```python
import torch

def _softmax(x, axis=-1):
    return torch.softmax(x, dim=axis)
def _gelu(x):
    return torch.nn.functional.gelu(x, approximate="tanh")
def _silu(x):
    return torch.nn.functional.silu(x)
def _sigmoid(x):
    return torch.sigmoid(x)
def _layernorm(x, axis=-1, eps=1e-5):
    m = x.mean(dim=axis, keepdim=True)
    v = x.var(dim=axis, keepdim=True, unbiased=False)
    return (x - m) / torch.sqrt(v + eps)
def _scatter_add(tgt, idx, src, axis=0):
    return tgt.clone().index_add_(axis, idx, src)
def _segment_sum(src, seg, n):
    out = torch.zeros((n,) + src.shape[1:], dtype=src.dtype)
    return out.index_add_(0, seg, src)
def _pad(x, pw):
    flat = tuple(v for pair in reversed(pw) for v in pair)
    return torch.nn.functional.pad(x, flat)

kernel_name = 'interleave_layers__linear_attn_block__dense_activation_silu__prompt'

def setup_inputs():

    _w = (lambda a: (lambda t: t.to(torch.bfloat16) if t.is_floating_point() else t)(torch.as_tensor(a)))
    def _A_setup():
        B, S, D = 1, 2048, 576
        return {
            "x": _w((lambda *s: torch.randn(*s, dtype=torch.bfloat16) * 0.05)(B, S, D)),
            "wqkv": _w((lambda *s: torch.randn(*s, dtype=torch.bfloat16) * 0.05)(D, 3 * D)),
            "wo": _w((lambda *s: torch.randn(*s, dtype=torch.bfloat16) * 0.05)(D, D)),
        }
    _A_in = _A_setup()

    def _B_setup():
        B, S, D, F = 1, 2048, 576, 4608
        return {
            "x": _w((lambda *s: torch.randn(*s, dtype=torch.bfloat16) * 0.05)(B, S, D)),
            "w1": _w((lambda *s: torch.randn(*s, dtype=torch.bfloat16) * 0.8)(D, F) * (D ** -0.5)),
            "w2": _w((lambda *s: torch.randn(*s, dtype=torch.bfloat16) * 0.8)(F, D) * (F ** -0.5)),
        }
    _B_in = _B_setup()

    return {
        "A_x": _A_in["x"],
        "A_wqkv": _A_in["wqkv"],
        "A_wo": _A_in["wo"],
        "B_x": _B_in["x"],
        "B_w1": _B_in["w1"],
        "B_w2": _B_in["w2"],
    }

def reference(A_x, A_wqkv, A_wo, B_x, B_w1, B_w2):
    def _A_ref(x, wqkv, wo):
        B, S, D = x.shape
        H = 32; Dh = D // H
        qkv = (lambda x, *d: x.permute(*d))((x @ wqkv).reshape(B, S, 3, H, Dh), 2, 0, 3, 1, 4)
        q, k, v = qkv[0], qkv[1], qkv[2]
        phi = lambda t: torch.where(t > 0, t + 1, torch.exp(t)) + 1e-6
        pq, pk = phi(q), phi(k)
        kv = torch.einsum("bhsd,bhse->bhde", pk, v)
        z = torch.einsum("bhsd->bhd", pk)
        num = torch.einsum("bhqd,bhde->bhqe", pq, kv)
        den = torch.einsum("bhqd,bhd->bhq", pq, z)[..., None] + 1e-6
        o = num / den
        return (lambda x, *d: x.permute(*d))(o, 0, 2, 1, 3).reshape(B, S, D) @ wo

    def _B_ref(x, w1, w2):
        h = torch.einsum("bsd,df->bsf", x, w1)
        h = _silu(h)
        out = torch.einsum("bsf,fd->bsd", h, w2)
        return out

    x = A_x
    x = x + _A_ref(_layernorm(x, axis=-1), A_wqkv, A_wo)
    x = x + _B_ref(_layernorm(x, axis=-1), B_w1, B_w2)
    x = x + _A_ref(_layernorm(x, axis=-1), A_wqkv, A_wo)
    x = x + _B_ref(_layernorm(x, axis=-1), B_w1, B_w2)
    return x
```

```python
import re

TRANS = ('v_exp_f32', 'v_log_f32', 'v_rcp_f32', 'v_rsq_f32', 'v_sqrt_f32', 'v_sin_f32', 'v_cos_f32')
REG_RE = re.compile(r'(?<![\w.])(?:([vsa])\[(\d+):(\d+)\]|([vsa])(\d+)(?![\w\[])|(vcc|exec|m0)(?:_lo|_hi)?(?!\w))')


def regs_of(text):
    out = []
    for m in REG_RE.finditer(text):
        if m.group(1):
            out += ['%s%d' % (m.group(1), i) for i in range(int(m.group(2)), int(m.group(3)) + 1)]
        elif m.group(4):
            out.append(m.group(4) + m.group(5))
        else:
            out.append(m.group(6))
    return out


class Ins:
    def __init__(self, text):
        self.text = text
        t = text.split(';')[0].strip()
        self.is_label = t.endswith(':')
        self.is_dir = t.startswith('.')
        self.op = ''
        self.dst = set(); self.src = set()
        self.srcA = self.srcB = self.srcC = set()
        self.data = set()
        if self.is_label or self.is_dir or not t:
            self.kind = 'none'
            self.label = t[:-1] if self.is_label else None
            return
        parts = t.split(None, 1)
        op = self.op = parts[0]
        rest = parts[1] if len(parts) > 1 else ''
        ops = [o.strip() for o in rest.split(',')]
        R = [regs_of(o) for o in ops]
        allr = set(r for x in R for r in x)
        self.target = None
        if op.startswith('v_mfma'):
            self.kind = 'mfma'
            self.passes = 4 if '16x16x32' in op or '16x16x16' in op else 8
            self.dst = set(R[0]); self.srcA = set(R[1]); self.srcB = set(R[2]); self.srcC = set(R[3])
            self.dlist = R[0]; self.clist = R[3]
            self.src = self.srcA | self.srcB | self.srcC
        elif op.startswith('v_'):
            self.kind = 'valu'
            base = op.replace('_e32', '').replace('_e64', '').replace('_dpp', '')
            self.base = base
            nd = 1
            if base in ('v_add_co_u32', 'v_addc_co_u32', 'v_sub_co_u32', 'v_subb_co_u32', 'v_mad_u64_u32', 'v_div_scale_f32'):
                nd = 2
            self.dst = set(r for x in R[:nd] for r in x)
            self.src = set(r for x in R[nd:] for r in x)
            if base in ('v_fmac_f32', 'v_dot2c_f32_bf16', 'v_writelane_b32', 'v_pk_fmac_f16') or 'dpp' in op or 'row_' in rest or 'quad_perm' in rest:
                self.src |= set(R[0])
            if base.startswith('v_permlane') or base == 'v_swap_b32':
                self.dst = allr; self.src = allr
            if base == 'v_nop':
                self.dst = set(); self.src = set()
            self.dpp = ('dpp' in op) or ('row_' in rest) or ('quad_perm' in rest) or ('wave_' in rest)
        elif op.startswith('buffer_') or op.startswith('global_') or op.startswith('flat_'):
            self.kind = 'vmem'
            toks = rest.split()
            if op in ('buffer_wbl2', 'buffer_inv'):
                pass
            elif 'lds' in toks or '_lds_' in op:
                self.src = allr | {'m0'}
            elif 'store' in op or ('atomic' in op and 'sc0' not in toks):
                self.src = allr
                self.data = set(R[0]) if op.startswith('buffer_') else set(R[1])
            elif 'atomic' in op:
                self.src = allr; self.dst = set(R[0])
            else:
                self.dst = set(R[0]); self.src = set(r for x in R[1:] for r in x)
        elif op.startswith('ds_'):
            self.kind = 'ds'
            if op.startswith('ds_write') or (op.startswith('ds_add') and 'rtn' not in op):
                self.src = allr
            else:
                self.dst = set(R[0]); self.src = set(r for x in R[1:] for r in x)
        elif op.startswith('s_'):
            self.kind = 'salu'
            if op == 's_nop':
                self.kind = 'nop'; self.n = int(rest, 0) + 1
            elif op in ('s_branch',) or op.startswith('s_cbranch'):
                self.kind = 'branch'; self.target = rest.strip()
            elif op in ('s_waitcnt', 's_barrier', 's_endpgm', 's_setprio', 's_sleep'):
                self.kind = 'misc'
            elif op.startswith('s_cmp') or op.startswith('s_bitcmp'):
                self.src = allr
            elif op.startswith('s_load') or op.startswith('s_buffer_load') or op in ('s_memtime', 's_memrealtime') or op.startswith('s_atomic'):
                self.kind = 'smem'
                self.dst = set(R[0]); self.src = set(r for x in R[1:] for r in x)
            else:
                self.dst = set(R[0]); self.src = set(r for x in R[1:] for r in x)
                if 'saveexec' in op:
                    self.dst |= {'exec'}; self.src |= {'exec'}
                if op in ('s_addk_i32', 's_mulk_i32'):
                    self.src |= set(R[0])
        else:
            raise ValueError('unknown instr: ' + text)

    def states(self):
        if self.kind == 'none':
            return 0
        if self.kind == 'nop':
            return self.n
        return 1


def isv(r):
    return r[0] == 'v' and r != 'vcc' or r[0] == 'a'


def need(p, c):
    n = 0
    if p.kind == 'valu':
        vd = set(r for r in p.dst if isv(r))
        sd = p.dst - vd
        if c.kind == 'mfma' and vd & c.src:
            n = max(n, 2)
        if c.kind == 'valu':
            if p.base in TRANS and c.base not in TRANS and vd & c.src:
                n = max(n, 1)
            if c.base in ('v_readfirstlane_b32', 'v_readlane_b32') and vd & c.src:
                n = max(n, 1)
            if (c.dpp or c.base.startswith('v_permlane')) and vd & c.src:
                n = max(n, 2)
            if sd & c.src:
                n = max(n, 4 if c.base in ('v_readlane_b32', 'v_writelane_b32') else 2)
            if p.base.startswith('v_dot') and vd & (c.src | c.dst):
                if not (c.base == p.base and p.base == 'v_dot2c_f32_bf16' and not (vd & (c.src - c.dst))):
                    n = max(n, 3)
        if c.kind in ('vmem', 'ds') and p.base.startswith('v_dot') and vd & c.src:
            n = max(n, 3)
        if c.kind == 'vmem' and sd & c.src:
            n = max(n, 5)
        if c.kind in ('salu', 'smem') and sd & c.src:
            n = max(n, 1)
    elif p.kind == 'mfma':
        big = 8 if p.passes == 4 else 12
        if c.kind == 'mfma':
            if p.dst & (c.srcA | c.srcB):
                n = max(n, big)
            if p.dst & c.srcC:
                if not (p.dlist == c.clist and p.passes == c.passes):
                    n = max(n, p.passes + 2)
            elif p.dst & c.dst:
                n = max(n, p.passes + 2)
        elif c.kind == 'valu':
            if p.dst & (c.src | c.dst):
                n = max(n, big)
            if p.srcC & c.dst:
                n = max(n, p.passes - 1)
        elif c.kind in ('vmem', 'ds'):
            if p.dst & (c.src | c.dst):
                n = max(n, big)
    elif p.kind == 'salu':
        if 'm0' in p.dst and c.kind == 'vmem' and 'm0' in c.src:
            n = max(n, 1)
    elif p.kind == 'vmem':
        if len(p.data) >= 3 and p.data & c.dst:
            n = max(n, 2 if c.kind in ('valu', 'mfma') else 1)
    return n


MAXW = 12


def deficit(prev, c):
    dist = 0
    d = 0
    for p in reversed(prev):
        if dist >= MAXW:
            break
        if p.kind != 'none':
            d = max(d, need(p, c) - dist)
        dist += p.states()
    return d


def fix_hazards(lines):
    ins = [Ins(l) for l in lines]
    changed = True
    while changed:
        changed = False
        out = []
        for c in ins:
            if c.kind not in ('none', 'nop'):
                prev = []
                for p in reversed(out[-40:]):
                    if p.op in ('s_branch', 's_endpgm'):
                        break
                    prev.append(p)
                prev.reverse()
                d = deficit(prev, c)
                if d > 0:
                    out.append(Ins('s_nop %d' % (d - 1)))
                    changed = True
            out.append(c)
        ins = out
        labels = {x.label: i for i, x in enumerate(ins) if x.is_label}
        for i, b in enumerate(ins):
            if b.kind == 'branch':
                t = labels[b.target]
                prev = []
                for p in reversed(ins[max(0, i - 40):i + 1]):
                    if p is not b and p.op in ('s_branch', 's_endpgm'):
                        break
                    prev.append(p)
                prev.reverse()
                seq = list(prev)
                dist = 0
                j = t
                bad = 0
                while j < len(ins) and dist < MAXW:
                    c = ins[j]
                    if c.kind not in ('none', 'nop'):
                        bad = max(bad, deficit(seq, c))
                    seq.append(c)
                    dist += c.states()
                    if c.op in ('s_branch', 's_endpgm'):
                        break
                    j += 1
                if bad > 0:
                    ins.insert(i, Ins('s_nop %d' % (bad - 1)))
                    changed = True
                    break
    return [x.text for x in ins]


class Asm:
    def __init__(self):
        self.lines = []

    def __call__(self, s):
        for l in s.split('\n'):
            l = l.strip()
            if l:
                self.lines.append(l)

    def label(self, name):
        self.lines.append(name + ':')

    def text(self):
        out = []
        for l in fix_hazards(self.lines):
            out.append(l if l.endswith(':') or l.startswith('.') else '    ' + l)
        return '\n'.join(out) + '\n'


def vr(a, n=1):
    return 'v%d' % a if n == 1 else 'v[%d:%d]' % (a, a + n - 1)


def sr(a, n=1):
    return 's%d' % a if n == 1 else 's[%d:%d]' % (a, a + n - 1)


def kernel_text(name, asm, nvgpr, nsgpr):
    body = asm.text()
    maxv = 0; maxs = 0
    for l in body.split('\n'):
        for r in regs_of(l.split(';')[0]):
            if r[0] == 'v' and r != 'vcc':
                maxv = max(maxv, int(r[1:]))
            elif r[0] == 's':
                maxs = max(maxs, int(r[1:]))
    assert maxv < nvgpr, (name, maxv, nvgpr)
    assert maxs < nsgpr, (name, maxs, nsgpr)
    code = '.text\n.globl %s\n.p2align 8\n.type %s,@function\n%s:\n%s' % (name, name, name, body)
    acc = (nvgpr + 3) // 4 * 4
    desc = ('.section .rodata,"a"\n.p2align 6\n.amdhsa_kernel %s\n'
            '  .amdhsa_next_free_vgpr %d\n  .amdhsa_next_free_sgpr %d\n  .amdhsa_accum_offset %d\n'
            '  .amdhsa_group_segment_fixed_size 0\n  .amdhsa_kernarg_size 72\n  .amdhsa_user_sgpr_count 2\n'
            '  .amdhsa_user_sgpr_kernarg_segment_ptr 1\n  .amdhsa_system_sgpr_workgroup_id_x 1\n'
            '  .amdhsa_float_denorm_mode_32 3\n'
            '.end_amdhsa_kernel\n') % (name, nvgpr, nsgpr, acc)
    return code, desc
```

```python
import sys
from asmlib import Asm, vr, sr, kernel_text

NAME = 'interleave_layers__linear_attn_block__dense_activation_silu__prompt'
S, D, F = 2048, 576, 4608
ACT = S * D * 2
WQ_HG = 313344
WQ = 0
WO = WQ + 8 * WQ_HG
W1 = WO + 36 * 18432
W2 = W1 + D * F * 2
X0 = W2 + D * F * 2
X1 = X0 + ACT
PQ = X1 + ACT
SS = PQ + ACT
HS = 1536
PART = SS + 32 * HS
WS_BYTES = 268435456
OOB = 0x80000000
LOG2E = 0x3fb8aa3b
NLOG2E = 0xbfb8aa3b
EPS6 = 0x358637bd
EPS5 = 0x3727c5ac
INV576 = 0x3ae38e39
ONES = 0x3f803f80
MF = 'v_mfma_f32_16x16x32_bf16'


def mfma(a, d, x, y, c=None):
    a('%s %s, %s, %s, %s' % (MF, vr(d, 4), vr(x, 4), vr(y, 4), '0' if c is None else vr(c, 4)))


def ws_srd(a):
    a('s_load_dwordx2 s[8:9], s[0:1], 64')
    a('s_mov_b32 s10, 0x%x' % WS_BYTES)
    a('s_mov_b32 s11, 0x20000')


def wave_id(a, sdst, vtmp):
    a('v_lshrrev_b32 %s, 6, v0' % vr(vtmp))
    a('v_readfirstlane_b32 %s, %s' % (sr(sdst), vr(vtmp)))
    a('v_and_b32 v0, 63, v0')


def gen_prep():
    a = Asm()
    NW = 187; NX = 64; NZ = 3
    a('s_cmp_ge_u32 s2, %d' % (NW + NX + NZ))
    a('s_cbranch_scc1 prep_end')
    ws_srd(a)
    a('s_load_dwordx2 s[24:25], s[0:1], 0')
    a('s_load_dwordx2 s[26:27], s[0:1], 8')
    a('s_load_dwordx2 s[28:29], s[0:1], 16')
    a('s_load_dwordx2 s[30:31], s[0:1], 32')
    a('s_load_dwordx2 s[32:33], s[0:1], 40')
    wave_id(a, 3, 1)
    a('v_and_b32 v2, 15, v0')
    a('v_lshrrev_b32 v3, 4, v0')
    a('v_lshlrev_b32 v4, 4, v0')
    a('s_lshl_b32 s4, s2, 2')
    a('s_add_u32 s20, s4, s3')
    a('s_mov_b32 s15, 0x20000')
    a('s_waitcnt lgkmcnt(0)')
    a('s_cmp_ge_u32 s2, %d' % (NW + NX))
    a('s_cbranch_scc1 prep_zero')
    a('s_cmp_ge_u32 s2, %d' % NW)
    a('s_cbranch_scc1 prep_x')
    a('v_lshrrev_b32 v5, 2, v2')
    a('v_and_b32 v6, 3, v2')
    a('v_lshl_add_u32 v7, v5, 3, v6')
    a('s_cmp_ge_u32 s20, 712')
    a('s_cbranch_scc1 prep_wo')
    a('s_cmp_ge_u32 s20, 576')
    a('s_cbranch_scc1 prep_wq')
    a('s_cmp_ge_u32 s20, 288')
    a('s_cbranch_scc1 prep_w2')
    a('s_mov_b32 s12, s30\ns_mov_b32 s13, s31\ns_mov_b32 s14, %d' % (D * F * 2))
    a('s_mov_b32 s21, s20')
    a('s_mov_b32 s22, s20')
    a('s_mov_b32 s16, %d' % W1)
    a('s_mov_b32 s18, 9216\ns_mov_b32 s19, 0\ns_mov_b32 s23, 1')
    a('s_branch prep_w12')
    a.label('prep_w2')
    a('s_mov_b32 s12, s32\ns_mov_b32 s13, s33\ns_mov_b32 s14, %d' % (D * F * 2))
    a('s_sub_u32 s21, s20, 288')
    a('s_mul_i32 s4, s21, 1821\ns_lshr_b32 s4, s4, 16')
    a('s_mul_i32 s5, s4, 36\ns_sub_u32 s22, s21, s5')
    a('s_mov_b32 s16, %d' % W2)
    a('s_mov_b32 s18, 1152\ns_mul_i32 s19, s4, %d\ns_mov_b32 s23, 0' % (576 * 1152))
    a.label('prep_w12')
    a('s_mul_i32 s4, s21, 43691\ns_lshr_b32 s4, s4, 17')
    a('s_mul_i32 s5, s4, 3\ns_sub_u32 s5, s21, s5')
    a('s_mul_i32 s4, s4, 54\ns_add_u32 s4, s4, s5\ns_lshl_b32 s4, s4, 10')
    a('s_add_u32 s16, s16, s4')
    a('s_mov_b32 s17, 3072')
    a('s_lshr_b32 s4, s22, 1\ns_lshl_b32 s4, s4, 5\ns_and_b32 s5, s22, 1\ns_lshl_b32 s5, s5, 2\ns_add_u32 s4, s4, s5')
    a('v_add_u32 v8, s4, v7')
    a('s_mov_b64 s[6:7], -1')
    a('s_branch prep_std')
    a.label('prep_wq')
    a('s_mov_b32 s12, s26\ns_mov_b32 s13, s27\ns_mov_b32 s14, %d' % (D * 3 * D * 2))
    a('s_mov_b32 s18, 3456\ns_mov_b32 s19, 0\ns_mov_b32 s23, 1')
    a('s_sub_u32 s21, s20, 576')
    a('s_mul_i32 s4, s21, 3856\ns_lshr_b32 s4, s4, 16')
    a('s_mul_i32 s5, s4, 17\ns_sub_u32 s5, s21, s5')
    a('s_mul_i32 s16, s4, %d' % WQ_HG)
    a('s_add_u32 s16, s16, %d' % WQ)
    a('s_mul_i32 s34, s4, 72')
    a('s_mov_b64 s[6:7], -1')
    a('s_cmp_eq_u32 s5, 16')
    a('s_cbranch_scc1 prep_wq_qx')
    a('s_cmp_ge_u32 s5, 12')
    a('s_cbranch_scc1 prep_wq_qm')
    a('s_mul_i32 s35, s5, 43691\ns_lshr_b32 s35, s35, 17')
    a('s_mul_i32 s36, s35, 3\ns_sub_u32 s36, s5, s36')
    a('s_mul_i32 s37, s35, 54\ns_add_u32 s37, s37, s36\ns_lshl_b32 s37, s37, 10')
    a('s_add_u32 s16, s16, s37')
    a('s_mov_b32 s17, 3072')
    a('s_mul_i32 s35, s35, 18\ns_add_u32 s34, s34, s35')
    a('s_cmp_eq_u32 s36, 2')
    a('s_cbranch_scc1 prep_wq_x')
    a('s_add_u32 s36, s36, 1\ns_mul_i32 s36, s36, 576\ns_add_u32 s34, s34, s36')
    a('v_add_u32 v8, s34, v2')
    a('s_branch prep_std')
    a.label('prep_wq_x')
    a('s_add_u32 s34, s34, %d' % (1152 + 16))
    a('v_and_b32 v9, 1, v2')
    a('v_mul_u32_u24 v9, 576, v9')
    a('v_add_u32 v8, s34, v5')
    a('v_sub_u32 v8, v8, v9')
    a('s_mov_b32 s6, 0x00330033\ns_mov_b32 s7, 0x00330033')
    a('s_branch prep_std')
    a.label('prep_wq_qm')
    a('s_sub_u32 s35, s5, 12')
    a('s_mul_i32 s36, s35, 18432\ns_add_u32 s16, s16, s36\ns_add_u32 s16, s16, 221184')
    a('s_mov_b32 s17, 1024')
    a('s_mul_i32 s35, s35, 18\ns_add_u32 s34, s34, s35')
    a('v_add_u32 v8, s34, v2')
    a('s_branch prep_std')
    a.label('prep_wq_qx')
    a('s_add_u32 s16, s16, 294912')
    a('s_mov_b32 s17, 1024')
    a('s_add_u32 s34, s34, 16')
    a('v_mul_u32_u24 v9, 18, v5')
    a('v_add3_u32 v8, v9, v6, s34')
    a('s_mov_b32 s6, 0x33333333\ns_mov_b32 s7, 0x33333333')
    V = 16
    a.label('prep_std')
    a('s_lshl_b32 s4, s18, 3')
    a('v_mul_lo_u32 v9, v3, s4')
    a('v_lshl_add_u32 v9, v8, 1, v9')
    a('v_mov_b32 v10, 0x%x' % OOB)
    a('v_cndmask_b32 v9, v10, v9, s[6:7]')
    a('s_mul_i32 s5, s18, 25')
    n = 0
    for ks in range(18):
        for i in range(8):
            if n >= 56 and n % 8 == 0:
                a('s_waitcnt vmcnt(48)')
            a('buffer_load_ushort %s, v9, s[12:15], s19 offen' % vr(V + ks * 8 + i))
            a('s_add_u32 s19, s19, %s' % ('s18' if i < 7 else 's5'))
            n += 1
    a('s_branch prep_fin')
    a.label('prep_wo')
    a('s_mov_b32 s12, s28\ns_mov_b32 s13, s29\ns_mov_b32 s14, %d' % (D * D * 2))
    a('s_sub_u32 s22, s20, 712')
    a('s_mul_i32 s16, s22, 18432\ns_add_u32 s16, s16, %d' % WO)
    a('s_mov_b32 s17, 1024\ns_mov_b32 s23, 0')
    a('s_lshr_b32 s4, s22, 1\ns_lshl_b32 s4, s4, 5\ns_and_b32 s5, s22, 1\ns_lshl_b32 s5, s5, 2\ns_add_u32 s4, s4, s5')
    a('v_add_u32 v8, s4, v7')
    a('v_mul_u32_u24 v9, %d, v3' % (4 * 1152))
    a('v_lshl_add_u32 v9, v8, 1, v9')
    a('v_mul_u32_u24 v10, %d, v3' % (18 * 1152))
    a('v_lshl_add_u32 v10, v8, 1, v10')
    n = 0
    for ks in range(18):
        for i in range(8):
            if n >= 56 and n % 8 == 0:
                a('s_waitcnt vmcnt(48)')
            if ks < 16:
                row = 36 * ks + 18 * (i >> 2) + (i & 3); va = 9
            else:
                row = 288 * (ks - 16) + 72 * (i >> 1) + 16 + (i & 1); va = 10
            a('s_mov_b32 s19, %d' % (row * 1152))
            a('buffer_load_ushort %s, v%d, s[12:15], s19 offen' % (vr(V + ks * 8 + i), va))
            n += 1
    a.label('prep_fin')
    a('s_waitcnt vmcnt(0)')
    for k in range(144):
        a('v_lshlrev_b32 %s, 16, %s' % (vr(V + k), vr(V + k)))
    a('s_cmp_eq_u32 s23, 0')
    a('s_cbranch_scc1 prep_pack')
    for k in range(4):
        a('v_add_f32 v%d, %s, %s' % (11 + k, vr(V + k), vr(V + 4 + k)))
    for k in range(8, 144):
        a('v_add_f32 v%d, v%d, %s' % (11 + k % 4, 11 + k % 4, vr(V + k)))
    a('v_add_f32 v11, v11, v12\nv_add_f32 v13, v13, v14\nv_add_f32 v11, v11, v13')
    a('v_mov_b32 v12, v11')
    a('v_permlane32_swap_b32 v11, v12')
    a('v_add_f32 v11, v11, v12')
    a('v_mov_b32 v12, v11')
    a('v_permlane16_swap_b32 v11, v12')
    a('v_add_f32 v11, v11, v12')
    a('v_mul_f32 v11, 0x%x, v11' % INV576)
    for k in range(144):
        a('v_sub_f32 %s, %s, v11' % (vr(V + k), vr(V + k)))
    a.label('prep_pack')
    for ks in range(18):
        b = V + ks * 8
        for p in range(4):
            a('v_cvt_pk_bf16_f32 %s, %s, %s' % (vr(b + p), vr(b + 2 * p), vr(b + 2 * p + 1)))
        a('buffer_store_dwordx4 %s, v4, s[8:11], s16 offen' % vr(b, 4))
        a('s_add_u32 s16, s16, s17')
    a('s_endpgm')
    a.label('prep_x')
    a('s_mov_b32 s12, s24\ns_mov_b32 s13, s25\ns_mov_b32 s14, %d' % ACT)
    a('s_sub_u32 s20, s20, %d' % (NW * 4))
    a('s_lshr_b32 s4, s20, 1\ns_and_b32 s5, s20, 1')
    a('s_mul_i32 s19, s4, %d' % (16 * 1152))
    a('s_mul_i32 s6, s5, %d\ns_add_u32 s19, s19, s6' % (9 * 64))
    a('v_mul_u32_u24 v9, 1152, v2')
    a('v_lshl_add_u32 v9, v3, 4, v9')
    a('s_mul_i32 s16, s20, %d\ns_add_u32 s16, s16, %d' % (9 * 1024, X0))
    for k in range(9):
        a('buffer_load_dwordx4 %s, v9, s[12:15], s19 offen offset:%d' % (vr(V + 4 * k, 4), 64 * k))
    for k in range(9):
        a('s_waitcnt vmcnt(8)')
        a('buffer_store_dwordx4 %s, v4, s[8:11], s16 offen' % vr(V + 4 * k, 4))
        a('s_add_u32 s16, s16, 1024')
    a('s_endpgm')
    a.label('prep_zero')
    a('s_sub_u32 s20, s20, %d' % ((NW + NX) * 4))
    a('s_lshl_b32 s16, s20, 12\ns_add_u32 s16, s16, %d' % SS)
    for k in range(4):
        a('v_mov_b32 v%d, 0' % (V + k))
    for k in range(4):
        a('buffer_store_dwordx4 %s, v4, s[8:11], s16 offen offset:%d' % (vr(V, 4), 1024 * k))
    a.label('prep_end')
    a('s_endpgm')
    return ('prep_kernel', a, 160, 40, (NW + NX + NZ, 256, 0))


def x_dma(a, nk, s_g, s_l, v_l16):
    for k in range(nk):
        a('s_mov_b32 m0, %s' % sr(s_l))
        if k < nk - 1:
            a('s_add_u32 %s, %s, 4096' % (sr(s_l), sr(s_l)))
        else:
            a('s_nop 0')
        a('buffer_load_dwordx4 %s, s[8:11], %s offen lds' % (vr(v_l16), sr(s_g)))
        if k < nk - 1:
            a('s_add_u32 %s, %s, 1024' % (sr(s_g), sr(s_g)))


def stats_prepass(a, nk, v_addr, v_fr, v_ones, v_res, v_t, v_g, v_tmp, v_dst):
    for k in range(nk):
        a('ds_read_b128 %s, %s offset:%d' % (vr(v_fr + 4 * k, 4), vr(v_addr), 4096 * k))
    for k in range(4):
        a('v_mov_b32 %s, 0x%x' % (vr(v_ones + k), ONES))
    for k in range(nk):
        a('s_waitcnt lgkmcnt(%d)' % (nk - 1 - k))
        f = v_fr + 4 * k
        mfma(a, v_res, v_ones, f, None if k == 0 else v_res)
        mfma(a, v_res + 4, f, f, None if k == 0 else v_res + 4)
    a('s_mov_b32 s40, 0x22222222\ns_mov_b32 s41, 0x22222222')
    a('s_mov_b32 s42, 0x44444444\ns_mov_b32 s43, 0x44444444')
    a('s_mov_b32 s44, 0x88888888\ns_mov_b32 s45, 0x88888888')
    a('v_cndmask_b32 %s, %s, %s, s[40:41]' % (vr(v_res + 1), vr(v_res + 4), vr(v_res + 5)))
    a('v_cndmask_b32 %s, %s, %s, s[42:43]' % (vr(v_res + 1), vr(v_res + 1), vr(v_res + 6)))
    a('v_cndmask_b32 %s, %s, %s, s[44:45]' % (vr(v_res + 1), vr(v_res + 1), vr(v_res + 7)))
    a('s_mov_b32 exec_lo, 0x00f0000f\ns_mov_b32 exec_hi, 0xf0000f00')
    a('ds_write_b64 %s, %s' % (vr(v_dst), vr(v_res, 2)))
    a('s_mov_b64 exec, -1')


def stats_final(a, nparts, lds_stats, v_lane, v_tmp):
    a('v_lshlrev_b32 %s, 3, %s' % (vr(v_tmp + 6), vr(v_lane)))
    for p in range(nparts):
        a('ds_read_b64 %s, %s offset:%d' % (vr(v_tmp + 2 * p, 2), vr(v_tmp + 6), p * 512))
    a('s_waitcnt lgkmcnt(0)')
    for p in range(1, nparts):
        a('v_add_f32 %s, %s, %s' % (vr(v_tmp), vr(v_tmp), vr(v_tmp + 2 * p)))
        a('v_add_f32 %s, %s, %s' % (vr(v_tmp + 1), vr(v_tmp + 1), vr(v_tmp + 2 * p + 1)))
    a('v_mul_f32 %s, 0x%x, %s' % (vr(v_tmp), INV576, vr(v_tmp)))
    a('v_mul_f32 %s, 0x%x, %s' % (vr(v_tmp + 1), INV576, vr(v_tmp + 1)))
    a('v_fma_f32 %s, -%s, %s, %s' % (vr(v_tmp + 1), vr(v_tmp), vr(v_tmp), vr(v_tmp + 1)))
    a('v_max_f32 %s, 0, %s' % (vr(v_tmp + 1), vr(v_tmp + 1)))
    a('v_add_f32 %s, 0x%x, %s' % (vr(v_tmp + 1), EPS5, vr(v_tmp + 1)))
    a('v_rsq_f32 %s, %s' % (vr(v_tmp), vr(v_tmp + 1)))


def gen_p3():
    a = Asm()
    XI = 2048; HI = XI + 73728; ST = 0
    LDS = HI + 73728
    ACC = 0 + 4; RING = ACC + 48; BF = RING + 72; RS = BF + 32
    VA = RS + 4; VB = VA + 1; VT = VB + 1
    L16 = 1
    assert ACC % 4 == 0
    acc = lambda j, tt: ACC + (j * 4 + tt) * 4
    ring = lambda k, j: RING + (k * 3 + j) * 4
    bf = lambda p, tt: BF + (p * 4 + tt) * 4
    a('s_cmp_ge_u32 s2, 256')
    a('s_cbranch_scc1 p3_end')
    ws_srd(a)
    wave_id(a, 12, 1)
    a('v_lshlrev_b32 v1, 4, v0')
    a('v_and_b32 v2, 15, v0')
    a('v_lshrrev_b32 v3, 4, v0')
    a('s_and_b32 s13, s2, 7\ns_lshr_b32 s14, s2, 3')
    a('s_mul_i32 s4, s14, 21846\ns_lshr_b32 s4, s4, 16\ns_mul_i32 s4, s4, 3\ns_sub_u32 s19, s14, s4')
    a('s_mul_i32 s16, s13, 12\ns_add_u32 s16, s16, s12\ns_mul_i32 s16, s16, 55296\ns_add_u32 s16, s16, %d' % W1)
    a('s_and_b32 s20, s12, 3\ns_lshr_b32 s21, s12, 2')
    a('s_lshl_b32 s4, s14, 2\ns_add_u32 s4, s4, s20\ns_mul_i32 s4, s4, 18\ns_mul_i32 s5, s21, 6\ns_add_u32 s4, s4, s5')
    a('s_lshl_b32 s4, s4, 10\ns_add_u32 s22, s4, %d' % X1)
    a('s_mul_i32 s5, s21, 24\ns_add_u32 s5, s5, s20\ns_lshl_b32 s5, s5, 10\ns_add_u32 s23, s5, %d' % XI)
    a('v_add_u32 %s, s23, v1' % vr(VA))
    a('s_mul_i32 s15, s19, 18432\ns_add_u32 s15, s15, s16')
    a('s_lshl_b32 s4, s21, 2\ns_add_u32 s4, s4, s20\ns_lshl_b32 s4, s4, 7')
    a('v_lshl_add_u32 %s, v2, 3, s4' % vr(VB))
    if PRIO:
        a('s_cmp_eq_u32 s21, 0\ns_cbranch_scc0 p3_pr1\ns_setprio 2\ns_branch p3_pr2')
        a.label('p3_pr1')
        a('s_cmp_eq_u32 s21, 1\ns_cbranch_scc0 p3_pr2\ns_setprio 1')
        a.label('p3_pr2')
    a('s_waitcnt lgkmcnt(0)')
    x_dma(a, 6, 22, 23, L16)
    for k in range(6):
        for j in range(3):
            a('buffer_load_dwordx4 %s, v1, s[8:11], s15 offen offset:%d' % (vr(ring(k, j), 4), 1024 * j))
        a('s_add_u32 s15, s15, 3072')
    a('s_waitcnt vmcnt(18)')
    stats_prepass(a, 6, VA, BF, BF + 24, ACC, 2, 3, VT, VB)
    a('s_waitcnt lgkmcnt(0)')
    a('s_barrier')
    stats_final(a, 3, ST, 0, BF + 16)
    a('s_mul_i32 s4, s19, 24576\ns_add_u32 s24, s4, %d' % XI)
    a('v_add_u32 %s, s24, v1' % vr(VA))
    a('v_lshlrev_b32 %s, 2, v2' % vr(VT))
    for tt in range(4):
        a('ds_bpermute_b32 %s, %s, %s offset:%d' % (vr(RS + tt), vr(VT), vr(BF + 16), 64 * tt))
    for tt in range(4):
        a('ds_read_b128 %s, %s offset:%d' % (vr(bf(0, tt), 4), vr(VA), 1024 * tt))
    for k in range(48):
        a('v_mov_b32 %s, 0' % vr(ACC + k))
    a('s_mov_b32 s17, s19')
    a('s_mov_b32 s18, 0')
    a('s_mov_b32 s25, %d' % XI)

    def body(refill):
        for k in range(6):
            last = (k == 5)
            if not (last and not refill):
                for tt in range(4):
                    if not last:
                        a('ds_read_b128 %s, %s offset:%d' % (vr(bf((k + 1) & 1, tt), 4), vr(VA), 4096 * (k + 1) + 1024 * tt))
                    else:
                        a('ds_read_b128 %s, %s offset:%d' % (vr(bf(0, tt), 4), vr(VB), 1024 * tt))
                lg = 4
            else:
                lg = 0
            for j in range(3):
                vm = 17 if refill else 17 - (k * 3 + j)
                if j == 0:
                    a('s_waitcnt vmcnt(%d) lgkmcnt(%d)' % (vm, lg))
                else:
                    a('s_waitcnt vmcnt(%d)' % vm)
                for tt in range(4):
                    mfma(a, acc(j, tt), ring(k, j), bf(k & 1, tt), acc(j, tt))
                if refill:
                    a('buffer_load_dwordx4 %s, v1, s[8:11], s15 offen offset:%d' % (vr(ring(k, j), 4), 1024 * j))
            if refill and not last:
                a('s_add_u32 s15, s15, 3072')

    a.label('p3_loop')
    a('s_add_u32 s17, s17, 1\ns_cmp_eq_u32 s17, 3\ns_cselect_b32 s17, 0, s17')
    a('s_cmp_eq_u32 s18, 2\ns_cselect_b32 s4, %d, 0\ns_add_u32 s16, s16, s4' % (W2 - W1))
    a('s_mul_i32 s15, s17, 18432\ns_add_u32 s15, s15, s16')
    a('s_mul_i32 s4, s17, 24576\ns_add_u32 s4, s4, s25')
    a('v_add_u32 %s, s4, v1' % vr(VB))
    body(True)
    a('v_mov_b32 %s, %s' % (vr(VA), vr(VB)))
    a('s_add_u32 s18, s18, 1')
    a('s_cmp_eq_u32 s18, 5')
    a('s_cbranch_scc1 p3_final')
    a('s_cmp_lg_u32 s18, 3')
    a('s_cbranch_scc1 p3_loop')
    a('s_waitcnt lgkmcnt(0)')
    C = BF + 28
    for tt in range(4):
        a('v_mul_f32 %s, 0x%x, %s' % (vr(C + tt), NLOG2E, vr(RS + tt)))
    T = BF
    for j in range(3):
        a('s_mul_i32 s4, s12, 3\ns_add_u32 s4, s4, %d' % j)
        a('s_lshr_b32 s5, s4, 1\ns_lshl_b32 s5, s5, 12\ns_and_b32 s4, s4, 1\ns_lshl_b32 s4, s4, 3')
        a('s_add_u32 s4, s4, s5\ns_add_u32 s4, s4, %d' % HI)
        a('v_add_u32 %s, s4, v1' % vr(VT))
        for tp in range(2):
            idx = [(tt, r) for tt in (2 * tp, 2 * tp + 1) for r in range(4)]
            for n, (tt, r) in enumerate(idx):
                a('v_mul_f32 %s, %s, %s' % (vr(T + n), vr(acc(j, tt) + r), vr(C + tt)))
            for n in range(8):
                a('v_exp_f32 %s, %s' % (vr(T + n), vr(T + n)))
            for n in range(8):
                a('v_add_f32 %s, 1.0, %s' % (vr(T + n), vr(T + n)))
            for n in range(8):
                a('v_rcp_f32 %s, %s' % (vr(T + n), vr(T + n)))
            for n, (tt, r) in enumerate(idx):
                a('v_mul_f32 %s, %s, %s' % (vr(T + n), vr(acc(j, tt) + r), vr(T + n)))
            P = BF + 8 + 4 * ((j * 2 + tp) % 4)
            for n in range(4):
                a('v_cvt_pk_bf16_f32 %s, %s, %s' % (vr(P + n), vr(T + 2 * n), vr(T + 2 * n + 1)))
            a('ds_write_b64 %s, %s offset:%d' % (vr(VT), vr(P, 2), 1024 * (2 * tp)))
            a('ds_write_b64 %s, %s offset:%d' % (vr(VT), vr(P + 2, 2), 1024 * (2 * tp + 1)))
    for k in range(48):
        a('v_mov_b32 %s, 0' % vr(ACC + k))
    a('s_mov_b32 s25, %d' % HI)
    a('v_add_u32 %s, %d, %s' % (vr(VA), HI - XI, vr(VA)))
    a('s_waitcnt lgkmcnt(0)')
    a('s_barrier')
    for tt in range(4):
        a('ds_read_b128 %s, %s offset:%d' % (vr(bf(0, tt), 4), vr(VA), 1024 * tt))
    a('s_branch p3_loop')
    a.label('p3_final')
    body(False)
    a('s_lshl_b32 s4, s13, 6\ns_lshl_b32 s5, s14, 1\ns_add_u32 s4, s4, s5\ns_mul_i32 s4, s4, 36')
    a('s_mul_i32 s5, s12, 3\ns_add_u32 s4, s4, s5\ns_lshl_b32 s4, s4, 10\ns_add_u32 s4, s4, %d' % PART)
    a('s_add_u32 s5, s4, %d' % (36 * 1024))
    for j in range(3):
        for tp in range(2):
            P = BF + 4 * (j * 2 + tp)
            for n, tt in enumerate((2 * tp, 2 * tp + 1)):
                for r in range(4):
                    a('v_mul_f32 %s, %s, %s' % (vr(acc(j, tt) + r), vr(acc(j, tt) + r), vr(RS + tt)))
                a('v_cvt_pk_bf16_f32 %s, %s, %s' % (vr(P + 2 * n), vr(acc(j, tt)), vr(acc(j, tt) + 1)))
                a('v_cvt_pk_bf16_f32 %s, %s, %s' % (vr(P + 2 * n + 1), vr(acc(j, tt) + 2), vr(acc(j, tt) + 3)))
            a('buffer_store_dwordx4 %s, v1, s[8:11], s%d offen offset:%d' % (vr(P, 4), 4 + tp, 1024 * j))
    a('s_cmp_lt_u32 s2, 48\ns_cbranch_scc0 p3_end')
    a('s_cmp_eq_u32 s12, 0\ns_cbranch_scc0 p3_end')
    for k in range(4):
        a('v_mov_b32 %s, 0' % vr(RING + k))
    a('s_lshl_b32 s4, s2, 10\ns_add_u32 s4, s4, %d' % SS)
    a('buffer_store_dwordx4 %s, v1, s[8:11], s4 offen' % vr(RING, 4))
    a.label('p3_end')
    a('s_endpgm')
    return ('p3_kernel', a, 168, 48, (256, 768, LDS))


def phi(a, dst, src, scale, scale2, t0, t1):
    a('v_mul_f32 %s, %s, %s' % (vr(t0), vr(src), vr(scale2)))
    a('v_mul_f32 %s, %s, %s' % (vr(t1), vr(src), vr(scale)))
    a('v_min_f32 %s, 0, %s' % (vr(t0), vr(t0)))
    a('v_max_f32 %s, 0, %s' % (vr(t1), vr(t1)))
    a('v_exp_f32 %s, %s' % (vr(t0), vr(t0)))
    a('v_add_f32 %s, 0x%x, %s' % (vr(t1), EPS6, vr(t1)))
    a('v_add_f32 %s, %s, %s' % (vr(dst), vr(t0), vr(t1)))


def gen_p1():
    a = Asm()
    ST = 0; RSL = 1024; XI = 2048
    LDS = XI + 73728
    ACC = 8; RING = ACC + 48; BF = RING + 144
    VA = 4; VB = 5; VT = 6; VQ = 7
    a('s_cmp_ge_u32 s2, 256')
    a('s_cbranch_scc1 p1_end')
    ws_srd(a)
    wave_id(a, 12, 1)
    a('v_lshlrev_b32 v1, 4, v0')
    a('v_and_b32 v2, 15, v0')
    a('v_lshrrev_b32 v3, 4, v0')
    a('s_and_b32 s13, s2, 7\ns_lshr_b32 s14, s2, 3')
    a('s_and_b32 s20, s12, 3\ns_lshr_b32 s21, s12, 2')
    a('s_lshl_b32 s4, s14, 2\ns_add_u32 s4, s4, s20\ns_mul_i32 s4, s4, 18\ns_mul_i32 s5, s21, 9\ns_add_u32 s4, s4, s5')
    a('s_lshl_b32 s4, s4, 10\ns_add_u32 s22, s4, %d' % X0)
    a('s_mul_i32 s5, s21, 36\ns_add_u32 s5, s5, s20\ns_lshl_b32 s5, s5, 10\ns_add_u32 s23, s5, %d' % XI)
    a('v_add_u32 %s, s23, v1' % vr(VA))
    a('s_lshl_b32 s4, s21, 2\ns_add_u32 s4, s4, s20\ns_lshl_b32 s4, s4, 7')
    a('v_lshl_add_u32 %s, v2, 3, s4' % vr(VB))
    a('s_mul_i32 s16, s13, %d\ns_add_u32 s16, s16, %d' % (WQ_HG, WQ))
    a('s_waitcnt lgkmcnt(0)')
    x_dma(a, 9, 22, 23, 1)
    a('s_cmp_eq_u32 s21, 0')
    a('s_cbranch_scc0 p1_ldq')
    a('s_mul_i32 s15, s20, 55296\ns_add_u32 s15, s15, s16')
    ring = lambda k, j: RING + ((k % 12) * 3 + j) * 4
    for k in range(12):
        for j in range(3):
            a('buffer_load_dwordx4 %s, v1, s[8:11], s15 offen offset:%d' % (vr(ring(k, j), 4), 1024 * j))
        a('s_add_u32 s15, s15, 3072')
    a('s_branch p1_ldd')
    a.label('p1_ldq')
    qw = lambda k, j: RING + (k * 2 + j) * 4
    a('s_mul_i32 s15, s20, 18432\ns_add_u32 s15, s15, s16\ns_add_u32 s15, s15, 221184')
    a('s_add_u32 s17, s16, 294912')
    for k in range(18):
        a('buffer_load_dwordx4 %s, v1, s[8:11], s15 offen offset:%d' % (vr(qw(k, 0), 4), 1024 * (k % 4)))
        a('buffer_load_dwordx4 %s, v1, s[8:11], s17 offen offset:%d' % (vr(qw(k, 1), 4), 1024 * (k % 4)))
        if k % 4 == 3:
            a('s_add_u32 s15, s15, 4096\ns_add_u32 s17, s17, 4096')
    a.label('p1_ldd')
    a('s_waitcnt vmcnt(36)')
    stats_prepass(a, 9, VA, BF, BF + 36, ACC, 2, 3, VT, VB)
    a('s_waitcnt lgkmcnt(0)')
    a('s_barrier')
    a('v_add_u32 %s, %d, v1' % (vr(VA), XI))
    a('v_add_u32 %s, %d, v1' % (vr(VB), XI + 9 * 4096))
    xaddr = lambda k, tt: (VA, 4096 * k + 1024 * tt) if k < 9 else (VB, 4096 * (k - 9) + 1024 * tt)
    a('s_cmp_eq_u32 s21, 0')
    a('s_cbranch_scc0 p1_q')
    acc = lambda j, tt: ACC + (j * 4 + tt) * 4
    bf = lambda p, tt: BF + (p * 4 + tt) * 4
    for tt in range(4):
        v, o = xaddr(0, tt)
        a('ds_read_b128 %s, %s offset:%d' % (vr(bf(0, tt), 4), vr(v), o))
    outstanding = 36
    for k in range(18):
        lg = 0
        if k < 17:
            for tt in range(4):
                v, o = xaddr(k + 1, tt)
                a('ds_read_b128 %s, %s offset:%d' % (vr(bf((k + 1) & 1, tt), 4), vr(v), o))
            lg = 4
        for j in range(3):
            outstanding -= 1
            a('s_waitcnt vmcnt(%d)%s' % (outstanding, ' lgkmcnt(%d)' % lg if j == 0 else ''))
            for tt in range(4):
                mfma(a, acc(j, tt), bf(k & 1, tt), ring(k, j), None if k == 0 else acc(j, tt))
            if k < 6:
                a('buffer_load_dwordx4 %s, v1, s[8:11], s15 offen offset:%d' % (vr(ring(k, j), 4), 1024 * j))
                outstanding += 1
        if k < 6:
            a('s_add_u32 s15, s15, 3072')
    RS = RING; RS2 = RING + 16; TMP = RING + 32
    stats_final(a, 2, ST, 0, TMP)
    a('v_lshlrev_b32 %s, 2, v0' % vr(VT))
    a('ds_write_b32 %s, %s offset:%d' % (vr(VT), vr(TMP), RSL))
    a('v_lshlrev_b32 %s, 4, v3' % vr(VT))
    a('s_waitcnt lgkmcnt(0)')
    for tt in range(4):
        a('ds_read_b128 %s, %s offset:%d' % (vr(RS + 4 * tt, 4), vr(VT), RSL + 64 * tt))
    a('s_waitcnt lgkmcnt(0)')
    for n in range(16):
        a('v_mul_f32 %s, 0x%x, %s' % (vr(RS2 + n), LOG2E, vr(RS + n)))
    a('s_mov_b32 s40, 0x00220022\ns_mov_b32 s41, 0x00220022')
    a('s_mov_b32 s42, 0x01000100\ns_mov_b32 s43, 0x01000100')
    FK = TMP + 16; FV = FK + 8; FX = FV + 8
    for tt in range(4):
        for r in range(4):
            n = tt * 4 + r
            phi(a, acc(0, tt) + r, acc(0, tt) + r, RS + n, RS2 + n, TMP + (2 * r) % 8, TMP + (2 * r + 1) % 8)
            a('v_mul_f32 %s, %s, %s' % (vr(acc(1, tt) + r), vr(acc(1, tt) + r), vr(RS + n)))
            phi(a, TMP + 8 + r, acc(2, tt) + r, RS + n, RS2 + n, TMP + (2 * r) % 8, TMP + (2 * r + 1) % 8)
            a('v_mul_f32 %s, %s, %s' % (vr(acc(2, tt) + r), vr(acc(2, tt) + r), vr(RS + n)))
            a('v_cndmask_b32 %s, %s, %s, s[40:41]' % (vr(acc(2, tt) + r), vr(acc(2, tt) + r), vr(TMP + 8 + r)))
            a('v_cndmask_b32 %s, %s, 1.0, s[42:43]' % (vr(acc(2, tt) + r), vr(acc(2, tt) + r)))
        for j, Fb in enumerate((FK, FV, FX)):
            d = Fb + 2 * tt
            a('v_cvt_pk_bf16_f32 %s, %s, %s' % (vr(d), vr(acc(j, tt)), vr(acc(j, tt) + 1)))
            a('v_cvt_pk_bf16_f32 %s, %s, %s' % (vr(d + 1), vr(acc(j, tt) + 2), vr(acc(j, tt) + 3)))
    DV = BF
    for p in range(2):
        c = (lambda x: None) if p == 0 else (lambda x: x)
        mfma(a, DV, FV + 4 * p, FK + 4 * p, c(DV))
        mfma(a, DV + 4, FX + 4 * p, FV + 4 * p, c(DV + 4))
        mfma(a, DV + 8, FX + 4 * p, FK + 4 * p, c(DV + 8))
        mfma(a, DV + 12, FX + 4 * p, FX + 4 * p, c(DV + 12))
    a('s_lshl_b32 s4, s13, 2\ns_add_u32 s4, s4, s20\ns_mul_i32 s4, s4, %d\ns_add_u32 s4, s4, %d' % (HS, SS))
    a('v_lshlrev_b32 %s, 2, v0' % vr(VT))
    a('v_lshlrev_b32 %s, 3, v2' % vr(VA))
    a('v_lshl_add_u32 %s, v3, 2, %s' % (vr(VA), vr(VA)))
    a('v_lshlrev_b32 %s, 3, v3' % vr(VB))
    a('v_and_b32 %s, 4, v2' % vr(VQ))
    a('v_add_u32 %s, %s, %s' % (vr(VB), vr(VB), vr(VQ)))
    for r in range(4):
        a('buffer_atomic_add_f32 %s, %s, s[8:11], s4 offen offset:%d' % (vr(DV + r), vr(VT), 256 * r))
    a('s_mov_b32 exec_lo, -1\ns_mov_b32 exec_hi, 0')
    a('buffer_atomic_add_f32 %s, %s, s[8:11], s4 offen offset:1280' % (vr(DV + 5), vr(VA)))
    a('s_mov_b32 exec_hi, 0xffff')
    a('buffer_atomic_add_f32 %s, %s, s[8:11], s4 offen offset:1024' % (vr(DV + 8), vr(VT)))
    a('s_mov_b32 exec_lo, 0x00220022\ns_mov_b32 exec_hi, 0x0022')
    a('buffer_atomic_add_f32 %s, %s, s[8:11], s4 offen offset:%d' % (vr(DV + 12), vr(VB), 1280 + 128))
    a('s_endpgm')
    a.label('p1_q')
    bq = lambda p, n: BF + (p * 5 + n) * 4
    a('s_lshl_b32 s4, s20, 10')
    a('v_add_u32 %s, s4, %s' % (vr(VT), vr(VA)))
    a('v_add_u32 %s, s4, %s' % (vr(VQ), vr(VB)))

    def rdq(k):
        for tt in range(4):
            v, o = xaddr(k, tt)
            a('ds_read_b128 %s, %s offset:%d' % (vr(bq(k & 1, tt), 4), vr(v), o))
        v, o = (VT, 4096 * k) if k < 9 else (VQ, 4096 * (k - 9))
        a('ds_read_b128 %s, %s offset:%d' % (vr(bq(k & 1, 4), 4), vr(v), o))
    rdq(0)
    for k in range(18):
        lg = 0
        if k < 17:
            rdq(k + 1); lg = 5
        a('s_waitcnt vmcnt(%d) lgkmcnt(%d)' % (34 - 2 * k, lg))
        for tt in range(4):
            mfma(a, ACC + 4 * tt, qw(k, 0), bq(k & 1, tt), None if k == 0 else ACC + 4 * tt)
        mfma(a, ACC + 16, qw(k, 1), bq(k & 1, 4), None if k == 0 else ACC + 16)
    RS = RING; RS2 = RING + 8; TMP = RING + 16
    stats_final(a, 2, ST, 0, TMP)
    a('v_lshlrev_b32 %s, 2, v2' % vr(VT))
    a('s_lshl_b32 s4, s20, 6')
    a('v_add_u32 %s, s4, %s' % (vr(VQ), vr(VT)))
    for tt in range(4):
        a('ds_bpermute_b32 %s, %s, %s offset:%d' % (vr(RS + tt), vr(VT), vr(TMP), 64 * tt))
    a('ds_bpermute_b32 %s, %s, %s' % (vr(RS + 4), vr(VQ), vr(TMP)))
    a('s_waitcnt lgkmcnt(0)')
    for n in range(5):
        a('v_mul_f32 %s, 0x%x, %s' % (vr(RS2 + n), LOG2E, vr(RS + n)))
    a('s_lshl_b32 s4, s14, 5\ns_add_u32 s4, s4, s13\ns_mul_i32 s4, s4, 2304\ns_add_u32 s4, s4, %d' % PQ)
    a('s_mul_i32 s5, s20, %d\ns_add_u32 s5, s5, s4' % (8 * 2304))
    a('s_lshl_b32 s6, s20, 9\ns_add_u32 s4, s4, s6')
    a('v_lshlrev_b32 %s, 3, v0' % vr(VA))
    a('v_lshlrev_b32 %s, 2, v0' % vr(VB))
    for tt in range(5):
        nr = 4 if tt < 4 else 2
        for r in range(nr):
            phi(a, ACC + 4 * tt + r, ACC + 4 * tt + r, RS + tt, RS2 + tt, TMP + 2 * r, TMP + 2 * r + 1)
        P = BF + 2 * tt
        a('v_cvt_pk_bf16_f32 %s, %s, %s' % (vr(P), vr(ACC + 4 * tt), vr(ACC + 4 * tt + 1)))
        if tt < 4:
            a('v_cvt_pk_bf16_f32 %s, %s, %s' % (vr(P + 1), vr(ACC + 4 * tt + 2), vr(ACC + 4 * tt + 3)))
            a('buffer_store_dwordx2 %s, %s, s[8:11], s4 offen' % (vr(P, 2), vr(VA)))
            a('s_add_u32 s4, s4, %d' % (8 * 2304))
        else:
            a('buffer_store_dword %s, %s, s[8:11], s5 offen offset:2048' % (vr(P), vr(VB)))
    a.label('p1_end')
    a('s_endpgm')
    return ('p1_kernel', a, 240, 48, (256, 512, LDS))


def gen_p2():
    a = Asm()
    LDS = 36864
    WF = 12; FR = WF + 72; XP = FR + 32; QF = XP + 16
    VA = 4; VB = 5; VC = 6; VD = 7; EX = 8; VT = 9; RX = 164
    f1 = lambda hh: FR + 8 * hh
    f2 = lambda hh: FR + 8 * hh + 4
    qf = lambda tt, hh: QF + (tt * 4 + hh) * 4
    a('s_cmp_ge_u32 s2, 256')
    a('s_cbranch_scc1 p2_end')
    ws_srd(a)
    wave_id(a, 12, 1)
    a('v_lshlrev_b32 v1, 4, v0')
    a('v_and_b32 v2, 15, v0')
    a('v_lshrrev_b32 v3, 4, v0')
    a('s_and_b32 s13, s2, 3\ns_lshr_b32 s14, s2, 2')
    a('s_mul_i32 s15, s13, 9\ns_add_u32 s15, s15, s12')
    a('s_mul_i32 s16, s15, 18432\ns_add_u32 s16, s16, %d' % WO)
    a('s_mul_i32 s17, s14, 36\ns_lshr_b32 s4, s15, 1\ns_add_u32 s17, s17, s4\ns_lshl_b32 s17, s17, 10')
    a('s_and_b32 s4, s15, 1\ns_lshl_b32 s4, s4, 3\ns_add_u32 s17, s17, s4')
    a('s_add_u32 s18, s17, %d\ns_add_u32 s19, s18, %d' % (X0, 18432))
    a('s_add_u32 s20, s17, %d\ns_add_u32 s21, s20, %d' % (X1, 18432))
    a('v_and_b32 %s, 3, v2' % vr(VT))
    a('v_lshrrev_b32 %s, 2, v2' % vr(VA))
    a('v_lshl_add_u32 %s, %s, 2, %s' % (vr(VA), vr(VT), vr(VA)))
    a('v_lshlrev_b32 %s, 6, %s' % (vr(VA), vr(VA)))
    a('v_lshl_add_u32 %s, v3, 4, %s' % (vr(VA), vr(VA)))
    a('v_min_u32 %s, 2, %s' % (vr(VT), vr(VT)))
    a('v_lshlrev_b32 %s, 6, %s' % (vr(VB), vr(VT)))
    a('v_lshl_add_u32 %s, v3, 4, %s' % (vr(VB), vr(VB)))
    a('v_lshlrev_b32 %s, 3, v2' % vr(VC))
    a('v_lshlrev_b32 %s, 3, %s' % (vr(VD), vr(VT)))
    a('s_mul_i32 s22, s12, %d\ns_add_u32 s22, s22, %d' % (4 * HS, SS))
    a('s_lshl_b32 s23, s14, 4\ns_add_u32 s23, s23, s12\ns_mul_i32 s23, s23, 2304\ns_add_u32 s23, s23, %d' % PQ)
    a('s_add_u32 s24, s23, %d' % (8 * 2304))
    a('v_lshlrev_b32 v10, 3, v0')
    a('v_lshlrev_b32 v11, 2, v0')
    for hh in range(4):
        a('s_mov_b32 s%d, 0x%x\ns_mov_b32 s%d, 0x%x' % (
            40 + 2 * hh, (0xffff << (16 * hh)) & 0xffffffff, 41 + 2 * hh, ((0xffff << (16 * hh)) >> 32) & 0xffffffff))
    a('s_waitcnt lgkmcnt(0)')
    a('s_cmp_eq_u32 s12, 8')
    a('s_cbranch_scc1 p2_ldw')
    for hh in range(4):
        a('buffer_load_dwordx4 %s, %s, s[8:11], s22 offen' % (vr(f1(hh), 4), vr(VA)))
        a('buffer_load_dwordx2 %s, %s, s[8:11], s22 offen offset:1280' % (vr(XP + 4 * hh, 2), vr(VC)))
        a('buffer_load_dwordx4 %s, %s, s[8:11], s22 offen offset:1024' % (vr(f2(hh), 4), vr(VB)))
        a('buffer_load_dwordx2 %s, %s, s[8:11], s22 offen offset:%d' % (vr(XP + 4 * hh + 2, 2), vr(VD), 1280 + 128))
        a('s_add_u32 s22, s22, %d' % HS)
    for tt in range(2):
        for hh in range(4):
            a('buffer_load_dwordx2 %s, v10, s[8:11], s%d offen offset:%d' % (vr(qf(tt, hh), 2), 23 + tt, 512 * hh))
        a('buffer_load_dword %s, v11, s[8:11], s%d offen offset:2048' % (vr(qf(tt, 0) + 2), 23 + tt))
    a.label('p2_ldw')
    for k in range(18):
        a('buffer_load_dwordx4 %s, v1, s[8:11], s16 offen offset:%d' % (vr(WF + 4 * k, 4), 1024 * (k % 4)))
        if k % 4 == 3:
            a('s_add_u32 s16, s16, 4096')
    a('buffer_load_dwordx2 %s, v1, s[8:11], s18 offen' % vr(RX, 2))
    a('buffer_load_dwordx2 %s, v1, s[8:11], s19 offen' % vr(RX + 2, 2))
    a('s_cmp_eq_u32 s12, 8')
    a('s_cbranch_scc1 p2_bar')
    a('s_waitcnt vmcnt(30)')
    for hh in range(4):
        for f, x in ((f1(hh), XP + 4 * hh), (f2(hh), XP + 4 * hh + 2)):
            a('v_cvt_pk_bf16_f32 %s, %s, %s' % (vr(f), vr(f), vr(f + 1)))
            a('v_cvt_pk_bf16_f32 %s, %s, %s' % (vr(f + 1), vr(f + 2), vr(f + 3)))
            a('v_cvt_pk_bf16_f32 %s, %s, %s' % (vr(f + 2), vr(x), vr(x + 1)))
            a('v_mov_b32 %s, 0' % vr(f + 3))
            a('v_cndmask_b32 %s, 0, %s, s[%d:%d]' % (vr(f + 2), vr(f + 2), 40 + 2 * hh, 41 + 2 * hh))
    a('s_waitcnt vmcnt(20)')
    for tt in range(2):
        for hh in range(4):
            if hh:
                a('v_mov_b32 %s, %s' % (vr(qf(tt, hh) + 2), vr(qf(tt, 0) + 2)))
            a('v_mov_b32 %s, 0' % vr(qf(tt, hh) + 3))
    a('s_lshl_b32 s4, s12, 12')
    a('v_add_u32 %s, s4, v1' % vr(VA))
    a('s_lshr_b32 s4, s12, 2\ns_add_u32 s4, s4, 16\ns_lshl_b32 s4, s4, 11\ns_and_b32 s5, s12, 3\ns_lshl_b32 s5, s5, 2\ns_add_u32 s4, s4, s5')
    a('v_add_u32 %s, s4, v1' % vr(VB))
    for tt in range(2):
        for p in range(2):
            for n in range(2):
                hh = 2 * p + n
                mfma(a, XP + 8 * n, f1(hh), qf(tt, hh))
                mfma(a, XP + 8 * n + 4, f2(hh), qf(tt, hh))
            O = qf(tt, 2 * p)
            for n in range(2):
                hh = 2 * p + n
                d1 = XP + 8 * n; d2 = d1 + 4
                a('v_add_f32 %s, 0x%x, %s' % (vr(d2 + 2), EPS6, vr(d2 + 2)))
                a('v_rcp_f32 %s, %s' % (vr(d2 + 2), vr(d2 + 2)))
                for r in range(6):
                    a('v_mul_f32 %s, %s, %s' % (vr(d1 + r), vr(d1 + r), vr(d2 + 2)))
                a('v_cvt_pk_bf16_f32 %s, %s, %s' % (vr(O + 2 * n), vr(d1), vr(d1 + 1)))
                a('v_cvt_pk_bf16_f32 %s, %s, %s' % (vr(O + 2 * n + 1), vr(d1 + 2), vr(d1 + 3)))
                if hh == 0:
                    a('v_cvt_pk_bf16_f32 %s, %s, %s' % (vr(EX), vr(d2), vr(d2 + 1)))
                else:
                    a('v_cvt_pk_bf16_f32 %s, %s, %s' % (vr(VT), vr(d2), vr(d2 + 1)))
                    a('v_cndmask_b32 %s, %s, %s, s[%d:%d]' % (vr(EX), vr(EX), vr(VT), 40 + 2 * hh, 41 + 2 * hh))
            a('ds_write_b128 %s, %s offset:%d' % (vr(VA), vr(O, 4), 2048 * p + 1024 * tt))
        a('ds_write_b32 %s, %s offset:%d' % (vr(VB), vr(EX), 1024 * tt))
    a.label('p2_bar')
    a('s_waitcnt lgkmcnt(0)')
    a('s_barrier')
    NB = 12
    slot = lambda n: FR + 4 * (n % NB)
    AC = 4
    for n in range(NB):
        a('ds_read_b128 %s, v1 offset:%d' % (vr(slot(n), 4), 1024 * n))
    for n in range(36):
        k, tt = n >> 1, n & 1
        rem = min(NB - 1, 35 - n)
        a('s_waitcnt vmcnt(%d) lgkmcnt(%d)' % (19 - k, rem))
        mfma(a, AC + 4 * tt, WF + 4 * k, slot(n), None if k == 0 else AC + 4 * tt)
        if n + NB < 36:
            a('ds_read_b128 %s, v1 offset:%d' % (vr(slot(n), 4), 1024 * (n + NB)))
    a('s_waitcnt vmcnt(0)')
    T = FR
    for tt in range(2):
        for h in range(2):
            a('v_lshlrev_b32 %s, 16, %s' % (vr(T + 4 * tt + 2 * h), vr(RX + 2 * tt + h)))
            a('v_and_b32 %s, 0xffff0000, %s' % (vr(T + 4 * tt + 2 * h + 1), vr(RX + 2 * tt + h)))
    for tt in range(2):
        for r in range(4):
            a('v_add_f32 %s, %s, %s' % (vr(T + 4 * tt + r), vr(T + 4 * tt + r), vr(AC + 4 * tt + r)))
        a('v_cvt_pk_bf16_f32 %s, %s, %s' % (vr(RX + 2 * tt), vr(T + 4 * tt), vr(T + 4 * tt + 1)))
        a('v_cvt_pk_bf16_f32 %s, %s, %s' % (vr(RX + 2 * tt + 1), vr(T + 4 * tt + 2), vr(T + 4 * tt + 3)))
        a('buffer_store_dwordx2 %s, v1, s[8:11], s%d offen' % (vr(RX + 2 * tt, 2), 20 + tt))
    a.label('p2_end')
    a('s_endpgm')
    return ('p2_kernel', a, 168, 48, (256, 576, LDS))


def gen_p0(final):
    a = Asm()
    nm = 'p0b' if final else 'p0a'
    P = 8; RX = 4; AC = 40
    a('s_cmp_ge_u32 s2, 256')
    a('s_cbranch_scc1 %s_end' % nm)
    ws_srd(a)
    if final:
        a('s_load_dwordx2 s[24:25], s[0:1], 48')
        a('s_mov_b32 s26, %d\ns_mov_b32 s27, 0x20000' % ACT)
    wave_id(a, 12, 1)
    a('v_lshlrev_b32 v1, 4, v0')
    a('s_and_b32 s13, s2, 3\ns_lshr_b32 s14, s2, 2')
    a('s_mul_i32 s15, s13, 9\ns_add_u32 s15, s15, s12')
    a('s_mul_i32 s16, s14, 36\ns_add_u32 s16, s16, s15\ns_lshl_b32 s16, s16, 10\ns_add_u32 s16, s16, %d' % PART)
    a('s_mul_i32 s17, s14, 36\ns_lshr_b32 s4, s15, 1\ns_add_u32 s17, s17, s4\ns_lshl_b32 s17, s17, 10')
    a('s_and_b32 s5, s15, 1\ns_lshl_b32 s5, s5, 3\ns_add_u32 s17, s17, s5')
    a('s_add_u32 s18, s17, %d\ns_add_u32 s19, s18, %d' % (X1, 18432))
    if final:
        a('s_mul_i32 s20, s14, %d\ns_lshl_b32 s4, s4, 6\ns_add_u32 s20, s20, s4\ns_add_u32 s20, s20, s5' % (32 * 1152))
        a('s_add_u32 s21, s20, %d' % (16 * 1152))
        a('v_and_b32 v2, 15, v0\nv_lshrrev_b32 v3, 4, v0')
        a('v_mul_u32_u24 v2, 1152, v2')
        a('v_lshl_add_u32 v2, v3, 4, v2')
    else:
        a('s_add_u32 s20, s17, %d\ns_add_u32 s21, s20, %d' % (X0, 18432))
    a('s_waitcnt lgkmcnt(0)')
    a('buffer_load_dwordx2 %s, v1, s[8:11], s18 offen' % vr(RX, 2))
    a('buffer_load_dwordx2 %s, v1, s[8:11], s19 offen' % vr(RX + 2, 2))
    for c in range(8):
        a('buffer_load_dwordx4 %s, v1, s[8:11], s16 offen' % vr(P + 4 * c, 4))
        if c < 7:
            a('s_add_u32 s16, s16, %d' % ACT)
    a('s_waitcnt vmcnt(8)')
    for n in range(4):
        a('v_lshlrev_b32 %s, 16, %s' % (vr(AC + 2 * n), vr(RX + n)))
        a('v_and_b32 %s, 0xffff0000, %s' % (vr(AC + 2 * n + 1), vr(RX + n)))
    for c in range(8):
        a('s_waitcnt vmcnt(%d)' % (7 - c))
        for n in range(4):
            a('v_lshlrev_b32 %s, 16, %s' % (vr(RX + n), vr(P + 4 * c + n)))
            a('v_and_b32 %s, 0xffff0000, %s' % (vr(P + 4 * c + n), vr(P + 4 * c + n)))
        for n in range(4):
            a('v_add_f32 %s, %s, %s' % (vr(AC + 2 * n), vr(AC + 2 * n), vr(RX + n)))
            a('v_add_f32 %s, %s, %s' % (vr(AC + 2 * n + 1), vr(AC + 2 * n + 1), vr(P + 4 * c + n)))
    for n in range(4):
        a('v_cvt_pk_bf16_f32 %s, %s, %s' % (vr(RX + n), vr(AC + 2 * n), vr(AC + 2 * n + 1)))
    for tt in range(2):
        if final:
            a('buffer_store_dwordx2 %s, v2, s[24:27], s%d offen' % (vr(RX + 2 * tt, 2), 20 + tt))
        else:
            a('buffer_store_dwordx2 %s, v1, s[8:11], s%d offen' % (vr(RX + 2 * tt, 2), 20 + tt))
    a.label('%s_end' % nm)
    a('s_endpgm')
    return (nm + '_kernel', a, 48, 32, (256, 576, 0))


PRIO = True


def build():
    ks = [gen_prep(), gen_p1(), gen_p2(), gen_p3(), gen_p0(False), gen_p0(True)]
    geo = {k[0]: k[4] for k in ks}
    order = ['prep', 'p1', 'p2', 'p3', 'p0a', 'p1', 'p2', 'p3', 'p0b']
    hdr = ['; generated by gen/gen.py (hand-written generator); see that file for the layouts']
    for o in order:
        g, b, l = geo[o + '_kernel']
        hdr.append('; @launch kernel=%s_kernel grid=(%d,1,1) block=(%d,1,1) lds=%d' % (o, g, b, l))
    out = '\n'.join(hdr) + '\n.amdgcn_target "amdgcn-amd-amdhsa--gfx950"\n'
    descs = ''
    for name, a, nv, ns, _ in ks:
        c, d = kernel_text(name, a, nv, ns)
        out += c
        descs += d
    return out + descs


if __name__ == '__main__':
    path = sys.argv[1] if len(sys.argv) > 1 else 'cdna_kernels/%s.s' % NAME
    open(path, 'w').write(build())
    print('wrote', path)
```

```python
import sys
from asmlib import Asm, vr, sr, kernel_text

NAME = 'interleave_layers__linear_attn_block__dense_activation_silu__prompt'
S, D, F = 2048, 576, 4608
ACT = S * D * 2
WQ_HG = 313344
WQ = 0
WO = WQ + 8 * WQ_HG
W1 = WO + 36 * 18432
W2 = W1 + D * F * 2
X0 = W2 + D * F * 2
X1 = X0 + ACT
PQ = X1 + ACT
SS = PQ + ACT
HS = 1536
PART = SS + 32 * HS
WS_BYTES = 268435456
OOB = 0x80000000
LOG2E = 0x3fb8aa3b
NLOG2E = 0xbfb8aa3b
EPS6 = 0x358637bd
EPS5 = 0x3727c5ac
INV576 = 0x3ae38e39
ONES = 0x3f803f80
MF = 'v_mfma_f32_16x16x32_bf16'


def mfma(a, d, x, y, c=None):
    a('%s %s, %s, %s, %s' % (MF, vr(d, 4), vr(x, 4), vr(y, 4), '0' if c is None else vr(c, 4)))


def ws_srd(a):
    a('s_load_dwordx2 s[8:9], s[0:1], 64')
    a('s_mov_b32 s10, 0x%x' % WS_BYTES)
    a('s_mov_b32 s11, 0x20000')


def wave_id(a, sdst, vtmp):
    a('v_lshrrev_b32 %s, 6, v0' % vr(vtmp))
    a('v_readfirstlane_b32 %s, %s' % (sr(sdst), vr(vtmp)))
    a('v_and_b32 v0, 63, v0')


DBG = 128 << 20
STAMPS = False


def stamp(a, i):
    if STAMPS:
        a('s_memtime s[%d:%d]' % (60 + 2 * i, 61 + 2 * i))


def stamp_begin(a):
    if STAMPS:
        a('s_memrealtime s[56:57]')
        a('s_memtime s[60:61]')


def stamp_end(a, kid, n, s_wave, nw):
    if not STAMPS:
        return
    a('s_waitcnt vmcnt(0)')
    a('s_memtime s[%d:%d]' % (60 + 2 * (n - 1), 61 + 2 * (n - 1)))
    a('s_memrealtime s[58:59]')
    a('s_getreg_b32 s55, hwreg(HW_REG_XCC_ID)')
    a('s_getreg_b32 s54, hwreg(HW_REG_HW_ID)')
    a('s_mov_b64 exec, -1')
    a('s_mul_i32 s4, s2, %d\ns_add_u32 s4, s4, %s\ns_lshl_b32 s4, s4, 6\ns_add_u32 s4, s4, %d' % (nw, sr(s_wave), DBG + (kid << 20)))
    a('s_waitcnt lgkmcnt(0)')
    a('v_mov_b32 v2, 0')
    for i in range(n):
        a('v_writelane_b32 v2, s%d, %d' % (60 + 2 * i, i))
    a('v_writelane_b32 v2, s54, 12')
    a('v_writelane_b32 v2, s55, 13')
    a('v_writelane_b32 v2, s56, 14')
    a('v_writelane_b32 v2, s58, 15')
    a('v_mbcnt_lo_u32_b32 v3, -1, 0')
    a('v_lshlrev_b32 v3, 2, v3')
    a('s_mov_b64 exec, 0xffff')
    a('buffer_store_dword v2, v3, s[8:11], s4 offen')


def gen_prep():
    a = Asm()
    NW = 187; NX = 64; NZ = 3
    a('s_cmp_ge_u32 s2, %d' % (NW + NX + NZ))
    a('s_cbranch_scc1 prep_end')
    ws_srd(a)
    a('s_load_dwordx2 s[24:25], s[0:1], 0')
    a('s_load_dwordx2 s[26:27], s[0:1], 8')
    a('s_load_dwordx2 s[28:29], s[0:1], 16')
    a('s_load_dwordx2 s[30:31], s[0:1], 32')
    a('s_load_dwordx2 s[32:33], s[0:1], 40')
    wave_id(a, 3, 1)
    a('v_and_b32 v2, 15, v0')
    a('v_lshrrev_b32 v3, 4, v0')
    a('v_lshlrev_b32 v4, 4, v0')
    a('s_lshl_b32 s4, s2, 2')
    a('s_add_u32 s20, s4, s3')
    a('s_mov_b32 s15, 0x20000')
    a('s_waitcnt lgkmcnt(0)')
    a('s_cmp_ge_u32 s2, %d' % (NW + NX))
    a('s_cbranch_scc1 prep_zero')
    a('s_cmp_ge_u32 s2, %d' % NW)
    a('s_cbranch_scc1 prep_x')
    a('v_lshrrev_b32 v5, 2, v2')
    a('v_and_b32 v6, 3, v2')
    a('v_lshl_add_u32 v7, v5, 3, v6')
    a('s_cmp_ge_u32 s20, 712')
    a('s_cbranch_scc1 prep_wo')
    a('s_cmp_ge_u32 s20, 576')
    a('s_cbranch_scc1 prep_wq')
    a('s_cmp_ge_u32 s20, 288')
    a('s_cbranch_scc1 prep_w2')
    a('s_mov_b32 s12, s30\ns_mov_b32 s13, s31\ns_mov_b32 s14, %d' % (D * F * 2))
    a('s_mov_b32 s21, s20')
    a('s_mov_b32 s22, s20')
    a('s_mov_b32 s16, %d' % W1)
    a('s_mov_b32 s18, 9216\ns_mov_b32 s19, 0\ns_mov_b32 s23, 1')
    a('s_branch prep_w12')
    a.label('prep_w2')
    a('s_mov_b32 s12, s32\ns_mov_b32 s13, s33\ns_mov_b32 s14, %d' % (D * F * 2))
    a('s_sub_u32 s21, s20, 288')
    a('s_mul_i32 s4, s21, 1821\ns_lshr_b32 s4, s4, 16')
    a('s_mul_i32 s5, s4, 36\ns_sub_u32 s22, s21, s5')
    a('s_mov_b32 s16, %d' % W2)
    a('s_mov_b32 s18, 1152\ns_mul_i32 s19, s4, %d\ns_mov_b32 s23, 0' % (576 * 1152))
    a.label('prep_w12')
    a('s_mul_i32 s4, s21, 43691\ns_lshr_b32 s4, s4, 17')
    a('s_mul_i32 s5, s4, 3\ns_sub_u32 s5, s21, s5')
    a('s_mul_i32 s4, s4, 54\ns_add_u32 s4, s4, s5\ns_lshl_b32 s4, s4, 10')
    a('s_add_u32 s16, s16, s4')
    a('s_mov_b32 s17, 3072')
    a('s_lshr_b32 s4, s22, 1\ns_lshl_b32 s4, s4, 5\ns_and_b32 s5, s22, 1\ns_lshl_b32 s5, s5, 2\ns_add_u32 s4, s4, s5')
    a('v_add_u32 v8, s4, v7')
    a('s_mov_b64 s[6:7], -1')
    a('s_branch prep_std')
    a.label('prep_wq')
    a('s_mov_b32 s12, s26\ns_mov_b32 s13, s27\ns_mov_b32 s14, %d' % (D * 3 * D * 2))
    a('s_mov_b32 s18, 3456\ns_mov_b32 s19, 0\ns_mov_b32 s23, 1')
    a('s_sub_u32 s21, s20, 576')
    a('s_mul_i32 s4, s21, 3856\ns_lshr_b32 s4, s4, 16')
    a('s_mul_i32 s5, s4, 17\ns_sub_u32 s5, s21, s5')
    a('s_mul_i32 s16, s4, %d' % WQ_HG)
    a('s_add_u32 s16, s16, %d' % WQ)
    a('s_mul_i32 s34, s4, 72')
    a('s_mov_b64 s[6:7], -1')
    a('s_cmp_eq_u32 s5, 16')
    a('s_cbranch_scc1 prep_wq_qx')
    a('s_cmp_ge_u32 s5, 12')
    a('s_cbranch_scc1 prep_wq_qm')
    a('s_mul_i32 s35, s5, 43691\ns_lshr_b32 s35, s35, 17')
    a('s_mul_i32 s36, s35, 3\ns_sub_u32 s36, s5, s36')
    a('s_mul_i32 s37, s35, 54\ns_add_u32 s37, s37, s36\ns_lshl_b32 s37, s37, 10')
    a('s_add_u32 s16, s16, s37')
    a('s_mov_b32 s17, 3072')
    a('s_mul_i32 s35, s35, 18\ns_add_u32 s34, s34, s35')
    a('s_cmp_eq_u32 s36, 2')
    a('s_cbranch_scc1 prep_wq_x')
    a('s_add_u32 s36, s36, 1\ns_mul_i32 s36, s36, 576\ns_add_u32 s34, s34, s36')
    a('v_add_u32 v8, s34, v2')
    a('s_branch prep_std')
    a.label('prep_wq_x')
    a('s_add_u32 s34, s34, %d' % (1152 + 16))
    a('v_and_b32 v9, 1, v2')
    a('v_mul_u32_u24 v9, 576, v9')
    a('v_add_u32 v8, s34, v5')
    a('v_sub_u32 v8, v8, v9')
    a('s_mov_b32 s6, 0x00330033\ns_mov_b32 s7, 0x00330033')
    a('s_branch prep_std')
    a.label('prep_wq_qm')
    a('s_sub_u32 s35, s5, 12')
    a('s_mul_i32 s36, s35, 18432\ns_add_u32 s16, s16, s36\ns_add_u32 s16, s16, 221184')
    a('s_mov_b32 s17, 1024')
    a('s_mul_i32 s35, s35, 18\ns_add_u32 s34, s34, s35')
    a('v_add_u32 v8, s34, v2')
    a('s_branch prep_std')
    a.label('prep_wq_qx')
    a('s_add_u32 s16, s16, 294912')
    a('s_mov_b32 s17, 1024')
    a('s_add_u32 s34, s34, 16')
    a('v_mul_u32_u24 v9, 18, v5')
    a('v_add3_u32 v8, v9, v6, s34')
    a('s_mov_b32 s6, 0x33333333\ns_mov_b32 s7, 0x33333333')
    V = 16
    a.label('prep_std')
    a('s_lshl_b32 s4, s18, 3')
    a('v_mul_lo_u32 v9, v3, s4')
    a('v_lshl_add_u32 v9, v8, 1, v9')
    a('v_mov_b32 v10, 0x%x' % OOB)
    a('v_cndmask_b32 v9, v10, v9, s[6:7]')
    a('s_mul_i32 s5, s18, 25')
    n = 0
    for ks in range(18):
        for i in range(8):
            if n >= 56 and n % 8 == 0:
                a('s_waitcnt vmcnt(48)')
            a('buffer_load_ushort %s, v9, s[12:15], s19 offen' % vr(V + ks * 8 + i))
            a('s_add_u32 s19, s19, %s' % ('s18' if i < 7 else 's5'))
            n += 1
    a('s_branch prep_fin')
    a.label('prep_wo')
    a('s_mov_b32 s12, s28\ns_mov_b32 s13, s29\ns_mov_b32 s14, %d' % (D * D * 2))
    a('s_sub_u32 s22, s20, 712')
    a('s_mul_i32 s16, s22, 18432\ns_add_u32 s16, s16, %d' % WO)
    a('s_mov_b32 s17, 1024\ns_mov_b32 s23, 0')
    a('s_lshr_b32 s4, s22, 1\ns_lshl_b32 s4, s4, 5\ns_and_b32 s5, s22, 1\ns_lshl_b32 s5, s5, 2\ns_add_u32 s4, s4, s5')
    a('v_add_u32 v8, s4, v7')
    a('v_mul_u32_u24 v9, %d, v3' % (4 * 1152))
    a('v_lshl_add_u32 v9, v8, 1, v9')
    a('v_mul_u32_u24 v10, %d, v3' % (18 * 1152))
    a('v_lshl_add_u32 v10, v8, 1, v10')
    n = 0
    for ks in range(18):
        for i in range(8):
            if n >= 56 and n % 8 == 0:
                a('s_waitcnt vmcnt(48)')
            if ks < 16:
                row = 36 * ks + 18 * (i >> 2) + (i & 3); va = 9
            else:
                row = 288 * (ks - 16) + 72 * (i >> 1) + 16 + (i & 1); va = 10
            a('s_mov_b32 s19, %d' % (row * 1152))
            a('buffer_load_ushort %s, v%d, s[12:15], s19 offen' % (vr(V + ks * 8 + i), va))
            n += 1
    a.label('prep_fin')
    a('s_waitcnt vmcnt(0)')
    for k in range(144):
        a('v_lshlrev_b32 %s, 16, %s' % (vr(V + k), vr(V + k)))
    a('s_cmp_eq_u32 s23, 0')
    a('s_cbranch_scc1 prep_pack')
    for k in range(4):
        a('v_add_f32 v%d, %s, %s' % (11 + k, vr(V + k), vr(V + 4 + k)))
    for k in range(8, 144):
        a('v_add_f32 v%d, v%d, %s' % (11 + k % 4, 11 + k % 4, vr(V + k)))
    a('v_add_f32 v11, v11, v12\nv_add_f32 v13, v13, v14\nv_add_f32 v11, v11, v13')
    a('v_mov_b32 v12, v11')
    a('v_permlane32_swap_b32 v11, v12')
    a('v_add_f32 v11, v11, v12')
    a('v_mov_b32 v12, v11')
    a('v_permlane16_swap_b32 v11, v12')
    a('v_add_f32 v11, v11, v12')
    a('v_mul_f32 v11, 0x%x, v11' % INV576)
    for k in range(144):
        a('v_sub_f32 %s, %s, v11' % (vr(V + k), vr(V + k)))
    a.label('prep_pack')
    for ks in range(18):
        b = V + ks * 8
        for p in range(4):
            a('v_cvt_pk_bf16_f32 %s, %s, %s' % (vr(b + p), vr(b + 2 * p), vr(b + 2 * p + 1)))
        a('buffer_store_dwordx4 %s, v4, s[8:11], s16 offen' % vr(b, 4))
        a('s_add_u32 s16, s16, s17')
    a('s_endpgm')
    a.label('prep_x')
    a('s_mov_b32 s12, s24\ns_mov_b32 s13, s25\ns_mov_b32 s14, %d' % ACT)
    a('s_sub_u32 s20, s20, %d' % (NW * 4))
    a('s_lshr_b32 s4, s20, 1\ns_and_b32 s5, s20, 1')
    a('s_mul_i32 s19, s4, %d' % (16 * 1152))
    a('s_mul_i32 s6, s5, %d\ns_add_u32 s19, s19, s6' % (9 * 64))
    a('v_mul_u32_u24 v9, 1152, v2')
    a('v_lshl_add_u32 v9, v3, 4, v9')
    a('s_mul_i32 s16, s20, %d\ns_add_u32 s16, s16, %d' % (9 * 1024, X0))
    for k in range(9):
        a('buffer_load_dwordx4 %s, v9, s[12:15], s19 offen offset:%d' % (vr(V + 4 * k, 4), 64 * k))
    for k in range(9):
        a('s_waitcnt vmcnt(8)')
        a('buffer_store_dwordx4 %s, v4, s[8:11], s16 offen' % vr(V + 4 * k, 4))
        a('s_add_u32 s16, s16, 1024')
    a('s_endpgm')
    a.label('prep_zero')
    a('s_sub_u32 s20, s20, %d' % ((NW + NX) * 4))
    a('s_lshl_b32 s16, s20, 12\ns_add_u32 s16, s16, %d' % SS)
    for k in range(4):
        a('v_mov_b32 v%d, 0' % (V + k))
    for k in range(4):
        a('buffer_store_dwordx4 %s, v4, s[8:11], s16 offen offset:%d' % (vr(V, 4), 1024 * k))
    a.label('prep_end')
    a('s_endpgm')
    return ('prep_kernel', a, 160, 40, (NW + NX + NZ, 256, 0))


def xcd_map(a, ncx, s_c, s_r, nc=8):
    lg = ncx.bit_length() - 1
    ng = nc // ncx
    lgg = ng.bit_length() - 1
    a('s_and_b32 s4, s2, 7\ns_lshr_b32 s5, s2, 3')
    a('s_and_b32 s6, s4, %d\ns_lshl_b32 s6, s6, %d\ns_and_b32 s7, s5, %d\ns_add_u32 %s, s6, s7' % (ng - 1, lg, ncx - 1, sr(s_c)))
    a('s_lshr_b32 s6, s4, %d\ns_mul_i32 s6, s6, %d\ns_lshr_b32 s7, s5, %d\ns_add_u32 %s, s6, s7' % (lgg, 32 // ncx, lg, sr(s_r)))


def x_dma(a, nk, s_g, s_l, v_l16):
    for k in range(nk):
        a('s_mov_b32 m0, %s' % sr(s_l))
        if k < nk - 1:
            a('s_add_u32 %s, %s, 4096' % (sr(s_l), sr(s_l)))
        else:
            a('s_nop 0')
        a('buffer_load_dwordx4 %s, s[8:11], %s offen lds' % (vr(v_l16), sr(s_g)))
        if k < nk - 1:
            a('s_add_u32 %s, %s, 1024' % (sr(s_g), sr(s_g)))


def stats_prepass(a, nk, v_addr, v_fr, v_ones, v_res, v_t, v_g, v_tmp, v_dst):
    for k in range(nk):
        a('ds_read_b128 %s, %s offset:%d' % (vr(v_fr + 4 * k, 4), vr(v_addr), 4096 * k))
    for k in range(4):
        a('v_mov_b32 %s, 0x%x' % (vr(v_ones + k), ONES))
    for k in range(nk):
        a('s_waitcnt lgkmcnt(%d)' % (nk - 1 - k))
        f = v_fr + 4 * k
        mfma(a, v_res, v_ones, f, None if k == 0 else v_res)
        mfma(a, v_res + 4, f, f, None if k == 0 else v_res + 4)
    a('s_mov_b32 s40, 0x22222222\ns_mov_b32 s41, 0x22222222')
    a('s_mov_b32 s42, 0x44444444\ns_mov_b32 s43, 0x44444444')
    a('s_mov_b32 s44, 0x88888888\ns_mov_b32 s45, 0x88888888')
    a('v_cndmask_b32 %s, %s, %s, s[40:41]' % (vr(v_res + 1), vr(v_res + 4), vr(v_res + 5)))
    a('v_cndmask_b32 %s, %s, %s, s[42:43]' % (vr(v_res + 1), vr(v_res + 1), vr(v_res + 6)))
    a('v_cndmask_b32 %s, %s, %s, s[44:45]' % (vr(v_res + 1), vr(v_res + 1), vr(v_res + 7)))
    a('s_mov_b32 exec_lo, 0x00f0000f\ns_mov_b32 exec_hi, 0xf0000f00')
    a('ds_write_b64 %s, %s' % (vr(v_dst), vr(v_res, 2)))
    a('s_mov_b64 exec, -1')


def stats_final(a, nparts, lds_stats, v_lane, v_tmp):
    a('v_lshlrev_b32 %s, 3, %s' % (vr(v_tmp + 6), vr(v_lane)))
    for p in range(nparts):
        a('ds_read_b64 %s, %s offset:%d' % (vr(v_tmp + 2 * p, 2), vr(v_tmp + 6), p * 512))
    a('s_waitcnt lgkmcnt(0)')
    for p in range(1, nparts):
        a('v_add_f32 %s, %s, %s' % (vr(v_tmp), vr(v_tmp), vr(v_tmp + 2 * p)))
        a('v_add_f32 %s, %s, %s' % (vr(v_tmp + 1), vr(v_tmp + 1), vr(v_tmp + 2 * p + 1)))
    a('v_mul_f32 %s, 0x%x, %s' % (vr(v_tmp), INV576, vr(v_tmp)))
    a('v_mul_f32 %s, 0x%x, %s' % (vr(v_tmp + 1), INV576, vr(v_tmp + 1)))
    a('v_fma_f32 %s, -%s, %s, %s' % (vr(v_tmp + 1), vr(v_tmp), vr(v_tmp), vr(v_tmp + 1)))
    a('v_max_f32 %s, 0, %s' % (vr(v_tmp + 1), vr(v_tmp + 1)))
    a('v_add_f32 %s, 0x%x, %s' % (vr(v_tmp + 1), EPS5, vr(v_tmp + 1)))
    a('v_rsq_f32 %s, %s' % (vr(v_tmp), vr(v_tmp + 1)))


def gen_p3():
    a = Asm()
    XI = 2048; HI = XI + 73728; ST = 0
    LDS = HI + 73728
    ACC = 0 + 4; RING = ACC + 48; BF = RING + 72; RS = BF + 32
    VA = RS + 4; VB = VA + 1; VT = VB + 1
    L16 = 1
    assert ACC % 4 == 0
    acc = lambda j, tt: ACC + (j * 4 + tt) * 4
    ring = lambda k, j: RING + (k * 3 + j) * 4
    bf = lambda p, tt: BF + (p * 4 + tt) * 4
    a('s_cmp_ge_u32 s2, 256')
    a('s_cbranch_scc1 p3_end')
    stamp_begin(a)
    ws_srd(a)
    wave_id(a, 12, 1)
    a('v_lshlrev_b32 v1, 4, v0')
    a('v_and_b32 v2, 15, v0')
    a('v_lshrrev_b32 v3, 4, v0')
    xcd_map(a, P3_NCX, 13, 14)
    a('s_mul_i32 s4, s14, 21846\ns_lshr_b32 s4, s4, 16\ns_mul_i32 s4, s4, 3\ns_sub_u32 s19, s14, s4')
    a('s_mul_i32 s16, s13, 12\ns_add_u32 s16, s16, s12\ns_mul_i32 s16, s16, 55296\ns_add_u32 s16, s16, %d' % W1)
    a('s_and_b32 s20, s12, 3\ns_lshr_b32 s21, s12, 2')
    a('s_lshl_b32 s4, s14, 2\ns_add_u32 s4, s4, s20\ns_mul_i32 s4, s4, 18\ns_mul_i32 s5, s21, 6\ns_add_u32 s4, s4, s5')
    a('s_lshl_b32 s4, s4, 10\ns_add_u32 s22, s4, %d' % X1)
    a('s_mul_i32 s5, s21, 24\ns_add_u32 s5, s5, s20\ns_lshl_b32 s5, s5, 10\ns_add_u32 s23, s5, %d' % XI)
    a('v_add_u32 %s, s23, v1' % vr(VA))
    a('s_mul_i32 s15, s19, 18432\ns_add_u32 s15, s15, s16')
    a('s_lshl_b32 s4, s21, 2\ns_add_u32 s4, s4, s20\ns_lshl_b32 s4, s4, 7')
    a('v_lshl_add_u32 %s, v2, 3, s4' % vr(VB))
    a('s_waitcnt lgkmcnt(0)')
    x_dma(a, 6, 22, 23, L16)
    a('s_barrier')
    if PRIO:
        a('s_cmp_eq_u32 s21, 0\ns_cbranch_scc0 p3_pr1\ns_setprio 2\ns_branch p3_pr2')
        a.label('p3_pr1')
        a('s_cmp_eq_u32 s21, 1\ns_cbranch_scc0 p3_pr2\ns_setprio 1')
        a.label('p3_pr2')
    for k in range(6):
        for j in range(3):
            a('buffer_load_dwordx4 %s, v1, s[8:11], s15 offen offset:%d' % (vr(ring(k, j), 4), 1024 * j))
        a('s_add_u32 s15, s15, 3072')
    stamp(a, 1)
    a('s_waitcnt vmcnt(18)')
    stamp(a, 2)
    stats_prepass(a, 6, VA, BF, BF + 24, ACC, 2, 3, VT, VB)
    a('s_waitcnt lgkmcnt(0)')
    a('s_barrier')
    stamp(a, 3)
    stats_final(a, 3, ST, 0, BF + 16)
    a('s_mul_i32 s4, s19, 24576\ns_add_u32 s24, s4, %d' % XI)
    a('v_add_u32 %s, s24, v1' % vr(VA))
    a('v_lshlrev_b32 %s, 2, v2' % vr(VT))
    for tt in range(4):
        a('ds_bpermute_b32 %s, %s, %s offset:%d' % (vr(RS + tt), vr(VT), vr(BF + 16), 64 * tt))
    for tt in range(4):
        a('ds_read_b128 %s, %s offset:%d' % (vr(bf(0, tt), 4), vr(VA), 1024 * tt))
    for k in range(48):
        a('v_mov_b32 %s, 0' % vr(ACC + k))
    a('s_mov_b32 s17, s19')
    a('s_mov_b32 s18, 0')
    a('s_mov_b32 s25, %d' % XI)

    def body(refill):
        for k in range(6):
            last = (k == 5)
            fin = last and not refill

            def rd(tt):
                if fin:
                    return
                if not last:
                    a('ds_read_b128 %s, %s offset:%d' % (vr(bf((k + 1) & 1, tt), 4), vr(VA), 4096 * (k + 1) + 1024 * tt))
                else:
                    a('ds_read_b128 %s, %s offset:%d' % (vr(bf(0, tt), 4), vr(VB), 1024 * tt))

            def ld(j):
                if refill:
                    a('buffer_load_dwordx4 %s, v1, s[8:11], s15 offen offset:%d' % (vr(ring(k, j), 4), 1024 * j))

            def wt(j, lg=False):
                n = k * 3 + j + 1
                if not refill and n > 17:
                    return
                vm = 16 if refill else 17 - n
                a('s_waitcnt vmcnt(%d)%s' % (vm, ' lgkmcnt(0)' if lg else ''))
            gaps = {0: lambda: rd(0), 1: lambda: rd(1), 2: lambda: wt(0), 3: lambda: ld(0), 4: lambda: rd(2),
                    5: lambda: rd(3), 6: lambda: wt(1), 7: lambda: ld(1), 10: lambda: wt(2, True), 11: lambda: ld(2)}
            for n in range(12):
                j, tt = n >> 2, n & 3
                mfma(a, acc(j, tt), ring(k, j), bf(k & 1, tt), acc(j, tt))
                if n == 0 and k > 0 and refill:
                    a('s_add_u32 s15, s15, 3072')
                if n in gaps:
                    gaps[n]()

    a('s_waitcnt vmcnt(17) lgkmcnt(0)')
    a.label('p3_loop')
    a('s_add_u32 s17, s17, 1\ns_cmp_eq_u32 s17, 3\ns_cselect_b32 s17, 0, s17')
    a('s_cmp_eq_u32 s18, 2\ns_cselect_b32 s4, %d, 0\ns_add_u32 s16, s16, s4' % (W2 - W1))
    a('s_mul_i32 s15, s17, 18432\ns_add_u32 s15, s15, s16')
    a('s_mul_i32 s4, s17, 24576\ns_add_u32 s4, s4, s25')
    a('v_add_u32 %s, s4, v1' % vr(VB))
    body(True)
    a('v_mov_b32 %s, %s' % (vr(VA), vr(VB)))
    a('s_add_u32 s18, s18, 1')
    a('s_cmp_eq_u32 s18, 5')
    a('s_cbranch_scc1 p3_final')
    a('s_cmp_lg_u32 s18, 3')
    a('s_cbranch_scc1 p3_loop')
    stamp(a, 4)
    a('s_waitcnt lgkmcnt(0)')
    C = BF + 28
    for tt in range(4):
        a('v_mul_f32 %s, 0x%x, %s' % (vr(C + tt), NLOG2E, vr(RS + tt)))
    T = BF
    for j in range(3):
        a('s_mul_i32 s4, s12, 3\ns_add_u32 s4, s4, %d' % j)
        a('s_lshr_b32 s5, s4, 1\ns_lshl_b32 s5, s5, 12\ns_and_b32 s4, s4, 1\ns_lshl_b32 s4, s4, 3')
        a('s_add_u32 s4, s4, s5\ns_add_u32 s4, s4, %d' % HI)
        a('v_add_u32 %s, s4, v1' % vr(VT))
        for tp in range(2):
            idx = [(tt, r) for tt in (2 * tp, 2 * tp + 1) for r in range(4)]
            for n, (tt, r) in enumerate(idx):
                a('v_mul_f32 %s, %s, %s' % (vr(T + n), vr(acc(j, tt) + r), vr(C + tt)))
            for n in range(8):
                a('v_exp_f32 %s, %s' % (vr(T + n), vr(T + n)))
            for n in range(8):
                a('v_add_f32 %s, 1.0, %s' % (vr(T + n), vr(T + n)))
            for n in range(8):
                a('v_rcp_f32 %s, %s' % (vr(T + n), vr(T + n)))
            for n, (tt, r) in enumerate(idx):
                a('v_mul_f32 %s, %s, %s' % (vr(T + n), vr(acc(j, tt) + r), vr(T + n)))
            P = BF + 8 + 4 * ((j * 2 + tp) % 4)
            for n in range(4):
                a('v_cvt_pk_bf16_f32 %s, %s, %s' % (vr(P + n), vr(T + 2 * n), vr(T + 2 * n + 1)))
            a('ds_write_b64 %s, %s offset:%d' % (vr(VT), vr(P, 2), 1024 * (2 * tp)))
            a('ds_write_b64 %s, %s offset:%d' % (vr(VT), vr(P + 2, 2), 1024 * (2 * tp + 1)))
    for k in range(48):
        a('v_mov_b32 %s, 0' % vr(ACC + k))
    a('s_mov_b32 s25, %d' % HI)
    a('v_add_u32 %s, %d, %s' % (vr(VA), HI - XI, vr(VA)))
    stamp(a, 5)
    a('s_waitcnt lgkmcnt(0)')
    a('s_barrier')
    stamp(a, 6)
    for tt in range(4):
        a('ds_read_b128 %s, %s offset:%d' % (vr(bf(0, tt), 4), vr(VA), 1024 * tt))
    a('s_waitcnt lgkmcnt(0)')
    a('s_branch p3_loop')
    a.label('p3_final')
    body(False)
    stamp(a, 7)
    a('s_lshl_b32 s4, s13, 6\ns_lshl_b32 s5, s14, 1\ns_add_u32 s4, s4, s5\ns_mul_i32 s4, s4, 36')
    a('s_mul_i32 s5, s12, 3\ns_add_u32 s4, s4, s5\ns_lshl_b32 s4, s4, 10\ns_add_u32 s4, s4, %d' % PART)
    a('s_add_u32 s5, s4, %d' % (36 * 1024))
    for j in range(3):
        for tp in range(2):
            P = BF + 4 * (j * 2 + tp)
            for n, tt in enumerate((2 * tp, 2 * tp + 1)):
                for r in range(4):
                    a('v_mul_f32 %s, %s, %s' % (vr(acc(j, tt) + r), vr(acc(j, tt) + r), vr(RS + tt)))
                a('v_cvt_pk_bf16_f32 %s, %s, %s' % (vr(P + 2 * n), vr(acc(j, tt)), vr(acc(j, tt) + 1)))
                a('v_cvt_pk_bf16_f32 %s, %s, %s' % (vr(P + 2 * n + 1), vr(acc(j, tt) + 2), vr(acc(j, tt) + 3)))
            a('buffer_store_dwordx4 %s, v1, s[8:11], s%d offen offset:%d%s' % (vr(P, 4), 4 + tp, 1024 * j, P3_ST))
    stamp(a, 8)
    stamp_end(a, 3, 10, 12, 12)
    if STAMPS:
        a('s_mov_b64 exec, -1')
    a('s_cmp_lt_u32 s2, 48\ns_cbranch_scc0 p3_end')
    a('s_cmp_eq_u32 s12, 0\ns_cbranch_scc0 p3_end')
    for k in range(4):
        a('v_mov_b32 %s, 0' % vr(RING + k))
    a('s_lshl_b32 s4, s2, 10\ns_add_u32 s4, s4, %d' % SS)
    a('buffer_store_dwordx4 %s, v1, s[8:11], s4 offen' % vr(RING, 4))
    a.label('p3_end')
    a('s_endpgm')
    return ('p3_kernel', a, 168, 96 if STAMPS else 48, (256, 768, LDS))


def phi(a, dst, src, scale, scale2, t0, t1):
    a('v_mul_f32 %s, %s, %s' % (vr(t0), vr(src), vr(scale2)))
    a('v_mul_f32 %s, %s, %s' % (vr(t1), vr(src), vr(scale)))
    a('v_min_f32 %s, 0, %s' % (vr(t0), vr(t0)))
    a('v_max_f32 %s, 0, %s' % (vr(t1), vr(t1)))
    a('v_exp_f32 %s, %s' % (vr(t0), vr(t0)))
    a('v_add_f32 %s, 0x%x, %s' % (vr(t1), EPS6, vr(t1)))
    a('v_add_f32 %s, %s, %s' % (vr(dst), vr(t0), vr(t1)))


def gen_p1():
    a = Asm()
    ST = 0; RSL = 1024; XI = 2048
    LDS = XI + 73728
    ACC = 8; RING = ACC + 48; BF = RING + 144
    VA = 4; VB = 5; VT = 6; VQ = 7
    a('s_cmp_ge_u32 s2, 256')
    a('s_cbranch_scc1 p1_end')
    stamp_begin(a)
    ws_srd(a)
    wave_id(a, 12, 1)
    a('v_lshlrev_b32 v1, 4, v0')
    a('v_and_b32 v2, 15, v0')
    a('v_lshrrev_b32 v3, 4, v0')
    a('s_and_b32 s13, s2, 7\ns_lshr_b32 s14, s2, 3')
    a('s_and_b32 s20, s12, 3\ns_lshr_b32 s21, s12, 2')
    a('s_lshl_b32 s4, s14, 2\ns_add_u32 s4, s4, s20\ns_mul_i32 s4, s4, 18\ns_mul_i32 s5, s21, 9\ns_add_u32 s4, s4, s5')
    a('s_lshl_b32 s4, s4, 10\ns_add_u32 s22, s4, %d' % X0)
    a('s_mul_i32 s5, s21, 36\ns_add_u32 s5, s5, s20\ns_lshl_b32 s5, s5, 10\ns_add_u32 s23, s5, %d' % XI)
    a('v_add_u32 %s, s23, v1' % vr(VA))
    a('s_lshl_b32 s4, s21, 2\ns_add_u32 s4, s4, s20\ns_lshl_b32 s4, s4, 7')
    a('v_lshl_add_u32 %s, v2, 3, s4' % vr(VB))
    a('s_mul_i32 s16, s13, %d\ns_add_u32 s16, s16, %d' % (WQ_HG, WQ))
    a('s_waitcnt lgkmcnt(0)')
    stamp(a, 1)
    x_dma(a, 9, 22, 23, 1)
    stamp(a, 2)
    a('s_cmp_eq_u32 s21, 0')
    a('s_cbranch_scc0 p1_ldq')
    a('s_mul_i32 s15, s20, 55296\ns_add_u32 s15, s15, s16')
    ring = lambda k, j: RING + ((k % 12) * 3 + j) * 4
    for k in range(12):
        for j in range(3):
            a('buffer_load_dwordx4 %s, v1, s[8:11], s15 offen offset:%d' % (vr(ring(k, j), 4), 1024 * j))
        a('s_add_u32 s15, s15, 3072')
    a('s_branch p1_ldd')
    a.label('p1_ldq')
    qw = lambda k, j: RING + (k * 2 + j) * 4
    a('s_mul_i32 s15, s20, 18432\ns_add_u32 s15, s15, s16\ns_add_u32 s15, s15, 221184')
    a('s_add_u32 s17, s16, 294912')
    for k in range(18):
        a('buffer_load_dwordx4 %s, v1, s[8:11], s15 offen offset:%d' % (vr(qw(k, 0), 4), 1024 * (k % 4)))
        a('buffer_load_dwordx4 %s, v1, s[8:11], s17 offen offset:%d' % (vr(qw(k, 1), 4), 1024 * (k % 4)))
        if k % 4 == 3:
            a('s_add_u32 s15, s15, 4096\ns_add_u32 s17, s17, 4096')
    a.label('p1_ldd')
    stamp(a, 3)
    a('s_waitcnt vmcnt(36)')
    stamp(a, 4)
    stats_prepass(a, 9, VA, BF, BF + 36, ACC, 2, 3, VT, VB)
    a('s_waitcnt lgkmcnt(0)')
    a('s_barrier')
    stamp(a, 5)
    a('v_add_u32 %s, %d, v1' % (vr(VA), XI))
    a('v_add_u32 %s, %d, v1' % (vr(VB), XI + 9 * 4096))
    xaddr = lambda k, tt: (VA, 4096 * k + 1024 * tt) if k < 9 else (VB, 4096 * (k - 9) + 1024 * tt)
    a('s_cmp_eq_u32 s21, 0')
    a('s_cbranch_scc0 p1_q')
    acc = lambda j, tt: ACC + (j * 4 + tt) * 4
    bf = lambda p, tt: BF + (p * 4 + tt) * 4
    for tt in range(4):
        v, o = xaddr(0, tt)
        a('ds_read_b128 %s, %s offset:%d' % (vr(bf(0, tt), 4), vr(v), o))
    outstanding = 36
    for k in range(18):
        lg = 0
        if k < 17:
            for tt in range(4):
                v, o = xaddr(k + 1, tt)
                a('ds_read_b128 %s, %s offset:%d' % (vr(bf((k + 1) & 1, tt), 4), vr(v), o))
            lg = 4
        for j in range(3):
            outstanding -= 1
            a('s_waitcnt vmcnt(%d)%s' % (outstanding, ' lgkmcnt(%d)' % lg if j == 0 else ''))
            for tt in range(4):
                mfma(a, acc(j, tt), bf(k & 1, tt), ring(k, j), None if k == 0 else acc(j, tt))
            if k < 6:
                a('buffer_load_dwordx4 %s, v1, s[8:11], s15 offen offset:%d' % (vr(ring(k, j), 4), 1024 * j))
                outstanding += 1
        if k < 6:
            a('s_add_u32 s15, s15, 3072')
    RS = RING; RS2 = RING + 16; TMP = RING + 32
    stamp(a, 6)
    stats_final(a, 2, ST, 0, TMP)
    a('v_lshlrev_b32 %s, 2, v0' % vr(VT))
    a('ds_write_b32 %s, %s offset:%d' % (vr(VT), vr(TMP), RSL))
    a('v_lshlrev_b32 %s, 4, v3' % vr(VT))
    a('s_waitcnt lgkmcnt(0)')
    for tt in range(4):
        a('ds_read_b128 %s, %s offset:%d' % (vr(RS + 4 * tt, 4), vr(VT), RSL + 64 * tt))
    a('s_waitcnt lgkmcnt(0)')
    for n in range(16):
        a('v_mul_f32 %s, 0x%x, %s' % (vr(RS2 + n), LOG2E, vr(RS + n)))
    a('s_mov_b32 s40, 0x00220022\ns_mov_b32 s41, 0x00220022')
    a('s_mov_b32 s42, 0x01000100\ns_mov_b32 s43, 0x01000100')
    FK = TMP + 16; FV = FK + 8; FX = FV + 8
    for tt in range(4):
        for r in range(4):
            n = tt * 4 + r
            phi(a, acc(0, tt) + r, acc(0, tt) + r, RS + n, RS2 + n, TMP + (2 * r) % 8, TMP + (2 * r + 1) % 8)
            a('v_mul_f32 %s, %s, %s' % (vr(acc(1, tt) + r), vr(acc(1, tt) + r), vr(RS + n)))
            phi(a, TMP + 8 + r, acc(2, tt) + r, RS + n, RS2 + n, TMP + (2 * r) % 8, TMP + (2 * r + 1) % 8)
            a('v_mul_f32 %s, %s, %s' % (vr(acc(2, tt) + r), vr(acc(2, tt) + r), vr(RS + n)))
            a('v_cndmask_b32 %s, %s, %s, s[40:41]' % (vr(acc(2, tt) + r), vr(acc(2, tt) + r), vr(TMP + 8 + r)))
            a('v_cndmask_b32 %s, %s, 1.0, s[42:43]' % (vr(acc(2, tt) + r), vr(acc(2, tt) + r)))
        for j, Fb in enumerate((FK, FV, FX)):
            d = Fb + 2 * tt
            a('v_cvt_pk_bf16_f32 %s, %s, %s' % (vr(d), vr(acc(j, tt)), vr(acc(j, tt) + 1)))
            a('v_cvt_pk_bf16_f32 %s, %s, %s' % (vr(d + 1), vr(acc(j, tt) + 2), vr(acc(j, tt) + 3)))
    DV = BF
    for p in range(2):
        c = (lambda x: None) if p == 0 else (lambda x: x)
        mfma(a, DV, FV + 4 * p, FK + 4 * p, c(DV))
        mfma(a, DV + 4, FX + 4 * p, FV + 4 * p, c(DV + 4))
        mfma(a, DV + 8, FX + 4 * p, FK + 4 * p, c(DV + 8))
        mfma(a, DV + 12, FX + 4 * p, FX + 4 * p, c(DV + 12))
    a('s_lshl_b32 s4, s13, 2\ns_add_u32 s4, s4, s20\ns_mul_i32 s4, s4, %d\ns_add_u32 s4, s4, %d' % (HS, SS))
    a('v_lshlrev_b32 %s, 2, v0' % vr(VT))
    a('v_lshlrev_b32 %s, 3, v2' % vr(VA))
    a('v_lshl_add_u32 %s, v3, 2, %s' % (vr(VA), vr(VA)))
    a('v_lshlrev_b32 %s, 3, v3' % vr(VB))
    a('v_and_b32 %s, 4, v2' % vr(VQ))
    a('v_add_u32 %s, %s, %s' % (vr(VB), vr(VB), vr(VQ)))
    stamp(a, 7)
    for r in range(4):
        a('buffer_atomic_add_f32 %s, %s, s[8:11], s4 offen offset:%d' % (vr(DV + r), vr(VT), 256 * r))
    a('s_mov_b32 exec_lo, -1\ns_mov_b32 exec_hi, 0')
    a('buffer_atomic_add_f32 %s, %s, s[8:11], s4 offen offset:1280' % (vr(DV + 5), vr(VA)))
    a('s_mov_b32 exec_hi, 0xffff')
    a('buffer_atomic_add_f32 %s, %s, s[8:11], s4 offen offset:1024' % (vr(DV + 8), vr(VT)))
    a('s_mov_b32 exec_lo, 0x00220022\ns_mov_b32 exec_hi, 0x0022')
    a('buffer_atomic_add_f32 %s, %s, s[8:11], s4 offen offset:%d' % (vr(DV + 12), vr(VB), 1280 + 128))
    stamp_end(a, 1, 9, 12, 8)
    a('s_endpgm')
    a.label('p1_q')
    bq = lambda p, n: BF + (p * 5 + n) * 4
    a('s_lshl_b32 s4, s20, 10')
    a('v_add_u32 %s, s4, %s' % (vr(VT), vr(VA)))
    a('v_add_u32 %s, s4, %s' % (vr(VQ), vr(VB)))

    def rdq(k):
        for tt in range(4):
            v, o = xaddr(k, tt)
            a('ds_read_b128 %s, %s offset:%d' % (vr(bq(k & 1, tt), 4), vr(v), o))
        v, o = (VT, 4096 * k) if k < 9 else (VQ, 4096 * (k - 9))
        a('ds_read_b128 %s, %s offset:%d' % (vr(bq(k & 1, 4), 4), vr(v), o))
    rdq(0)
    for k in range(18):
        lg = 0
        if k < 17:
            rdq(k + 1); lg = 5
        a('s_waitcnt vmcnt(%d) lgkmcnt(%d)' % (34 - 2 * k, lg))
        for tt in range(4):
            mfma(a, ACC + 4 * tt, qw(k, 0), bq(k & 1, tt), None if k == 0 else ACC + 4 * tt)
        mfma(a, ACC + 16, qw(k, 1), bq(k & 1, 4), None if k == 0 else ACC + 16)
    RS = RING; RS2 = RING + 8; TMP = RING + 16
    stamp(a, 6)
    stats_final(a, 2, ST, 0, TMP)
    a('v_lshlrev_b32 %s, 2, v2' % vr(VT))
    a('s_lshl_b32 s4, s20, 6')
    a('v_add_u32 %s, s4, %s' % (vr(VQ), vr(VT)))
    for tt in range(4):
        a('ds_bpermute_b32 %s, %s, %s offset:%d' % (vr(RS + tt), vr(VT), vr(TMP), 64 * tt))
    a('ds_bpermute_b32 %s, %s, %s' % (vr(RS + 4), vr(VQ), vr(TMP)))
    a('s_waitcnt lgkmcnt(0)')
    for n in range(5):
        a('v_mul_f32 %s, 0x%x, %s' % (vr(RS2 + n), LOG2E, vr(RS + n)))
    a('s_lshl_b32 s4, s14, 5\ns_add_u32 s4, s4, s13\ns_mul_i32 s4, s4, 2304\ns_add_u32 s4, s4, %d' % PQ)
    a('s_mul_i32 s5, s20, %d\ns_add_u32 s5, s5, s4' % (8 * 2304))
    a('s_lshl_b32 s6, s20, 9\ns_add_u32 s4, s4, s6')
    a('v_lshlrev_b32 %s, 3, v0' % vr(VA))
    a('v_lshlrev_b32 %s, 2, v0' % vr(VB))
    for tt in range(5):
        nr = 4 if tt < 4 else 2
        for r in range(nr):
            phi(a, ACC + 4 * tt + r, ACC + 4 * tt + r, RS + tt, RS2 + tt, TMP + 2 * r, TMP + 2 * r + 1)
        P = BF + 2 * tt
        a('v_cvt_pk_bf16_f32 %s, %s, %s' % (vr(P), vr(ACC + 4 * tt), vr(ACC + 4 * tt + 1)))
        if tt < 4:
            a('v_cvt_pk_bf16_f32 %s, %s, %s' % (vr(P + 1), vr(ACC + 4 * tt + 2), vr(ACC + 4 * tt + 3)))
            a('buffer_store_dwordx2 %s, %s, s[8:11], s4 offen' % (vr(P, 2), vr(VA)))
            a('s_add_u32 s4, s4, %d' % (8 * 2304))
        else:
            a('buffer_store_dword %s, %s, s[8:11], s5 offen offset:2048' % (vr(P), vr(VB)))
    stamp(a, 7)
    stamp_end(a, 1, 9, 12, 8)
    a.label('p1_end')
    a('s_endpgm')
    return ('p1_kernel', a, 240, 96 if STAMPS else 48, (256, 512, LDS))


def gen_p2():
    a = Asm()
    LDS = 36864
    WF = 12; FR = WF + 72; XP = FR + 32; QF = XP + 16
    VA = 4; VB = 5; VC = 6; VD = 7; EX = 8; VT = 9; RX = 164
    f1 = lambda hh: FR + 8 * hh
    f2 = lambda hh: FR + 8 * hh + 4
    qf = lambda tt, hh: QF + (tt * 4 + hh) * 4
    a('s_cmp_ge_u32 s2, 256')
    a('s_cbranch_scc1 p2_end')
    stamp_begin(a)
    ws_srd(a)
    wave_id(a, 12, 1)
    a('v_lshlrev_b32 v1, 4, v0')
    a('v_and_b32 v2, 15, v0')
    a('v_lshrrev_b32 v3, 4, v0')
    a('s_and_b32 s13, s2, 3\ns_lshr_b32 s14, s2, 2')
    a('s_mul_i32 s15, s13, 9\ns_add_u32 s15, s15, s12')
    a('s_mul_i32 s16, s15, 18432\ns_add_u32 s16, s16, %d' % WO)
    a('s_mul_i32 s17, s14, 36\ns_lshr_b32 s4, s15, 1\ns_add_u32 s17, s17, s4\ns_lshl_b32 s17, s17, 10')
    a('s_and_b32 s4, s15, 1\ns_lshl_b32 s4, s4, 3\ns_add_u32 s17, s17, s4')
    a('s_add_u32 s18, s17, %d\ns_add_u32 s19, s18, %d' % (X0, 18432))
    a('s_add_u32 s20, s17, %d\ns_add_u32 s21, s20, %d' % (X1, 18432))
    a('v_and_b32 %s, 3, v2' % vr(VT))
    a('v_lshrrev_b32 %s, 2, v2' % vr(VA))
    a('v_lshl_add_u32 %s, %s, 2, %s' % (vr(VA), vr(VT), vr(VA)))
    a('v_lshlrev_b32 %s, 6, %s' % (vr(VA), vr(VA)))
    a('v_lshl_add_u32 %s, v3, 4, %s' % (vr(VA), vr(VA)))
    a('v_min_u32 %s, 2, %s' % (vr(VT), vr(VT)))
    a('v_lshlrev_b32 %s, 6, %s' % (vr(VB), vr(VT)))
    a('v_lshl_add_u32 %s, v3, 4, %s' % (vr(VB), vr(VB)))
    a('v_lshlrev_b32 %s, 3, v2' % vr(VC))
    a('v_lshlrev_b32 %s, 3, %s' % (vr(VD), vr(VT)))
    a('s_mul_i32 s22, s12, %d\ns_add_u32 s22, s22, %d' % (4 * HS, SS))
    a('s_lshl_b32 s23, s14, 4\ns_add_u32 s23, s23, s12\ns_mul_i32 s23, s23, 2304\ns_add_u32 s23, s23, %d' % PQ)
    a('s_add_u32 s24, s23, %d' % (8 * 2304))
    a('v_lshlrev_b32 v10, 3, v0')
    a('v_lshlrev_b32 v11, 2, v0')
    for hh in range(4):
        a('s_mov_b32 s%d, 0x%x\ns_mov_b32 s%d, 0x%x' % (
            40 + 2 * hh, (0xffff << (16 * hh)) & 0xffffffff, 41 + 2 * hh, ((0xffff << (16 * hh)) >> 32) & 0xffffffff))
    a('s_waitcnt lgkmcnt(0)')
    stamp(a, 1)
    stamp(a, 3)
    stamp(a, 4)
    a('s_cmp_eq_u32 s12, 8')
    a('s_cbranch_scc1 p2_ldw')
    for hh in range(4):
        a('buffer_load_dwordx4 %s, %s, s[8:11], s22 offen' % (vr(f1(hh), 4), vr(VA)))
        a('buffer_load_dwordx2 %s, %s, s[8:11], s22 offen offset:1280' % (vr(XP + 4 * hh, 2), vr(VC)))
        a('buffer_load_dwordx4 %s, %s, s[8:11], s22 offen offset:1024' % (vr(f2(hh), 4), vr(VB)))
        a('buffer_load_dwordx2 %s, %s, s[8:11], s22 offen offset:%d' % (vr(XP + 4 * hh + 2, 2), vr(VD), 1280 + 128))
        a('s_add_u32 s22, s22, %d' % HS)
    for tt in range(2):
        for hh in range(4):
            a('buffer_load_dwordx2 %s, v10, s[8:11], s%d offen offset:%d' % (vr(qf(tt, hh), 2), 23 + tt, 512 * hh))
        a('buffer_load_dword %s, v11, s[8:11], s%d offen offset:2048' % (vr(qf(tt, 0) + 2), 23 + tt))
    a.label('p2_ldw')
    for k in range(18):
        a('buffer_load_dwordx4 %s, v1, s[8:11], s16 offen offset:%d' % (vr(WF + 4 * k, 4), 1024 * (k % 4)))
        if k % 4 == 3:
            a('s_add_u32 s16, s16, 4096')
    a('buffer_load_dwordx2 %s, v1, s[8:11], s18 offen' % vr(RX, 2))
    a('buffer_load_dwordx2 %s, v1, s[8:11], s19 offen' % vr(RX + 2, 2))
    stamp(a, 2)
    a('s_cmp_eq_u32 s12, 8')
    a('s_cbranch_scc1 p2_bar')
    a('s_waitcnt vmcnt(30)')
    stamp(a, 3)
    for hh in range(4):
        for f, x in ((f1(hh), XP + 4 * hh), (f2(hh), XP + 4 * hh + 2)):
            a('v_cvt_pk_bf16_f32 %s, %s, %s' % (vr(f), vr(f), vr(f + 1)))
            a('v_cvt_pk_bf16_f32 %s, %s, %s' % (vr(f + 1), vr(f + 2), vr(f + 3)))
            a('v_cvt_pk_bf16_f32 %s, %s, %s' % (vr(f + 2), vr(x), vr(x + 1)))
            a('v_mov_b32 %s, 0' % vr(f + 3))
            a('v_cndmask_b32 %s, 0, %s, s[%d:%d]' % (vr(f + 2), vr(f + 2), 40 + 2 * hh, 41 + 2 * hh))
    a('s_waitcnt vmcnt(20)')
    stamp(a, 4)
    for tt in range(2):
        for hh in range(4):
            if hh:
                a('v_mov_b32 %s, %s' % (vr(qf(tt, hh) + 2), vr(qf(tt, 0) + 2)))
            a('v_mov_b32 %s, 0' % vr(qf(tt, hh) + 3))
    a('s_lshl_b32 s4, s12, 12')
    a('v_add_u32 %s, s4, v1' % vr(VA))
    a('s_lshr_b32 s4, s12, 2\ns_add_u32 s4, s4, 16\ns_lshl_b32 s4, s4, 11\ns_and_b32 s5, s12, 3\ns_lshl_b32 s5, s5, 2\ns_add_u32 s4, s4, s5')
    a('v_add_u32 %s, s4, v1' % vr(VB))
    for tt in range(2):
        for p in range(2):
            for n in range(2):
                hh = 2 * p + n
                mfma(a, XP + 8 * n, f1(hh), qf(tt, hh))
                mfma(a, XP + 8 * n + 4, f2(hh), qf(tt, hh))
            O = qf(tt, 2 * p)
            for n in range(2):
                hh = 2 * p + n
                d1 = XP + 8 * n; d2 = d1 + 4
                a('v_add_f32 %s, 0x%x, %s' % (vr(d2 + 2), EPS6, vr(d2 + 2)))
                a('v_rcp_f32 %s, %s' % (vr(d2 + 2), vr(d2 + 2)))
                for r in range(6):
                    a('v_mul_f32 %s, %s, %s' % (vr(d1 + r), vr(d1 + r), vr(d2 + 2)))
                a('v_cvt_pk_bf16_f32 %s, %s, %s' % (vr(O + 2 * n), vr(d1), vr(d1 + 1)))
                a('v_cvt_pk_bf16_f32 %s, %s, %s' % (vr(O + 2 * n + 1), vr(d1 + 2), vr(d1 + 3)))
                if hh == 0:
                    a('v_cvt_pk_bf16_f32 %s, %s, %s' % (vr(EX), vr(d2), vr(d2 + 1)))
                else:
                    a('v_cvt_pk_bf16_f32 %s, %s, %s' % (vr(VT), vr(d2), vr(d2 + 1)))
                    a('v_cndmask_b32 %s, %s, %s, s[%d:%d]' % (vr(EX), vr(EX), vr(VT), 40 + 2 * hh, 41 + 2 * hh))
            a('ds_write_b128 %s, %s offset:%d' % (vr(VA), vr(O, 4), 2048 * p + 1024 * tt))
        a('ds_write_b32 %s, %s offset:%d' % (vr(VB), vr(EX), 1024 * tt))
    a.label('p2_bar')
    stamp(a, 5)
    a('s_waitcnt lgkmcnt(0)')
    a('s_barrier')
    stamp(a, 6)
    NB = 12
    slot = lambda n: FR + 4 * (n % NB)
    AC = 4
    for n in range(NB):
        a('ds_read_b128 %s, v1 offset:%d' % (vr(slot(n), 4), 1024 * n))
    for n in range(36):
        k, tt = n >> 1, n & 1
        rem = min(NB - 1, 35 - n)
        a('s_waitcnt vmcnt(%d) lgkmcnt(%d)' % (19 - k, rem))
        mfma(a, AC + 4 * tt, WF + 4 * k, slot(n), None if k == 0 else AC + 4 * tt)
        if n + NB < 36:
            a('ds_read_b128 %s, v1 offset:%d' % (vr(slot(n), 4), 1024 * (n + NB)))
    a('s_waitcnt vmcnt(0)')
    stamp(a, 7)
    T = FR
    for tt in range(2):
        for h in range(2):
            a('v_lshlrev_b32 %s, 16, %s' % (vr(T + 4 * tt + 2 * h), vr(RX + 2 * tt + h)))
            a('v_and_b32 %s, 0xffff0000, %s' % (vr(T + 4 * tt + 2 * h + 1), vr(RX + 2 * tt + h)))
    for tt in range(2):
        for r in range(4):
            a('v_add_f32 %s, %s, %s' % (vr(T + 4 * tt + r), vr(T + 4 * tt + r), vr(AC + 4 * tt + r)))
        a('v_cvt_pk_bf16_f32 %s, %s, %s' % (vr(RX + 2 * tt), vr(T + 4 * tt), vr(T + 4 * tt + 1)))
        a('v_cvt_pk_bf16_f32 %s, %s, %s' % (vr(RX + 2 * tt + 1), vr(T + 4 * tt + 2), vr(T + 4 * tt + 3)))
        a('buffer_store_dwordx2 %s, v1, s[8:11], s%d offen' % (vr(RX + 2 * tt, 2), 20 + tt))
    stamp_end(a, 2, 9, 12, 9)
    a.label('p2_end')
    a('s_endpgm')
    return ('p2_kernel', a, 168, 96 if STAMPS else 48, (256, 576, LDS))


def gen_p0(final):
    a = Asm()
    nm = 'p0b' if final else 'p0a'
    P = 8; RX = 4; AC = 40
    a('s_cmp_ge_u32 s2, 256')
    a('s_cbranch_scc1 %s_end' % nm)
    stamp_begin(a)
    ws_srd(a)
    if final:
        a('s_load_dwordx2 s[24:25], s[0:1], 48')
        a('s_mov_b32 s26, %d\ns_mov_b32 s27, 0x20000' % ACT)
    wave_id(a, 12, 1)
    a('v_lshlrev_b32 v1, 4, v0')
    a('s_and_b32 s13, s2, 3\ns_lshr_b32 s14, s2, 2')
    a('s_mul_i32 s15, s13, 9\ns_add_u32 s15, s15, s12')
    a('s_mul_i32 s16, s14, 36\ns_add_u32 s16, s16, s15\ns_lshl_b32 s16, s16, 10\ns_add_u32 s16, s16, %d' % PART)
    a('s_mul_i32 s17, s14, 36\ns_lshr_b32 s4, s15, 1\ns_add_u32 s17, s17, s4\ns_lshl_b32 s17, s17, 10')
    a('s_and_b32 s5, s15, 1\ns_lshl_b32 s5, s5, 3\ns_add_u32 s17, s17, s5')
    a('s_add_u32 s18, s17, %d\ns_add_u32 s19, s18, %d' % (X1, 18432))
    if final:
        a('s_mul_i32 s20, s14, %d\ns_lshl_b32 s4, s4, 6\ns_add_u32 s20, s20, s4\ns_add_u32 s20, s20, s5' % (32 * 1152))
        a('s_add_u32 s21, s20, %d' % (16 * 1152))
        a('v_and_b32 v2, 15, v0\nv_lshrrev_b32 v3, 4, v0')
        a('v_mul_u32_u24 v2, 1152, v2')
        a('v_lshl_add_u32 v2, v3, 4, v2')
    else:
        a('s_add_u32 s20, s17, %d\ns_add_u32 s21, s20, %d' % (X0, 18432))
    a('s_waitcnt lgkmcnt(0)')
    a('buffer_load_dwordx2 %s, v1, s[8:11], s18 offen' % vr(RX, 2))
    a('buffer_load_dwordx2 %s, v1, s[8:11], s19 offen' % vr(RX + 2, 2))
    for c in range(8):
        a('buffer_load_dwordx4 %s, v1, s[8:11], s16 offen' % vr(P + 4 * c, 4))
        if c < 7:
            a('s_add_u32 s16, s16, %d' % ACT)
    stamp(a, 1)
    a('s_waitcnt vmcnt(8)')
    stamp(a, 2)
    for n in range(4):
        a('v_lshlrev_b32 %s, 16, %s' % (vr(AC + 2 * n), vr(RX + n)))
        a('v_and_b32 %s, 0xffff0000, %s' % (vr(AC + 2 * n + 1), vr(RX + n)))
    for c in range(8):
        a('s_waitcnt vmcnt(%d)' % (7 - c))
        for n in range(4):
            a('v_lshlrev_b32 %s, 16, %s' % (vr(RX + n), vr(P + 4 * c + n)))
            a('v_and_b32 %s, 0xffff0000, %s' % (vr(P + 4 * c + n), vr(P + 4 * c + n)))
        for n in range(4):
            a('v_add_f32 %s, %s, %s' % (vr(AC + 2 * n), vr(AC + 2 * n), vr(RX + n)))
            a('v_add_f32 %s, %s, %s' % (vr(AC + 2 * n + 1), vr(AC + 2 * n + 1), vr(P + 4 * c + n)))
    stamp(a, 3)
    for n in range(4):
        a('v_cvt_pk_bf16_f32 %s, %s, %s' % (vr(RX + n), vr(AC + 2 * n), vr(AC + 2 * n + 1)))
    for tt in range(2):
        if final:
            a('buffer_store_dwordx2 %s, v2, s[24:27], s%d offen' % (vr(RX + 2 * tt, 2), 20 + tt))
        else:
            a('buffer_store_dwordx2 %s, v1, s[8:11], s%d offen' % (vr(RX + 2 * tt, 2), 20 + tt))
    stamp_end(a, 5 if final else 4, 5, 12, 9)
    a.label('%s_end' % nm)
    a('s_endpgm')
    return (nm + '_kernel', a, 48, 96 if STAMPS else 32, (256, 576, 0))


def gen_empty():
    a = Asm()
    a('s_endpgm')
    return ('empty_kernel', a, 8, 16, (256, 256, 0))


def gen_chain(slot):
    a = Asm()
    a('s_cmp_ge_u32 s2, 32')
    a('s_cbranch_scc1 chain_end')
    a('s_load_dwordx2 s[8:9], s[0:1], %d' % (8 * slot))
    a('s_mov_b32 s10, %d\ns_mov_b32 s11, 0x20000' % ACT)
    a('s_mul_i32 s4, s2, %d' % (64 * 1024))
    a('v_mov_b32 v1, 0')
    a('s_mov_b64 exec, 1')
    a('s_waitcnt lgkmcnt(0)')
    for k in range(64):
        a('buffer_load_dword v2, v1, s[8:11], s4 offen')
        a('s_waitcnt vmcnt(0)')
        a('v_and_b32 v2, 0, v2')
        a('v_add_u32 v1, 1024, v1')
        a('v_add_u32 v1, v2, v1')
    a.label('chain_end')
    a('s_endpgm')
    return ('chain_kernel', a, 8, 16, (32, 64, 0))


PRE = []
PRIO = True
P3_NCX = 1
P3_ST = ''


def build():
    ks = [gen_prep(), gen_p1(), gen_p2(), gen_p3(), gen_p0(False), gen_p0(True)]
    if 'empty' in PRE:
        ks.append(gen_empty())
    if 'chain' in PRE:
        ks.append(gen_chain(3))
    geo = {k[0]: k[4] for k in ks}
    order = PRE + ['prep', 'p1', 'p2', 'p3', 'p0a', 'p1', 'p2', 'p3', 'p0b']
    hdr = ['; generated by gen/gen.py (hand-written generator); see that file for the layouts']
    for o in order:
        g, b, l = geo[o + '_kernel']
        hdr.append('; @launch kernel=%s_kernel grid=(%d,1,1) block=(%d,1,1) lds=%d' % (o, g, b, l))
    out = '\n'.join(hdr) + '\n.amdgcn_target "amdgcn-amd-amdhsa--gfx950"\n'
    descs = ''
    for name, a, nv, ns, _ in ks:
        c, d = kernel_text(name, a, nv, ns)
        out += c
        descs += d
    return out + descs


if __name__ == '__main__':
    path = sys.argv[1] if len(sys.argv) > 1 else 'cdna_kernels/%s.s' % NAME
    for o in sys.argv[2:]:
        k, v = o.split('=')
        globals()[k] = eval(v)
    open(path, 'w').write(build())
    print('wrote', path)
```

```python
import sys
from asmlib import Asm, vr, sr, kernel_text

NAME = 'interleave_layers__linear_attn_block__dense_activation_silu__prompt'
S, D, F = 2048, 576, 4608
ACT = S * D * 2
WQ_HG = 258048
WQ = 0
WO = WQ + 8 * WQ_HG
W1 = WO + 36 * 18432
W2 = W1 + D * F * 2
X0 = W2 + D * F * 2
X1 = X0 + ACT
PQ = X1 + ACT
SS = PQ + ACT
HS = 1536
PART = SS + 32 * HS
WS_BYTES = 268435456
OOB = 0x80000000
LOG2E = 0x3fb8aa3b
NLOG2E = 0xbfb8aa3b
EPS6 = 0x358637bd
EPS5 = 0x3727c5ac
INV576 = 0x3ae38e39
ONES = 0x3f803f80
MF = 'v_mfma_f32_16x16x32_bf16'


def mfma(a, d, x, y, c=None):
    a('%s %s, %s, %s, %s' % (MF, vr(d, 4), vr(x, 4), vr(y, 4), '0' if c is None else vr(c, 4)))


def ws_srd(a):
    a('s_load_dwordx2 s[8:9], s[0:1], 64')
    a('s_mov_b32 s10, 0x%x' % WS_BYTES)
    a('s_mov_b32 s11, 0x20000')


def wave_id(a, sdst, vtmp):
    a('v_lshrrev_b32 %s, 6, v0' % vr(vtmp))
    a('v_readfirstlane_b32 %s, %s' % (sr(sdst), vr(vtmp)))
    a('v_and_b32 v0, 63, v0')


DBG = 128 << 20
STAMPS = False


def stamp(a, i):
    if STAMPS:
        a('s_mem%stime s[%d:%d]' % ('real' if STAMPS == 2 else '', 60 + 2 * i, 61 + 2 * i))


def stamp_begin(a):
    if STAMPS:
        a('s_memrealtime s[56:57]')
        stamp(a, 0)


def stamp_end(a, kid, n, s_wave, nw):
    if not STAMPS:
        return
    a('s_waitcnt vmcnt(0)')
    stamp(a, n - 1)
    a('s_memrealtime s[58:59]')
    a('s_getreg_b32 s55, hwreg(HW_REG_XCC_ID)')
    a('s_getreg_b32 s54, hwreg(HW_REG_HW_ID)')
    a('s_mov_b64 exec, -1')
    a('s_mul_i32 s4, s2, %d\ns_add_u32 s4, s4, %s\ns_lshl_b32 s4, s4, 6\ns_add_u32 s4, s4, %d' % (nw, sr(s_wave), DBG + (kid << 20)))
    a('s_waitcnt lgkmcnt(0)')
    a('v_mov_b32 v2, 0')
    for i in range(n):
        a('v_writelane_b32 v2, s%d, %d' % (60 + 2 * i, i))
    a('v_writelane_b32 v2, s54, 12')
    a('v_writelane_b32 v2, s55, 13')
    a('v_writelane_b32 v2, s56, 14')
    a('v_writelane_b32 v2, s58, 15')
    a('v_mbcnt_lo_u32_b32 v3, -1, 0')
    a('v_lshlrev_b32 v3, 2, v3')
    a('s_mov_b64 exec, 0xffff')
    a('buffer_store_dword v2, v3, s[8:11], s4 offen')


def conv_unit(a, L, nw, s_u, s_w, lds_base, lds_cs):
    nk = 18 // nw
    FR = 24; ON = 8; CS = FR + 16 * nk
    fr = lambda k, c: FR + (k * 4 + c) * 4
    a('s_mov_b32 s14, %d\ns_mov_b32 s15, 0x20000' % (D * F * 2))
    a('s_cmp_ge_u32 %s, 72' % sr(s_u))
    a('s_cbranch_scc1 %s_w2' % L)
    a('s_mov_b32 s12, s30\ns_mov_b32 s13, s31')
    a('s_mov_b32 s18, 9216\ns_lshl_b32 s19, %s, 7\ns_mov_b32 s16, %d\ns_lshl_b32 s21, %s, 2' % (sr(s_u), W1, sr(s_u)))
    a('s_branch %s_go' % L)
    a.label('%s_w2' % L)
    a('s_mov_b32 s12, s32\ns_mov_b32 s13, s33')
    a('s_sub_u32 s21, %s, 72' % sr(s_u))
    a('s_mul_i32 s4, s21, 7282\ns_lshr_b32 s4, s4, 16')
    a('s_mul_i32 s5, s4, 9\ns_sub_u32 s5, s21, s5\ns_lshl_b32 s5, s5, 7')
    a('s_mul_i32 s19, s4, %d\ns_add_u32 s19, s19, s5' % (576 * 1152))
    a('s_mov_b32 s18, 1152\ns_mov_b32 s16, %d\ns_lshl_b32 s21, s21, 2' % W2)
    a.label('%s_go' % L)
    a('s_mul_i32 s4, %s, s18\ns_mul_i32 s4, s4, %d\ns_add_u32 s19, s19, s4' % (sr(s_w), 32 * nk))
    a('s_mul_i32 s22, %s, %d\ns_add_u32 s22, s22, %d' % (sr(s_w), 4096 * nk, lds_base))
    a('s_lshl_b32 s17, s18, 3')
    a('v_lshrrev_b32 v4, 3, v0')
    a('v_mul_lo_u32 v4, v4, s18')
    a('v_and_b32 v5, 7, v0')
    a('v_lshrrev_b32 v6, 2, v0')
    a('v_and_b32 v6, 4, v6')
    a('v_xor_b32 v5, v5, v6')
    a('v_lshl_add_u32 v4, v5, 4, v4')
    a('s_mov_b32 s23, s22')
    for n in range(4 * nk):
        a('s_mov_b32 m0, s23')
        a('s_add_u32 s23, s23, 1024')
        a('buffer_load_dwordx4 v4, s[12:15], s19 offen nt lds')
        a('s_add_u32 s19, s19, s17')
    a('v_lshrrev_b32 v5, 4, v0')
    a('v_bfe_u32 v6, v0, 2, 2')
    a('v_lshl_add_u32 v5, v5, 3, v6')
    a('v_lshlrev_b32 v5, 7, v5')
    a('v_and_b32 v6, 3, v0')
    a('v_lshl_add_u32 v5, v6, 4, v5')
    a('v_and_b32 v6, 8, v0')
    a('v_lshl_add_u32 v5, v6, 3, v5')
    a('v_add_u32 v5, s22, v5')
    a('v_xor_b32 v6, 64, v5')
    for c in range(4):
        a('s_add_u32 s4, s21, %d\ns_mul_i32 s5, s4, 43691\ns_lshr_b32 s5, s5, 17' % c)
        a('s_mul_i32 s6, s5, 51\ns_add_u32 s4, s4, s6\ns_mul_i32 s6, %s, %d\ns_add_u32 s4, s4, s6' % (sr(s_w), 3 * nk))
        a('s_lshl_b32 s4, s4, 10\ns_add_u32 s%d, s4, s16' % (24 + c))
    for k in range(4):
        a('v_mov_b32 %s, 0x%x' % (vr(ON + k), ONES))
    for k in range(nk):
        a('s_waitcnt vmcnt(%d)' % (4 * (nk - 1 - k)))
        for c in range(4):
            for hi in range(2):
                a('ds_read_b64_tr_b16 %s, v%d offset:%d' % (vr(fr(k, c) + 2 * hi, 2), 5 + (c >> 1), 4096 * k + 512 * hi + 8 * (c & 1)))
        if k + 1 < nk:
            a('s_waitcnt lgkmcnt(4)')
    a('s_waitcnt lgkmcnt(0)')
    a('s_cmp_ge_u32 %s, 72' % sr(s_u))
    a('s_cbranch_scc1 %s_st' % L)
    for k in range(nk):
        for c in range(4):
            mfma(a, CS + 4 * c, ON, fr(k, c), None if k == 0 else CS + 4 * c)
    a('v_and_b32 v4, 15, v0')
    a('v_mul_u32_u24 v4, %d, v4' % (16 * nw))
    a('s_lshl_b32 s4, %s, 4' % sr(s_w))
    a('v_add_u32 v5, s4, v4')
    for c in range(4):
        a('v_mov_b32 %s, %s' % (vr(ON + c), vr(CS + 4 * c)))
    a('ds_write_b128 v5, %s offset:%d' % (vr(ON, 4), lds_cs))
    a('s_waitcnt lgkmcnt(0)')
    a('s_barrier')
    for w in range(nw):
        a('ds_read_b128 %s, v4 offset:%d' % (vr(CS + 4 * w, 4), lds_cs + 16 * w))
    a('s_waitcnt lgkmcnt(0)')
    for c in range(4):
        for w in range(1, nw):
            a('v_add_f32 %s, %s, %s' % (vr(CS + c), vr(CS + c), vr(CS + 4 * w + c)))
        a('v_mul_f32 %s, 0x%x, %s' % (vr(CS + c), INV576, vr(CS + c)))
    for k in range(nk):
        for c in range(4):
            f = fr(k, c)
            for p in range(4):
                a('v_lshlrev_b32 %s, 16, %s' % (vr(12 + 2 * p), vr(f + p)))
                a('v_and_b32 %s, 0xffff0000, %s' % (vr(13 + 2 * p), vr(f + p)))
            for p in range(8):
                a('v_sub_f32 %s, %s, %s' % (vr(12 + p), vr(12 + p), vr(CS + c)))
            for p in range(4):
                a('v_cvt_pk_bf16_f32 %s, %s, %s' % (vr(f + p), vr(12 + 2 * p), vr(13 + 2 * p)))
    a.label('%s_st' % L)
    for k in range(nk):
        for c in range(4):
            a('buffer_store_dwordx4 %s, v1, s[8:11], s%d offen%s' % (vr(fr(k, c), 4), 24 + c, PREP_ST))
            a('s_add_u32 s%d, s%d, 3072' % (24 + c, 24 + c))
    return CS + 4 * max(4, nw)


def gen_prep():
    a = Asm()
    NM = 8; NT = 144; NG = 148; NX = 128
    LCS = 0; LB = 2048
    a('s_cmp_ge_u32 s2, %d' % (NM + NT + NG + NX))
    a('s_cbranch_scc1 prep_end')
    stamp_begin(a)
    ws_srd(a)
    a('s_load_dwordx4 s[24:27], s[0:1], 0')
    a('s_load_dwordx2 s[28:29], s[0:1], 16')
    a('s_load_dwordx2 s[30:31], s[0:1], 32')
    a('s_load_dwordx2 s[32:33], s[0:1], 40')
    wave_id(a, 3, 1)
    a('v_lshlrev_b32 v1, 4, v0')
    a('v_and_b32 v2, 15, v0')
    a('v_lshrrev_b32 v3, 4, v0')
    a('s_cmp_lt_u32 s2, %d' % NM)
    a('s_cbranch_scc1 prep_misc')
    a('s_sub_u32 s20, s2, %d' % NM)
    a('s_waitcnt lgkmcnt(0)')
    a('s_cmp_ge_u32 s2, %d' % (NM + NT))
    a('s_cbranch_scc1 prep_gx')
    nv = conv_unit(a, 'prep_c', 6, 20, 3, LB, LCS)
    stamp_end(a, 0, 2, 3, 6)
    a('s_endpgm')
    a.label('prep_gx')
    a('s_mov_b32 s15, 0x20000')
    a('s_sub_u32 s20, s20, %d' % NT)
    a('s_cmp_ge_u32 s20, %d' % NG)
    a('s_cbranch_scc1 prep_x')
    V = 16
    a('v_lshrrev_b32 v5, 2, v2')
    a('v_and_b32 v6, 3, v2')
    a('s_mov_b64 s[6:7], -1')
    a('s_mul_i32 s21, s3, 3')
    a('s_cmp_ge_u32 s20, 112')
    a('s_cbranch_scc1 prep_wo')
    a('s_mov_b32 s12, s26\ns_mov_b32 s13, s27\ns_mov_b32 s14, %d' % (D * 3 * D * 2))
    a('s_mul_i32 s4, s20, 4682\ns_lshr_b32 s4, s4, 16')
    a('s_mul_i32 s5, s4, 14\ns_sub_u32 s5, s20, s5')
    a('s_lshr_b32 s35, s5, 1\ns_and_b32 s36, s5, 1')
    a('s_mul_i32 s16, s4, 7\ns_add_u32 s16, s16, s35\ns_mul_i32 s16, s16, 36\ns_add_u32 s16, s16, s36')
    a('s_lshl_b32 s17, s21, 1\ns_add_u32 s16, s16, s17\ns_lshl_b32 s16, s16, 10\ns_add_u32 s16, s16, %d' % WQ)
    a('s_mov_b32 s17, 2048')
    a('s_mul_i32 s34, s4, 72')
    a('s_cmp_ge_u32 s5, 12')
    a('s_cbranch_scc1 prep_wq_x')
    a('s_sub_u32 s37, s5, 8')
    a('s_add_u32 s36, s36, 1\ns_mul_i32 s36, s36, 576')
    a('s_cmp_ge_u32 s5, 8')
    a('s_cselect_b32 s35, s37, s35\ns_cselect_b32 s36, 0, s36')
    a('s_mul_i32 s35, s35, 18\ns_add_u32 s34, s34, s35\ns_add_u32 s34, s34, s36')
    a('v_add_u32 v8, s34, v2')
    a('s_branch prep_wq_go')
    a.label('prep_wq_x')
    a('s_add_u32 s34, s34, 16')
    a('s_cmp_eq_u32 s5, 13')
    a('s_cbranch_scc1 prep_wq_qx')
    a('v_mul_u32_u24 v8, 18, v6')
    a('v_lshrrev_b32 v9, 3, v2')
    a('v_mad_u32_u24 v8, v9, 64, v8')
    a('v_lshl_add_u32 v8, v9, 9, v8')
    a('v_and_b32 v9, 1, v5')
    a('s_add_u32 s34, s34, 576')
    a('v_add3_u32 v8, v8, v9, s34')
    a('s_branch prep_wq_go')
    a.label('prep_wq_qx')
    a('v_mul_u32_u24 v9, 18, v5')
    a('v_add3_u32 v8, v9, v6, s34')
    a('s_mov_b32 s6, 0x33333333\ns_mov_b32 s7, 0x33333333')
    a.label('prep_wq_go')
    a('v_mul_u32_u24 v9, %d, v3' % (8 * 3456))
    a('v_lshl_add_u32 v9, v8, 1, v9')
    a('v_mov_b32 v10, 0x%x' % OOB)
    a('v_cndmask_b32 v9, v10, v9, s[6:7]')
    a('s_mul_i32 s19, s21, %d' % (32 * 3456))
    for k in range(3):
        for i in range(8):
            a('buffer_load_ushort %s, v9, s[12:15], s19 offen offset:%d' % (vr(V + k * 8 + i), 3456 * (i & 1)))
            if i & 1:
                a('s_add_u32 s19, s19, %d' % (3456 * (2 if i < 7 else 26)))
    a('s_waitcnt vmcnt(0)')
    for k in range(24):
        a('v_lshlrev_b32 %s, 16, %s' % (vr(V + k), vr(V + k)))
    for k in range(4):
        a('v_add_f32 v%d, %s, %s' % (11 + k, vr(V + k), vr(V + 4 + k)))
    for k in range(8, 24):
        a('v_add_f32 v%d, v%d, %s' % (11 + k % 4, 11 + k % 4, vr(V + k)))
    a('v_add_f32 v11, v11, v12\nv_add_f32 v13, v13, v14\nv_add_f32 v11, v11, v13')
    a('s_lshl_b32 s4, s3, 8')
    a('v_lshl_add_u32 v12, v0, 2, s4')
    a('ds_write_b32 v12, v11')
    a('v_lshlrev_b32 v12, 2, v2')
    a('s_waitcnt lgkmcnt(0)')
    a('s_barrier')
    for n in range(12):
        a('ds_read2_b32 %s, v12 offset0:%d offset1:%d' % (vr(40 + 2 * n, 2), 32 * (n % 8), 32 * (n % 8) + 16))
        if n == 7:
            a('v_add_u32 v12, 1024, v12')
    a('s_waitcnt lgkmcnt(0)')
    for st in (12, 6, 3):
        for n in range(st):
            a('v_add_f32 %s, %s, %s' % (vr(40 + n), vr(40 + n), vr(40 + st + n)))
    a('v_add_f32 v40, v40, v41\nv_add_f32 v40, v40, v42')
    a('v_mul_f32 v11, 0x%x, v40' % INV576)
    for k in range(24):
        a('v_sub_f32 %s, %s, v11' % (vr(V + k), vr(V + k)))
    a('s_branch prep_pack')
    a.label('prep_wo')
    a('s_mov_b32 s12, s28\ns_mov_b32 s13, s29\ns_mov_b32 s14, %d' % (D * D * 2))
    a('s_sub_u32 s22, s20, 112')
    a('s_mul_i32 s16, s22, 18\ns_add_u32 s16, s16, s21\ns_lshl_b32 s16, s16, 10\ns_add_u32 s16, s16, %d' % WO)
    a('s_mov_b32 s17, 1024')
    a('s_lshr_b32 s4, s22, 1\ns_lshl_b32 s4, s4, 5\ns_and_b32 s5, s22, 1\ns_lshl_b32 s5, s5, 2\ns_add_u32 s4, s4, s5')
    a('v_lshl_add_u32 v7, v5, 3, v6')
    a('v_add_u32 v8, s4, v7')
    for k in range(3):
        a('s_add_u32 s4, s21, %d' % k)
        a('s_mul_i32 s19, s4, %d' % (36 * 1152))
        a('s_sub_u32 s5, s4, 16\ns_mul_i32 s5, s5, %d\ns_add_u32 s5, s5, %d' % (288 * 1152, 16 * 1152))
        a('s_cmp_lt_u32 s4, 16')
        a('s_cselect_b32 s19, s19, s5')
        a('s_cselect_b32 s34, %d, %d' % (2, 72))
        a('s_cselect_b32 s35, %d, %d' % (16, 72))
        a('s_cselect_b32 s36, %d, %d' % (4, 18))
        a('s_mul_i32 s34, s34, 1152\ns_mul_i32 s35, s35, 1152\ns_mul_i32 s36, s36, 1152')
        a('v_mul_lo_u32 v9, v3, s36')
        a('v_lshl_add_u32 v9, v8, 1, v9')
        for i in range(8):
            a('buffer_load_ushort %s, v9, s[12:15], s19 offen offset:%d' % (vr(V + k * 8 + i), 1152 * (i & 1)))
            if i in (1, 3, 5):
                a('s_add_u32 s19, s19, s%d' % (35 if i == 3 else 34))
    a('s_waitcnt vmcnt(0)')
    for k in range(24):
        a('v_lshlrev_b32 %s, 16, %s' % (vr(V + k), vr(V + k)))
    a.label('prep_pack')
    for k in range(3):
        b = V + k * 8
        for p in range(4):
            a('v_cvt_pk_bf16_f32 %s, %s, %s' % (vr(b + p), vr(b + 2 * p), vr(b + 2 * p + 1)))
        a('buffer_store_dwordx4 %s, v1, s[8:11], s16 offen%s' % (vr(b, 4), PREP_ST))
        a('s_add_u32 s16, s16, s17')
    stamp_end(a, 0, 2, 3, 6)
    a('s_endpgm')
    a.label('prep_x')
    a('s_mov_b32 s12, s24\ns_mov_b32 s13, s25\ns_mov_b32 s14, %d' % ACT)
    a('s_sub_u32 s20, s20, %d' % NG)
    a('s_mul_i32 s19, s20, %d\ns_mul_i32 s6, s3, 192\ns_add_u32 s19, s19, s6' % (16 * 1152))
    a('v_mul_u32_u24 v9, 1152, v2')
    a('v_lshl_add_u32 v9, v3, 4, v9')
    a('s_mul_i32 s16, s20, 6\ns_add_u32 s16, s16, s3\ns_mul_i32 s16, s16, 3072\ns_add_u32 s16, s16, %d' % X0)
    for k in range(3):
        a('buffer_load_dwordx4 %s, v9, s[12:15], s19 offen offset:%d%s' % (vr(V + 4 * k, 4), 64 * k, PREP_XLD))
    for k in range(3):
        a('s_waitcnt vmcnt(2)')
        a('buffer_store_dwordx4 %s, v1, s[8:11], s16 offen offset:%d%s' % (vr(V + 4 * k, 4), 1024 * k, PREP_ST))
    stamp_end(a, 0, 2, 3, 6)
    a('s_endpgm')
    a.label('prep_misc')
    if CODE_PF:
        a('s_getpc_b64 s[4:5]')
        a.label('prep_pc')
        a('s_sub_u32 s4, s4, prep_pc-prep_kernel')
        a('s_subb_u32 s5, s5, 0')
        a('s_lshl_b32 s6, s3, 13')
        a('v_lshl_add_u32 v4, v0, 7, s6')
        a('v_min_u32 v4, code_end-prep_kernel-4, v4')
        a('global_load_dword v5, v4, s[4:5]')
    a('s_mul_i32 s16, s2, 6\ns_add_u32 s16, s16, s3\ns_lshl_b32 s16, s16, 10\ns_add_u32 s16, s16, %d' % SS)
    for k in range(4):
        a('v_mov_b32 v%d, 0' % (V + k))
    a('s_waitcnt lgkmcnt(0)')
    a('buffer_store_dwordx4 %s, v1, s[8:11], s16 offen' % vr(V, 4))
    a('s_waitcnt vmcnt(0)')
    stamp_end(a, 0, 2, 3, 6)
    a.label('prep_end')
    a('s_endpgm')
    return ('prep_kernel', a, max(nv, 64), 96 if STAMPS else 40, (NM + NT + NG + NX, 384, LB + 73728))


def xcd_map(a, ncx, s_c, s_r, nc=8):
    lg = ncx.bit_length() - 1
    ng = nc // ncx
    lgg = ng.bit_length() - 1
    a('s_and_b32 s4, s2, 7\ns_lshr_b32 s5, s2, 3')
    a('s_and_b32 s6, s4, %d\ns_lshl_b32 s6, s6, %d\ns_and_b32 s7, s5, %d\ns_add_u32 %s, s6, s7' % (ng - 1, lg, ncx - 1, sr(s_c)))
    a('s_lshr_b32 s6, s4, %d\ns_mul_i32 s6, s6, %d\ns_lshr_b32 s7, s5, %d\ns_add_u32 %s, s6, s7' % (lgg, 32 // ncx, lg, sr(s_r)))


def l2_touch(a, base, part_bytes, ncx, nc, v_t, v_d, share=1, s_sub=None):
    ng = nc // ncx
    lines = ncx * part_bytes // 128
    per = -(-lines // (32 * share))
    n = -(-per // 64)
    a('s_and_b32 s4, s2, %d\ns_mul_i32 s4, s4, %d\ns_add_u32 s4, s4, %d' % (ng - 1, ncx * part_bytes, base))
    a('s_lshr_b32 s5, s2, 3')
    if share > 1:
        a('s_mul_i32 s5, s5, %d\ns_add_u32 s5, s5, %s' % (share, sr(s_sub)))
    a('s_mul_i32 s5, s5, %d' % per)
    for i in range(n):
        a('v_add_u32 %s, %d, v0' % (vr(v_t), 64 * i))
        if (i + 1) * 64 > per:
            a('v_min_u32 %s, %d, %s' % (vr(v_t), per - 1, vr(v_t)))
        a('v_add_u32 %s, s5, %s' % (vr(v_t), vr(v_t)))
        a('v_min_u32 %s, %d, %s' % (vr(v_t), lines - 1, vr(v_t)))
        a('v_lshlrev_b32 %s, 7, %s' % (vr(v_t), vr(v_t)))
        a('buffer_load_dword %s, %s, s[8:11], s4 offen' % (vr(v_d), vr(v_t)))


def x_dma(a, nk, s_g, s_l, v_l16):
    for k in range(nk):
        a('s_mov_b32 m0, %s' % sr(s_l))
        if k < nk - 1:
            a('s_add_u32 %s, %s, 4096' % (sr(s_l), sr(s_l)))
        else:
            a('s_nop 0')
        a('buffer_load_dwordx4 %s, s[8:11], %s offen lds' % (vr(v_l16), sr(s_g)))
        if k < nk - 1:
            a('s_add_u32 %s, %s, 1024' % (sr(s_g), sr(s_g)))


def stats_prepass(a, nk, v_addr, v_fr, v_ones, v_res, v_t, v_g, v_tmp, v_dst):
    for k in range(nk):
        a('ds_read_b128 %s, %s offset:%d' % (vr(v_fr + 4 * k, 4), vr(v_addr), 4096 * k))
    for k in range(4):
        a('v_mov_b32 %s, 0x%x' % (vr(v_ones + k), ONES))
    for k in range(nk):
        a('s_waitcnt lgkmcnt(%d)' % (nk - 1 - k))
        f = v_fr + 4 * k
        mfma(a, v_res, v_ones, f, None if k == 0 else v_res)
        mfma(a, v_res + 4, f, f, None if k == 0 else v_res + 4)
    a('s_mov_b32 s40, 0x22222222\ns_mov_b32 s41, 0x22222222')
    a('s_mov_b32 s42, 0x44444444\ns_mov_b32 s43, 0x44444444')
    a('s_mov_b32 s44, 0x88888888\ns_mov_b32 s45, 0x88888888')
    a('v_cndmask_b32 %s, %s, %s, s[40:41]' % (vr(v_res + 1), vr(v_res + 4), vr(v_res + 5)))
    a('v_cndmask_b32 %s, %s, %s, s[42:43]' % (vr(v_res + 1), vr(v_res + 1), vr(v_res + 6)))
    a('v_cndmask_b32 %s, %s, %s, s[44:45]' % (vr(v_res + 1), vr(v_res + 1), vr(v_res + 7)))
    a('s_mov_b32 exec_lo, 0x00f0000f\ns_mov_b32 exec_hi, 0xf0000f00')
    a('ds_write_b64 %s, %s' % (vr(v_dst), vr(v_res, 2)))
    a('s_mov_b64 exec, -1')


def stats_final(a, nparts, lds_stats, v_lane, v_tmp):
    a('v_lshlrev_b32 %s, 3, %s' % (vr(v_tmp + 6), vr(v_lane)))
    for p in range(nparts):
        a('ds_read_b64 %s, %s offset:%d' % (vr(v_tmp + 2 * p, 2), vr(v_tmp + 6), p * 512))
    a('s_waitcnt lgkmcnt(0)')
    for p in range(1, nparts):
        a('v_add_f32 %s, %s, %s' % (vr(v_tmp), vr(v_tmp), vr(v_tmp + 2 * p)))
        a('v_add_f32 %s, %s, %s' % (vr(v_tmp + 1), vr(v_tmp + 1), vr(v_tmp + 2 * p + 1)))
    a('v_mul_f32 %s, 0x%x, %s' % (vr(v_tmp), INV576, vr(v_tmp)))
    a('v_mul_f32 %s, 0x%x, %s' % (vr(v_tmp + 1), INV576, vr(v_tmp + 1)))
    a('v_fma_f32 %s, -%s, %s, %s' % (vr(v_tmp + 1), vr(v_tmp), vr(v_tmp), vr(v_tmp + 1)))
    a('v_max_f32 %s, 0, %s' % (vr(v_tmp + 1), vr(v_tmp + 1)))
    a('v_add_f32 %s, 0x%x, %s' % (vr(v_tmp + 1), EPS5, vr(v_tmp + 1)))
    a('v_rsq_f32 %s, %s' % (vr(v_tmp), vr(v_tmp + 1)))


def diag_select(a, dst, src):
    a('s_mov_b32 s40, 0x22222222\ns_mov_b32 s41, 0x22222222')
    a('s_mov_b32 s42, 0x44444444\ns_mov_b32 s43, 0x44444444')
    a('s_mov_b32 s44, 0x88888888\ns_mov_b32 s45, 0x88888888')
    a('v_cndmask_b32 %s, %s, %s, s[40:41]' % (vr(dst), vr(src), vr(src + 1)))
    a('v_cndmask_b32 %s, %s, %s, s[42:43]' % (vr(dst), vr(dst), vr(src + 2)))
    a('v_cndmask_b32 %s, %s, %s, s[44:45]' % (vr(dst), vr(dst), vr(src + 3)))


def rstd_from(a, dst, vsum, vsq):
    a('v_mul_f32 %s, 0x%x, %s' % (vr(vsum), INV576, vr(vsum)))
    a('v_mul_f32 %s, 0x%x, %s' % (vr(vsq), INV576, vr(vsq)))
    a('v_fma_f32 %s, -%s, %s, %s' % (vr(vsq), vr(vsum), vr(vsum), vr(vsq)))
    a('v_max_f32 %s, 0, %s' % (vr(vsq), vr(vsq)))
    a('v_add_f32 %s, 0x%x, %s' % (vr(vsq), EPS5, vr(vsq)))
    a('v_rsq_f32 %s, %s' % (vr(dst), vr(vsq)))


def lds_spin(a, name, v_tmp, v_zero, off, mask, want):
    a.label(name)
    a('ds_read_b32 %s, %s offset:%d' % (vr(v_tmp), vr(v_zero), off))
    a('s_waitcnt lgkmcnt(0)')
    a('v_readfirstlane_b32 s4, %s' % vr(v_tmp))
    a('s_and_b32 s4, s4, 0x%x' % mask)
    a('s_cmp_eq_u32 s4, 0x%x' % want)
    a('s_cbranch_scc1 %s_ok' % name)
    a('s_sleep 1')
    a('s_branch %s' % name)
    a.label(name + '_ok')


def gen_p3():
    a = Asm()
    CNT = 256; TOK = 272; XI = 512; HI = XI + 73728
    LDS = HI + 73728
    ACC = 4; RING = ACC + 48; BF = RING + 72; RS = BF + 32
    VA = RS + 4; VT = VA + 3; VZ = VT + 1; VC = VZ + 1; VK = VC + 1
    acc = lambda j, tt: ACC + (j * 4 + tt) * 4
    ring = lambda k, j: RING + ((k % 6) * 3 + j) * 4
    bf = lambda p, tt: BF + (p * 4 + tt) * 4
    a('s_cmp_ge_u32 s2, 256')
    a('s_cbranch_scc1 p3_end')
    stamp_begin(a)
    ws_srd(a)
    wave_id(a, 12, 1)
    a('v_lshlrev_b32 v1, 4, v0')
    a('v_and_b32 v2, 15, v0')
    a('s_and_b32 s20, s12, 3\ns_lshr_b32 s21, s12, 2')
    a('v_mov_b32 %s, 0' % vr(VZ))
    a('s_lshl_b32 s4, s20, 2')
    a('v_mov_b32 %s, s4' % vr(VK))
    a('ds_write_b32 %s, %s offset:%d' % (vr(VZ), vr(VZ), CNT))
    a('ds_write_b32 %s, %s offset:%d' % (vr(VK), vr(VZ), TOK))
    xcd_map(a, P3_NCX, 13, 14)
    a('s_lshl_b32 s4, s14, 2\ns_add_u32 s4, s4, s20\ns_mul_i32 s4, s4, 18\ns_mul_i32 s5, s21, 6\ns_add_u32 s4, s4, s5')
    a('s_lshl_b32 s4, s4, 10\ns_add_u32 s22, s4, %d' % X1)
    a('s_mul_i32 s5, s21, 24\ns_add_u32 s5, s5, s20\ns_lshl_b32 s5, s5, 10\ns_add_u32 s23, s5, %d' % XI)
    a('s_mul_i32 s4, s14, 21846\ns_lshr_b32 s4, s4, 16\ns_mul_i32 s4, s4, 3\ns_sub_u32 s19, s14, s4')
    a('s_lshl_b32 s4, s19, 2\ns_add_u32 s28, s12, s4\ns_cmp_ge_u32 s28, 12\ns_cselect_b32 s4, 12, 0\ns_sub_u32 s28, s28, s4')
    a('s_mul_i32 s16, s13, 12\ns_add_u32 s16, s16, s28\ns_mul_i32 s16, s16, 55296\ns_add_u32 s16, s16, %d' % W1)
    a('s_mov_b32 s17, s19')
    for b in range(3):
        a('s_mul_i32 s4, s17, 18432\ns_add_u32 s%d, s4, s16' % (30 + b))
        a('s_mul_i32 s4, s17, 24576\ns_add_u32 s4, s4, %d' % XI)
        a('v_add_u32 %s, s4, v1' % vr(VA + b))
        if b < 2:
            a('s_add_u32 s17, s17, 1\ns_cmp_eq_u32 s17, 3\ns_cselect_b32 s17, 0, s17')
    a('s_lshl_b32 s4, s21, 3\ns_lshl_b32 s27, 1, s4')
    a('s_mov_b32 s18, s21')
    a('s_mov_b32 s34, 0\ns_mov_b32 s35, 0')
    a('s_waitcnt lgkmcnt(0)')
    x_dma(a, 6, 22, 23, 1)
    a('s_barrier')
    stamp(a, 1)
    a('s_cmp_eq_u32 s21, 0')
    a('s_cbranch_scc1 p3_fill')
    a('s_waitcnt vmcnt(0)')
    a('s_barrier')
    a('s_cmp_eq_u32 s21, 1')
    a('s_cbranch_scc1 p3_tok')
    a('s_setprio %d' % P3_SPRIO)
    a('s_lshl_b32 s4, s20, 10\ns_add_u32 s4, s4, %d' % XI)
    a('v_add_u32 %s, s4, v1' % vr(VC))
    a('v_add_u32 %s, %d, %s' % (vr(VT), 9 * 4096, vr(VC)))
    for k in range(4):
        a('v_mov_b32 %s, 0x%x' % (vr(BF + k), ONES))
    rdk = lambda k: a('ds_read_b128 %s, %s offset:%d' % (vr(RING + 4 * k, 4), vr(VC if k < 9 else VT), 4096 * (k % 9)))
    for k in range(12):
        rdk(k)
    for k in range(18):
        a('s_waitcnt lgkmcnt(%d)' % min(11, 17 - k))
        f = RING + 4 * k
        mfma(a, ACC, BF, f, None if k == 0 else ACC)
        mfma(a, ACC + 4, f, f, None if k == 0 else ACC + 4)
        if k + 12 < 18:
            rdk(k + 12)
    diag_select(a, ACC + 1, ACC + 4)
    rstd_from(a, ACC + 2, ACC, ACC + 1)
    a('s_lshl_b32 s4, s20, 6')
    a('v_lshl_add_u32 %s, v2, 2, s4' % vr(VT))
    a('v_mov_b32 %s, 0x1000000' % vr(VC))
    a('s_mov_b32 exec_lo, 0x00f0000f\ns_mov_b32 exec_hi, 0xf0000f00')
    a('ds_write_b32 %s, %s' % (vr(VT), vr(ACC + 2)))
    a('s_mov_b64 exec, 1')
    a('ds_add_u32 %s, %s offset:%d' % (vr(VZ), vr(VC), CNT))
    a('s_mov_b64 exec, -1')
    a.label('p3_tok')
    a('ds_read_b32 %s, %s offset:%d' % (vr(VT), vr(VK), TOK))
    a('s_waitcnt lgkmcnt(0)')
    a('v_readfirstlane_b32 s4, %s' % vr(VT))
    a('s_cmp_ge_u32 s4, s18')
    a('s_cbranch_scc1 p3_fill')
    a('s_sleep 1')
    a('s_branch p3_tok')
    a.label('p3_fill')
    a('s_mov_b32 s15, s30')
    for k in range(6):
        for j in range(3):
            a('buffer_load_dwordx4 %s, v1, s[8:11], s15 offen offset:%d%s' % (vr(ring(k, j), 4), 1024 * j, P3_LD))
        if k < 5:
            a('s_add_u32 s15, s15, 3072')
    a('s_add_u32 s4, s18, 1')
    a('v_mov_b32 %s, s4' % vr(VC))
    a('s_cmp_lt_u32 s18, 3')
    a('s_cbranch_scc1 p3_pa')
    lds_spin(a, 'p3_w2', VT, VZ, CNT, 0xff, 0x04)
    a('s_setprio 1')
    stamp(a, 5)
    a('s_branch p3_pass')
    a.label('p3_pa')
    a('s_setprio 2')
    a('s_cmp_eq_u32 s18, 0')
    a('s_cbranch_scc0 p3_go')
    a('s_waitcnt vmcnt(18)')
    a('s_barrier')
    a.label('p3_go')
    stamp(a, 2)
    a.label('p3_pass')

    def rd(k, tt):
        a('ds_read_b128 %s, %s offset:%d' % (vr(bf(k & 1, tt), 4), vr(VA + k // 6), 4096 * (k % 6) + 1024 * tt))
    for tt in range(4):
        rd(0, tt)
    a('s_waitcnt vmcnt(17) lgkmcnt(0)')
    issued = 18
    for k in range(18):
        for n in range(12):
            j, tt = n >> 2, n & 3
            if j & 1:
                tt = 3 - tt
            mfma(a, acc(j, tt), ring(k, j), bf(k & 1, tt), None if k == 0 else acc(j, tt))
            if n == 0 and k < 12:
                a('s_add_u32 s15, s15, 3072' if k % 6 else 's_mov_b32 s15, s%d' % (31 + k // 6))
            if n in (0, 1, 4, 5) and k < 17 and not (P3_NODS and k):
                rd(k + 1, n if n < 2 else n - 2)
            if n in (2, 6, 10) and k * 3 + j + 1 < 54:
                a('s_waitcnt vmcnt(%d)%s' % (issued - (k * 3 + j + 2), ' lgkmcnt(0)' if n == 10 else ''))
            if n in (3, 7, 11) and k < 12:
                if not P3_NOLD:
                    a('buffer_load_dwordx4 %s, v1, s[8:11], s15 offen offset:%d%s' % (vr(ring(k, j), 4), 1024 * j, P3_LD))
                issued += 1
            if n == 8 and k == P3_TOK:
                a('ds_write_b32 %s, %s offset:%d' % (vr(VK), vr(VC), TOK))
            if k in (4, 10):
                m = 34 if k == 4 else 35
                if n == 6:
                    a('ds_read_b32 %s, %s offset:%d' % (vr(VT), vr(VZ), CNT))
                if n == 10:
                    a('v_readfirstlane_b32 s4, %s' % vr(VT))
                if n == 11:
                    a('s_andn2_b32 s4, s%d, s4' % m)
                    a('s_cbranch_scc1 p3_slow%d' % k)
                    a.label('p3_back%d' % k)
                    if k == 10:
                        stamp(a, 6)
    a('s_cmp_ge_u32 s18, 3')
    a('s_cbranch_scc1 p3_epib')
    stamp(a, 3)
    a('s_setprio %d' % P3_EPRIO)
    if P3_EPRIO2 != P3_EPRIO:
        a('s_cmp_eq_u32 s18, 2\ns_cbranch_scc0 p3_ep')
        a('s_setprio %d' % P3_EPRIO2)
        a.label('p3_ep')
    lds_spin(a, 'p3_w1', VT, VZ, CNT, 0xff000000, 0x04000000)
    a('v_lshlrev_b32 %s, 2, v2' % vr(VT))
    for tt in range(4):
        a('ds_read_b32 %s, %s offset:%d' % (vr(RS + tt), vr(VT), 64 * tt))
    a('s_waitcnt lgkmcnt(0)')
    C = BF + 28
    for tt in range(4):
        a('v_mul_f32 %s, 0x%x, %s' % (vr(C + tt), NLOG2E, vr(RS + tt)))
    T = BF
    for j in range(3):
        a('s_mul_i32 s4, s28, 3\ns_add_u32 s4, s4, %d' % j)
        a('s_lshr_b32 s5, s4, 1\ns_lshl_b32 s5, s5, 12\ns_and_b32 s4, s4, 1\ns_lshl_b32 s4, s4, 3')
        a('s_add_u32 s4, s4, s5\ns_add_u32 s4, s4, %d' % HI)
        a('v_add_u32 %s, s4, v1' % vr(VT))
        for tp in range(2):
            idx = [(tt, r) for tt in (2 * tp, 2 * tp + 1) for r in range(4)]
            for n, (tt, r) in enumerate(idx):
                a('v_mul_f32 %s, %s, %s' % (vr(T + n), vr(acc(j, tt) + r), vr(C + tt)))
            for n in range(8):
                a('v_exp_f32 %s, %s' % (vr(T + n), vr(T + n)))
            for n in range(8):
                a('v_add_f32 %s, 1.0, %s' % (vr(T + n), vr(T + n)))
            for n in range(8):
                a('v_rcp_f32 %s, %s' % (vr(T + n), vr(T + n)))
            for n, (tt, r) in enumerate(idx):
                a('v_mul_f32 %s, %s, %s' % (vr(T + n), vr(acc(j, tt) + r), vr(T + n)))
            P = BF + 8 + 4 * ((j * 2 + tp) % 4)
            for n in range(4):
                a('v_cvt_pk_bf16_f32 %s, %s, %s' % (vr(P + n), vr(T + 2 * n), vr(T + 2 * n + 1)))
            a('ds_write_b64 %s, %s offset:%d' % (vr(VT), vr(P, 2), 1024 * (2 * tp)))
            a('ds_write_b64 %s, %s offset:%d' % (vr(VT), vr(P + 2, 2), 1024 * (2 * tp + 1)))
    a('v_mov_b32 %s, s27' % vr(VC))
    a('s_mov_b64 exec, 1')
    a('ds_add_u32 %s, %s offset:%d' % (vr(VZ), vr(VC), CNT))
    a('s_mov_b64 exec, -1')
    a('s_setprio 0')
    for b in range(3):
        a('s_add_u32 s%d, s%d, %d' % (30 + b, 30 + b, W2 - W1))
        a('v_add_u32 %s, %d, %s' % (vr(VA + b), HI - XI, vr(VA + b)))
    a('s_add_u32 s18, s18, 3')
    a('s_mov_b32 s34, 0x0400\ns_mov_b32 s35, 0x040000')
    stamp(a, 4)
    a('s_branch p3_tok')
    for k, m in ((4, 0x0400), (10, 0x040000)):
        lds_spin(a, 'p3_slow%d' % k, VT, VZ, CNT, m, m)
        a('s_branch p3_back%d' % k)
    a.label('p3_epib')
    stamp(a, 7)
    a('s_setprio %d' % P3_EPRIO)
    a('s_lshl_b32 s4, s13, 6\ns_lshl_b32 s5, s14, 1\ns_add_u32 s4, s4, s5\ns_mul_i32 s4, s4, 36')
    a('s_mul_i32 s5, s28, 3\ns_add_u32 s4, s4, s5\ns_lshl_b32 s4, s4, 10\ns_add_u32 s4, s4, %d' % PART)
    a('s_add_u32 s5, s4, %d' % (36 * 1024))
    for j in range(3):
        for tp in range(2):
            P = BF + 4 * (j * 2 + tp)
            for n, tt in enumerate((2 * tp, 2 * tp + 1)):
                for r in range(4):
                    a('v_mul_f32 %s, %s, %s' % (vr(acc(j, tt) + r), vr(acc(j, tt) + r), vr(RS + tt)))
                a('v_cvt_pk_bf16_f32 %s, %s, %s' % (vr(P + 2 * n), vr(acc(j, tt)), vr(acc(j, tt) + 1)))
                a('v_cvt_pk_bf16_f32 %s, %s, %s' % (vr(P + 2 * n + 1), vr(acc(j, tt) + 2), vr(acc(j, tt) + 3)))
            a('buffer_store_dwordx4 %s, v1, s[8:11], s%d offen offset:%d%s' % (vr(P, 4), 4 + tp, 1024 * j, P3_ST))
            if P3_SLEEP and (j, tp) != (2, 1):
                a('s_cmp_eq_u32 s18, 5\ns_cbranch_scc1 p3_ns%d\ns_sleep %d' % (j * 2 + tp, P3_SLEEP))
                a.label('p3_ns%d' % (j * 2 + tp))
    stamp(a, 8)
    stamp_end(a, 3, 10, 12, 12)
    if STAMPS:
        a('s_mov_b64 exec, -1')
    a('s_cmp_lt_u32 s2, 48\ns_cbranch_scc0 p3_end')
    a('s_cmp_eq_u32 s12, 0\ns_cbranch_scc0 p3_end')
    for k in range(4):
        a('v_mov_b32 %s, 0' % vr(RING + k))
    a('s_lshl_b32 s4, s2, 10\ns_add_u32 s4, s4, %d' % SS)
    a('buffer_store_dwordx4 %s, v1, s[8:11], s4 offen' % vr(RING, 4))
    a.label('p3_end')
    a('s_endpgm')
    return ('p3_kernel', a, 168, 96 if STAMPS else 48, (256, 768, LDS))


def phi(a, dst, src, scale, scale2, t0, t1):
    a('v_mul_f32 %s, %s, %s' % (vr(t0), vr(src), vr(scale2)))
    a('v_mul_f32 %s, %s, %s' % (vr(t1), vr(src), vr(scale)))
    a('v_min_f32 %s, 0, %s' % (vr(t0), vr(t0)))
    a('v_max_f32 %s, 0, %s' % (vr(t1), vr(t1)))
    a('v_exp_f32 %s, %s' % (vr(t0), vr(t0)))
    a('v_add_f32 %s, 0x%x, %s' % (vr(t1), EPS6, vr(t1)))
    a('v_add_f32 %s, %s, %s' % (vr(dst), vr(t0), vr(t1)))


def gen_p1():
    a = Asm()
    RSL = 0; FLG = 512; XF = 1024; XI = 3072
    LDS = XI + 73728
    ACC = 8; RING = ACC + 32; BF = RING + 72
    VA = 4; VB = 5; VT = 6; VZ = 7
    acc = lambda j, tt: ACC + (j * 4 + tt) * 4
    ring = lambda k, j: RING + ((k % 9) * 2 + j) * 4
    bf = lambda p, tt: BF + (p * 4 + tt) * 4
    a('s_cmp_ge_u32 s2, 256')
    a('s_cbranch_scc1 p1_end')
    stamp_begin(a)
    ws_srd(a)
    wave_id(a, 12, 1)
    a('v_lshlrev_b32 v1, 4, v0')
    a('v_and_b32 v2, 15, v0')
    a('v_lshrrev_b32 v3, 4, v0')
    a('v_mov_b32 %s, 0' % vr(VZ))
    a('ds_write_b32 %s, %s offset:%d' % (vr(VZ), vr(VZ), FLG))
    xcd_map(a, P1_NCX, 13, 14)
    a('s_and_b32 s20, s12, 3\ns_lshr_b32 s21, s12, 2')
    a('s_lshl_b32 s4, s14, 2\ns_add_u32 s4, s4, s20\ns_mul_i32 s4, s4, 18\ns_mul_i32 s5, s21, 9\ns_add_u32 s4, s4, s5')
    a('s_lshl_b32 s4, s4, 10\ns_add_u32 s22, s4, %d' % X0)
    a('s_mul_i32 s5, s21, 36\ns_add_u32 s5, s5, s20\ns_lshl_b32 s5, s5, 10\ns_add_u32 s23, s5, %d' % XI)
    a('s_mul_i32 s15, s13, 7\ns_add_u32 s15, s15, s12\ns_mul_i32 s15, s15, 36864\ns_add_u32 s15, s15, %d' % WQ)
    a('v_add_u32 %s, %d, v1' % (vr(VA), XI))
    a('v_add_u32 %s, %d, v1' % (vr(VB), XI + 9 * 4096))
    a('s_waitcnt lgkmcnt(0)')
    x_dma(a, 9, 22, 23, 1)
    a('s_barrier')
    stamp(a, 1)
    a('s_cmp_eq_u32 s12, 7')
    a('s_cbranch_scc1 p1_stats')

    def wld(k):
        for j in range(2):
            a('buffer_load_dwordx4 %s, v1, s[8:11], s15 offen offset:%d' % (vr(ring(k, j), 4), 2048 * (k & 1) + 1024 * j))
        if k & 1:
            a('s_add_u32 s15, s15, 4096')

    def rdx(k, tt):
        v, o = (VA, 4096 * k + 1024 * tt) if k < 9 else (VB, 4096 * (k - 9) + 1024 * tt)
        a('ds_read_b128 %s, %s offset:%d' % (vr(bf(k & 1, tt), 4), vr(v), o))
    a('s_lshr_b32 s26, 0x43, s12\ns_and_b32 s26, s26, 1')
    a('s_cbranch_scc1 p1_f1')
    a('s_waitcnt vmcnt(0)')
    a('s_barrier')
    a('s_branch p1_fill')
    a.label('p1_f1')
    a('s_setprio 2')
    a.label('p1_fill')
    for k in range(9):
        wld(k)
    a('s_cmp_eq_u32 s26, 0')
    a('s_cbranch_scc1 p1_go')
    a('s_waitcnt vmcnt(18)')
    a('s_barrier')
    a.label('p1_go')
    stamp(a, 2)
    for tt in range(4):
        rdx(0, tt)
    a('s_cmp_lt_u32 s12, 4')
    a('s_cbranch_scc1 p1_nn')
    a('s_cmp_eq_u32 s12, 6')
    a('s_cbranch_scc1 p1_nt')

    def main(orient):
        issued = 18
        a('s_waitcnt vmcnt(17) lgkmcnt(0)')
        for k in range(18):
            for n in range(8):
                j, tt = n >> 2, n & 3
                if j:
                    tt = 3 - tt
                c = None if k == 0 else acc(j, tt)
                if orient[j] == 'N':
                    mfma(a, acc(j, tt), bf(k & 1, tt), ring(k, j), c)
                else:
                    mfma(a, acc(j, tt), ring(k, j), bf(k & 1, tt), c)
                if n < 2 and k < 17:
                    rdx(k + 1, 2 * n); rdx(k + 1, 2 * n + 1)
                if n == 2:
                    a('s_waitcnt vmcnt(%d)' % (issued - (2 * k + 2)))
                if n in (3, 7) and k < 9:
                    kk = k + 9
                    a('buffer_load_dwordx4 %s, v1, s[8:11], s15 offen offset:%d' % (vr(ring(kk, j), 4), 2048 * (kk & 1) + 1024 * j))
                    issued += 1
                    if n == 7 and (kk & 1):
                        a('s_add_u32 s15, s15, 4096')
                if n == 6 and k < 17:
                    a('s_waitcnt vmcnt(%d) lgkmcnt(0)' % (issued - (2 * k + 3)))
        stamp(a, 3)
        if orient == 'NN':
            a('s_setprio 0')
        lds_spin(a, 'p1_s' + orient, VT, VZ, FLG, 2, 2)
        stamp(a, 4)

    def rs_n(RS):
        a('v_lshlrev_b32 %s, 4, v3' % vr(VT))
        for n in range(8):
            a('ds_read_b128 %s, %s offset:%d' % (vr(RS + 4 * n, 4), vr(VT), RSL + 64 * n))

    def rs_t(RS):
        a('v_lshlrev_b32 %s, 2, v2' % vr(VT))
        for n in range(8):
            a('ds_read_b32 %s, %s offset:%d' % (vr(RS + n), vr(VT), RSL + 64 * n))

    def phi4(items, T):
        n = len(items)
        for i, (d, x, s1, s2) in enumerate(items):
            a('v_mul_f32 %s, %s, %s' % (vr(T + i), vr(x), vr(s2)))
        for i in range(n):
            a('v_min_f32 %s, 0, %s' % (vr(T + i), vr(T + i)))
        for i in range(n):
            a('v_exp_f32 %s, %s' % (vr(T + i), vr(T + i)))
        for i, (d, x, s1, s2) in enumerate(items):
            a('v_max_f32 %s, 0, %s' % (vr(d), vr(x)))
        for i in range(n):
            a('v_add_f32 %s, 0x%x, %s' % (vr(T + i), EPS6, vr(T + i)))
        for i, (d, x, s1, s2) in enumerate(items):
            a('v_fma_f32 %s, %s, %s, %s' % (vr(d), vr(d), vr(s1), vr(T + i)))

    RS = RING; TMP = RING + 32; F0 = RING + 48; ON = RING + 64
    pq_base = 's_lshl_b32 s4, s14, 4\ns_add_u32 s4, s4, s13\ns_mul_i32 s4, s4, 4608\ns_add_u32 s4, s4, %d' % PQ
    main('TT')
    rs_t(RS)
    a(pq_base)
    a('s_lshl_b32 s5, s20, 10\ns_add_u32 s4, s4, s5\ns_add_u32 s5, s4, %d' % (8 * 4608))
    a('s_waitcnt lgkmcnt(0)')
    for tt in range(4):
        phi4([(acc(j, tt) + r, acc(j, tt) + r, RS + tt, RS + 4 + tt) for j in range(2) for r in range(4)], TMP)
        P = BF + 4 * tt
        for j in range(2):
            a('v_cvt_pk_bf16_f32 %s, %s, %s' % (vr(P + 2 * j), vr(acc(j, tt)), vr(acc(j, tt) + 1)))
            a('v_cvt_pk_bf16_f32 %s, %s, %s' % (vr(P + 2 * j + 1), vr(acc(j, tt) + 2), vr(acc(j, tt) + 3)))
        a('buffer_store_dwordx4 %s, v1, s[8:11], s%d offen offset:%d%s' % (vr(P, 4), 4 + (tt >> 1), 2048 * (tt & 1), P1_ST))
    stamp(a, 5)
    stamp_end(a, 1, 7, 12, 8)
    a('s_endpgm')
    a.label('p1_nn')
    main('NN')
    rs_n(RS)
    FK = F0; FV = F0 + 8; DV = BF; FX = BF + 16
    for k in range(4):
        a('v_mov_b32 %s, 0x%x' % (vr(ON + k), ONES))
    a('s_lshl_b32 s4, s13, 2\ns_add_u32 s4, s4, s20\ns_mul_i32 s6, s4, %d\ns_add_u32 s6, s6, %d' % (HS, SS))
    a('s_waitcnt lgkmcnt(0)')
    for tp in range(2):
        phi4([(acc(0, tt) + r, acc(0, tt) + r, RS + 4 * tt + r, RS + 16 + 4 * tt + r) for tt in (2 * tp, 2 * tp + 1) for r in range(4)], TMP)
        for tt in (2 * tp, 2 * tp + 1):
            for r in range(4):
                a('v_mul_f32 %s, %s, %s' % (vr(acc(1, tt) + r), vr(acc(1, tt) + r), vr(RS + 4 * tt + r)))
            for j, Fb in enumerate((FK, FV)):
                d = Fb + 2 * tt
                a('v_cvt_pk_bf16_f32 %s, %s, %s' % (vr(d), vr(acc(j, tt)), vr(acc(j, tt) + 1)))
                a('v_cvt_pk_bf16_f32 %s, %s, %s' % (vr(d + 1), vr(acc(j, tt) + 2), vr(acc(j, tt) + 3)))
        c = (lambda x: None) if tp == 0 else (lambda x: x)
        mfma(a, DV, FV + 4 * tp, FK + 4 * tp, c(DV))
        mfma(a, DV + 4, ON, FK + 4 * tp, c(DV + 4))
    a('v_and_b32 %s, 0x3c0, v1' % vr(VA))
    a('s_lshl_b32 s5, s20, 4')
    a('v_add_u32 %s, s5, %s' % (vr(VA), vr(VA)))
    a('v_lshlrev_b32 %s, 2, v0' % vr(VB))
    for r in range(4):
        a('buffer_atomic_add_f32 %s, %s, s[8:11], s6 offen offset:%d' % (vr(DV + r), vr(VB), 256 * r))
    a('s_mov_b64 exec, 0xffff')
    a('buffer_atomic_add_f32 %s, %s, s[8:11], s6 offen offset:1152' % (vr(DV + 4), vr(VB)))
    a('s_mov_b64 exec, -1')
    lds_spin(a, 'p1_w', VT, VZ, FLG, 1, 1)
    a('ds_read_b128 %s, %s offset:%d' % (vr(FX, 4), vr(VA), XF))
    a('ds_read_b128 %s, %s offset:%d' % (vr(FX + 4, 4), vr(VA), XF + 1024))
    a('v_lshlrev_b32 %s, 3, v2' % vr(VT))
    a('v_lshl_add_u32 %s, v3, 2, %s' % (vr(VT), vr(VT)))
    a('v_add_u32 %s, 384, %s' % (vr(VT), vr(VT)))
    a('s_mov_b32 s40, -1\ns_mov_b32 s41, 0')
    a('v_cndmask_b32 %s, %s, %s, s[40:41]' % (vr(VT), vr(VB), vr(VT)))
    a('s_waitcnt lgkmcnt(0)')
    for tp in range(2):
        c = (lambda x: None) if tp == 0 else (lambda x: x)
        mfma(a, DV + 8, FX + 4 * tp, FV + 4 * tp, c(DV + 8))
        mfma(a, DV + 12, FX + 4 * tp, FK + 4 * tp, c(DV + 12))
    a('v_cndmask_b32 %s, %s, %s, s[40:41]' % (vr(DV + 8), vr(DV + 12), vr(DV + 8)))
    a('buffer_atomic_add_f32 %s, %s, s[8:11], s6 offen offset:896' % (vr(DV + 8), vr(VT)))
    stamp(a, 5)
    stamp_end(a, 1, 7, 12, 8)
    a('s_endpgm')
    a.label('p1_nt')
    main('NT')
    rs_n(RS)
    FX = F0; PH = BF + 16
    for k in range(4):
        a('v_mov_b32 %s, 0x%x' % (vr(ON + k), ONES))
    a('s_mov_b32 s46, 0x00ff00ff\ns_mov_b32 s47, 0x00ff00ff')
    a('s_waitcnt lgkmcnt(0)')
    for tp in range(2):
        tts = (2 * tp, 2 * tp + 1)
        phi4([(PH + 4 * (tt & 1) + r, acc(0, tt) + r, RS + 4 * tt + r, RS + 16 + 4 * tt + r) for tt in tts for r in range(4)], TMP)
        for tt in tts:
            for r in range(4):
                a('v_mul_f32 %s, %s, %s' % (vr(acc(0, tt) + r), vr(acc(0, tt) + r), vr(RS + 4 * tt + r)))
                a('v_cndmask_b32 %s, %s, %s, s[46:47]' % (vr(acc(0, tt) + r), vr(acc(0, tt) + r), vr(PH + 4 * (tt & 1) + r)))
            a('v_cvt_pk_bf16_f32 %s, %s, %s' % (vr(FX + 2 * tt), vr(acc(0, tt)), vr(acc(0, tt) + 1)))
            a('v_cvt_pk_bf16_f32 %s, %s, %s' % (vr(FX + 2 * tt + 1), vr(acc(0, tt) + 2), vr(acc(0, tt) + 3)))
        a('ds_write_b128 v1, %s offset:%d' % (vr(FX + 4 * tp, 4), XF + 1024 * tp))
    a('v_mov_b32 %s, 3' % vr(VT))
    a('ds_write_b32 %s, %s offset:%d' % (vr(VZ), vr(VT), FLG))
    for tp in range(2):
        c = (lambda x: None) if tp == 0 else (lambda x: x)
        mfma(a, DV, FX + 4 * tp, FX + 4 * tp, c(DV))
        mfma(a, DV + 4, ON, FX + 4 * tp, c(DV + 4))
    rs_t(RS)
    a('v_and_b32 %s, 3, v2' % vr(VA))
    a('v_mul_u32_u24 %s, %d, %s' % (vr(VA), HS, vr(VA)))
    a('v_and_b32 %s, 4, v2' % vr(VB))
    a('v_add_u32 %s, %s, %s' % (vr(VA), vr(VA), vr(VB)))
    a('v_add_u32 %s, 2, v3' % vr(VB))
    a('v_and_b32 %s, 3, %s' % (vr(VB), vr(VB)))
    a('v_lshl_add_u32 %s, %s, 3, %s' % (vr(VA), vr(VB), vr(VA)))
    a('s_mul_i32 s6, s13, %d\ns_add_u32 s6, s6, %d' % (4 * HS, SS))
    diag_select(a, DV + 8, DV)
    a('s_mov_b32 s40, 0xffff\ns_mov_b32 s41, 0')
    a('v_cndmask_b32 %s, %s, %s, s[40:41]' % (vr(DV + 8), vr(DV + 8), vr(DV + 4)))
    a('s_mov_b32 exec_lo, 0xff\ns_mov_b32 exec_hi, 0x00ff00ff')
    a('buffer_atomic_add_f32 %s, %s, s[8:11], s6 offen offset:%d' % (vr(DV + 8), vr(VA), 1280 + 128))
    a('s_mov_b64 exec, -1')
    a(pq_base)
    a('s_add_u32 s4, s4, 4096\ns_add_u32 s5, s4, %d' % (8 * 4608))
    a('v_lshlrev_b32 %s, 3, v0' % vr(VB))
    a('s_waitcnt lgkmcnt(0)')
    phi4([(acc(1, tt) + r, acc(1, tt) + r, RS + tt, RS + 4 + tt) for tt in range(4) for r in range(2)], TMP)
    for tt in range(4):
        a('v_cvt_pk_bf16_f32 %s, %s, %s' % (vr(PH + tt), vr(acc(1, tt)), vr(acc(1, tt) + 1)))
    for tp in range(2):
        a('buffer_store_dwordx2 %s, %s, s[8:11], s%d offen%s' % (vr(PH + 2 * tp, 2), vr(VB), 4 + tp, P1_ST))
    stamp(a, 5)
    stamp_end(a, 1, 7, 12, 8)
    a('s_endpgm')
    a.label('p1_stats')
    a('s_setprio 3')
    for k in range(4):
        a('v_mov_b32 %s, 0x%x' % (vr(RING + k), ONES))
    a('s_waitcnt vmcnt(0)')
    a('s_barrier')
    stamp(a, 2)
    for tt in range(4):
        rdx(0, tt)
    for k in range(18):
        if k < 17:
            for tt in range(4):
                rdx(k + 1, tt)
        a('s_waitcnt lgkmcnt(%d)' % (4 if k < 17 else 0))
        for tt in range(4):
            mfma(a, acc(0, tt), RING, bf(k & 1, tt), None if k == 0 else acc(0, tt))
            mfma(a, acc(1, tt), bf(k & 1, tt), bf(k & 1, tt), None if k == 0 else acc(1, tt))
    a('v_lshlrev_b32 %s, 2, v2' % vr(VT))
    for tt in range(4):
        diag_select(a, acc(0, tt) + 1, acc(1, tt))
        rstd_from(a, acc(0, tt) + 2, acc(0, tt), acc(0, tt) + 1)
        a('v_mul_f32 %s, 0x%x, %s' % (vr(acc(0, tt) + 3), LOG2E, vr(acc(0, tt) + 2)))
    a('s_mov_b32 exec_lo, 0x00f0000f\ns_mov_b32 exec_hi, 0xf0000f00')
    for tt in range(4):
        a('ds_write_b32 %s, %s offset:%d' % (vr(VT), vr(acc(0, tt) + 2), RSL + 64 * tt))
        a('ds_write_b32 %s, %s offset:%d' % (vr(VT), vr(acc(0, tt) + 3), RSL + 256 + 64 * tt))
    a('v_mov_b32 %s, 2' % vr(VT))
    a('ds_write_b32 %s, %s offset:%d' % (vr(VZ), vr(VT), FLG))
    a('s_mov_b64 exec, -1')
    a('s_setprio 0')
    if 'wo' in PF1:
        l2_touch(a, WO, 9 * 18432, P2_NCX, 4, RING, RING + 1)
    if 'w1' in PF1:
        l2_touch(a, W1, 663552, P3_NCX, 8, RING, RING + 1)
    if 'w2' in PF1:
        l2_touch(a, W2, 663552, P3_NCX, 8, RING, RING + 1)
    stamp(a, 3)
    stamp(a, 4)
    stamp(a, 5)
    stamp_end(a, 1, 7, 12, 8)
    a.label('p1_end')
    a('s_endpgm')
    return ('p1_kernel', a, 144, 96 if STAMPS else 48, (256, 512, LDS))


def gen_p2():
    a = Asm()
    SL = 36864
    LDS = SL + 32 * HS
    WF = 12; FR = WF + 72; XP = FR + 32; QF = XP + 16
    VA = 4; VB = 5; VC = 6; VD = 7; EX = 8; VT = 9; RX = 164
    f1 = lambda hh: FR + 8 * hh
    f2 = lambda hh: FR + 8 * hh + 4
    qf = lambda tt, hh: QF + (tt * 4 + hh) * 4
    a('s_cmp_ge_u32 s2, 256')
    a('s_cbranch_scc1 p2_end')
    stamp_begin(a)
    ws_srd(a)
    wave_id(a, 12, 1)
    a('v_lshlrev_b32 v1, 4, v0')
    a('v_and_b32 v2, 15, v0')
    a('v_lshrrev_b32 v3, 4, v0')
    xcd_map(a, P2_NCX, 13, 14, nc=4)
    a('v_and_b32 %s, 3, v2' % vr(VT))
    a('v_lshrrev_b32 %s, 2, v2' % vr(VA))
    a('v_lshl_add_u32 %s, %s, 2, %s' % (vr(VA), vr(VT), vr(VA)))
    a('v_lshlrev_b32 %s, 6, %s' % (vr(VA), vr(VA)))
    a('v_lshl_add_u32 %s, v3, 4, %s' % (vr(VA), vr(VA)))
    a('v_min_u32 %s, 2, %s' % (vr(VT), vr(VT)))
    a('v_lshlrev_b32 %s, 6, %s' % (vr(VB), vr(VT)))
    a('v_lshl_add_u32 %s, v3, 4, %s' % (vr(VB), vr(VB)))
    a('v_mul_u32_u24 %s, %d, v3' % (vr(VD), HS))
    a('v_lshl_add_u32 %s, v2, 3, %s' % (vr(VC), vr(VD)))
    a('v_lshl_add_u32 %s, %s, 3, %s' % (vr(VD), vr(VT), vr(VD)))
    a('s_mul_i32 s25, s12, %d\ns_add_u32 s22, s25, %d\ns_add_u32 s25, s25, %d' % (4 * HS, SS, SL))
    a('s_lshl_b32 s23, s14, 3\ns_add_u32 s23, s23, s12\ns_mul_i32 s23, s23, 4608\ns_add_u32 s23, s23, %d' % PQ)
    a('s_add_u32 s24, s23, 4096')
    a('v_lshlrev_b32 v10, 3, v0')
    for v in (VA, VB, VC, VD):
        a('v_add_u32 %s, s25, %s' % (vr(v), vr(v)))
    a('s_mov_b32 m0, s25')
    a('s_cmp_eq_u32 s12, 8')
    a('s_waitcnt lgkmcnt(0)')
    stamp(a, 1)
    stamp(a, 3)
    stamp(a, 4)
    a('s_cbranch_scc1 p2_ldw')
    for n in range(6):
        if n == 4:
            a('s_add_u32 m0, s25, 4096\ns_add_u32 s22, s22, 4096')
        a('buffer_load_dwordx4 v1, s[8:11], s22 offen offset:%d lds' % (1024 * (n % 4)))
    for tt in range(2):
        for p in range(2):
            a('buffer_load_dwordx4 %s, v1, s[8:11], s23 offen offset:%d' % (vr(qf(tt, 2 * p), 4), 2048 * tt + 1024 * p))
    a('buffer_load_dwordx2 %s, v10, s[8:11], s24 offen' % vr(XP + 4, 2))
    a.label('p2_ldw')
    a('s_mul_i32 s15, s13, 9\ns_add_u32 s15, s15, s12')
    a('s_mul_i32 s16, s15, 18432\ns_add_u32 s16, s16, %d' % WO)
    a('s_mul_i32 s17, s14, 36\ns_lshr_b32 s4, s15, 1\ns_add_u32 s17, s17, s4\ns_lshl_b32 s17, s17, 10')
    a('s_and_b32 s4, s15, 1\ns_lshl_b32 s4, s4, 3\ns_add_u32 s17, s17, s4')
    a('s_add_u32 s18, s17, %d\ns_add_u32 s19, s18, %d' % (X0, 18432))
    a('s_add_u32 s20, s17, %d\ns_add_u32 s21, s20, %d' % (X1, 18432))
    for hh in range(4):
        a('s_mov_b32 s%d, 0x%x\ns_mov_b32 s%d, 0x%x' % (
            40 + 2 * hh, (0xffff << (16 * hh)) & 0xffffffff, 41 + 2 * hh, ((0xffff << (16 * hh)) >> 32) & 0xffffffff))
    a('s_barrier')

    nW = [0]

    def wld(n):
        for _ in range(n):
            k = nW[0]
            a('buffer_load_dwordx4 %s, v1, s[8:11], s16 offen offset:%d' % (vr(WF + 4 * k, 4), 1024 * (k % 4)))
            if k % 4 == 3:
                a('s_add_u32 s16, s16, 4096')
            nW[0] += 1
    W0 = P2_W0
    wld(W0)
    stamp(a, 2)
    a('s_cmp_eq_u32 s12, 8')
    a('s_cbranch_scc1 p2_bar')
    a('s_waitcnt vmcnt(%d)' % (W0 + 5))
    stamp(a, 3)
    a('ds_read_b64 %s, %s offset:1280' % (vr(XP, 2), vr(VC)))
    a('ds_read_b64 %s, %s offset:%d' % (vr(XP + 2, 2), vr(VD), 1280 + 128))
    for hh in range(4):
        a('ds_read_b128 %s, %s offset:%d' % (vr(f1(hh), 4), vr(VA), HS * hh))
        a('ds_read_b128 %s, %s offset:%d' % (vr(f2(hh), 4), vr(VB), HS * hh + 1024))
    a('s_waitcnt lgkmcnt(8)')
    a('v_cvt_pk_bf16_f32 %s, %s, %s' % (vr(XP), vr(XP), vr(XP + 1)))
    a('v_cvt_pk_bf16_f32 %s, %s, %s' % (vr(XP + 2), vr(XP + 2), vr(XP + 3)))
    for hh in range(4):
        a('s_waitcnt lgkmcnt(%d)' % (6 - 2 * hh))
        for f, x in ((f1(hh), XP), (f2(hh), XP + 2)):
            a('v_cvt_pk_bf16_f32 %s, %s, %s' % (vr(f), vr(f), vr(f + 1)))
            a('v_cvt_pk_bf16_f32 %s, %s, %s' % (vr(f + 1), vr(f + 2), vr(f + 3)))
            a('v_cndmask_b32 %s, 0, %s, s[%d:%d]' % (vr(f + 2), vr(x), 40 + 2 * hh, 41 + 2 * hh))
            a('v_mov_b32 %s, 0' % vr(f + 3))
    a('s_waitcnt vmcnt(%d)' % W0)
    stamp(a, 4)
    for tt in range(2):
        for p in range(2):
            q0, q1 = qf(tt, 2 * p), qf(tt, 2 * p + 1)
            a('v_mov_b32 %s, %s' % (vr(q1), vr(q0 + 2)))
            a('v_mov_b32 %s, %s' % (vr(q1 + 1), vr(q0 + 3)))
            for q in (q0, q1):
                a('v_mov_b32 %s, %s' % (vr(q + 2), vr(XP + 4 + tt)))
                a('v_mov_b32 %s, 0' % vr(q + 3))
    a('s_lshl_b32 s4, s12, 12')
    a('v_add_u32 %s, s4, v1' % vr(VA))
    a('s_lshr_b32 s4, s12, 2\ns_add_u32 s4, s4, 16\ns_lshl_b32 s4, s4, 11\ns_and_b32 s5, s12, 3\ns_lshl_b32 s5, s5, 2\ns_add_u32 s4, s4, s5')
    a('v_add_u32 %s, s4, v1' % vr(VB))
    for tt in range(2):
        for p in range(2):
            for n in range(2):
                hh = 2 * p + n
                mfma(a, XP + 8 * n + 4, f2(hh), qf(tt, hh))
            for n in range(2):
                hh = 2 * p + n
                mfma(a, XP + 8 * n, f1(hh), qf(tt, hh))
            wld(P2_W1)
            O = qf(tt, 2 * p)
            for n in range(2):
                d2 = XP + 8 * n + 4
                a('v_add_f32 %s, 0x%x, %s' % (vr(d2 + 2), EPS6, vr(d2 + 2)))
            for n in range(2):
                d2 = XP + 8 * n + 4
                a('v_rcp_f32 %s, %s' % (vr(d2 + 2), vr(d2 + 2)))
            for n in range(2):
                hh = 2 * p + n
                d1 = XP + 8 * n; d2 = d1 + 4
                for r in (4, 5, 0, 1, 2, 3):
                    a('v_mul_f32 %s, %s, %s' % (vr(d1 + r), vr(d1 + r), vr(d2 + 2)))
                a('v_cvt_pk_bf16_f32 %s, %s, %s' % (vr(O + 2 * n), vr(d1), vr(d1 + 1)))
                a('v_cvt_pk_bf16_f32 %s, %s, %s' % (vr(O + 2 * n + 1), vr(d1 + 2), vr(d1 + 3)))
                if hh == 0:
                    a('v_cvt_pk_bf16_f32 %s, %s, %s' % (vr(EX), vr(d2), vr(d2 + 1)))
                else:
                    a('v_cvt_pk_bf16_f32 %s, %s, %s' % (vr(VT), vr(d2), vr(d2 + 1)))
                    a('v_cndmask_b32 %s, %s, %s, s[%d:%d]' % (vr(EX), vr(EX), vr(VT), 40 + 2 * hh, 41 + 2 * hh))
            a('ds_write_b128 %s, %s offset:%d' % (vr(VA), vr(O, 4), 2048 * p + 1024 * tt))
        a('ds_write_b32 %s, %s offset:%d' % (vr(VB), vr(EX), 1024 * tt))
    a('s_branch p2_bar2')
    a.label('p2_bar')
    nW[0] = W0
    wld(4 * P2_W1)
    a.label('p2_bar2')
    stamp(a, 5)
    a('s_waitcnt lgkmcnt(0)')
    a('s_barrier')
    stamp(a, 6)
    NB = 12
    slot = lambda n: FR + 4 * (n % NB)
    AC = 4
    for n in range(NB):
        a('ds_read_b128 %s, v1 offset:%d' % (vr(slot(n), 4), 1024 * n))
    wld(18 - W0 - 4 * P2_W1)
    a('buffer_load_dwordx2 %s, v1, s[8:11], s18 offen' % vr(RX, 2))
    a('buffer_load_dwordx2 %s, v1, s[8:11], s19 offen' % vr(RX + 2, 2))
    n0 = len(a.lines)
    if 'w1' in PF2:
        l2_touch(a, W1, 663552, P3_NCX, 8, QF, QF + 1, 9, 12)
    if 'w2' in PF2:
        l2_touch(a, W2, 663552, P3_NCX, 8, QF, QF + 1, 9, 12)
    npf = sum(l.startswith('buffer_load') for l in a.lines[n0:])
    for n in range(36):
        k, tt = n >> 1, n & 1
        rem = min(NB - 1, 35 - n)
        a('s_waitcnt vmcnt(%d) lgkmcnt(%d)' % (19 - k + npf, rem))
        mfma(a, AC + 4 * tt, WF + 4 * k, slot(n), None if k == 0 else AC + 4 * tt)
        if n + NB < 36:
            a('ds_read_b128 %s, v1 offset:%d' % (vr(slot(n), 4), 1024 * (n + NB)))
    a('s_waitcnt vmcnt(%d)' % npf)
    stamp(a, 7)
    T = FR
    for tt in range(2):
        for h in range(2):
            a('v_lshlrev_b32 %s, 16, %s' % (vr(T + 4 * tt + 2 * h), vr(RX + 2 * tt + h)))
            a('v_and_b32 %s, 0xffff0000, %s' % (vr(T + 4 * tt + 2 * h + 1), vr(RX + 2 * tt + h)))
    for tt in range(2):
        for r in range(4):
            a('v_add_f32 %s, %s, %s' % (vr(T + 4 * tt + r), vr(T + 4 * tt + r), vr(AC + 4 * tt + r)))
        a('v_cvt_pk_bf16_f32 %s, %s, %s' % (vr(RX + 2 * tt), vr(T + 4 * tt), vr(T + 4 * tt + 1)))
        a('v_cvt_pk_bf16_f32 %s, %s, %s' % (vr(RX + 2 * tt + 1), vr(T + 4 * tt + 2), vr(T + 4 * tt + 3)))
        a('buffer_store_dwordx2 %s, v1, s[8:11], s%d offen' % (vr(RX + 2 * tt, 2), 20 + tt))
    stamp_end(a, 2, 9, 12, 9)
    a.label('p2_end')
    a('s_endpgm')
    return ('p2_kernel', a, 168, 96 if STAMPS else 48, (256, 576, LDS))


def gen_p0(final):
    a = Asm()
    nm = 'p0b' if final else 'p0a'
    P = 8; RX = 4; AC = 40
    a('s_cmp_ge_u32 s2, 256')
    a('s_cbranch_scc1 %s_end' % nm)
    stamp_begin(a)
    ws_srd(a)
    if final:
        a('s_load_dwordx2 s[24:25], s[0:1], 48')
        a('s_mov_b32 s26, %d\ns_mov_b32 s27, 0x20000' % ACT)
    wave_id(a, 12, 1)
    a('v_lshlrev_b32 v1, 4, v0')
    a('s_and_b32 s13, s2, 3\ns_lshr_b32 s14, s2, 2')
    a('s_mul_i32 s15, s13, 9\ns_add_u32 s15, s15, s12')
    a('s_mul_i32 s16, s14, 36\ns_add_u32 s16, s16, s15\ns_lshl_b32 s16, s16, 10\ns_add_u32 s16, s16, %d' % PART)
    a('s_mul_i32 s17, s14, 36\ns_lshr_b32 s4, s15, 1\ns_add_u32 s17, s17, s4\ns_lshl_b32 s17, s17, 10')
    a('s_and_b32 s5, s15, 1\ns_lshl_b32 s5, s5, 3\ns_add_u32 s17, s17, s5')
    a('s_add_u32 s18, s17, %d\ns_add_u32 s19, s18, %d' % (X1, 18432))
    if final:
        a('s_mul_i32 s20, s14, %d\ns_lshl_b32 s4, s4, 6\ns_add_u32 s20, s20, s4\ns_add_u32 s20, s20, s5' % (32 * 1152))
        a('s_add_u32 s21, s20, %d' % (16 * 1152))
        a('v_and_b32 v2, 15, v0\nv_lshrrev_b32 v3, 4, v0')
        a('v_mul_u32_u24 v2, 1152, v2')
        a('v_lshl_add_u32 v2, v3, 4, v2')
    else:
        a('s_add_u32 s20, s17, %d\ns_add_u32 s21, s20, %d' % (X0, 18432))
    a('s_waitcnt lgkmcnt(0)')
    a('buffer_load_dwordx2 %s, v1, s[8:11], s18 offen' % vr(RX, 2))
    a('buffer_load_dwordx2 %s, v1, s[8:11], s19 offen' % vr(RX + 2, 2))
    for c in range(8):
        a('buffer_load_dwordx4 %s, v1, s[8:11], s16 offen%s' % (vr(P + 4 * c, 4), P0_LD))
        if c < 7:
            a('s_add_u32 s16, s16, %d' % ACT)
    stamp(a, 1)
    a('s_waitcnt vmcnt(8)')
    stamp(a, 2)
    for n in range(4):
        a('v_lshlrev_b32 %s, 16, %s' % (vr(AC + 2 * n), vr(RX + n)))
        a('v_and_b32 %s, 0xffff0000, %s' % (vr(AC + 2 * n + 1), vr(RX + n)))
    for c in range(8):
        a('s_waitcnt vmcnt(%d)' % (7 - c))
        for n in range(4):
            a('v_lshlrev_b32 %s, 16, %s' % (vr(RX + n), vr(P + 4 * c + n)))
            a('v_and_b32 %s, 0xffff0000, %s' % (vr(P + 4 * c + n), vr(P + 4 * c + n)))
        for n in range(4):
            a('v_add_f32 %s, %s, %s' % (vr(AC + 2 * n), vr(AC + 2 * n), vr(RX + n)))
            a('v_add_f32 %s, %s, %s' % (vr(AC + 2 * n + 1), vr(AC + 2 * n + 1), vr(P + 4 * c + n)))
    stamp(a, 3)
    for n in range(4):
        a('v_cvt_pk_bf16_f32 %s, %s, %s' % (vr(RX + n), vr(AC + 2 * n), vr(AC + 2 * n + 1)))
    for tt in range(2):
        if final:
            a('buffer_store_dwordx2 %s, v2, s[24:27], s%d offen' % (vr(RX + 2 * tt, 2), 20 + tt))
        else:
            a('buffer_store_dwordx2 %s, v1, s[8:11], s%d offen' % (vr(RX + 2 * tt, 2), 20 + tt))
    stamp_end(a, 5 if final else 4, 5, 12, 9)
    a.label('%s_end' % nm)
    a('s_endpgm')
    return (nm + '_kernel', a, 48, 96 if STAMPS else 32, (256, 576, 0))


def gen_pf():
    a = Asm()
    a('s_cmp_ge_u32 s2, 256')
    a('s_cbranch_scc1 pf_end')
    ws_srd(a)
    xcd_map(a, P3_NCX, 13, 14)
    nsh = 32 // P3_NCX
    per = 5184 // nsh
    a('s_and_b32 s14, s14, %d' % (nsh - 1))
    a('s_mul_i32 s4, s13, 663552\ns_mul_i32 s5, s14, %d\ns_add_u32 s4, s4, s5\ns_add_u32 s4, s4, %d' % (per * 128, W1))
    a('s_add_u32 s5, s4, %d' % (W2 - W1))
    a('v_lshlrev_b32 v1, 7, v0')
    a('s_waitcnt lgkmcnt(0)')
    for k in range((per + 255) // 256):
        a('buffer_load_dword v2, v1, s[8:11], s4 offen')
        a('buffer_load_dword v3, v1, s[8:11], s5 offen')
        a('s_add_u32 s4, s4, 32768\ns_add_u32 s5, s5, 32768')
    a('s_waitcnt vmcnt(0)')
    a.label('pf_end')
    a('s_endpgm')
    return ('pf_kernel', a, 8, 24, (256, 256, 0))


def gen_empty():
    a = Asm()
    a('s_endpgm')
    return ('empty_kernel', a, 8, 16, (256, 256, 0))


def gen_chain(slot):
    a = Asm()
    a('s_cmp_ge_u32 s2, 32')
    a('s_cbranch_scc1 chain_end')
    a('s_load_dwordx2 s[8:9], s[0:1], %d' % (8 * slot))
    a('s_mov_b32 s10, %d\ns_mov_b32 s11, 0x20000' % ACT)
    a('s_mul_i32 s4, s2, %d' % (64 * 1024))
    a('v_mov_b32 v1, 0')
    a('s_mov_b64 exec, 1')
    a('s_waitcnt lgkmcnt(0)')
    for k in range(64):
        a('buffer_load_dword v2, v1, s[8:11], s4 offen')
        a('s_waitcnt vmcnt(0)')
        a('v_and_b32 v2, 0, v2')
        a('v_add_u32 v1, 1024, v1')
        a('v_add_u32 v1, v2, v1')
    a.label('chain_end')
    a('s_endpgm')
    return ('chain_kernel', a, 8, 16, (32, 64, 0))


PRE = []
P3_SLEEP = 0
P3_TOK = 11
P3_EPRIO2 = 0
P3_SPRIO = 1
PF1 = []
PF2 = []
PF3 = None
P0_LD = ''
P1_NCX = 4
P2_NCX = 4
P1_ST = ' sc1'
P2_W0 = 4
P2_W1 = 2
CODE_PF = True
PREP_ST = ''
PREP_XLD = ' nt'
P3_LD = ''
P3_SNAKE = True
P3_EPRIO = 0
PF = False
P3_NODS = False
P3_NOLD = False
PRIO = True
P3_NCX = 4
P3_ST = ' sc1'


def build():
    ks = [gen_prep(), gen_p1(), gen_p2(), gen_p3(), gen_p0(False), gen_p0(True)]
    if 'empty' in PRE:
        ks.append(gen_empty())
    if 'chain' in PRE:
        ks.append(gen_chain(3))
    if PF:
        ks.append(gen_pf())
    geo = {k[0]: k[4] for k in ks}
    order = PRE + ['prep', 'p1', 'p2', 'p3', 'p0a', 'p1', 'p2', 'p3', 'p0b']
    if PF:
        order = ['prep', 'p1', 'p2', 'pf', 'p3', 'p0a', 'p1', 'p2', 'pf', 'p3', 'p0b']
    hdr = ['; generated by gen/gen.py (hand-written generator); see that file for the layouts']
    for o in order:
        g, b, l = geo[o + '_kernel']
        hdr.append('; @launch kernel=%s_kernel grid=(%d,1,1) block=(%d,1,1) lds=%d' % (o, g, b, l))
    out = '\n'.join(hdr) + '\n.amdgcn_target "amdgcn-amd-amdhsa--gfx950"\n'
    descs = ''
    for name, a, nv, ns, _ in ks:
        c, d = kernel_text(name, a, nv, ns)
        out += c
        descs += d
    out += 'code_end:\n'
    return out + descs


if __name__ == '__main__':
    path = sys.argv[1] if len(sys.argv) > 1 else 'cdna_kernels/%s.s' % NAME
    for o in sys.argv[2:]:
        k, v = o.split('=')
        globals()[k] = eval(v)
    open(path, 'w').write(build())
    print('wrote', path)
```

```python
import sys
from asmlib import Asm, vr, sr, kernel_text

NAME = 'interleave_layers__linear_attn_block__dense_activation_silu__prompt'
S, D, F = 2048, 576, 4608
ACT = S * D * 2
WQ_HG = 258048
WQ = 0
WO = WQ + 8 * WQ_HG
W1 = WO + 36 * 18432
W2 = W1 + D * F * 2
X0 = W2 + D * F * 2
X1 = X0 + ACT
PQ = X1 + ACT
SS = PQ + ACT
HS = 1536
PART = SS + 32 * HS
WS_BYTES = 268435456
OOB = 0x80000000
LOG2E = 0x3fb8aa3b
NLOG2E = 0xbfb8aa3b
EPS6 = 0x358637bd
EPS5 = 0x3727c5ac
INV576 = 0x3ae38e39
ONES = 0x3f803f80
MF = 'v_mfma_f32_16x16x32_bf16'


def mfma(a, d, x, y, c=None):
    a('%s %s, %s, %s, %s' % (MF, vr(d, 4), vr(x, 4), vr(y, 4), '0' if c is None else vr(c, 4)))


def ws_srd(a):
    a('s_load_dwordx2 s[8:9], s[0:1], 64')
    a('s_mov_b32 s10, 0x%x' % WS_BYTES)
    a('s_mov_b32 s11, 0x20000')


def wave_id(a, sdst, vtmp):
    a('v_lshrrev_b32 %s, 6, v0' % vr(vtmp))
    a('v_readfirstlane_b32 %s, %s' % (sr(sdst), vr(vtmp)))
    a('v_and_b32 v0, 63, v0')


DBG = 128 << 20
STAMPS = False


def stamp(a, i):
    if STAMPS:
        a('s_mem%stime s[%d:%d]' % ('real' if STAMPS == 2 else '', 60 + 2 * i, 61 + 2 * i))


def stamp_begin(a):
    if STAMPS:
        a('s_memrealtime s[56:57]')
        stamp(a, 0)


def stamp_end(a, kid, n, s_wave, nw):
    if not STAMPS:
        return
    a('s_waitcnt vmcnt(0)')
    stamp(a, n - 1)
    a('s_memrealtime s[58:59]')
    a('s_getreg_b32 s55, hwreg(HW_REG_XCC_ID)')
    a('s_getreg_b32 s54, hwreg(HW_REG_HW_ID)')
    a('s_mov_b64 exec, -1')
    a('s_mul_i32 s4, s2, %d\ns_add_u32 s4, s4, %s\ns_lshl_b32 s4, s4, 6\ns_add_u32 s4, s4, %d' % (nw, sr(s_wave), DBG + (kid << 20)))
    a('s_waitcnt lgkmcnt(0)')
    a('v_mov_b32 v2, 0')
    for i in range(n):
        a('v_writelane_b32 v2, s%d, %d' % (60 + 2 * i, i))
    a('v_writelane_b32 v2, s54, 12')
    a('v_writelane_b32 v2, s55, 13')
    a('v_writelane_b32 v2, s56, 14')
    a('v_writelane_b32 v2, s58, 15')
    a('v_mbcnt_lo_u32_b32 v3, -1, 0')
    a('v_lshlrev_b32 v3, 2, v3')
    a('s_mov_b64 exec, 0xffff')
    a('buffer_store_dword v2, v3, s[8:11], s4 offen')


def conv_unit(a, L, nw, s_u, s_w, lds_base, lds_cs):
    nk = 18 // nw
    FR = 24; ON = 8; CS = FR + 16 * nk
    fr = lambda k, c: FR + (k * 4 + c) * 4
    a('s_mov_b32 s14, %d\ns_mov_b32 s15, 0x20000' % (D * F * 2))
    a('s_cmp_ge_u32 %s, 72' % sr(s_u))
    a('s_cbranch_scc1 %s_w2' % L)
    a('s_mov_b32 s12, s30\ns_mov_b32 s13, s31')
    a('s_mov_b32 s18, 9216\ns_lshl_b32 s19, %s, 7\ns_mov_b32 s16, %d\ns_lshl_b32 s21, %s, 2' % (sr(s_u), W1, sr(s_u)))
    a('s_branch %s_go' % L)
    a.label('%s_w2' % L)
    a('s_mov_b32 s12, s32\ns_mov_b32 s13, s33')
    a('s_sub_u32 s21, %s, 72' % sr(s_u))
    a('s_mul_i32 s4, s21, 7282\ns_lshr_b32 s4, s4, 16')
    a('s_mul_i32 s5, s4, 9\ns_sub_u32 s5, s21, s5\ns_lshl_b32 s5, s5, 7')
    a('s_mul_i32 s19, s4, %d\ns_add_u32 s19, s19, s5' % (576 * 1152))
    a('s_mov_b32 s18, 1152\ns_mov_b32 s16, %d\ns_lshl_b32 s21, s21, 2' % W2)
    a.label('%s_go' % L)
    a('s_mul_i32 s4, %s, s18\ns_mul_i32 s4, s4, %d\ns_add_u32 s19, s19, s4' % (sr(s_w), 32 * nk))
    a('s_mul_i32 s22, %s, %d\ns_add_u32 s22, s22, %d' % (sr(s_w), 4096 * nk, lds_base))
    a('s_lshl_b32 s17, s18, 3')
    a('v_lshrrev_b32 v4, 3, v0')
    a('v_mul_lo_u32 v4, v4, s18')
    a('v_and_b32 v5, 7, v0')
    a('v_lshrrev_b32 v6, 2, v0')
    a('v_and_b32 v6, 4, v6')
    a('v_xor_b32 v5, v5, v6')
    a('v_lshl_add_u32 v4, v5, 4, v4')
    a('s_mov_b32 s23, s22')
    for n in range(4 * nk):
        a('s_mov_b32 m0, s23')
        a('s_add_u32 s23, s23, 1024')
        a('buffer_load_dwordx4 v4, s[12:15], s19 offen nt lds')
        a('s_add_u32 s19, s19, s17')
    a('v_lshrrev_b32 v5, 4, v0')
    a('v_bfe_u32 v6, v0, 2, 2')
    a('v_lshl_add_u32 v5, v5, 3, v6')
    a('v_lshlrev_b32 v5, 7, v5')
    a('v_and_b32 v6, 3, v0')
    a('v_lshl_add_u32 v5, v6, 4, v5')
    a('v_and_b32 v6, 8, v0')
    a('v_lshl_add_u32 v5, v6, 3, v5')
    a('v_add_u32 v5, s22, v5')
    a('v_xor_b32 v6, 64, v5')
    for c in range(4):
        a('s_add_u32 s4, s21, %d\ns_mul_i32 s5, s4, 43691\ns_lshr_b32 s5, s5, 17' % c)
        a('s_mul_i32 s6, s5, 51\ns_add_u32 s4, s4, s6\ns_mul_i32 s6, %s, %d\ns_add_u32 s4, s4, s6' % (sr(s_w), 3 * nk))
        a('s_lshl_b32 s4, s4, 10\ns_add_u32 s%d, s4, s16' % (24 + c))
    for k in range(4):
        a('v_mov_b32 %s, 0x%x' % (vr(ON + k), ONES))
    for k in range(nk):
        a('s_waitcnt vmcnt(%d)' % (4 * (nk - 1 - k)))
        for c in range(4):
            for hi in range(2):
                a('ds_read_b64_tr_b16 %s, v%d offset:%d' % (vr(fr(k, c) + 2 * hi, 2), 5 + (c >> 1), 4096 * k + 512 * hi + 8 * (c & 1)))
        if k + 1 < nk:
            a('s_waitcnt lgkmcnt(4)')
    a('s_waitcnt lgkmcnt(0)')
    a('s_cmp_ge_u32 %s, 72' % sr(s_u))
    a('s_cbranch_scc1 %s_st' % L)
    for k in range(nk):
        for c in range(4):
            mfma(a, CS + 4 * c, ON, fr(k, c), None if k == 0 else CS + 4 * c)
    a('v_and_b32 v4, 15, v0')
    a('v_mul_u32_u24 v4, %d, v4' % (16 * nw))
    a('s_lshl_b32 s4, %s, 4' % sr(s_w))
    a('v_add_u32 v5, s4, v4')
    for c in range(4):
        a('v_mov_b32 %s, %s' % (vr(ON + c), vr(CS + 4 * c)))
    a('ds_write_b128 v5, %s offset:%d' % (vr(ON, 4), lds_cs))
    a('s_waitcnt lgkmcnt(0)')
    a('s_barrier')
    for w in range(nw):
        a('ds_read_b128 %s, v4 offset:%d' % (vr(CS + 4 * w, 4), lds_cs + 16 * w))
    a('s_waitcnt lgkmcnt(0)')
    for c in range(4):
        for w in range(1, nw):
            a('v_add_f32 %s, %s, %s' % (vr(CS + c), vr(CS + c), vr(CS + 4 * w + c)))
        a('v_mul_f32 %s, 0x%x, %s' % (vr(CS + c), INV576, vr(CS + c)))
    for k in range(nk):
        for c in range(4):
            f = fr(k, c)
            for p in range(4):
                a('v_lshlrev_b32 %s, 16, %s' % (vr(12 + 2 * p), vr(f + p)))
                a('v_and_b32 %s, 0xffff0000, %s' % (vr(13 + 2 * p), vr(f + p)))
            for p in range(8):
                a('v_sub_f32 %s, %s, %s' % (vr(12 + p), vr(12 + p), vr(CS + c)))
            for p in range(4):
                a('v_cvt_pk_bf16_f32 %s, %s, %s' % (vr(f + p), vr(12 + 2 * p), vr(13 + 2 * p)))
    a.label('%s_st' % L)
    for k in range(nk):
        for c in range(4):
            a('buffer_store_dwordx4 %s, v1, s[8:11], s%d offen%s' % (vr(fr(k, c), 4), 24 + c, PREP_ST))
            a('s_add_u32 s%d, s%d, 3072' % (24 + c, 24 + c))
    return CS + 4 * max(4, nw)


def gen_prep():
    a = Asm()
    NM = 8; NT = 144; NG = 148; NX = 128
    LCS = 0; LB = 2048
    a('s_cmp_ge_u32 s2, %d' % (NM + NT + NG + NX))
    a('s_cbranch_scc1 prep_end')
    stamp_begin(a)
    ws_srd(a)
    a('s_load_dwordx4 s[24:27], s[0:1], 0')
    a('s_load_dwordx2 s[28:29], s[0:1], 16')
    a('s_load_dwordx2 s[30:31], s[0:1], 32')
    a('s_load_dwordx2 s[32:33], s[0:1], 40')
    wave_id(a, 3, 1)
    a('v_lshlrev_b32 v1, 4, v0')
    a('v_and_b32 v2, 15, v0')
    a('v_lshrrev_b32 v3, 4, v0')
    a('s_cmp_lt_u32 s2, %d' % NM)
    a('s_cbranch_scc1 prep_misc')
    a('s_sub_u32 s20, s2, %d' % NM)
    a('s_waitcnt lgkmcnt(0)')
    a('s_cmp_ge_u32 s2, %d' % (NM + NT))
    a('s_cbranch_scc1 prep_gx')
    nv = conv_unit(a, 'prep_c', 6, 20, 3, LB, LCS)
    stamp_end(a, 0, 2, 3, 6)
    a('s_endpgm')
    a.label('prep_gx')
    a('s_mov_b32 s15, 0x20000')
    a('s_sub_u32 s20, s20, %d' % NT)
    a('s_cmp_ge_u32 s20, %d' % NG)
    a('s_cbranch_scc1 prep_x')
    V = 16
    a('v_lshrrev_b32 v5, 2, v2')
    a('v_and_b32 v6, 3, v2')
    a('s_mov_b64 s[6:7], -1')
    a('s_mul_i32 s21, s3, 3')
    a('s_cmp_ge_u32 s20, 112')
    a('s_cbranch_scc1 prep_wo')
    a('s_mov_b32 s12, s26\ns_mov_b32 s13, s27\ns_mov_b32 s14, %d' % (D * 3 * D * 2))
    a('s_mul_i32 s4, s20, 4682\ns_lshr_b32 s4, s4, 16')
    a('s_mul_i32 s5, s4, 14\ns_sub_u32 s5, s20, s5')
    a('s_lshr_b32 s35, s5, 1\ns_and_b32 s36, s5, 1')
    a('s_mul_i32 s16, s4, 7\ns_add_u32 s16, s16, s35\ns_mul_i32 s16, s16, 36\ns_add_u32 s16, s16, s36')
    a('s_lshl_b32 s17, s21, 1\ns_add_u32 s16, s16, s17\ns_lshl_b32 s16, s16, 10\ns_add_u32 s16, s16, %d' % WQ)
    a('s_mov_b32 s17, 2048')
    a('s_mul_i32 s34, s4, 72')
    a('s_cmp_ge_u32 s5, 12')
    a('s_cbranch_scc1 prep_wq_x')
    a('s_sub_u32 s37, s5, 8')
    a('s_add_u32 s36, s36, 1\ns_mul_i32 s36, s36, 576')
    a('s_cmp_ge_u32 s5, 8')
    a('s_cselect_b32 s35, s37, s35\ns_cselect_b32 s36, 0, s36')
    a('s_mul_i32 s35, s35, 18\ns_add_u32 s34, s34, s35\ns_add_u32 s34, s34, s36')
    a('v_add_u32 v8, s34, v2')
    a('s_branch prep_wq_go')
    a.label('prep_wq_x')
    a('s_add_u32 s34, s34, 16')
    a('s_cmp_eq_u32 s5, 13')
    a('s_cbranch_scc1 prep_wq_qx')
    a('v_mul_u32_u24 v8, 18, v6')
    a('v_lshrrev_b32 v9, 3, v2')
    a('v_mad_u32_u24 v8, v9, 64, v8')
    a('v_lshl_add_u32 v8, v9, 9, v8')
    a('v_and_b32 v9, 1, v5')
    a('s_add_u32 s34, s34, 576')
    a('v_add3_u32 v8, v8, v9, s34')
    a('s_branch prep_wq_go')
    a.label('prep_wq_qx')
    a('v_mul_u32_u24 v9, 18, v5')
    a('v_add3_u32 v8, v9, v6, s34')
    a('s_mov_b32 s6, 0x33333333\ns_mov_b32 s7, 0x33333333')
    a.label('prep_wq_go')
    a('v_mul_u32_u24 v9, %d, v3' % (8 * 3456))
    a('v_lshl_add_u32 v9, v8, 1, v9')
    a('v_mov_b32 v10, 0x%x' % OOB)
    a('v_cndmask_b32 v9, v10, v9, s[6:7]')
    a('s_mul_i32 s19, s21, %d' % (32 * 3456))
    for k in range(3):
        for i in range(8):
            a('buffer_load_ushort %s, v9, s[12:15], s19 offen offset:%d' % (vr(V + k * 8 + i), 3456 * (i & 1)))
            if i & 1:
                a('s_add_u32 s19, s19, %d' % (3456 * (2 if i < 7 else 26)))
    a('s_waitcnt vmcnt(0)')
    for k in range(24):
        a('v_lshlrev_b32 %s, 16, %s' % (vr(V + k), vr(V + k)))
    for k in range(4):
        a('v_add_f32 v%d, %s, %s' % (11 + k, vr(V + k), vr(V + 4 + k)))
    for k in range(8, 24):
        a('v_add_f32 v%d, v%d, %s' % (11 + k % 4, 11 + k % 4, vr(V + k)))
    a('v_add_f32 v11, v11, v12\nv_add_f32 v13, v13, v14\nv_add_f32 v11, v11, v13')
    a('s_lshl_b32 s4, s3, 8')
    a('v_lshl_add_u32 v12, v0, 2, s4')
    a('ds_write_b32 v12, v11')
    a('v_lshlrev_b32 v12, 2, v2')
    a('s_waitcnt lgkmcnt(0)')
    a('s_barrier')
    for n in range(12):
        a('ds_read2_b32 %s, v12 offset0:%d offset1:%d' % (vr(40 + 2 * n, 2), 32 * (n % 8), 32 * (n % 8) + 16))
        if n == 7:
            a('v_add_u32 v12, 1024, v12')
    a('s_waitcnt lgkmcnt(0)')
    for st in (12, 6, 3):
        for n in range(st):
            a('v_add_f32 %s, %s, %s' % (vr(40 + n), vr(40 + n), vr(40 + st + n)))
    a('v_add_f32 v40, v40, v41\nv_add_f32 v40, v40, v42')
    a('v_mul_f32 v11, 0x%x, v40' % INV576)
    for k in range(24):
        a('v_sub_f32 %s, %s, v11' % (vr(V + k), vr(V + k)))
    a('s_branch prep_pack')
    a.label('prep_wo')
    a('s_mov_b32 s12, s28\ns_mov_b32 s13, s29\ns_mov_b32 s14, %d' % (D * D * 2))
    a('s_sub_u32 s22, s20, 112')
    a('s_mul_i32 s16, s22, 18\ns_add_u32 s16, s16, s21\ns_lshl_b32 s16, s16, 10\ns_add_u32 s16, s16, %d' % WO)
    a('s_mov_b32 s17, 1024')
    a('s_lshr_b32 s4, s22, 1\ns_lshl_b32 s4, s4, 5\ns_and_b32 s5, s22, 1\ns_lshl_b32 s5, s5, 2\ns_add_u32 s4, s4, s5')
    a('v_lshl_add_u32 v7, v5, 3, v6')
    a('v_add_u32 v8, s4, v7')
    for k in range(3):
        a('s_add_u32 s4, s21, %d' % k)
        a('s_mul_i32 s19, s4, %d' % (36 * 1152))
        a('s_sub_u32 s5, s4, 16\ns_mul_i32 s5, s5, %d\ns_add_u32 s5, s5, %d' % (288 * 1152, 16 * 1152))
        a('s_cmp_lt_u32 s4, 16')
        a('s_cselect_b32 s19, s19, s5')
        a('s_cselect_b32 s34, %d, %d' % (2, 72))
        a('s_cselect_b32 s35, %d, %d' % (16, 72))
        a('s_cselect_b32 s36, %d, %d' % (4, 18))
        a('s_mul_i32 s34, s34, 1152\ns_mul_i32 s35, s35, 1152\ns_mul_i32 s36, s36, 1152')
        a('v_mul_lo_u32 v9, v3, s36')
        a('v_lshl_add_u32 v9, v8, 1, v9')
        for i in range(8):
            a('buffer_load_ushort %s, v9, s[12:15], s19 offen offset:%d' % (vr(V + k * 8 + i), 1152 * (i & 1)))
            if i in (1, 3, 5):
                a('s_add_u32 s19, s19, s%d' % (35 if i == 3 else 34))
    a('s_waitcnt vmcnt(0)')
    for k in range(24):
        a('v_lshlrev_b32 %s, 16, %s' % (vr(V + k), vr(V + k)))
    a.label('prep_pack')
    for k in range(3):
        b = V + k * 8
        for p in range(4):
            a('v_cvt_pk_bf16_f32 %s, %s, %s' % (vr(b + p), vr(b + 2 * p), vr(b + 2 * p + 1)))
        a('buffer_store_dwordx4 %s, v1, s[8:11], s16 offen%s' % (vr(b, 4), PREP_ST))
        a('s_add_u32 s16, s16, s17')
    stamp_end(a, 0, 2, 3, 6)
    a('s_endpgm')
    a.label('prep_x')
    a('s_mov_b32 s12, s24\ns_mov_b32 s13, s25\ns_mov_b32 s14, %d' % ACT)
    a('s_sub_u32 s20, s20, %d' % NG)
    a('s_mul_i32 s19, s20, %d\ns_mul_i32 s6, s3, 192\ns_add_u32 s19, s19, s6' % (16 * 1152))
    a('v_mul_u32_u24 v9, 1152, v2')
    a('v_lshl_add_u32 v9, v3, 4, v9')
    a('s_mul_i32 s16, s20, 6\ns_add_u32 s16, s16, s3\ns_mul_i32 s16, s16, 3072\ns_add_u32 s16, s16, %d' % X0)
    for k in range(3):
        a('buffer_load_dwordx4 %s, v9, s[12:15], s19 offen offset:%d%s' % (vr(V + 4 * k, 4), 64 * k, PREP_XLD))
    for k in range(3):
        a('s_waitcnt vmcnt(2)')
        a('buffer_store_dwordx4 %s, v1, s[8:11], s16 offen offset:%d%s' % (vr(V + 4 * k, 4), 1024 * k, PREP_ST))
    stamp_end(a, 0, 2, 3, 6)
    a('s_endpgm')
    a.label('prep_misc')
    if CODE_PF:
        a('s_getpc_b64 s[4:5]')
        a.label('prep_pc')
        a('s_sub_u32 s4, s4, prep_pc-prep_kernel')
        a('s_subb_u32 s5, s5, 0')
        a('s_lshl_b32 s6, s3, 13')
        a('v_lshl_add_u32 v4, v0, 7, s6')
        a('v_min_u32 v4, code_end-prep_kernel-4, v4')
        a('global_load_dword v5, v4, s[4:5]')
    if KD_PF:
        a('s_getpc_b64 s[4:5]')
        a('s_add_u32 s4, s4, kd_begin@rel32@lo+4')
        a('s_addc_u32 s5, s5, kd_begin@rel32@hi+12')
        a('v_lshlrev_b32 v4, 6, v0')
        a('v_min_u32 v4, kd_end-kd_begin-4, v4')
        a('global_load_dword v6, v4, s[4:5]')
    a('s_mul_i32 s16, s2, 6\ns_add_u32 s16, s16, s3\ns_lshl_b32 s16, s16, 10\ns_add_u32 s16, s16, %d' % SS)
    for k in range(4):
        a('v_mov_b32 v%d, 0' % (V + k))
    a('s_waitcnt lgkmcnt(0)')
    a('buffer_store_dwordx4 %s, v1, s[8:11], s16 offen' % vr(V, 4))
    a('s_waitcnt vmcnt(0)')
    stamp_end(a, 0, 2, 3, 6)
    a.label('prep_end')
    a('s_endpgm')
    return ('prep_kernel', a, max(nv, 64), 96 if STAMPS else 40, (NM + NT + NG + NX, 384, LB + 73728))


def xcd_map(a, ncx, s_c, s_r, nc=8):
    lg = ncx.bit_length() - 1
    ng = nc // ncx
    lgg = ng.bit_length() - 1
    a('s_and_b32 s4, s2, 7\ns_lshr_b32 s5, s2, 3')
    a('s_and_b32 s6, s4, %d\ns_lshl_b32 s6, s6, %d\ns_and_b32 s7, s5, %d\ns_add_u32 %s, s6, s7' % (ng - 1, lg, ncx - 1, sr(s_c)))
    a('s_lshr_b32 s6, s4, %d\ns_mul_i32 s6, s6, %d\ns_lshr_b32 s7, s5, %d\ns_add_u32 %s, s6, s7' % (lgg, 32 // ncx, lg, sr(s_r)))


def l2_touch(a, base, part_bytes, ncx, nc, v_t, v_d, share=1, s_sub=None):
    ng = nc // ncx
    lines = ncx * part_bytes // 128
    per = -(-lines // (32 * share))
    n = -(-per // 64)
    a('s_and_b32 s4, s2, %d\ns_mul_i32 s4, s4, %d\ns_add_u32 s4, s4, %d' % (ng - 1, ncx * part_bytes, base))
    a('s_lshr_b32 s5, s2, 3')
    if share > 1:
        a('s_mul_i32 s5, s5, %d\ns_add_u32 s5, s5, %s' % (share, sr(s_sub)))
    a('s_mul_i32 s5, s5, %d' % per)
    for i in range(n):
        a('v_add_u32 %s, %d, v0' % (vr(v_t), 64 * i))
        if (i + 1) * 64 > per:
            a('v_min_u32 %s, %d, %s' % (vr(v_t), per - 1, vr(v_t)))
        a('v_add_u32 %s, s5, %s' % (vr(v_t), vr(v_t)))
        a('v_min_u32 %s, %d, %s' % (vr(v_t), lines - 1, vr(v_t)))
        a('v_lshlrev_b32 %s, 7, %s' % (vr(v_t), vr(v_t)))
        a('buffer_load_dword %s, %s, s[8:11], s4 offen' % (vr(v_d), vr(v_t)))


def x_dma(a, nk, s_g, s_l, v_l16):
    for k in range(nk):
        a('s_mov_b32 m0, %s' % sr(s_l))
        if k < nk - 1:
            a('s_add_u32 %s, %s, 4096' % (sr(s_l), sr(s_l)))
        else:
            a('s_nop 0')
        a('buffer_load_dwordx4 %s, s[8:11], %s offen lds' % (vr(v_l16), sr(s_g)))
        if k < nk - 1:
            a('s_add_u32 %s, %s, 1024' % (sr(s_g), sr(s_g)))


def stats_prepass(a, nk, v_addr, v_fr, v_ones, v_res, v_t, v_g, v_tmp, v_dst):
    for k in range(nk):
        a('ds_read_b128 %s, %s offset:%d' % (vr(v_fr + 4 * k, 4), vr(v_addr), 4096 * k))
    for k in range(4):
        a('v_mov_b32 %s, 0x%x' % (vr(v_ones + k), ONES))
    for k in range(nk):
        a('s_waitcnt lgkmcnt(%d)' % (nk - 1 - k))
        f = v_fr + 4 * k
        mfma(a, v_res, v_ones, f, None if k == 0 else v_res)
        mfma(a, v_res + 4, f, f, None if k == 0 else v_res + 4)
    a('s_mov_b32 s40, 0x22222222\ns_mov_b32 s41, 0x22222222')
    a('s_mov_b32 s42, 0x44444444\ns_mov_b32 s43, 0x44444444')
    a('s_mov_b32 s44, 0x88888888\ns_mov_b32 s45, 0x88888888')
    a('v_cndmask_b32 %s, %s, %s, s[40:41]' % (vr(v_res + 1), vr(v_res + 4), vr(v_res + 5)))
    a('v_cndmask_b32 %s, %s, %s, s[42:43]' % (vr(v_res + 1), vr(v_res + 1), vr(v_res + 6)))
    a('v_cndmask_b32 %s, %s, %s, s[44:45]' % (vr(v_res + 1), vr(v_res + 1), vr(v_res + 7)))
    a('s_mov_b32 exec_lo, 0x00f0000f\ns_mov_b32 exec_hi, 0xf0000f00')
    a('ds_write_b64 %s, %s' % (vr(v_dst), vr(v_res, 2)))
    a('s_mov_b64 exec, -1')


def stats_final(a, nparts, lds_stats, v_lane, v_tmp):
    a('v_lshlrev_b32 %s, 3, %s' % (vr(v_tmp + 6), vr(v_lane)))
    for p in range(nparts):
        a('ds_read_b64 %s, %s offset:%d' % (vr(v_tmp + 2 * p, 2), vr(v_tmp + 6), p * 512))
    a('s_waitcnt lgkmcnt(0)')
    for p in range(1, nparts):
        a('v_add_f32 %s, %s, %s' % (vr(v_tmp), vr(v_tmp), vr(v_tmp + 2 * p)))
        a('v_add_f32 %s, %s, %s' % (vr(v_tmp + 1), vr(v_tmp + 1), vr(v_tmp + 2 * p + 1)))
    a('v_mul_f32 %s, 0x%x, %s' % (vr(v_tmp), INV576, vr(v_tmp)))
    a('v_mul_f32 %s, 0x%x, %s' % (vr(v_tmp + 1), INV576, vr(v_tmp + 1)))
    a('v_fma_f32 %s, -%s, %s, %s' % (vr(v_tmp + 1), vr(v_tmp), vr(v_tmp), vr(v_tmp + 1)))
    a('v_max_f32 %s, 0, %s' % (vr(v_tmp + 1), vr(v_tmp + 1)))
    a('v_add_f32 %s, 0x%x, %s' % (vr(v_tmp + 1), EPS5, vr(v_tmp + 1)))
    a('v_rsq_f32 %s, %s' % (vr(v_tmp), vr(v_tmp + 1)))


def diag_select(a, dst, src):
    a('s_mov_b32 s40, 0x22222222\ns_mov_b32 s41, 0x22222222')
    a('s_mov_b32 s42, 0x44444444\ns_mov_b32 s43, 0x44444444')
    a('s_mov_b32 s44, 0x88888888\ns_mov_b32 s45, 0x88888888')
    a('v_cndmask_b32 %s, %s, %s, s[40:41]' % (vr(dst), vr(src), vr(src + 1)))
    a('v_cndmask_b32 %s, %s, %s, s[42:43]' % (vr(dst), vr(dst), vr(src + 2)))
    a('v_cndmask_b32 %s, %s, %s, s[44:45]' % (vr(dst), vr(dst), vr(src + 3)))


def rstd_from(a, dst, vsum, vsq):
    a('v_mul_f32 %s, 0x%x, %s' % (vr(vsum), INV576, vr(vsum)))
    a('v_mul_f32 %s, 0x%x, %s' % (vr(vsq), INV576, vr(vsq)))
    a('v_fma_f32 %s, -%s, %s, %s' % (vr(vsq), vr(vsum), vr(vsum), vr(vsq)))
    a('v_max_f32 %s, 0, %s' % (vr(vsq), vr(vsq)))
    a('v_add_f32 %s, 0x%x, %s' % (vr(vsq), EPS5, vr(vsq)))
    a('v_rsq_f32 %s, %s' % (vr(dst), vr(vsq)))


def lds_spin(a, name, v_tmp, v_zero, off, mask, want):
    a.label(name)
    a('ds_read_b32 %s, %s offset:%d' % (vr(v_tmp), vr(v_zero), off))
    a('s_waitcnt lgkmcnt(0)')
    a('v_readfirstlane_b32 s4, %s' % vr(v_tmp))
    a('s_and_b32 s4, s4, 0x%x' % mask)
    a('s_cmp_eq_u32 s4, 0x%x' % want)
    a('s_cbranch_scc1 %s_ok' % name)
    a('s_sleep 1')
    a('s_branch %s' % name)
    a.label(name + '_ok')


def gen_p3():
    a = Asm()
    CNT = 256; TOK = 272; XI = 512; HI = XI + 73728
    LDS = HI + 73728
    ACC = 4; RING = ACC + 48; BF = RING + 72; RS = BF + 32
    VA = RS + 4; VT = VA + 3; VZ = VT + 1; VC = VZ + 1; VK = VC + 1
    acc = lambda j, tt: ACC + (j * 4 + tt) * 4
    ring = lambda k, j: RING + ((k % 6) * 3 + j) * 4
    bf = lambda p, tt: BF + (p * 4 + tt) * 4
    a('s_cmp_ge_u32 s2, 256')
    a('s_cbranch_scc1 p3_end')
    stamp_begin(a)
    ws_srd(a)
    wave_id(a, 12, 1)
    a('v_lshlrev_b32 v1, 4, v0')
    a('v_and_b32 v2, 15, v0')
    a('s_and_b32 s20, s12, 3\ns_lshr_b32 s21, s12, 2')
    a('v_mov_b32 %s, 0' % vr(VZ))
    a('s_lshl_b32 s4, s20, 2')
    a('v_mov_b32 %s, s4' % vr(VK))
    a('ds_write_b32 %s, %s offset:%d' % (vr(VZ), vr(VZ), CNT))
    a('ds_write_b32 %s, %s offset:%d' % (vr(VK), vr(VZ), TOK))
    xcd_map(a, P3_NCX, 13, 14)
    a('s_lshl_b32 s4, s14, 2\ns_add_u32 s4, s4, s20\ns_mul_i32 s4, s4, 18\ns_mul_i32 s5, s21, 6\ns_add_u32 s4, s4, s5')
    a('s_lshl_b32 s4, s4, 10\ns_add_u32 s22, s4, %d' % X1)
    a('s_mul_i32 s5, s21, 24\ns_add_u32 s5, s5, s20\ns_lshl_b32 s5, s5, 10\ns_add_u32 s23, s5, %d' % XI)
    a('s_mul_i32 s4, s14, 21846\ns_lshr_b32 s4, s4, 16\ns_mul_i32 s4, s4, 3\ns_sub_u32 s19, s14, s4')
    a('s_lshl_b32 s4, s19, 2\ns_add_u32 s28, s12, s4\ns_cmp_ge_u32 s28, 12\ns_cselect_b32 s4, 12, 0\ns_sub_u32 s28, s28, s4')
    a('s_mul_i32 s16, s13, 12\ns_add_u32 s16, s16, s28\ns_mul_i32 s16, s16, 55296\ns_add_u32 s16, s16, %d' % W1)
    a('s_mov_b32 s17, s19')
    for b in range(3):
        a('s_mul_i32 s4, s17, 18432\ns_add_u32 s%d, s4, s16' % (30 + b))
        a('s_mul_i32 s4, s17, 24576\ns_add_u32 s4, s4, %d' % XI)
        a('v_add_u32 %s, s4, v1' % vr(VA + b))
        if b < 2:
            a('s_add_u32 s17, s17, 1\ns_cmp_eq_u32 s17, 3\ns_cselect_b32 s17, 0, s17')
    a('s_lshl_b32 s4, s21, 3\ns_lshl_b32 s27, 1, s4')
    a('s_mov_b32 s18, s21')
    a('s_mov_b32 s34, 0\ns_mov_b32 s35, 0')
    a('s_waitcnt lgkmcnt(0)')
    x_dma(a, 6, 22, 23, 1)
    a('s_barrier')
    stamp(a, 1)
    a('s_cmp_eq_u32 s21, 0')
    a('s_cbranch_scc1 p3_fill')
    a('s_waitcnt vmcnt(0)')
    a('s_barrier')
    a('s_cmp_eq_u32 s21, 1')
    a('s_cbranch_scc1 p3_tok')
    a('s_setprio %d' % P3_SPRIO)
    a('s_lshl_b32 s4, s20, 10\ns_add_u32 s4, s4, %d' % XI)
    a('v_add_u32 %s, s4, v1' % vr(VC))
    a('v_add_u32 %s, %d, %s' % (vr(VT), 9 * 4096, vr(VC)))
    for k in range(4):
        a('v_mov_b32 %s, 0x%x' % (vr(BF + k), ONES))
    rdk = lambda k: a('ds_read_b128 %s, %s offset:%d' % (vr(RING + 4 * k, 4), vr(VC if k < 9 else VT), 4096 * (k % 9)))
    for k in range(12):
        rdk(k)
    for k in range(18):
        a('s_waitcnt lgkmcnt(%d)' % min(11, 17 - k))
        f = RING + 4 * k
        mfma(a, ACC, BF, f, None if k == 0 else ACC)
        mfma(a, ACC + 4, f, f, None if k == 0 else ACC + 4)
        if k + 12 < 18:
            rdk(k + 12)
    diag_select(a, ACC + 1, ACC + 4)
    rstd_from(a, ACC + 2, ACC, ACC + 1)
    a('s_lshl_b32 s4, s20, 6')
    a('v_lshl_add_u32 %s, v2, 2, s4' % vr(VT))
    a('v_mov_b32 %s, 0x1000000' % vr(VC))
    a('s_mov_b32 exec_lo, 0x00f0000f\ns_mov_b32 exec_hi, 0xf0000f00')
    a('ds_write_b32 %s, %s' % (vr(VT), vr(ACC + 2)))
    a('s_mov_b64 exec, 1')
    a('ds_add_u32 %s, %s offset:%d' % (vr(VZ), vr(VC), CNT))
    a('s_mov_b64 exec, -1')
    a.label('p3_tok')
    a('ds_read_b32 %s, %s offset:%d' % (vr(VT), vr(VK), TOK))
    a('s_waitcnt lgkmcnt(0)')
    a('v_readfirstlane_b32 s4, %s' % vr(VT))
    a('s_cmp_ge_u32 s4, s18')
    a('s_cbranch_scc1 p3_fill')
    a('s_sleep 1')
    a('s_branch p3_tok')
    a.label('p3_fill')
    a('s_mov_b32 s15, s30')
    for k in range(6):
        for j in range(3):
            a('buffer_load_dwordx4 %s, v1, s[8:11], s15 offen offset:%d%s' % (vr(ring(k, j), 4), 1024 * j, P3_LD))
        if k < 5:
            a('s_add_u32 s15, s15, 3072')
    a('s_add_u32 s4, s18, 1')
    a('v_mov_b32 %s, s4' % vr(VC))
    a('s_cmp_lt_u32 s18, 3')
    a('s_cbranch_scc1 p3_pa')
    lds_spin(a, 'p3_w2', VT, VZ, CNT, 0xff, 0x04)
    a('s_setprio 1')
    stamp(a, 5)
    a('s_branch p3_pass')
    a.label('p3_pa')
    a('s_setprio 2')
    a('s_cmp_eq_u32 s18, 0')
    a('s_cbranch_scc0 p3_go')
    a('s_waitcnt vmcnt(18)')
    a('s_barrier')
    a.label('p3_go')
    stamp(a, 2)
    a.label('p3_pass')

    def rd(k, tt):
        a('ds_read_b128 %s, %s offset:%d' % (vr(bf(k & 1, tt), 4), vr(VA + k // 6), 4096 * (k % 6) + 1024 * tt))
    for tt in range(4):
        rd(0, tt)
    a('s_waitcnt vmcnt(17) lgkmcnt(0)')
    issued = 18
    for k in range(18):
        for n in range(12):
            j, tt = n >> 2, n & 3
            if j & 1:
                tt = 3 - tt
            mfma(a, acc(j, tt), ring(k, j), bf(k & 1, tt), None if k == 0 else acc(j, tt))
            if n == 0 and k < 12:
                a('s_add_u32 s15, s15, 3072' if k % 6 else 's_mov_b32 s15, s%d' % (31 + k // 6))
            if n in (0, 1, 4, 5) and k < 17 and not (P3_NODS and k):
                rd(k + 1, n if n < 2 else n - 2)
            if n in (2, 6, 10) and k * 3 + j + 1 < 54:
                a('s_waitcnt vmcnt(%d)%s' % (issued - (k * 3 + j + 2), ' lgkmcnt(0)' if n == 10 else ''))
            if n in (3, 7, 11) and k < 12:
                if not P3_NOLD:
                    a('buffer_load_dwordx4 %s, v1, s[8:11], s15 offen offset:%d%s' % (vr(ring(k, j), 4), 1024 * j, P3_LD))
                issued += 1
            if n == 8 and k == P3_TOK:
                a('ds_write_b32 %s, %s offset:%d' % (vr(VK), vr(VC), TOK))
            if k in (4, 10):
                m = 34 if k == 4 else 35
                if n == 6:
                    a('ds_read_b32 %s, %s offset:%d' % (vr(VT), vr(VZ), CNT))
                if n == 10:
                    a('v_readfirstlane_b32 s4, %s' % vr(VT))
                if n == 11:
                    a('s_andn2_b32 s4, s%d, s4' % m)
                    a('s_cbranch_scc1 p3_slow%d' % k)
                    a.label('p3_back%d' % k)
                    if k == 10:
                        stamp(a, 6)
    a('s_cmp_ge_u32 s18, 3')
    a('s_cbranch_scc1 p3_epib')
    stamp(a, 3)
    a('s_setprio %d' % P3_EPRIO)
    if P3_EPRIO2 != P3_EPRIO:
        a('s_cmp_eq_u32 s18, 2\ns_cbranch_scc0 p3_ep')
        a('s_setprio %d' % P3_EPRIO2)
        a.label('p3_ep')
    lds_spin(a, 'p3_w1', VT, VZ, CNT, 0xff000000, 0x04000000)
    a('v_lshlrev_b32 %s, 2, v2' % vr(VT))
    for tt in range(4):
        a('ds_read_b32 %s, %s offset:%d' % (vr(RS + tt), vr(VT), 64 * tt))
    a('s_waitcnt lgkmcnt(0)')
    C = BF + 28
    for tt in range(4):
        a('v_mul_f32 %s, 0x%x, %s' % (vr(C + tt), NLOG2E, vr(RS + tt)))
    T = BF
    for j in range(3):
        a('s_mul_i32 s4, s28, 3\ns_add_u32 s4, s4, %d' % j)
        a('s_lshr_b32 s5, s4, 1\ns_lshl_b32 s5, s5, 12\ns_and_b32 s4, s4, 1\ns_lshl_b32 s4, s4, 3')
        a('s_add_u32 s4, s4, s5\ns_add_u32 s4, s4, %d' % HI)
        a('v_add_u32 %s, s4, v1' % vr(VT))
        for tp in range(2):
            idx = [(tt, r) for tt in (2 * tp, 2 * tp + 1) for r in range(4)]
            for n, (tt, r) in enumerate(idx):
                a('v_mul_f32 %s, %s, %s' % (vr(T + n), vr(acc(j, tt) + r), vr(C + tt)))
            for n in range(8):
                a('v_exp_f32 %s, %s' % (vr(T + n), vr(T + n)))
            for n in range(8):
                a('v_add_f32 %s, 1.0, %s' % (vr(T + n), vr(T + n)))
            for n in range(8):
                a('v_rcp_f32 %s, %s' % (vr(T + n), vr(T + n)))
            for n, (tt, r) in enumerate(idx):
                a('v_mul_f32 %s, %s, %s' % (vr(T + n), vr(acc(j, tt) + r), vr(T + n)))
            P = BF + 8 + 4 * ((j * 2 + tp) % 4)
            for n in range(4):
                a('v_cvt_pk_bf16_f32 %s, %s, %s' % (vr(P + n), vr(T + 2 * n), vr(T + 2 * n + 1)))
            a('ds_write_b64 %s, %s offset:%d' % (vr(VT), vr(P, 2), 1024 * (2 * tp)))
            a('ds_write_b64 %s, %s offset:%d' % (vr(VT), vr(P + 2, 2), 1024 * (2 * tp + 1)))
    a('v_mov_b32 %s, s27' % vr(VC))
    a('s_mov_b64 exec, 1')
    a('ds_add_u32 %s, %s offset:%d' % (vr(VZ), vr(VC), CNT))
    a('s_mov_b64 exec, -1')
    a('s_setprio 0')
    for b in range(3):
        a('s_add_u32 s%d, s%d, %d' % (30 + b, 30 + b, W2 - W1))
        a('v_add_u32 %s, %d, %s' % (vr(VA + b), HI - XI, vr(VA + b)))
    a('s_add_u32 s18, s18, 3')
    a('s_mov_b32 s34, 0x0400\ns_mov_b32 s35, 0x040000')
    stamp(a, 4)
    a('s_branch p3_tok')
    for k, m in ((4, 0x0400), (10, 0x040000)):
        lds_spin(a, 'p3_slow%d' % k, VT, VZ, CNT, m, m)
        a('s_branch p3_back%d' % k)
    a.label('p3_epib')
    stamp(a, 7)
    a('s_setprio %d' % P3_EPRIO)
    a('s_lshl_b32 s4, s13, 6\ns_lshl_b32 s5, s14, 1\ns_add_u32 s4, s4, s5\ns_mul_i32 s4, s4, 36')
    a('s_mul_i32 s5, s28, 3\ns_add_u32 s4, s4, s5\ns_lshl_b32 s4, s4, 10\ns_add_u32 s4, s4, %d' % PART)
    a('s_add_u32 s5, s4, %d' % (36 * 1024))
    for j in range(3):
        for tp in range(2):
            P = BF + 4 * (j * 2 + tp)
            for n, tt in enumerate((2 * tp, 2 * tp + 1)):
                for r in range(4):
                    a('v_mul_f32 %s, %s, %s' % (vr(acc(j, tt) + r), vr(acc(j, tt) + r), vr(RS + tt)))
                a('v_cvt_pk_bf16_f32 %s, %s, %s' % (vr(P + 2 * n), vr(acc(j, tt)), vr(acc(j, tt) + 1)))
                a('v_cvt_pk_bf16_f32 %s, %s, %s' % (vr(P + 2 * n + 1), vr(acc(j, tt) + 2), vr(acc(j, tt) + 3)))
            a('buffer_store_dwordx4 %s, v1, s[8:11], s%d offen offset:%d%s' % (vr(P, 4), 4 + tp, 1024 * j, P3_ST))
            if P3_SLEEP and (j, tp) != (2, 1):
                a('s_cmp_eq_u32 s18, 5\ns_cbranch_scc1 p3_ns%d\ns_sleep %d' % (j * 2 + tp, P3_SLEEP))
                a.label('p3_ns%d' % (j * 2 + tp))
    stamp(a, 8)
    stamp_end(a, 3, 10, 12, 12)
    if STAMPS:
        a('s_mov_b64 exec, -1')
    a('s_cmp_lt_u32 s2, 48\ns_cbranch_scc0 p3_end')
    a('s_cmp_eq_u32 s12, 0\ns_cbranch_scc0 p3_end')
    for k in range(4):
        a('v_mov_b32 %s, 0' % vr(RING + k))
    a('s_lshl_b32 s4, s2, 10\ns_add_u32 s4, s4, %d' % SS)
    a('buffer_store_dwordx4 %s, v1, s[8:11], s4 offen' % vr(RING, 4))
    a.label('p3_end')
    a('s_endpgm')
    return ('p3_kernel', a, 168, 96 if STAMPS else 48, (256, 768, LDS))


def phi(a, dst, src, scale, scale2, t0, t1):
    a('v_mul_f32 %s, %s, %s' % (vr(t0), vr(src), vr(scale2)))
    a('v_mul_f32 %s, %s, %s' % (vr(t1), vr(src), vr(scale)))
    a('v_min_f32 %s, 0, %s' % (vr(t0), vr(t0)))
    a('v_max_f32 %s, 0, %s' % (vr(t1), vr(t1)))
    a('v_exp_f32 %s, %s' % (vr(t0), vr(t0)))
    a('v_add_f32 %s, 0x%x, %s' % (vr(t1), EPS6, vr(t1)))
    a('v_add_f32 %s, %s, %s' % (vr(dst), vr(t0), vr(t1)))


def gen_p1():
    a = Asm()
    RSL = 0; FLG = 512; XF = 1024; XI = 3072
    LDS = XI + 73728
    ACC = 8; RING = ACC + 32; BF = RING + 72
    VA = 4; VB = 5; VT = 6; VZ = 7
    acc = lambda j, tt: ACC + (j * 4 + tt) * 4
    ring = lambda k, j: RING + ((k % 9) * 2 + j) * 4
    bf = lambda p, tt: BF + (p * 4 + tt) * 4
    a('s_cmp_ge_u32 s2, 256')
    a('s_cbranch_scc1 p1_end')
    stamp_begin(a)
    ws_srd(a)
    wave_id(a, 12, 1)
    a('v_lshlrev_b32 v1, 4, v0')
    a('v_and_b32 v2, 15, v0')
    a('v_lshrrev_b32 v3, 4, v0')
    a('v_mov_b32 %s, 0' % vr(VZ))
    a('ds_write_b32 %s, %s offset:%d' % (vr(VZ), vr(VZ), FLG))
    xcd_map(a, P1_NCX, 13, 14)
    a('s_and_b32 s20, s12, 3\ns_lshr_b32 s21, s12, 2')
    a('s_lshl_b32 s4, s14, 2\ns_add_u32 s4, s4, s20\ns_mul_i32 s4, s4, 18\ns_mul_i32 s5, s21, 9\ns_add_u32 s4, s4, s5')
    a('s_lshl_b32 s4, s4, 10\ns_add_u32 s22, s4, %d' % X0)
    a('s_mul_i32 s5, s21, 36\ns_add_u32 s5, s5, s20\ns_lshl_b32 s5, s5, 10\ns_add_u32 s23, s5, %d' % XI)
    a('s_mul_i32 s15, s13, 7\ns_add_u32 s15, s15, s12\ns_mul_i32 s15, s15, 36864\ns_add_u32 s15, s15, %d' % WQ)
    a('v_add_u32 %s, %d, v1' % (vr(VA), XI))
    a('v_add_u32 %s, %d, v1' % (vr(VB), XI + 9 * 4096))
    a('s_waitcnt lgkmcnt(0)')
    x_dma(a, 9, 22, 23, 1)
    a('s_barrier')
    stamp(a, 1)
    a('s_cmp_eq_u32 s12, 7')
    a('s_cbranch_scc1 p1_stats')

    def wld(k):
        for j in range(2):
            a('buffer_load_dwordx4 %s, v1, s[8:11], s15 offen offset:%d' % (vr(ring(k, j), 4), 2048 * (k & 1) + 1024 * j))
        if k & 1:
            a('s_add_u32 s15, s15, 4096')

    def rdx(k, tt):
        v, o = (VA, 4096 * k + 1024 * tt) if k < 9 else (VB, 4096 * (k - 9) + 1024 * tt)
        a('ds_read_b128 %s, %s offset:%d' % (vr(bf(k & 1, tt), 4), vr(v), o))
    a('s_lshr_b32 s26, 0x43, s12\ns_and_b32 s26, s26, 1')
    a('s_cbranch_scc1 p1_f1')
    a('s_waitcnt vmcnt(0)')
    a('s_barrier')
    a('s_branch p1_fill')
    a.label('p1_f1')
    a('s_setprio 2')
    a.label('p1_fill')
    for k in range(9):
        wld(k)
    a('s_cmp_eq_u32 s26, 0')
    a('s_cbranch_scc1 p1_go')
    a('s_waitcnt vmcnt(18)')
    a('s_barrier')
    a.label('p1_go')
    stamp(a, 2)
    for tt in range(4):
        rdx(0, tt)
    a('s_cmp_lt_u32 s12, 4')
    a('s_cbranch_scc1 p1_nn')
    a('s_cmp_eq_u32 s12, 6')
    a('s_cbranch_scc1 p1_nt')

    def main(orient):
        issued = 18
        a('s_waitcnt vmcnt(17) lgkmcnt(0)')
        for k in range(18):
            for n in range(8):
                j, tt = n >> 2, n & 3
                if j:
                    tt = 3 - tt
                c = None if k == 0 else acc(j, tt)
                if orient[j] == 'N':
                    mfma(a, acc(j, tt), bf(k & 1, tt), ring(k, j), c)
                else:
                    mfma(a, acc(j, tt), ring(k, j), bf(k & 1, tt), c)
                if n < 2 and k < 17:
                    rdx(k + 1, 2 * n); rdx(k + 1, 2 * n + 1)
                if n == 2:
                    a('s_waitcnt vmcnt(%d)' % (issued - (2 * k + 2)))
                if n in (3, 7) and k < 9:
                    kk = k + 9
                    a('buffer_load_dwordx4 %s, v1, s[8:11], s15 offen offset:%d' % (vr(ring(kk, j), 4), 2048 * (kk & 1) + 1024 * j))
                    issued += 1
                    if n == 7 and (kk & 1):
                        a('s_add_u32 s15, s15, 4096')
                if n == 6 and k < 17:
                    a('s_waitcnt vmcnt(%d) lgkmcnt(0)' % (issued - (2 * k + 3)))
        stamp(a, 3)
        if orient == 'NN':
            a('s_setprio 0')
        lds_spin(a, 'p1_s' + orient, VT, VZ, FLG, 2, 2)
        stamp(a, 4)

    def rs_n(RS):
        a('v_lshlrev_b32 %s, 4, v3' % vr(VT))
        for n in range(8):
            a('ds_read_b128 %s, %s offset:%d' % (vr(RS + 4 * n, 4), vr(VT), RSL + 64 * n))

    def rs_t(RS):
        a('v_lshlrev_b32 %s, 2, v2' % vr(VT))
        for n in range(8):
            a('ds_read_b32 %s, %s offset:%d' % (vr(RS + n), vr(VT), RSL + 64 * n))

    def phi4(items, T):
        n = len(items)
        for i, (d, x, s1, s2) in enumerate(items):
            a('v_mul_f32 %s, %s, %s' % (vr(T + i), vr(x), vr(s2)))
        for i in range(n):
            a('v_min_f32 %s, 0, %s' % (vr(T + i), vr(T + i)))
        for i in range(n):
            a('v_exp_f32 %s, %s' % (vr(T + i), vr(T + i)))
        for i, (d, x, s1, s2) in enumerate(items):
            a('v_max_f32 %s, 0, %s' % (vr(d), vr(x)))
        for i in range(n):
            a('v_add_f32 %s, 0x%x, %s' % (vr(T + i), EPS6, vr(T + i)))
        for i, (d, x, s1, s2) in enumerate(items):
            a('v_fma_f32 %s, %s, %s, %s' % (vr(d), vr(d), vr(s1), vr(T + i)))

    RS = RING; TMP = RING + 32; F0 = RING + 48; ON = RING + 64
    pq_base = 's_lshl_b32 s4, s14, 4\ns_add_u32 s4, s4, s13\ns_mul_i32 s4, s4, 4608\ns_add_u32 s4, s4, %d' % PQ
    main('TT')
    rs_t(RS)
    a(pq_base)
    a('s_lshl_b32 s5, s20, 10\ns_add_u32 s4, s4, s5\ns_add_u32 s5, s4, %d' % (8 * 4608))
    a('s_waitcnt lgkmcnt(0)')
    for tt in range(4):
        phi4([(acc(j, tt) + r, acc(j, tt) + r, RS + tt, RS + 4 + tt) for j in range(2) for r in range(4)], TMP)
        P = BF + 4 * tt
        for j in range(2):
            a('v_cvt_pk_bf16_f32 %s, %s, %s' % (vr(P + 2 * j), vr(acc(j, tt)), vr(acc(j, tt) + 1)))
            a('v_cvt_pk_bf16_f32 %s, %s, %s' % (vr(P + 2 * j + 1), vr(acc(j, tt) + 2), vr(acc(j, tt) + 3)))
        a('buffer_store_dwordx4 %s, v1, s[8:11], s%d offen offset:%d%s' % (vr(P, 4), 4 + (tt >> 1), 2048 * (tt & 1), P1_ST))
    stamp(a, 5)
    stamp_end(a, 1, 7, 12, 8)
    a('s_endpgm')
    a.label('p1_nn')
    main('NN')
    rs_n(RS)
    FK = F0; FV = F0 + 8; DV = BF; FX = BF + 16
    for k in range(4):
        a('v_mov_b32 %s, 0x%x' % (vr(ON + k), ONES))
    a('s_lshl_b32 s4, s13, 2\ns_add_u32 s4, s4, s20\ns_mul_i32 s6, s4, %d\ns_add_u32 s6, s6, %d' % (HS, SS))
    a('s_waitcnt lgkmcnt(0)')
    for tp in range(2):
        phi4([(acc(0, tt) + r, acc(0, tt) + r, RS + 4 * tt + r, RS + 16 + 4 * tt + r) for tt in (2 * tp, 2 * tp + 1) for r in range(4)], TMP)
        for tt in (2 * tp, 2 * tp + 1):
            for r in range(4):
                a('v_mul_f32 %s, %s, %s' % (vr(acc(1, tt) + r), vr(acc(1, tt) + r), vr(RS + 4 * tt + r)))
            for j, Fb in enumerate((FK, FV)):
                d = Fb + 2 * tt
                a('v_cvt_pk_bf16_f32 %s, %s, %s' % (vr(d), vr(acc(j, tt)), vr(acc(j, tt) + 1)))
                a('v_cvt_pk_bf16_f32 %s, %s, %s' % (vr(d + 1), vr(acc(j, tt) + 2), vr(acc(j, tt) + 3)))
        c = (lambda x: None) if tp == 0 else (lambda x: x)
        mfma(a, DV, FV + 4 * tp, FK + 4 * tp, c(DV))
        mfma(a, DV + 4, ON, FK + 4 * tp, c(DV + 4))
    a('v_and_b32 %s, 0x3c0, v1' % vr(VA))
    a('s_lshl_b32 s5, s20, 4')
    a('v_add_u32 %s, s5, %s' % (vr(VA), vr(VA)))
    a('v_lshlrev_b32 %s, 2, v0' % vr(VB))
    for r in range(4):
        a('buffer_atomic_add_f32 %s, %s, s[8:11], s6 offen offset:%d' % (vr(DV + r), vr(VB), 256 * r))
    a('s_mov_b64 exec, 0xffff')
    a('buffer_atomic_add_f32 %s, %s, s[8:11], s6 offen offset:1152' % (vr(DV + 4), vr(VB)))
    a('s_mov_b64 exec, -1')
    lds_spin(a, 'p1_w', VT, VZ, FLG, 1, 1)
    a('ds_read_b128 %s, %s offset:%d' % (vr(FX, 4), vr(VA), XF))
    a('ds_read_b128 %s, %s offset:%d' % (vr(FX + 4, 4), vr(VA), XF + 1024))
    a('v_lshlrev_b32 %s, 3, v2' % vr(VT))
    a('v_lshl_add_u32 %s, v3, 2, %s' % (vr(VT), vr(VT)))
    a('v_add_u32 %s, 384, %s' % (vr(VT), vr(VT)))
    a('s_mov_b32 s40, -1\ns_mov_b32 s41, 0')
    a('v_cndmask_b32 %s, %s, %s, s[40:41]' % (vr(VT), vr(VB), vr(VT)))
    a('s_waitcnt lgkmcnt(0)')
    for tp in range(2):
        c = (lambda x: None) if tp == 0 else (lambda x: x)
        mfma(a, DV + 8, FX + 4 * tp, FV + 4 * tp, c(DV + 8))
        mfma(a, DV + 12, FX + 4 * tp, FK + 4 * tp, c(DV + 12))
    a('v_cndmask_b32 %s, %s, %s, s[40:41]' % (vr(DV + 8), vr(DV + 12), vr(DV + 8)))
    a('buffer_atomic_add_f32 %s, %s, s[8:11], s6 offen offset:896' % (vr(DV + 8), vr(VT)))
    stamp(a, 5)
    stamp_end(a, 1, 7, 12, 8)
    a('s_endpgm')
    a.label('p1_nt')
    main('NT')
    rs_n(RS)
    FX = F0; PH = BF + 16
    for k in range(4):
        a('v_mov_b32 %s, 0x%x' % (vr(ON + k), ONES))
    a('s_mov_b32 s46, 0x00ff00ff\ns_mov_b32 s47, 0x00ff00ff')
    a('s_waitcnt lgkmcnt(0)')
    for tp in range(2):
        tts = (2 * tp, 2 * tp + 1)
        phi4([(PH + 4 * (tt & 1) + r, acc(0, tt) + r, RS + 4 * tt + r, RS + 16 + 4 * tt + r) for tt in tts for r in range(4)], TMP)
        for tt in tts:
            for r in range(4):
                a('v_mul_f32 %s, %s, %s' % (vr(acc(0, tt) + r), vr(acc(0, tt) + r), vr(RS + 4 * tt + r)))
                a('v_cndmask_b32 %s, %s, %s, s[46:47]' % (vr(acc(0, tt) + r), vr(acc(0, tt) + r), vr(PH + 4 * (tt & 1) + r)))
            a('v_cvt_pk_bf16_f32 %s, %s, %s' % (vr(FX + 2 * tt), vr(acc(0, tt)), vr(acc(0, tt) + 1)))
            a('v_cvt_pk_bf16_f32 %s, %s, %s' % (vr(FX + 2 * tt + 1), vr(acc(0, tt) + 2), vr(acc(0, tt) + 3)))
        a('ds_write_b128 v1, %s offset:%d' % (vr(FX + 4 * tp, 4), XF + 1024 * tp))
    a('v_mov_b32 %s, 3' % vr(VT))
    a('ds_write_b32 %s, %s offset:%d' % (vr(VZ), vr(VT), FLG))
    for tp in range(2):
        c = (lambda x: None) if tp == 0 else (lambda x: x)
        mfma(a, DV, FX + 4 * tp, FX + 4 * tp, c(DV))
        mfma(a, DV + 4, ON, FX + 4 * tp, c(DV + 4))
    rs_t(RS)
    a('v_and_b32 %s, 3, v2' % vr(VA))
    a('v_mul_u32_u24 %s, %d, %s' % (vr(VA), HS, vr(VA)))
    a('v_and_b32 %s, 4, v2' % vr(VB))
    a('v_add_u32 %s, %s, %s' % (vr(VA), vr(VA), vr(VB)))
    a('v_add_u32 %s, 2, v3' % vr(VB))
    a('v_and_b32 %s, 3, %s' % (vr(VB), vr(VB)))
    a('v_lshl_add_u32 %s, %s, 3, %s' % (vr(VA), vr(VB), vr(VA)))
    a('s_mul_i32 s6, s13, %d\ns_add_u32 s6, s6, %d' % (4 * HS, SS))
    diag_select(a, DV + 8, DV)
    a('s_mov_b32 s40, 0xffff\ns_mov_b32 s41, 0')
    a('v_cndmask_b32 %s, %s, %s, s[40:41]' % (vr(DV + 8), vr(DV + 8), vr(DV + 4)))
    a('s_mov_b32 exec_lo, 0xff\ns_mov_b32 exec_hi, 0x00ff00ff')
    a('buffer_atomic_add_f32 %s, %s, s[8:11], s6 offen offset:%d' % (vr(DV + 8), vr(VA), 1280 + 128))
    a('s_mov_b64 exec, -1')
    a(pq_base)
    a('s_add_u32 s4, s4, 4096\ns_add_u32 s5, s4, %d' % (8 * 4608))
    a('v_lshlrev_b32 %s, 3, v0' % vr(VB))
    a('s_waitcnt lgkmcnt(0)')
    phi4([(acc(1, tt) + r, acc(1, tt) + r, RS + tt, RS + 4 + tt) for tt in range(4) for r in range(2)], TMP)
    for tt in range(4):
        a('v_cvt_pk_bf16_f32 %s, %s, %s' % (vr(PH + tt), vr(acc(1, tt)), vr(acc(1, tt) + 1)))
    for tp in range(2):
        a('buffer_store_dwordx2 %s, %s, s[8:11], s%d offen%s' % (vr(PH + 2 * tp, 2), vr(VB), 4 + tp, P1_ST))
    stamp(a, 5)
    stamp_end(a, 1, 7, 12, 8)
    a('s_endpgm')
    a.label('p1_stats')
    a('s_setprio 3')
    for k in range(4):
        a('v_mov_b32 %s, 0x%x' % (vr(RING + k), ONES))
    a('s_waitcnt vmcnt(0)')
    a('s_barrier')
    stamp(a, 2)
    for tt in range(4):
        rdx(0, tt)
    for k in range(18):
        if k < 17:
            for tt in range(4):
                rdx(k + 1, tt)
        a('s_waitcnt lgkmcnt(%d)' % (4 if k < 17 else 0))
        for tt in range(4):
            mfma(a, acc(0, tt), RING, bf(k & 1, tt), None if k == 0 else acc(0, tt))
            mfma(a, acc(1, tt), bf(k & 1, tt), bf(k & 1, tt), None if k == 0 else acc(1, tt))
    a('v_lshlrev_b32 %s, 2, v2' % vr(VT))
    for tt in range(4):
        diag_select(a, acc(0, tt) + 1, acc(1, tt))
        rstd_from(a, acc(0, tt) + 2, acc(0, tt), acc(0, tt) + 1)
        a('v_mul_f32 %s, 0x%x, %s' % (vr(acc(0, tt) + 3), LOG2E, vr(acc(0, tt) + 2)))
    a('s_mov_b32 exec_lo, 0x00f0000f\ns_mov_b32 exec_hi, 0xf0000f00')
    for tt in range(4):
        a('ds_write_b32 %s, %s offset:%d' % (vr(VT), vr(acc(0, tt) + 2), RSL + 64 * tt))
        a('ds_write_b32 %s, %s offset:%d' % (vr(VT), vr(acc(0, tt) + 3), RSL + 256 + 64 * tt))
    a('v_mov_b32 %s, 2' % vr(VT))
    a('ds_write_b32 %s, %s offset:%d' % (vr(VZ), vr(VT), FLG))
    a('s_mov_b64 exec, -1')
    a('s_setprio 0')
    if 'wo' in PF1:
        l2_touch(a, WO, 9 * 18432, P2_NCX, 4, RING, RING + 1)
    if 'w1' in PF1:
        l2_touch(a, W1, 663552, P3_NCX, 8, RING, RING + 1)
    if 'w2' in PF1:
        l2_touch(a, W2, 663552, P3_NCX, 8, RING, RING + 1)
    stamp(a, 3)
    stamp(a, 4)
    stamp(a, 5)
    stamp_end(a, 1, 7, 12, 8)
    a.label('p1_end')
    a('s_endpgm')
    return ('p1_kernel', a, 144, 96 if STAMPS else 48, (256, 512, LDS))


def gen_p2():
    a = Asm()
    SL = 36864
    LDS = SL + 32 * HS
    WF = 12; FR = WF + 72; XP = FR + 32; QF = XP + 16
    VA = 4; VB = 5; VC = 6; VD = 7; EX = 8; VT = 9; RX = 164
    f1 = lambda hh: FR + 8 * hh
    f2 = lambda hh: FR + 8 * hh + 4
    qf = lambda tt, hh: QF + (tt * 4 + hh) * 4
    a('s_cmp_ge_u32 s2, 256')
    a('s_cbranch_scc1 p2_end')
    stamp_begin(a)
    ws_srd(a)
    wave_id(a, 12, 1)
    a('v_lshlrev_b32 v1, 4, v0')
    a('v_and_b32 v2, 15, v0')
    a('v_lshrrev_b32 v3, 4, v0')
    xcd_map(a, P2_NCX, 13, 14, nc=4)
    a('v_and_b32 %s, 3, v2' % vr(VT))
    a('v_lshrrev_b32 %s, 2, v2' % vr(VA))
    a('v_lshl_add_u32 %s, %s, 2, %s' % (vr(VA), vr(VT), vr(VA)))
    a('v_lshlrev_b32 %s, 6, %s' % (vr(VA), vr(VA)))
    a('v_lshl_add_u32 %s, v3, 4, %s' % (vr(VA), vr(VA)))
    a('v_min_u32 %s, 2, %s' % (vr(VT), vr(VT)))
    a('v_lshlrev_b32 %s, 6, %s' % (vr(VB), vr(VT)))
    a('v_lshl_add_u32 %s, v3, 4, %s' % (vr(VB), vr(VB)))
    a('v_mul_u32_u24 %s, %d, v3' % (vr(VD), HS))
    a('v_lshl_add_u32 %s, v2, 3, %s' % (vr(VC), vr(VD)))
    a('v_lshl_add_u32 %s, %s, 3, %s' % (vr(VD), vr(VT), vr(VD)))
    a('s_mul_i32 s25, s12, %d\ns_add_u32 s22, s25, %d\ns_add_u32 s25, s25, %d' % (4 * HS, SS, SL))
    a('s_lshl_b32 s23, s14, 3\ns_add_u32 s23, s23, s12\ns_mul_i32 s23, s23, 4608\ns_add_u32 s23, s23, %d' % PQ)
    a('s_add_u32 s24, s23, 4096')
    a('v_lshlrev_b32 v10, 3, v0')
    for v in (VA, VB, VC, VD):
        a('v_add_u32 %s, s25, %s' % (vr(v), vr(v)))
    a('s_mov_b32 m0, s25')
    a('s_cmp_eq_u32 s12, 8')
    a('s_waitcnt lgkmcnt(0)')
    stamp(a, 1)
    stamp(a, 3)
    stamp(a, 4)
    a('s_cbranch_scc1 p2_ldw')
    for n in range(6):
        if n == 4:
            a('s_add_u32 m0, s25, 4096\ns_add_u32 s22, s22, 4096')
        a('buffer_load_dwordx4 v1, s[8:11], s22 offen offset:%d lds' % (1024 * (n % 4)))
    for tt in range(2):
        for p in range(2):
            a('buffer_load_dwordx4 %s, v1, s[8:11], s23 offen offset:%d' % (vr(qf(tt, 2 * p), 4), 2048 * tt + 1024 * p))
    a('buffer_load_dwordx2 %s, v10, s[8:11], s24 offen' % vr(XP + 4, 2))
    a.label('p2_ldw')
    a('s_mul_i32 s15, s13, 9\ns_add_u32 s15, s15, s12')
    a('s_mul_i32 s16, s15, 18432\ns_add_u32 s16, s16, %d' % WO)
    a('s_mul_i32 s17, s14, 36\ns_lshr_b32 s4, s15, 1\ns_add_u32 s17, s17, s4\ns_lshl_b32 s17, s17, 10')
    a('s_and_b32 s4, s15, 1\ns_lshl_b32 s4, s4, 3\ns_add_u32 s17, s17, s4')
    a('s_add_u32 s18, s17, %d\ns_add_u32 s19, s18, %d' % (X0, 18432))
    a('s_add_u32 s20, s17, %d\ns_add_u32 s21, s20, %d' % (X1, 18432))
    for hh in range(4):
        a('s_mov_b32 s%d, 0x%x\ns_mov_b32 s%d, 0x%x' % (
            40 + 2 * hh, (0xffff << (16 * hh)) & 0xffffffff, 41 + 2 * hh, ((0xffff << (16 * hh)) >> 32) & 0xffffffff))
    a('s_barrier')

    nW = [0]

    def wld(n):
        for _ in range(n):
            k = nW[0]
            a('buffer_load_dwordx4 %s, v1, s[8:11], s16 offen offset:%d' % (vr(WF + 4 * k, 4), 1024 * (k % 4)))
            if k % 4 == 3:
                a('s_add_u32 s16, s16, 4096')
            nW[0] += 1
    W0 = P2_W0
    wld(W0)
    stamp(a, 2)
    a('s_cmp_eq_u32 s12, 8')
    a('s_cbranch_scc1 p2_bar')
    a('s_waitcnt vmcnt(%d)' % (W0 + 5))
    stamp(a, 3)
    a('ds_read_b64 %s, %s offset:1280' % (vr(XP, 2), vr(VC)))
    a('ds_read_b64 %s, %s offset:%d' % (vr(XP + 2, 2), vr(VD), 1280 + 128))
    for hh in range(4):
        a('ds_read_b128 %s, %s offset:%d' % (vr(f1(hh), 4), vr(VA), HS * hh))
        a('ds_read_b128 %s, %s offset:%d' % (vr(f2(hh), 4), vr(VB), HS * hh + 1024))
    a('s_waitcnt lgkmcnt(8)')
    a('v_cvt_pk_bf16_f32 %s, %s, %s' % (vr(XP), vr(XP), vr(XP + 1)))
    a('v_cvt_pk_bf16_f32 %s, %s, %s' % (vr(XP + 2), vr(XP + 2), vr(XP + 3)))
    for hh in range(4):
        a('s_waitcnt lgkmcnt(%d)' % (6 - 2 * hh))
        for f, x in ((f1(hh), XP), (f2(hh), XP + 2)):
            a('v_cvt_pk_bf16_f32 %s, %s, %s' % (vr(f), vr(f), vr(f + 1)))
            a('v_cvt_pk_bf16_f32 %s, %s, %s' % (vr(f + 1), vr(f + 2), vr(f + 3)))
            a('v_cndmask_b32 %s, 0, %s, s[%d:%d]' % (vr(f + 2), vr(x), 40 + 2 * hh, 41 + 2 * hh))
            a('v_mov_b32 %s, 0' % vr(f + 3))
    a('s_waitcnt vmcnt(%d)' % W0)
    stamp(a, 4)
    for tt in range(2):
        for p in range(2):
            q0, q1 = qf(tt, 2 * p), qf(tt, 2 * p + 1)
            a('v_mov_b32 %s, %s' % (vr(q1), vr(q0 + 2)))
            a('v_mov_b32 %s, %s' % (vr(q1 + 1), vr(q0 + 3)))
            for q in (q0, q1):
                a('v_mov_b32 %s, %s' % (vr(q + 2), vr(XP + 4 + tt)))
                a('v_mov_b32 %s, 0' % vr(q + 3))
    a('s_lshl_b32 s4, s12, 12')
    a('v_add_u32 %s, s4, v1' % vr(VA))
    a('s_lshr_b32 s4, s12, 2\ns_add_u32 s4, s4, 16\ns_lshl_b32 s4, s4, 11\ns_and_b32 s5, s12, 3\ns_lshl_b32 s5, s5, 2\ns_add_u32 s4, s4, s5')
    a('v_add_u32 %s, s4, v1' % vr(VB))
    for tt in range(2):
        for p in range(2):
            for n in range(2):
                hh = 2 * p + n
                mfma(a, XP + 8 * n + 4, f2(hh), qf(tt, hh))
            for n in range(2):
                hh = 2 * p + n
                mfma(a, XP + 8 * n, f1(hh), qf(tt, hh))
            wld(P2_W1)
            O = qf(tt, 2 * p)
            for n in range(2):
                d2 = XP + 8 * n + 4
                a('v_add_f32 %s, 0x%x, %s' % (vr(d2 + 2), EPS6, vr(d2 + 2)))
            for n in range(2):
                d2 = XP + 8 * n + 4
                a('v_rcp_f32 %s, %s' % (vr(d2 + 2), vr(d2 + 2)))
            for n in range(2):
                hh = 2 * p + n
                d1 = XP + 8 * n; d2 = d1 + 4
                for r in (4, 5, 0, 1, 2, 3):
                    a('v_mul_f32 %s, %s, %s' % (vr(d1 + r), vr(d1 + r), vr(d2 + 2)))
                a('v_cvt_pk_bf16_f32 %s, %s, %s' % (vr(O + 2 * n), vr(d1), vr(d1 + 1)))
                a('v_cvt_pk_bf16_f32 %s, %s, %s' % (vr(O + 2 * n + 1), vr(d1 + 2), vr(d1 + 3)))
                if hh == 0:
                    a('v_cvt_pk_bf16_f32 %s, %s, %s' % (vr(EX), vr(d2), vr(d2 + 1)))
                else:
                    a('v_cvt_pk_bf16_f32 %s, %s, %s' % (vr(VT), vr(d2), vr(d2 + 1)))
                    a('v_cndmask_b32 %s, %s, %s, s[%d:%d]' % (vr(EX), vr(EX), vr(VT), 40 + 2 * hh, 41 + 2 * hh))
            a('ds_write_b128 %s, %s offset:%d' % (vr(VA), vr(O, 4), 2048 * p + 1024 * tt))
        a('ds_write_b32 %s, %s offset:%d' % (vr(VB), vr(EX), 1024 * tt))
    a('s_branch p2_bar2')
    a.label('p2_bar')
    nW[0] = W0
    wld(4 * P2_W1)
    a.label('p2_bar2')
    stamp(a, 5)
    a('s_waitcnt lgkmcnt(0)')
    a('s_barrier')
    stamp(a, 6)
    NB = 12
    slot = lambda n: FR + 4 * (n % NB)
    AC = 4
    for n in range(NB):
        a('ds_read_b128 %s, v1 offset:%d' % (vr(slot(n), 4), 1024 * n))
    wld(18 - W0 - 4 * P2_W1)
    a('buffer_load_dwordx2 %s, v1, s[8:11], s18 offen' % vr(RX, 2))
    a('buffer_load_dwordx2 %s, v1, s[8:11], s19 offen' % vr(RX + 2, 2))
    n0 = len(a.lines)
    if 'w1' in PF2:
        l2_touch(a, W1, 663552, P3_NCX, 8, QF, QF + 1, 9, 12)
    if 'w2' in PF2:
        l2_touch(a, W2, 663552, P3_NCX, 8, QF, QF + 1, 9, 12)
    npf = sum(l.startswith('buffer_load') for l in a.lines[n0:])
    for n in range(36):
        k, tt = n >> 1, n & 1
        rem = min(NB - 1, 35 - n)
        a('s_waitcnt vmcnt(%d) lgkmcnt(%d)' % (19 - k + npf, rem))
        mfma(a, AC + 4 * tt, WF + 4 * k, slot(n), None if k == 0 else AC + 4 * tt)
        if n + NB < 36:
            a('ds_read_b128 %s, v1 offset:%d' % (vr(slot(n), 4), 1024 * (n + NB)))
    a('s_waitcnt vmcnt(%d)' % npf)
    stamp(a, 7)
    T = FR
    for tt in range(2):
        for h in range(2):
            a('v_lshlrev_b32 %s, 16, %s' % (vr(T + 4 * tt + 2 * h), vr(RX + 2 * tt + h)))
            a('v_and_b32 %s, 0xffff0000, %s' % (vr(T + 4 * tt + 2 * h + 1), vr(RX + 2 * tt + h)))
    for tt in range(2):
        for r in range(4):
            a('v_add_f32 %s, %s, %s' % (vr(T + 4 * tt + r), vr(T + 4 * tt + r), vr(AC + 4 * tt + r)))
        a('v_cvt_pk_bf16_f32 %s, %s, %s' % (vr(RX + 2 * tt), vr(T + 4 * tt), vr(T + 4 * tt + 1)))
        a('v_cvt_pk_bf16_f32 %s, %s, %s' % (vr(RX + 2 * tt + 1), vr(T + 4 * tt + 2), vr(T + 4 * tt + 3)))
        a('buffer_store_dwordx2 %s, v1, s[8:11], s%d offen' % (vr(RX + 2 * tt, 2), 20 + tt))
    stamp_end(a, 2, 9, 12, 9)
    a.label('p2_end')
    a('s_endpgm')
    return ('p2_kernel', a, 168, 96 if STAMPS else 48, (256, 576, LDS))


def gen_p0(final):
    a = Asm()
    nm = 'p0b' if final else 'p0a'
    P = 8; RX = 4; AC = 40
    a('s_cmp_ge_u32 s2, 256')
    a('s_cbranch_scc1 %s_end' % nm)
    stamp_begin(a)
    ws_srd(a)
    if final:
        a('s_load_dwordx2 s[24:25], s[0:1], 48')
        a('s_mov_b32 s26, %d\ns_mov_b32 s27, 0x20000' % ACT)
    wave_id(a, 12, 1)
    a('v_lshlrev_b32 v1, 4, v0')
    a('s_and_b32 s13, s2, 3\ns_lshr_b32 s14, s2, 2')
    a('s_mul_i32 s15, s13, 9\ns_add_u32 s15, s15, s12')
    a('s_mul_i32 s16, s14, 36\ns_add_u32 s16, s16, s15\ns_lshl_b32 s16, s16, 10\ns_add_u32 s16, s16, %d' % PART)
    a('s_mul_i32 s17, s14, 36\ns_lshr_b32 s4, s15, 1\ns_add_u32 s17, s17, s4\ns_lshl_b32 s17, s17, 10')
    a('s_and_b32 s5, s15, 1\ns_lshl_b32 s5, s5, 3\ns_add_u32 s17, s17, s5')
    a('s_add_u32 s18, s17, %d\ns_add_u32 s19, s18, %d' % (X1, 18432))
    if final:
        a('s_mul_i32 s20, s14, %d\ns_lshl_b32 s4, s4, 6\ns_add_u32 s20, s20, s4\ns_add_u32 s20, s20, s5' % (32 * 1152))
        a('s_add_u32 s21, s20, %d' % (16 * 1152))
        a('v_and_b32 v2, 15, v0\nv_lshrrev_b32 v3, 4, v0')
        a('v_mul_u32_u24 v2, 1152, v2')
        a('v_lshl_add_u32 v2, v3, 4, v2')
    else:
        a('s_add_u32 s20, s17, %d\ns_add_u32 s21, s20, %d' % (X0, 18432))
    a('s_waitcnt lgkmcnt(0)')
    a('buffer_load_dwordx2 %s, v1, s[8:11], s18 offen' % vr(RX, 2))
    a('buffer_load_dwordx2 %s, v1, s[8:11], s19 offen' % vr(RX + 2, 2))
    for c in range(8):
        a('buffer_load_dwordx4 %s, v1, s[8:11], s16 offen%s' % (vr(P + 4 * c, 4), P0_LD))
        if c < 7:
            a('s_add_u32 s16, s16, %d' % ACT)
    stamp(a, 1)
    a('s_waitcnt vmcnt(8)')
    stamp(a, 2)
    for n in range(4):
        a('v_lshlrev_b32 %s, 16, %s' % (vr(AC + 2 * n), vr(RX + n)))
        a('v_and_b32 %s, 0xffff0000, %s' % (vr(AC + 2 * n + 1), vr(RX + n)))
    for c in range(8):
        a('s_waitcnt vmcnt(%d)' % (7 - c))
        for n in range(4):
            a('v_lshlrev_b32 %s, 16, %s' % (vr(RX + n), vr(P + 4 * c + n)))
            a('v_and_b32 %s, 0xffff0000, %s' % (vr(P + 4 * c + n), vr(P + 4 * c + n)))
        for n in range(4):
            a('v_add_f32 %s, %s, %s' % (vr(AC + 2 * n), vr(AC + 2 * n), vr(RX + n)))
            a('v_add_f32 %s, %s, %s' % (vr(AC + 2 * n + 1), vr(AC + 2 * n + 1), vr(P + 4 * c + n)))
    stamp(a, 3)
    for n in range(4):
        a('v_cvt_pk_bf16_f32 %s, %s, %s' % (vr(RX + n), vr(AC + 2 * n), vr(AC + 2 * n + 1)))
    for tt in range(2):
        if final:
            a('buffer_store_dwordx2 %s, v2, s[24:27], s%d offen' % (vr(RX + 2 * tt, 2), 20 + tt))
        else:
            a('buffer_store_dwordx2 %s, v1, s[8:11], s%d offen' % (vr(RX + 2 * tt, 2), 20 + tt))
    stamp_end(a, 5 if final else 4, 5, 12, 9)
    a.label('%s_end' % nm)
    a('s_endpgm')
    return (nm + '_kernel', a, 48, 96 if STAMPS else 32, (256, 576, 0))


def gen_pf():
    a = Asm()
    a('s_cmp_ge_u32 s2, 256')
    a('s_cbranch_scc1 pf_end')
    ws_srd(a)
    xcd_map(a, P3_NCX, 13, 14)
    nsh = 32 // P3_NCX
    per = 5184 // nsh
    a('s_and_b32 s14, s14, %d' % (nsh - 1))
    a('s_mul_i32 s4, s13, 663552\ns_mul_i32 s5, s14, %d\ns_add_u32 s4, s4, s5\ns_add_u32 s4, s4, %d' % (per * 128, W1))
    a('s_add_u32 s5, s4, %d' % (W2 - W1))
    a('v_lshlrev_b32 v1, 7, v0')
    a('s_waitcnt lgkmcnt(0)')
    for k in range((per + 255) // 256):
        a('buffer_load_dword v2, v1, s[8:11], s4 offen')
        a('buffer_load_dword v3, v1, s[8:11], s5 offen')
        a('s_add_u32 s4, s4, 32768\ns_add_u32 s5, s5, 32768')
    a('s_waitcnt vmcnt(0)')
    a.label('pf_end')
    a('s_endpgm')
    return ('pf_kernel', a, 8, 24, (256, 256, 0))


def gen_empty(n=''):
    a = Asm()
    a('s_endpgm')
    return ('empty%s_kernel' % n, a, 8, 16, (256, 256, 0))


def gen_chain(slot):
    a = Asm()
    a('s_cmp_ge_u32 s2, 32')
    a('s_cbranch_scc1 chain_end')
    a('s_load_dwordx2 s[8:9], s[0:1], %d' % (8 * slot))
    a('s_mov_b32 s10, %d\ns_mov_b32 s11, 0x20000' % ACT)
    a('s_mul_i32 s4, s2, %d' % (64 * 1024))
    a('v_mov_b32 v1, 0')
    a('s_mov_b64 exec, 1')
    a('s_waitcnt lgkmcnt(0)')
    for k in range(64):
        a('buffer_load_dword v2, v1, s[8:11], s4 offen')
        a('s_waitcnt vmcnt(0)')
        a('v_and_b32 v2, 0, v2')
        a('v_add_u32 v1, 1024, v1')
        a('v_add_u32 v1, v2, v1')
    a.label('chain_end')
    a('s_endpgm')
    return ('chain_kernel', a, 8, 16, (32, 64, 0))


PRE = []
MID = []
KD_PF = False
P3_SLEEP = 0
P3_TOK = 11
P3_EPRIO2 = 0
P3_SPRIO = 1
PF1 = []
PF2 = []
PF3 = None
P0_LD = ''
P1_NCX = 4
P2_NCX = 4
P1_ST = ' sc1'
P2_W0 = 4
P2_W1 = 2
CODE_PF = True
PREP_ST = ' sc1'
PREP_XLD = ' nt'
P3_LD = ''
P3_SNAKE = True
P3_EPRIO = 0
PF = False
P3_NODS = False
P3_NOLD = False
PRIO = True
P3_NCX = 4
P3_ST = ' sc1'


def build():
    ks = [gen_prep(), gen_p1(), gen_p2(), gen_p3(), gen_p0(False), gen_p0(True)]
    if 'empty' in PRE:
        ks.append(gen_empty())
    if 'chain' in PRE:
        ks.append(gen_chain(3))
    for e in sorted(set(MID)):
        ks.append(gen_empty(e[5:]))
    if PF:
        ks.append(gen_pf())
    geo = {k[0]: k[4] for k in ks}
    order = PRE + ['prep', 'p1', 'p2'] + MID + ['p3', 'p0a', 'p1', 'p2', 'p3', 'p0b']
    if PF:
        order = ['prep', 'p1', 'p2', 'pf', 'p3', 'p0a', 'p1', 'p2', 'pf', 'p3', 'p0b']
    hdr = ['; generated by gen/gen.py (hand-written generator); see that file for the layouts']
    for o in order:
        g, b, l = geo[o + '_kernel']
        hdr.append('; @launch kernel=%s_kernel grid=(%d,1,1) block=(%d,1,1) lds=%d' % (o, g, b, l))
    out = '\n'.join(hdr) + '\n.amdgcn_target "amdgcn-amd-amdhsa--gfx950"\n'
    descs = ''
    for name, a, nv, ns, _ in ks:
        c, d = kernel_text(name, a, nv, ns)
        out += c
        descs += d
    out += 'code_end:\n'
    return out + '.section .rodata,"a"\n.p2align 6\nkd_begin:\n' + descs + 'kd_end:\n'


if __name__ == '__main__':
    path = sys.argv[1] if len(sys.argv) > 1 else 'cdna_kernels/%s.s' % NAME
    for o in sys.argv[2:]:
        k, v = o.split('=')
        globals()[k] = eval(v)
    open(path, 'w').write(build())
    print('wrote', path)
```

```python
import sys
from asmlib import Asm, vr, sr, kernel_text

NAME = 'interleave_layers__linear_attn_block__dense_activation_silu__prompt'
S, D, F = 2048, 576, 4608
ACT = S * D * 2
WQ_HG = 258048
WQ = 0
WO = WQ + 8 * WQ_HG
W1 = WO + 36 * 18432
W2 = W1 + D * F * 2
X0 = W2 + D * F * 2
X1 = X0 + 2 * ACT
PQ = X1 + 2 * ACT
HS = 1536
SS = PQ + 2 * ACT
FL = SS + 64 * HS
FL_GB = FL
FL_CB = FL + 32 * 128
FL_RF = FL + 64 * 128
ZERO_BYTES = 64 * HS + 448 * 128
PART = SS + ZERO_BYTES
WS_BYTES = 268435456
OOB = 0x80000000
LOG2E = 0x3fb8aa3b
NLOG2E = 0xbfb8aa3b
EPS6 = 0x358637bd
EPS5 = 0x3727c5ac
INV576 = 0x3ae38e39
ONES = 0x3f803f80
MF = 'v_mfma_f32_16x16x32_bf16'


def mfma(a, d, x, y, c=None):
    a('%s %s, %s, %s, %s' % (MF, vr(d, 4), vr(x, 4), vr(y, 4), '0' if c is None else vr(c, 4)))


def ws_srd(a):
    a('s_load_dwordx2 s[8:9], s[0:1], 64')
    a('s_mov_b32 s10, 0x%x' % WS_BYTES)
    a('s_mov_b32 s11, 0x20000')


def wave_id(a, sdst, vtmp):
    a('v_lshrrev_b32 %s, 6, v0' % vr(vtmp))
    a('v_readfirstlane_b32 %s, %s' % (sr(sdst), vr(vtmp)))
    a('v_and_b32 v0, 63, v0')


DBG = 128 << 20
STAMPS = False


SEL = ['x1', 's1m', 's1d', 'e1a', 'e1b', 'o', 's2d', 'x3', 'pa', 'pb']


def stamp(a, i):
    if isinstance(i, str):
        if i not in SEL:
            return
        i = SEL.index(i) + 1
    if STAMPS:
        a('s_mem%stime s[%d:%d]' % ('real' if STAMPS == 2 else '', 60 + 2 * i, 61 + 2 * i))


def stamp_begin(a):
    if STAMPS:
        a('s_memrealtime s[56:57]')
        stamp(a, 0)


def stamp_end(a, kid, n, s_wave, nw, base_v=2):
    if not STAMPS:
        return
    a('s_waitcnt vmcnt(0)')
    stamp(a, n - 1)
    a('s_memrealtime s[58:59]')
    a('s_getreg_b32 s55, hwreg(HW_REG_XCC_ID)')
    a('s_getreg_b32 s54, hwreg(HW_REG_HW_ID)')
    a('s_mov_b64 exec, -1')
    a('s_mul_i32 s4, s2, %d\ns_add_u32 s4, s4, %s\ns_lshl_b32 s4, s4, 6\ns_add_u32 s4, s4, %d' % (nw, sr(s_wave), DBG + (kid << 20)))
    a('s_waitcnt lgkmcnt(0)')
    d, o = base_v, base_v + 1
    a('v_mov_b32 v%d, 0' % d)
    for i in range(n):
        a('v_writelane_b32 v%d, s%d, %d' % (d, 60 + 2 * i, i))
    a('v_writelane_b32 v%d, s54, 12' % d)
    a('v_writelane_b32 v%d, s55, 13' % d)
    a('v_writelane_b32 v%d, s56, 14' % d)
    a('v_writelane_b32 v%d, s58, 15' % d)
    a('v_mbcnt_lo_u32_b32 v%d, -1, 0' % o)
    a('v_lshlrev_b32 v%d, 2, v%d' % (o, o))
    a('s_mov_b64 exec, 0xffff')
    a('buffer_store_dword v%d, v%d, s[8:11], s4 offen' % (d, o))


def conv_unit(a, L, nw, s_u, s_w, lds_base, lds_cs):
    nk = 18 // nw
    FR = 24; ON = 8; CS = FR + 16 * nk
    fr = lambda k, c: FR + (k * 4 + c) * 4
    a('s_mov_b32 s14, %d\ns_mov_b32 s15, 0x20000' % (D * F * 2))
    a('s_cmp_ge_u32 %s, 72' % sr(s_u))
    a('s_cbranch_scc1 %s_w2' % L)
    a('s_mov_b32 s12, s30\ns_mov_b32 s13, s31')
    a('s_mov_b32 s18, 9216\ns_lshl_b32 s19, %s, 7\ns_mov_b32 s16, %d\ns_lshl_b32 s21, %s, 2' % (sr(s_u), W1, sr(s_u)))
    a('s_branch %s_go' % L)
    a.label('%s_w2' % L)
    a('s_mov_b32 s12, s32\ns_mov_b32 s13, s33')
    a('s_sub_u32 s21, %s, 72' % sr(s_u))
    a('s_mul_i32 s4, s21, 7282\ns_lshr_b32 s4, s4, 16')
    a('s_mul_i32 s5, s4, 9\ns_sub_u32 s5, s21, s5\ns_lshl_b32 s5, s5, 7')
    a('s_mul_i32 s19, s4, %d\ns_add_u32 s19, s19, s5' % (576 * 1152))
    a('s_mov_b32 s18, 1152\ns_mov_b32 s16, %d\ns_lshl_b32 s21, s21, 2' % W2)
    a.label('%s_go' % L)
    a('s_mul_i32 s4, %s, s18\ns_mul_i32 s4, s4, %d\ns_add_u32 s19, s19, s4' % (sr(s_w), 32 * nk))
    a('s_mul_i32 s22, %s, %d\ns_add_u32 s22, s22, %d' % (sr(s_w), 4096 * nk, lds_base))
    a('s_lshl_b32 s17, s18, 3')
    a('v_lshrrev_b32 v4, 3, v0')
    a('v_mul_lo_u32 v4, v4, s18')
    a('v_and_b32 v5, 7, v0')
    a('v_lshrrev_b32 v6, 2, v0')
    a('v_and_b32 v6, 4, v6')
    a('v_xor_b32 v5, v5, v6')
    a('v_lshl_add_u32 v4, v5, 4, v4')
    a('s_mov_b32 s23, s22')
    for n in range(4 * nk):
        a('s_mov_b32 m0, s23')
        a('s_add_u32 s23, s23, 1024')
        a('buffer_load_dwordx4 v4, s[12:15], s19 offen nt lds')
        a('s_add_u32 s19, s19, s17')
    a('v_lshrrev_b32 v5, 4, v0')
    a('v_bfe_u32 v6, v0, 2, 2')
    a('v_lshl_add_u32 v5, v5, 3, v6')
    a('v_lshlrev_b32 v5, 7, v5')
    a('v_and_b32 v6, 3, v0')
    a('v_lshl_add_u32 v5, v6, 4, v5')
    a('v_and_b32 v6, 8, v0')
    a('v_lshl_add_u32 v5, v6, 3, v5')
    a('v_add_u32 v5, s22, v5')
    a('v_xor_b32 v6, 64, v5')
    for c in range(4):
        a('s_add_u32 s4, s21, %d\ns_mul_i32 s5, s4, 43691\ns_lshr_b32 s5, s5, 17' % c)
        a('s_mul_i32 s6, s5, 3\ns_sub_u32 s4, s4, s6')
        a('s_and_b32 s6, s5, 1\ns_lshl_b32 s6, s6, 1\ns_add_u32 s4, s4, s6')
        a('s_cmp_ge_u32 s4, 3\ns_cselect_b32 s6, 3, 0\ns_sub_u32 s4, s4, s6')
        a('s_mul_i32 s6, s5, 54\ns_add_u32 s4, s4, s6\ns_mul_i32 s6, %s, %d\ns_add_u32 s4, s4, s6' % (sr(s_w), 3 * nk))
        a('s_lshl_b32 s4, s4, 10\ns_add_u32 s%d, s4, s16' % (24 + c))
    for k in range(4):
        a('v_mov_b32 %s, 0x%x' % (vr(ON + k), ONES))
    for k in range(nk):
        a('s_waitcnt vmcnt(%d)' % (4 * (nk - 1 - k)))
        for c in range(4):
            for hi in range(2):
                a('ds_read_b64_tr_b16 %s, v%d offset:%d' % (vr(fr(k, c) + 2 * hi, 2), 5 + (c >> 1), 4096 * k + 512 * hi + 8 * (c & 1)))
        if k + 1 < nk:
            a('s_waitcnt lgkmcnt(4)')
    a('s_waitcnt lgkmcnt(0)')
    a('s_cmp_ge_u32 %s, 72' % sr(s_u))
    a('s_cbranch_scc1 %s_st' % L)
    for k in range(nk):
        for c in range(4):
            mfma(a, CS + 4 * c, ON, fr(k, c), None if k == 0 else CS + 4 * c)
    a('v_and_b32 v4, 15, v0')
    a('v_mul_u32_u24 v4, %d, v4' % (16 * nw))
    a('s_lshl_b32 s4, %s, 4' % sr(s_w))
    a('v_add_u32 v5, s4, v4')
    for c in range(4):
        a('v_mov_b32 %s, %s' % (vr(ON + c), vr(CS + 4 * c)))
    a('ds_write_b128 v5, %s offset:%d' % (vr(ON, 4), lds_cs))
    a('s_waitcnt lgkmcnt(0)')
    a('s_barrier')
    for w in range(nw):
        a('ds_read_b128 %s, v4 offset:%d' % (vr(CS + 4 * w, 4), lds_cs + 16 * w))
    a('s_waitcnt lgkmcnt(0)')
    for c in range(4):
        for w in range(1, nw):
            a('v_add_f32 %s, %s, %s' % (vr(CS + c), vr(CS + c), vr(CS + 4 * w + c)))
        a('v_mul_f32 %s, 0x%x, %s' % (vr(CS + c), INV576, vr(CS + c)))
    for k in range(nk):
        for c in range(4):
            f = fr(k, c)
            for p in range(4):
                a('v_lshlrev_b32 %s, 16, %s' % (vr(12 + 2 * p), vr(f + p)))
                a('v_and_b32 %s, 0xffff0000, %s' % (vr(13 + 2 * p), vr(f + p)))
            for p in range(8):
                a('v_sub_f32 %s, %s, %s' % (vr(12 + p), vr(12 + p), vr(CS + c)))
            for p in range(4):
                a('v_cvt_pk_bf16_f32 %s, %s, %s' % (vr(f + p), vr(12 + 2 * p), vr(13 + 2 * p)))
    a.label('%s_st' % L)
    for k in range(nk):
        for c in range(4):
            a('buffer_store_dwordx4 %s, v1, s[8:11], s%d offen%s' % (vr(fr(k, c), 4), 24 + c, PREP_ST))
            a('s_add_u32 s%d, s%d, 3072' % (24 + c, 24 + c))
    return CS + 4 * max(4, nw)


def gen_prep():
    a = Asm()
    NM = 8; NT = 144; NG = 148; NX = 128
    LCS = 0; LB = 2048
    a('s_cmp_ge_u32 s2, %d' % (NM + NT + NG + NX))
    a('s_cbranch_scc1 prep_end')
    stamp_begin(a)
    ws_srd(a)
    a('s_load_dwordx4 s[24:27], s[0:1], 0')
    a('s_load_dwordx2 s[28:29], s[0:1], 16')
    a('s_load_dwordx2 s[30:31], s[0:1], 32')
    a('s_load_dwordx2 s[32:33], s[0:1], 40')
    wave_id(a, 3, 1)
    a('v_lshlrev_b32 v1, 4, v0')
    a('v_and_b32 v2, 15, v0')
    a('v_lshrrev_b32 v3, 4, v0')
    a('s_cmp_lt_u32 s2, %d' % NM)
    a('s_cbranch_scc1 prep_misc')
    a('s_sub_u32 s20, s2, %d' % NM)
    a('s_waitcnt lgkmcnt(0)')
    a('s_cmp_ge_u32 s2, %d' % (NM + NT))
    a('s_cbranch_scc1 prep_gx')
    nv = conv_unit(a, 'prep_c', 6, 20, 3, LB, LCS)
    stamp_end(a, 0, 2, 3, 6)
    a('s_endpgm')
    a.label('prep_gx')
    a('s_mov_b32 s15, 0x20000')
    a('s_sub_u32 s20, s20, %d' % NT)
    a('s_cmp_ge_u32 s20, %d' % NG)
    a('s_cbranch_scc1 prep_x')
    V = 16
    a('v_lshrrev_b32 v5, 2, v2')
    a('v_and_b32 v6, 3, v2')
    a('s_mov_b64 s[6:7], -1')
    a('s_mul_i32 s21, s3, 3')
    a('s_cmp_ge_u32 s20, 112')
    a('s_cbranch_scc1 prep_wo')
    a('s_mov_b32 s12, s26\ns_mov_b32 s13, s27\ns_mov_b32 s14, %d' % (D * 3 * D * 2))
    a('s_mul_i32 s4, s20, 4682\ns_lshr_b32 s4, s4, 16')
    a('s_mul_i32 s5, s4, 14\ns_sub_u32 s5, s20, s5')
    a('s_lshr_b32 s35, s5, 1\ns_and_b32 s36, s5, 1')
    a('s_mul_i32 s16, s4, 7\ns_add_u32 s16, s16, s35\ns_mul_i32 s16, s16, 36\ns_add_u32 s16, s16, s36')
    a('s_lshl_b32 s17, s21, 1\ns_add_u32 s16, s16, s17\ns_lshl_b32 s16, s16, 10\ns_add_u32 s16, s16, %d' % WQ)
    a('s_mov_b32 s17, 2048')
    a('s_mul_i32 s34, s4, 72')
    a('s_cmp_ge_u32 s5, 12')
    a('s_cbranch_scc1 prep_wq_x')
    a('s_sub_u32 s37, s5, 8')
    a('s_add_u32 s36, s36, 1\ns_mul_i32 s36, s36, 576')
    a('s_cmp_ge_u32 s5, 8')
    a('s_cselect_b32 s35, s37, s35\ns_cselect_b32 s36, 0, s36')
    a('s_mul_i32 s35, s35, 18\ns_add_u32 s34, s34, s35\ns_add_u32 s34, s34, s36')
    a('v_add_u32 v8, s34, v2')
    a('s_branch prep_wq_go')
    a.label('prep_wq_x')
    a('s_add_u32 s34, s34, 16')
    a('s_cmp_eq_u32 s5, 13')
    a('s_cbranch_scc1 prep_wq_qx')
    a('v_mul_u32_u24 v8, 18, v6')
    a('v_lshrrev_b32 v9, 3, v2')
    a('v_mad_u32_u24 v8, v9, 64, v8')
    a('v_lshl_add_u32 v8, v9, 9, v8')
    a('v_and_b32 v9, 1, v5')
    a('s_add_u32 s34, s34, 576')
    a('v_add3_u32 v8, v8, v9, s34')
    a('s_branch prep_wq_go')
    a.label('prep_wq_qx')
    a('v_mul_u32_u24 v9, 18, v5')
    a('v_add3_u32 v8, v9, v6, s34')
    a('s_mov_b32 s6, 0x33333333\ns_mov_b32 s7, 0x33333333')
    a.label('prep_wq_go')
    a('v_mul_u32_u24 v9, %d, v3' % (8 * 3456))
    a('v_lshl_add_u32 v9, v8, 1, v9')
    a('v_mov_b32 v10, 0x%x' % OOB)
    a('v_cndmask_b32 v9, v10, v9, s[6:7]')
    a('s_mul_i32 s19, s21, %d' % (32 * 3456))
    for k in range(3):
        for i in range(8):
            a('buffer_load_ushort %s, v9, s[12:15], s19 offen offset:%d' % (vr(V + k * 8 + i), 3456 * (i & 1)))
            if i & 1:
                a('s_add_u32 s19, s19, %d' % (3456 * (2 if i < 7 else 26)))
    a('s_waitcnt vmcnt(0)')
    for k in range(24):
        a('v_lshlrev_b32 %s, 16, %s' % (vr(V + k), vr(V + k)))
    for k in range(4):
        a('v_add_f32 v%d, %s, %s' % (11 + k, vr(V + k), vr(V + 4 + k)))
    for k in range(8, 24):
        a('v_add_f32 v%d, v%d, %s' % (11 + k % 4, 11 + k % 4, vr(V + k)))
    a('v_add_f32 v11, v11, v12\nv_add_f32 v13, v13, v14\nv_add_f32 v11, v11, v13')
    a('s_lshl_b32 s4, s3, 8')
    a('v_lshl_add_u32 v12, v0, 2, s4')
    a('ds_write_b32 v12, v11')
    a('v_lshlrev_b32 v12, 2, v2')
    a('s_waitcnt lgkmcnt(0)')
    a('s_barrier')
    for n in range(12):
        a('ds_read2_b32 %s, v12 offset0:%d offset1:%d' % (vr(40 + 2 * n, 2), 32 * (n % 8), 32 * (n % 8) + 16))
        if n == 7:
            a('v_add_u32 v12, 1024, v12')
    a('s_waitcnt lgkmcnt(0)')
    for st in (12, 6, 3):
        for n in range(st):
            a('v_add_f32 %s, %s, %s' % (vr(40 + n), vr(40 + n), vr(40 + st + n)))
    a('v_add_f32 v40, v40, v41\nv_add_f32 v40, v40, v42')
    a('v_mul_f32 v11, 0x%x, v40' % INV576)
    for k in range(24):
        a('v_sub_f32 %s, %s, v11' % (vr(V + k), vr(V + k)))
    a('s_branch prep_pack')
    a.label('prep_wo')
    a('s_mov_b32 s12, s28\ns_mov_b32 s13, s29\ns_mov_b32 s14, %d' % (D * D * 2))
    a('s_sub_u32 s22, s20, 112')
    a('s_mul_i32 s16, s22, 18\ns_add_u32 s16, s16, s21\ns_lshl_b32 s16, s16, 10\ns_add_u32 s16, s16, %d' % WO)
    a('s_mov_b32 s17, 1024')
    a('s_lshr_b32 s4, s22, 1\ns_lshl_b32 s4, s4, 5\ns_and_b32 s5, s22, 1\ns_lshl_b32 s5, s5, 2\ns_add_u32 s4, s4, s5')
    a('v_lshl_add_u32 v7, v5, 3, v6')
    a('v_add_u32 v8, s4, v7')
    for k in range(3):
        a('s_add_u32 s4, s21, %d' % k)
        a('s_mul_i32 s19, s4, %d' % (36 * 1152))
        a('s_sub_u32 s5, s4, 16\ns_mul_i32 s5, s5, %d\ns_add_u32 s5, s5, %d' % (288 * 1152, 16 * 1152))
        a('s_cmp_lt_u32 s4, 16')
        a('s_cselect_b32 s19, s19, s5')
        a('s_cselect_b32 s34, %d, %d' % (2, 72))
        a('s_cselect_b32 s35, %d, %d' % (16, 72))
        a('s_cselect_b32 s36, %d, %d' % (4, 18))
        a('s_mul_i32 s34, s34, 1152\ns_mul_i32 s35, s35, 1152\ns_mul_i32 s36, s36, 1152')
        a('v_mul_lo_u32 v9, v3, s36')
        a('v_lshl_add_u32 v9, v8, 1, v9')
        for i in range(8):
            a('buffer_load_ushort %s, v9, s[12:15], s19 offen offset:%d' % (vr(V + k * 8 + i), 1152 * (i & 1)))
            if i in (1, 3, 5):
                a('s_add_u32 s19, s19, s%d' % (35 if i == 3 else 34))
    a('s_waitcnt vmcnt(0)')
    for k in range(24):
        a('v_lshlrev_b32 %s, 16, %s' % (vr(V + k), vr(V + k)))
    a.label('prep_pack')
    for k in range(3):
        b = V + k * 8
        for p in range(4):
            a('v_cvt_pk_bf16_f32 %s, %s, %s' % (vr(b + p), vr(b + 2 * p), vr(b + 2 * p + 1)))
        a('buffer_store_dwordx4 %s, v1, s[8:11], s16 offen%s' % (vr(b, 4), PREP_ST))
        a('s_add_u32 s16, s16, s17')
    stamp_end(a, 0, 2, 3, 6)
    a('s_endpgm')
    a.label('prep_x')
    a('s_mov_b32 s12, s24\ns_mov_b32 s13, s25\ns_mov_b32 s14, %d' % ACT)
    a('s_sub_u32 s20, s20, %d' % NG)
    a('s_mul_i32 s19, s20, %d\ns_mul_i32 s6, s3, 192\ns_add_u32 s19, s19, s6' % (16 * 1152))
    a('v_mul_u32_u24 v9, 1152, v2')
    a('v_lshl_add_u32 v9, v3, 4, v9')
    a('s_mul_i32 s16, s20, 6\ns_add_u32 s16, s16, s3\ns_mul_i32 s16, s16, 3072\ns_add_u32 s16, s16, %d' % X0)
    for k in range(3):
        a('buffer_load_dwordx4 %s, v9, s[12:15], s19 offen offset:%d%s' % (vr(V + 4 * k, 4), 64 * k, PREP_XLD))
    for k in range(3):
        a('s_waitcnt vmcnt(2)')
        a('buffer_store_dwordx4 %s, v1, s[8:11], s16 offen offset:%d%s' % (vr(V + 4 * k, 4), 1024 * k, PREP_ST))
    stamp_end(a, 0, 2, 3, 6)
    a('s_endpgm')
    a.label('prep_misc')
    if CODE_PF:
        a('s_getpc_b64 s[4:5]')
        a.label('prep_pc')
        a('s_sub_u32 s4, s4, prep_pc-prep_kernel')
        a('s_subb_u32 s5, s5, 0')
        a('s_lshl_b32 s6, s3, 13')
        a('v_lshl_add_u32 v4, v0, 7, s6')
        a('v_min_u32 v4, code_end-prep_kernel-4, v4')
        a('global_load_dword v5, v4, s[4:5]')
    if KD_PF:
        a('s_getpc_b64 s[4:5]')
        a('s_add_u32 s4, s4, kd_begin@rel32@lo+4')
        a('s_addc_u32 s5, s5, kd_begin@rel32@hi+12')
        a('v_lshlrev_b32 v4, 6, v0')
        a('v_min_u32 v4, kd_end-kd_begin-4, v4')
        a('global_load_dword v6, v4, s[4:5]')
    a('s_mul_i32 s16, s2, 6\ns_add_u32 s16, s16, s3')
    a('s_cmp_ge_u32 s16, %d' % (ZERO_BYTES // 4096))
    a('s_cbranch_scc1 prep_nz')
    a('s_lshl_b32 s16, s16, 12\ns_add_u32 s16, s16, %d' % SS)
    for k in range(4):
        a('v_mov_b32 v%d, 0' % (V + k))
    a('s_waitcnt lgkmcnt(0)')
    for k in range(4):
        a('buffer_store_dwordx4 %s, v1, s[8:11], s16 offen offset:%d' % (vr(V, 4), 1024 * k))
    a.label('prep_nz')
    a('s_waitcnt lgkmcnt(0)')
    a('s_waitcnt vmcnt(0)')
    stamp_end(a, 0, 2, 3, 6)
    a.label('prep_end')
    a('s_endpgm')
    return ('prep_kernel', a, max(nv, 64), 96 if STAMPS else 40, (NM + NT + NG + NX, 384, LB + 73728))


def xcd_map(a, ncx, s_c, s_r, nc=8):
    lg = ncx.bit_length() - 1
    ng = nc // ncx
    lgg = ng.bit_length() - 1
    a('s_and_b32 s4, s2, 7\ns_lshr_b32 s5, s2, 3')
    a('s_and_b32 s6, s4, %d\ns_lshl_b32 s6, s6, %d\ns_and_b32 s7, s5, %d\ns_add_u32 %s, s6, s7' % (ng - 1, lg, ncx - 1, sr(s_c)))
    a('s_lshr_b32 s6, s4, %d\ns_mul_i32 s6, s6, %d\ns_lshr_b32 s7, s5, %d\ns_add_u32 %s, s6, s7' % (lgg, 32 // ncx, lg, sr(s_r)))


def l2_touch(a, base, part_bytes, ncx, nc, v_t, v_d, share=1, s_sub=None):
    ng = nc // ncx
    lines = ncx * part_bytes // 128
    per = -(-lines // (32 * share))
    n = -(-per // 64)
    a('s_and_b32 s4, s2, %d\ns_mul_i32 s4, s4, %d\ns_add_u32 s4, s4, %d' % (ng - 1, ncx * part_bytes, base))
    a('s_lshr_b32 s5, s2, 3')
    if share > 1:
        a('s_mul_i32 s5, s5, %d\ns_add_u32 s5, s5, %s' % (share, sr(s_sub)))
    a('s_mul_i32 s5, s5, %d' % per)
    for i in range(n):
        a('v_add_u32 %s, %d, v0' % (vr(v_t), 64 * i))
        if (i + 1) * 64 > per:
            a('v_min_u32 %s, %d, %s' % (vr(v_t), per - 1, vr(v_t)))
        a('v_add_u32 %s, s5, %s' % (vr(v_t), vr(v_t)))
        a('v_min_u32 %s, %d, %s' % (vr(v_t), lines - 1, vr(v_t)))
        a('v_lshlrev_b32 %s, 7, %s' % (vr(v_t), vr(v_t)))
        a('buffer_load_dword %s, %s, s[8:11], s4 offen' % (vr(v_d), vr(v_t)))


def x_dma(a, nk, s_g, s_l, v_l16):
    for k in range(nk):
        a('s_mov_b32 m0, %s' % sr(s_l))
        if k < nk - 1:
            a('s_add_u32 %s, %s, 4096' % (sr(s_l), sr(s_l)))
        else:
            a('s_nop 0')
        a('buffer_load_dwordx4 %s, s[8:11], %s offen sc1 lds' % (vr(v_l16), sr(s_g)))
        if k < nk - 1:
            a('s_add_u32 %s, %s, 1024' % (sr(s_g), sr(s_g)))


def stats_prepass(a, nk, v_addr, v_fr, v_ones, v_res, v_t, v_g, v_tmp, v_dst):
    for k in range(nk):
        a('ds_read_b128 %s, %s offset:%d' % (vr(v_fr + 4 * k, 4), vr(v_addr), 4096 * k))
    for k in range(4):
        a('v_mov_b32 %s, 0x%x' % (vr(v_ones + k), ONES))
    for k in range(nk):
        a('s_waitcnt lgkmcnt(%d)' % (nk - 1 - k))
        f = v_fr + 4 * k
        mfma(a, v_res, v_ones, f, None if k == 0 else v_res)
        mfma(a, v_res + 4, f, f, None if k == 0 else v_res + 4)
    a('s_mov_b32 s40, 0x22222222\ns_mov_b32 s41, 0x22222222')
    a('s_mov_b32 s42, 0x44444444\ns_mov_b32 s43, 0x44444444')
    a('s_mov_b32 s44, 0x88888888\ns_mov_b32 s45, 0x88888888')
    a('v_cndmask_b32 %s, %s, %s, s[40:41]' % (vr(v_res + 1), vr(v_res + 4), vr(v_res + 5)))
    a('v_cndmask_b32 %s, %s, %s, s[42:43]' % (vr(v_res + 1), vr(v_res + 1), vr(v_res + 6)))
    a('v_cndmask_b32 %s, %s, %s, s[44:45]' % (vr(v_res + 1), vr(v_res + 1), vr(v_res + 7)))
    a('s_mov_b32 exec_lo, 0x00f0000f\ns_mov_b32 exec_hi, 0xf0000f00')
    a('ds_write_b64 %s, %s' % (vr(v_dst), vr(v_res, 2)))
    a('s_mov_b64 exec, -1')


def stats_final(a, nparts, lds_stats, v_lane, v_tmp):
    a('v_lshlrev_b32 %s, 3, %s' % (vr(v_tmp + 6), vr(v_lane)))
    for p in range(nparts):
        a('ds_read_b64 %s, %s offset:%d' % (vr(v_tmp + 2 * p, 2), vr(v_tmp + 6), p * 512))
    a('s_waitcnt lgkmcnt(0)')
    for p in range(1, nparts):
        a('v_add_f32 %s, %s, %s' % (vr(v_tmp), vr(v_tmp), vr(v_tmp + 2 * p)))
        a('v_add_f32 %s, %s, %s' % (vr(v_tmp + 1), vr(v_tmp + 1), vr(v_tmp + 2 * p + 1)))
    a('v_mul_f32 %s, 0x%x, %s' % (vr(v_tmp), INV576, vr(v_tmp)))
    a('v_mul_f32 %s, 0x%x, %s' % (vr(v_tmp + 1), INV576, vr(v_tmp + 1)))
    a('v_fma_f32 %s, -%s, %s, %s' % (vr(v_tmp + 1), vr(v_tmp), vr(v_tmp), vr(v_tmp + 1)))
    a('v_max_f32 %s, 0, %s' % (vr(v_tmp + 1), vr(v_tmp + 1)))
    a('v_add_f32 %s, 0x%x, %s' % (vr(v_tmp + 1), EPS5, vr(v_tmp + 1)))
    a('v_rsq_f32 %s, %s' % (vr(v_tmp), vr(v_tmp + 1)))


def diag_select(a, dst, src):
    a('s_mov_b32 s40, 0x22222222\ns_mov_b32 s41, 0x22222222')
    a('s_mov_b32 s42, 0x44444444\ns_mov_b32 s43, 0x44444444')
    a('s_mov_b32 s44, 0x88888888\ns_mov_b32 s45, 0x88888888')
    a('v_cndmask_b32 %s, %s, %s, s[40:41]' % (vr(dst), vr(src), vr(src + 1)))
    a('v_cndmask_b32 %s, %s, %s, s[42:43]' % (vr(dst), vr(dst), vr(src + 2)))
    a('v_cndmask_b32 %s, %s, %s, s[44:45]' % (vr(dst), vr(dst), vr(src + 3)))


def rstd_from(a, dst, vsum, vsq):
    a('v_mul_f32 %s, 0x%x, %s' % (vr(vsum), INV576, vr(vsum)))
    a('v_mul_f32 %s, 0x%x, %s' % (vr(vsq), INV576, vr(vsq)))
    a('v_fma_f32 %s, -%s, %s, %s' % (vr(vsq), vr(vsum), vr(vsum), vr(vsq)))
    a('v_max_f32 %s, 0, %s' % (vr(vsq), vr(vsq)))
    a('v_add_f32 %s, 0x%x, %s' % (vr(vsq), EPS5, vr(vsq)))
    a('v_rsq_f32 %s, %s' % (vr(dst), vr(vsq)))


SPIN_CAP = 1 << 18


def lds_spin(a, name, v_tmp, v_addr, off, mask, want, ge=None):
    a('s_mov_b32 s5, 0')
    a.label(name)
    a('ds_read_b32 %s, %s offset:%d' % (vr(v_tmp), vr(v_addr), off))
    a('s_waitcnt lgkmcnt(0)')
    a('v_readfirstlane_b32 s4, %s' % vr(v_tmp))
    if ge is None:
        a('s_and_b32 s4, s4, 0x%x' % mask)
        a('s_cmp_eq_u32 s4, 0x%x' % want)
    else:
        a('s_cmp_ge_u32 s4, %s' % sr(ge))
    a('s_cbranch_scc1 %s_ok' % name)
    a('s_sleep 1')
    a('s_add_u32 s5, s5, 1')
    a('s_cmp_lt_u32 s5, 0x%x' % SPIN_CAP)
    a('s_cbranch_scc1 %s' % name)
    a('s_endpgm')
    a.label(name + '_ok')


def mem_arrive(a, s_off, v_zero, v_one):
    a('s_mov_b64 exec, 1')
    a('buffer_atomic_add %s, %s, s[8:11], %s offen sc1' % (vr(v_one), vr(v_zero), sr(s_off)))
    a('s_mov_b64 exec, -1')


def mem_wait(a, name, s_off, s_want, v_zero, v_tmp, backoff=None):
    a('s_mov_b32 s5, 0')
    a('s_mov_b64 exec, 1')
    a.label(name)
    a('buffer_load_dword %s, %s, s[8:11], %s offen sc1' % (vr(v_tmp), vr(v_zero), sr(s_off)))
    a('s_waitcnt vmcnt(0)')
    a('v_readfirstlane_b32 s4, %s' % vr(v_tmp))
    a('s_cmp_ge_u32 s4, %s' % sr(s_want))
    a('s_cbranch_scc1 %s_ok' % name)
    if backoff:
        a('s_cmp_eq_u32 %s, %d' % (sr(backoff[0]), backoff[1]))
        a('s_cbranch_scc1 %s_ns' % name)
        a('s_sleep 12')
        a.label(name + '_ns')
    a('s_add_u32 s5, s5, 1')
    a('s_cmp_lt_u32 s5, 0x%x' % SPIN_CAP)
    a('s_cbranch_scc1 %s' % name)
    a('s_endpgm')
    a.label(name + '_ok')
    a('s_mov_b64 exec, -1')


def gen_mega():
    a = Asm()
    RSL = 0; FLG = 512; CNT = 516; TOK = 528; XF = 1024; XI = 3072; HI = XI + 73728
    OI = HI; SL = HI + 36864
    LDS = SL + 32 * HS
    VZ = 167
    LAY, LOFF, GBO, GBW, CBO, CBW, RFW, SOF, PRT = 86, 87, 88, 89, 90, 91, 92, 96, 97
    a('s_cmp_ge_u32 s2, 256')
    a('s_cbranch_scc1 mega_end')
    stamp_begin(a)
    ws_srd(a)
    a('s_load_dwordx2 s[94:95], s[0:1], 48')
    wave_id(a, 12, 1)
    a('v_lshlrev_b32 v1, 4, v0')
    a('v_and_b32 v2, 15, v0')
    a('v_lshrrev_b32 v3, 4, v0')
    a('v_mov_b32 %s, 0' % vr(VZ))
    xcd_map(a, NCX, 13, 14)
    a('s_and_b32 s20, s12, 3\ns_lshr_b32 s21, s12, 2')
    a('s_mul_i32 s4, s14, 21846\ns_lshr_b32 s4, s4, 16\ns_mul_i32 s4, s4, 3\ns_sub_u32 s19, s14, s4')
    a('s_lshl_b32 s4, s19, 2\ns_add_u32 s28, s12, s4\ns_cmp_ge_u32 s28, 12\ns_cselect_b32 s4, 12, 0\ns_sub_u32 s28, s28, s4')
    a('s_mov_b32 s%d, 0\ns_mov_b32 s%d, 0\ns_mov_b32 s%d, 0\ns_mov_b32 s%d, 32\ns_mov_b32 s%d, 8' % (LAY, LOFF, GBW, CBW, RFW))
    a('s_lshl_b32 s4, s14, 7\ns_add_u32 s%d, s4, %d' % (GBO, FL_GB))
    a('s_lshl_b32 s4, s13, 7\ns_add_u32 s%d, s4, %d' % (CBO, FL_CB))
    a('s_mov_b32 s%d, %d\ns_mov_b32 s%d, %d' % (SOF, SS, PRT, PART))
    a('s_lshl_b32 s4, s14, 2\ns_add_u32 s4, s4, s20\ns_mul_i32 s4, s4, 18\ns_mul_i32 s5, s21, 6\ns_add_u32 s4, s4, s5')
    a('s_lshl_b32 s98, s4, 10')
    a('s_mul_i32 s5, s21, 24\ns_add_u32 s5, s5, s20\ns_lshl_b32 s5, s5, 10\ns_add_u32 s99, s5, %d' % XI)

    def load_x(base):
        a('s_add_u32 s22, s98, s%d\ns_add_u32 s22, s22, %d\ns_mov_b32 s23, s99' % (LOFF, base))
        x_dma(a, 6, 22, 23, 1)

    def group_sync(name):
        a('s_add_u32 s%d, s%d, 8' % (GBW, GBW))
        a('s_barrier')
        a('s_cmp_eq_u32 s12, 11')
        a('s_cbranch_scc0 %s_go' % name)
        a('v_mov_b32 v4, 1')
        mem_arrive(a, GBO, VZ, 4)
        mem_wait(a, name, GBO, GBW, VZ, 5)
        a.label('%s_go' % name)

    ACC = 8; RING = ACC + 32; BF = RING + 72
    VA = 4; VB = 5; VT = 6
    acc = lambda j, tt: ACC + (j * 4 + tt) * 4
    ring = lambda k, j: 40 + ((k % 9) * 2 + j) * 4
    bf = lambda p, tt: BF + (p * 4 + tt) * 4

    def s1_fill():
        a('s_mul_i32 s15, s13, 7\ns_add_u32 s15, s15, s12\ns_mul_i32 s15, s15, 36864\ns_add_u32 s15, s15, %d' % WQ)
        for k in range(9):
            for j in range(2):
                a('buffer_load_dwordx4 %s, v1, s[8:11], s15 offen offset:%d' % (vr(ring(k, j), 4), 2048 * (k & 1) + 1024 * j))
            if k & 1:
                a('s_add_u32 s15, s15, 4096')

    a('ds_write_b32 %s, %s offset:%d' % (vr(VZ), vr(VZ), FLG))
    a('s_waitcnt lgkmcnt(0)')
    load_x(X0)
    a('s_barrier')
    a('s_lshr_b32 s26, 0x43, s12\ns_and_b32 s26, s26, 1')
    a('s_cbranch_scc1 s1_f1')
    a('s_waitcnt vmcnt(0)')
    a('s_barrier')
    a('s_cmp_ge_u32 s12, 7')
    a('s_cbranch_scc1 s1_go')
    a.label('s1_f1')
    s1_fill()
    a('s_cmp_eq_u32 s26, 0')
    a('s_cbranch_scc1 s1_go')
    a('s_waitcnt vmcnt(18)')
    a('s_barrier')
    a('s_branch s1_go')
    a.label('s1_again')
    load_x(X0)
    a('s_waitcnt vmcnt(0)')
    a('s_barrier')
    a.label('s1_go')
    stamp(a, 'x1')
    a('s_cmp_ge_u32 s12, 8')
    a('s_cbranch_scc1 s1_wo')
    a('v_add_u32 %s, %d, v1' % (vr(VA), XI))
    a('v_add_u32 %s, %d, v1' % (vr(VB), XI + 9 * 4096))

    def rdx(k, tt):
        v, o = (VA, 4096 * k + 1024 * tt) if k < 9 else (VB, 4096 * (k - 9) + 1024 * tt)
        a('ds_read_b128 %s, %s offset:%d' % (vr(bf(k & 1, tt), 4), vr(v), o))
    for tt in range(4):
        rdx(0, tt)
    a('s_cmp_lt_u32 s12, 4')
    a('s_cbranch_scc1 s1_nn')
    a('s_cmp_eq_u32 s12, 6')
    a('s_cbranch_scc1 s1_nt')
    a('s_cmp_eq_u32 s12, 7')
    a('s_cbranch_scc1 s1_stats')

    def main(orient):
        issued = 18
        a('s_waitcnt vmcnt(17) lgkmcnt(0)')
        for k in range(18):
            for n in range(8):
                j, tt = n >> 2, n & 3
                if j:
                    tt = 3 - tt
                c = None if k == 0 else acc(j, tt)
                if orient[j] == 'N':
                    mfma(a, acc(j, tt), bf(k & 1, tt), ring(k, j), c)
                else:
                    mfma(a, acc(j, tt), ring(k, j), bf(k & 1, tt), c)
                if n < 2 and k < 17:
                    rdx(k + 1, 2 * n); rdx(k + 1, 2 * n + 1)
                if n == 2:
                    a('s_waitcnt vmcnt(%d)' % (issued - (2 * k + 2)))
                if n in (3, 7) and k < 9:
                    kk = k + 9
                    a('buffer_load_dwordx4 %s, v1, s[8:11], s15 offen offset:%d' % (vr(ring(kk, j), 4), 2048 * (kk & 1) + 1024 * j))
                    issued += 1
                    if n == 7 and (kk & 1):
                        a('s_add_u32 s15, s15, 4096')
                if n == 6 and k < 17:
                    a('s_waitcnt vmcnt(%d) lgkmcnt(0)' % (issued - (2 * k + 3)))
        stamp(a, 's1m')
        lds_spin(a, 's1_s' + orient, VT, VZ, FLG, 2, 2)

    def rs_n(RS):
        a('v_lshlrev_b32 %s, 4, v3' % vr(VT))
        for n in range(8):
            a('ds_read_b128 %s, %s offset:%d' % (vr(RS + 4 * n, 4), vr(VT), RSL + 64 * n))

    def rs_t(RS):
        a('v_lshlrev_b32 %s, 2, v2' % vr(VT))
        for n in range(8):
            a('ds_read_b32 %s, %s offset:%d' % (vr(RS + n), vr(VT), RSL + 64 * n))

    def phi4(items, T):
        n = len(items)
        for i, (d, x, s1, s2) in enumerate(items):
            a('v_mul_f32 %s, %s, %s' % (vr(T + i), vr(x), vr(s2)))
        for i in range(n):
            a('v_min_f32 %s, 0, %s' % (vr(T + i), vr(T + i)))
        for i in range(n):
            a('v_exp_f32 %s, %s' % (vr(T + i), vr(T + i)))
        for i, (d, x, s1, s2) in enumerate(items):
            a('v_max_f32 %s, 0, %s' % (vr(d), vr(x)))
        for i in range(n):
            a('v_add_f32 %s, 0x%x, %s' % (vr(T + i), EPS6, vr(T + i)))
        for i, (d, x, s1, s2) in enumerate(items):
            a('v_fma_f32 %s, %s, %s, %s' % (vr(d), vr(d), vr(s1), vr(T + i)))

    RS = RING; TMP = RING + 32; F0 = RING + 48; ON = RING + 64
    pq_base = 's_lshl_b32 s6, s14, 4\ns_add_u32 s6, s6, s13\ns_mul_i32 s6, s6, 4608\ns_add_u32 s6, s6, s%d\ns_add_u32 s6, s6, %d' % (LOFF, PQ)
    main('TT')
    rs_t(RS)
    a(pq_base)
    a('s_lshl_b32 s5, s20, 10\ns_add_u32 s6, s6, s5\ns_add_u32 s7, s6, %d' % (8 * 4608))
    a('s_waitcnt lgkmcnt(0)')
    for tt in range(4):
        phi4([(acc(j, tt) + r, acc(j, tt) + r, RS + tt, RS + 4 + tt) for j in range(2) for r in range(4)], TMP)
        P = BF + 4 * tt
        for j in range(2):
            a('v_cvt_pk_bf16_f32 %s, %s, %s' % (vr(P + 2 * j), vr(acc(j, tt)), vr(acc(j, tt) + 1)))
            a('v_cvt_pk_bf16_f32 %s, %s, %s' % (vr(P + 2 * j + 1), vr(acc(j, tt) + 2), vr(acc(j, tt) + 3)))
        a('buffer_store_dwordx4 %s, v1, s[8:11], s%d offen offset:%d sc1' % (vr(P, 4), 6 + (tt >> 1), 2048 * (tt & 1)))
    a('s_branch s1_done')
    a.label('s1_nn')
    main('NN')
    rs_n(RS)
    FK = F0; FV = F0 + 8; DV = BF; FX = BF + 16
    for k in range(4):
        a('v_mov_b32 %s, 0x%x' % (vr(ON + k), ONES))
    a('s_lshl_b32 s4, s13, 2\ns_add_u32 s4, s4, s20\ns_mul_i32 s6, s4, %d\ns_add_u32 s6, s6, s%d' % (HS, SOF))
    a('s_waitcnt lgkmcnt(0)')
    for tp in range(2):
        phi4([(acc(0, tt) + r, acc(0, tt) + r, RS + 4 * tt + r, RS + 16 + 4 * tt + r) for tt in (2 * tp, 2 * tp + 1) for r in range(4)], TMP)
        for tt in (2 * tp, 2 * tp + 1):
            for r in range(4):
                a('v_mul_f32 %s, %s, %s' % (vr(acc(1, tt) + r), vr(acc(1, tt) + r), vr(RS + 4 * tt + r)))
            for j, Fb in enumerate((FK, FV)):
                d = Fb + 2 * tt
                a('v_cvt_pk_bf16_f32 %s, %s, %s' % (vr(d), vr(acc(j, tt)), vr(acc(j, tt) + 1)))
                a('v_cvt_pk_bf16_f32 %s, %s, %s' % (vr(d + 1), vr(acc(j, tt) + 2), vr(acc(j, tt) + 3)))
        c = (lambda x: None) if tp == 0 else (lambda x: x)
        mfma(a, DV, FV + 4 * tp, FK + 4 * tp, c(DV))
        mfma(a, DV + 4, ON, FK + 4 * tp, c(DV + 4))
    a('v_and_b32 %s, 0x3c0, v1' % vr(VA))
    a('s_lshl_b32 s5, s20, 4')
    a('v_add_u32 %s, s5, %s' % (vr(VA), vr(VA)))
    a('v_lshlrev_b32 %s, 2, v0' % vr(VB))
    for r in range(4):
        a('buffer_atomic_add_f32 %s, %s, s[8:11], s6 offen offset:%d' % (vr(DV + r), vr(VB), 256 * r))
    a('s_mov_b64 exec, 0xffff')
    a('buffer_atomic_add_f32 %s, %s, s[8:11], s6 offen offset:1152' % (vr(DV + 4), vr(VB)))
    a('s_mov_b64 exec, -1')
    lds_spin(a, 's1_w', VT, VZ, FLG, 1, 1)
    a('ds_read_b128 %s, %s offset:%d' % (vr(FX, 4), vr(VA), XF))
    a('ds_read_b128 %s, %s offset:%d' % (vr(FX + 4, 4), vr(VA), XF + 1024))
    a('v_lshlrev_b32 %s, 3, v2' % vr(VT))
    a('v_lshl_add_u32 %s, v3, 2, %s' % (vr(VT), vr(VT)))
    a('v_add_u32 %s, 384, %s' % (vr(VT), vr(VT)))
    a('s_mov_b32 s40, -1\ns_mov_b32 s41, 0')
    a('v_cndmask_b32 %s, %s, %s, s[40:41]' % (vr(VT), vr(VB), vr(VT)))
    a('s_waitcnt lgkmcnt(0)')
    for tp in range(2):
        c = (lambda x: None) if tp == 0 else (lambda x: x)
        mfma(a, DV + 8, FX + 4 * tp, FV + 4 * tp, c(DV + 8))
        mfma(a, DV + 12, FX + 4 * tp, FK + 4 * tp, c(DV + 12))
    a('v_cndmask_b32 %s, %s, %s, s[40:41]' % (vr(DV + 8), vr(DV + 12), vr(DV + 8)))
    a('buffer_atomic_add_f32 %s, %s, s[8:11], s6 offen offset:896' % (vr(DV + 8), vr(VT)))
    a('s_branch s1_done')
    a.label('s1_nt')
    a('s_setprio 2')
    main('NT')
    rs_n(RS)
    FX = F0; PH = BF + 16
    for k in range(4):
        a('v_mov_b32 %s, 0x%x' % (vr(ON + k), ONES))
    a('s_mov_b32 s46, 0x00ff00ff\ns_mov_b32 s47, 0x00ff00ff')
    a('s_waitcnt lgkmcnt(0)')
    for tp in range(2):
        tts = (2 * tp, 2 * tp + 1)
        phi4([(PH + 4 * (tt & 1) + r, acc(0, tt) + r, RS + 4 * tt + r, RS + 16 + 4 * tt + r) for tt in tts for r in range(4)], TMP)
        for tt in tts:
            for r in range(4):
                a('v_mul_f32 %s, %s, %s' % (vr(acc(0, tt) + r), vr(acc(0, tt) + r), vr(RS + 4 * tt + r)))
                a('v_cndmask_b32 %s, %s, %s, s[46:47]' % (vr(acc(0, tt) + r), vr(acc(0, tt) + r), vr(PH + 4 * (tt & 1) + r)))
            a('v_cvt_pk_bf16_f32 %s, %s, %s' % (vr(FX + 2 * tt), vr(acc(0, tt)), vr(acc(0, tt) + 1)))
            a('v_cvt_pk_bf16_f32 %s, %s, %s' % (vr(FX + 2 * tt + 1), vr(acc(0, tt) + 2), vr(acc(0, tt) + 3)))
        a('ds_write_b128 v1, %s offset:%d' % (vr(FX + 4 * tp, 4), XF + 1024 * tp))
    a('v_mov_b32 %s, 3' % vr(VT))
    a('ds_write_b32 %s, %s offset:%d' % (vr(VZ), vr(VT), FLG))
    a('s_setprio 0')
    for tp in range(2):
        c = (lambda x: None) if tp == 0 else (lambda x: x)
        mfma(a, DV, FX + 4 * tp, FX + 4 * tp, c(DV))
        mfma(a, DV + 4, ON, FX + 4 * tp, c(DV + 4))
    rs_t(RS)
    a('v_and_b32 %s, 3, v2' % vr(VA))
    a('v_mul_u32_u24 %s, %d, %s' % (vr(VA), HS, vr(VA)))
    a('v_and_b32 %s, 4, v2' % vr(VB))
    a('v_add_u32 %s, %s, %s' % (vr(VA), vr(VA), vr(VB)))
    a('v_add_u32 %s, 2, v3' % vr(VB))
    a('v_and_b32 %s, 3, %s' % (vr(VB), vr(VB)))
    a('v_lshl_add_u32 %s, %s, 3, %s' % (vr(VA), vr(VB), vr(VA)))
    a('s_mul_i32 s6, s13, %d\ns_add_u32 s6, s6, s%d' % (4 * HS, SOF))
    diag_select(a, DV + 8, DV)
    a('s_mov_b32 s40, 0xffff\ns_mov_b32 s41, 0')
    a('v_cndmask_b32 %s, %s, %s, s[40:41]' % (vr(DV + 8), vr(DV + 8), vr(DV + 4)))
    a('s_mov_b32 exec_lo, 0xff\ns_mov_b32 exec_hi, 0x00ff00ff')
    a('buffer_atomic_add_f32 %s, %s, s[8:11], s6 offen offset:%d' % (vr(DV + 8), vr(VA), 1280 + 128))
    a('s_mov_b64 exec, -1')
    a(pq_base)
    a('s_add_u32 s6, s6, 4096\ns_add_u32 s7, s6, %d' % (8 * 4608))
    a('v_lshlrev_b32 %s, 3, v0' % vr(VB))
    a('s_waitcnt lgkmcnt(0)')
    phi4([(acc(1, tt) + r, acc(1, tt) + r, RS + tt, RS + 4 + tt) for tt in range(4) for r in range(2)], TMP)
    for tt in range(4):
        a('v_cvt_pk_bf16_f32 %s, %s, %s' % (vr(PH + tt), vr(acc(1, tt)), vr(acc(1, tt) + 1)))
    for tp in range(2):
        a('buffer_store_dwordx2 %s, %s, s[8:11], s%d offen sc1' % (vr(PH + 2 * tp, 2), vr(VB), 6 + tp))
    a('s_branch s1_done')
    a.label('s1_stats')
    a('s_setprio 3')
    for k in range(4):
        a('v_mov_b32 %s, 0x%x' % (vr(RING + k), ONES))
    for k in range(18):
        if k < 17:
            for tt in range(4):
                rdx(k + 1, tt)
        a('s_waitcnt lgkmcnt(%d)' % (4 if k < 17 else 0))
        for tt in range(4):
            mfma(a, acc(0, tt), RING, bf(k & 1, tt), None if k == 0 else acc(0, tt))
            mfma(a, acc(1, tt), bf(k & 1, tt), bf(k & 1, tt), None if k == 0 else acc(1, tt))
    a('v_lshlrev_b32 %s, 2, v2' % vr(VT))
    for tt in range(4):
        diag_select(a, acc(0, tt) + 1, acc(1, tt))
        rstd_from(a, acc(0, tt) + 2, acc(0, tt), acc(0, tt) + 1)
        a('v_mul_f32 %s, 0x%x, %s' % (vr(acc(0, tt) + 3), LOG2E, vr(acc(0, tt) + 2)))
    a('s_mov_b32 exec_lo, 0x00f0000f\ns_mov_b32 exec_hi, 0xf0000f00')
    for tt in range(4):
        a('ds_write_b32 %s, %s offset:%d' % (vr(VT), vr(acc(0, tt) + 2), RSL + 64 * tt))
        a('ds_write_b32 %s, %s offset:%d' % (vr(VT), vr(acc(0, tt) + 3), RSL + 256 + 64 * tt))
    a('s_mov_b64 exec, -1')
    a('v_mov_b32 %s, 2' % vr(VA))
    a('ds_write_b32 %s, %s offset:%d' % (vr(VZ), vr(VA), FLG))
    a('s_setprio 0')
    stamp(a, 's1m')
    a('s_branch s1_done')
    AC2 = 8; B2 = 24; WR = 56; NPRE = 13
    wr = lambda k, j: WR + ((k % NPRE) * 2 + j) * 4
    a.label('s1_wo')
    a('s_and_b32 s24, s13, 3')
    a('s_mul_i32 s25, s24, 9\ns_and_b32 s4, s24, 1\ns_add_u32 s25, s25, s4\ns_lshl_b32 s4, s20, 1\ns_add_u32 s25, s25, s4')
    a('s_mul_i32 s16, s25, 18432\ns_add_u32 s16, s16, %d\ns_add_u32 s17, s16, 18432' % WO)

    def wo_ld(k):
        for j in range(2):
            a('buffer_load_dwordx4 %s, v1, s[8:11], s%d offen offset:%d' % (vr(wr(k, j), 4), 16 + j, 1024 * (k % 4)))
        if k % 4 == 3:
            a('s_add_u32 s16, s16, 4096\ns_add_u32 s17, s17, 4096')
    for k in range(NPRE):
        wo_ld(k)
    stamp(a, 's1m')
    a('s_branch s1_join')
    a.label('s1_done')
    a('s_waitcnt vmcnt(0)')
    a.label('s1_join')
    stamp(a, 's1d')
    group_sync('e1a')
    a('s_cmp_eq_u32 s12, 11')
    a('s_cbranch_scc0 e1_x')
    mem_arrive(a, CBO, VZ, 4)
    a.label('e1_x')
    a('s_barrier')
    stamp(a, 'e1a')

    RING3 = 52
    FR = 124; QF = 20; XP = 4
    VA = 156; VB = 157; VC = 158; VD = 159; EX = 160; VT = 161; QX = 162
    f1 = lambda hh: FR + 8 * hh
    f2 = lambda hh: FR + 8 * hh + 4
    qf = lambda tt, hh: QF + (tt * 4 + hh) * 4
    a('s_cmp_ge_u32 s12, 8')
    a('s_cbranch_scc1 s2_hi')
    a('s_lshl_b32 s23, s14, 1\ns_lshr_b32 s4, s13, 2\ns_add_u32 s23, s23, s4')
    a('s_lshl_b32 s23, s23, 3\ns_add_u32 s23, s23, s12\ns_mul_i32 s23, s23, 4608\ns_add_u32 s23, s23, s%d\ns_add_u32 s23, s23, %d' % (LOFF, PQ))
    a('s_add_u32 s24, s23, 4096')
    a('v_lshlrev_b32 %s, 3, v0' % vr(VT))
    for tt in range(2):
        for p in range(2):
            a('buffer_load_dwordx4 %s, v1, s[8:11], s23 offen offset:%d sc1' % (vr(qf(tt, 2 * p), 4), 2048 * tt + 1024 * p))
    a('buffer_load_dwordx2 %s, %s, s[8:11], s24 offen sc1' % (vr(QX, 2), vr(VT)))
    a('v_and_b32 %s, 3, v2' % vr(VT))
    a('v_lshrrev_b32 %s, 2, v2' % vr(VA))
    a('v_lshl_add_u32 %s, %s, 2, %s' % (vr(VA), vr(VT), vr(VA)))
    a('v_lshlrev_b32 %s, 6, %s' % (vr(VA), vr(VA)))
    a('v_lshl_add_u32 %s, v3, 4, %s' % (vr(VA), vr(VA)))
    a('v_min_u32 %s, 2, %s' % (vr(VT), vr(VT)))
    a('v_lshlrev_b32 %s, 6, %s' % (vr(VB), vr(VT)))
    a('v_lshl_add_u32 %s, v3, 4, %s' % (vr(VB), vr(VB)))
    a('v_mul_u32_u24 %s, %d, v3' % (vr(VD), HS))
    a('v_lshl_add_u32 %s, v2, 3, %s' % (vr(VC), vr(VD)))
    a('v_lshl_add_u32 %s, %s, 3, %s' % (vr(VD), vr(VT), vr(VD)))
    a('s_mul_i32 s25, s12, %d\ns_add_u32 s22, s25, s%d\ns_add_u32 s25, s25, %d' % (4 * HS, SOF, SL))
    for v in (VA, VB, VC, VD):
        a('v_add_u32 %s, s25, %s' % (vr(v), vr(v)))
    for hh in range(4):
        a('s_mov_b32 s%d, 0x%x\ns_mov_b32 s%d, 0x%x' % (
            40 + 2 * hh, (0xffff << (16 * hh)) & 0xffffffff, 41 + 2 * hh, ((0xffff << (16 * hh)) >> 32) & 0xffffffff))
    a('s_mul_i32 s16, s13, 12\ns_add_u32 s16, s16, s28\ns_mul_i32 s16, s16, 55296\ns_mul_i32 s4, s19, 18432\ns_add_u32 s16, s16, s4\ns_add_u32 s16, s16, %d' % W1)
    a('s_and_b32 s4, s13, 3\ns_mul_i32 s29, s4, 9\ns_and_b32 s4, s4, 1\ns_xor_b32 s4, s4, 1\ns_lshl_b32 s4, s4, 3\ns_add_u32 s29, s29, s4')
    a('s_mul_i32 s4, s29, 18432\ns_add_u32 s4, s4, %d' % WO)
    a('s_cmp_eq_u32 s12, 7\ns_cselect_b32 s16, s4, s16')
    nW = [0]

    def wld(n):
        for _ in range(n):
            k = nW[0]
            a('buffer_load_dwordx4 %s, v1, s[8:11], s16 offen offset:%d' % (vr(RING3 + 4 * k, 4), 1024 * (k % 4)))
            if k % 4 == 3:
                a('s_add_u32 s16, s16, 4096')
            nW[0] += 1
    wld(S2_WE)
    a('s_waitcnt vmcnt(%d)' % S2_WE)
    for tt in range(2):
        for p in range(2):
            q0, q1 = qf(tt, 2 * p), qf(tt, 2 * p + 1)
            a('v_mov_b32 %s, %s' % (vr(q1), vr(q0 + 2)))
            a('v_mov_b32 %s, %s' % (vr(q1 + 1), vr(q0 + 3)))
            for q in (q0, q1):
                a('v_mov_b32 %s, %s' % (vr(q + 2), vr(QX + tt)))
                a('v_mov_b32 %s, 0' % vr(q + 3))
    a('s_mov_b32 m0, s25')
    a('s_barrier')
    stamp(a, 'e1b')
    for n in range(6):
        if n == 4:
            a('s_add_u32 m0, s25, 4096\ns_add_u32 s22, s22, 4096')
        a('buffer_load_dwordx4 v1, s[8:11], s22 offen offset:%d sc1 lds' % (1024 * (n % 4)))
    a('s_waitcnt vmcnt(0)')
    stamp(a, 'sld')
    a('ds_read_b64 %s, %s offset:1280' % (vr(XP, 2), vr(VC)))
    a('ds_read_b64 %s, %s offset:%d' % (vr(XP + 2, 2), vr(VD), 1280 + 128))
    for hh in range(4):
        a('ds_read_b128 %s, %s offset:%d' % (vr(f1(hh), 4), vr(VA), HS * hh))
        a('ds_read_b128 %s, %s offset:%d' % (vr(f2(hh), 4), vr(VB), HS * hh + 1024))
    wld(S2_W0)
    a('s_waitcnt lgkmcnt(8)')
    a('v_cvt_pk_bf16_f32 %s, %s, %s' % (vr(XP), vr(XP), vr(XP + 1)))
    a('v_cvt_pk_bf16_f32 %s, %s, %s' % (vr(XP + 2), vr(XP + 2), vr(XP + 3)))
    for hh in range(4):
        a('s_waitcnt lgkmcnt(%d)' % (6 - 2 * hh))
        for f, x in ((f1(hh), XP), (f2(hh), XP + 2)):
            a('v_cvt_pk_bf16_f32 %s, %s, %s' % (vr(f), vr(f), vr(f + 1)))
            a('v_cvt_pk_bf16_f32 %s, %s, %s' % (vr(f + 1), vr(f + 2), vr(f + 3)))
            a('v_cndmask_b32 %s, 0, %s, s[%d:%d]' % (vr(f + 2), vr(x), 40 + 2 * hh, 41 + 2 * hh))
            a('v_mov_b32 %s, 0' % vr(f + 3))
    stamp(a, 'scv')
    a('s_lshl_b32 s4, s12, 12\ns_add_u32 s4, s4, %d' % OI)
    a('v_add_u32 %s, s4, v1' % vr(VA))
    a('s_add_u32 s4, s21, 16\ns_lshl_b32 s4, s4, 11\ns_lshl_b32 s5, s20, 2\ns_add_u32 s4, s4, s5\ns_add_u32 s4, s4, %d' % OI)
    a('v_add_u32 %s, s4, v1' % vr(VB))
    for tt in range(2):
        for p in range(2):
            for n in range(2):
                mfma(a, XP + 8 * n + 4, f2(2 * p + n), qf(tt, 2 * p + n))
            for n in range(2):
                mfma(a, XP + 8 * n, f1(2 * p + n), qf(tt, 2 * p + n))
            wld(S2_W1)
            O = qf(tt, 2 * p)
            for n in range(2):
                d2 = XP + 8 * n + 4
                a('v_add_f32 %s, 0x%x, %s' % (vr(d2 + 2), EPS6, vr(d2 + 2)))
            for n in range(2):
                d2 = XP + 8 * n + 4
                a('v_rcp_f32 %s, %s' % (vr(d2 + 2), vr(d2 + 2)))
            for n in range(2):
                hh = 2 * p + n
                d1 = XP + 8 * n; d2 = d1 + 4
                for r in (4, 5, 0, 1, 2, 3):
                    a('v_mul_f32 %s, %s, %s' % (vr(d1 + r), vr(d1 + r), vr(d2 + 2)))
                a('v_cvt_pk_bf16_f32 %s, %s, %s' % (vr(O + 2 * n), vr(d1), vr(d1 + 1)))
                a('v_cvt_pk_bf16_f32 %s, %s, %s' % (vr(O + 2 * n + 1), vr(d1 + 2), vr(d1 + 3)))
                if hh == 0:
                    a('v_cvt_pk_bf16_f32 %s, %s, %s' % (vr(EX), vr(d2), vr(d2 + 1)))
                else:
                    a('v_cvt_pk_bf16_f32 %s, %s, %s' % (vr(VT), vr(d2), vr(d2 + 1)))
                    a('v_cndmask_b32 %s, %s, %s, s[%d:%d]' % (vr(EX), vr(EX), vr(VT), 40 + 2 * hh, 41 + 2 * hh))
            a('ds_write_b128 %s, %s offset:%d' % (vr(VA), vr(O, 4), 2048 * p + 1024 * tt))
        a('ds_write_b32 %s, %s offset:%d' % (vr(VB), vr(EX), 1024 * tt))
    stamp(a, 'st1')
    a('s_waitcnt lgkmcnt(0)')
    a('s_barrier')
    stamp(a, 'o')
    a('s_cmp_eq_u32 s12, 7')
    a('s_cbranch_scc0 s2_n7')
    a('s_setprio 3')
    a.label('s2_n7')
    wld(18 - nW[0])
    a('s_cmp_eq_u32 s12, 7')
    a('s_cbranch_scc0 s2_done')

    def resid_store(nt, AC, T, s_ct):
        a('s_lshr_b32 s4, %s, 1\ns_lshr_b32 s5, s13, 2\ns_lshl_b32 s5, s5, 1' % sr(s_ct))
        a('s_and_b32 s24, %s, 1\ns_lshl_b32 s24, s24, 3' % sr(s_ct))
        a('s_lshl_b32 s6, s4, 2\ns_add_u32 s6, s6, s5\ns_lshl_b32 s6, s6, 10\ns_add_u32 s6, s6, s24\ns_add_u32 s6, s6, %d' % XI)
        a('v_add_u32 %s, s6, v1' % vr(T + 24))
        for tt in range(2):
            a('ds_read_b%d %s, %s offset:%d' % (64 * nt, vr(T + 4 * tt, 2 * nt), vr(T + 24), 1024 * tt))
        a('s_lshl_b32 s6, s14, 2\ns_add_u32 s6, s6, s5\ns_mul_i32 s6, s6, 18\ns_add_u32 s6, s6, s4\ns_lshl_b32 s6, s6, 10')
        a('s_add_u32 s6, s6, s24\ns_add_u32 s6, s6, s%d\ns_add_u32 s6, s6, %d\ns_add_u32 s7, s6, 18432' % (LOFF, X1))
        a('s_waitcnt lgkmcnt(0)')
        for tt in range(2):
            U = T + 8 + 8 * tt
            for h in range(2 * nt):
                a('v_lshlrev_b32 %s, 16, %s' % (vr(U + 2 * h), vr(T + 4 * tt + h)))
                a('v_and_b32 %s, 0xffff0000, %s' % (vr(U + 2 * h + 1), vr(T + 4 * tt + h)))
            for j in range(nt):
                for r in range(4):
                    a('v_add_f32 %s, %s, %s' % (vr(U + 4 * j + r), vr(U + 4 * j + r), vr(AC + (2 * j + tt) * 4 + r)))
            for h in range(2 * nt):
                a('v_cvt_pk_bf16_f32 %s, %s, %s' % (vr(T + 4 * tt + h), vr(U + 2 * h), vr(U + 2 * h + 1)))
            a('buffer_store_dwordx%d %s, v1, s[8:11], s%d offen sc1' % (2 * nt, vr(T + 4 * tt, 2 * nt), 6 + tt))

    NB = 8
    slot = lambda n: FR + 4 * (n % NB)
    a('v_add_u32 %s, %d, v1' % (vr(VA), OI))
    for n in range(NB):
        a('ds_read_b128 %s, %s offset:%d' % (vr(slot(n), 4), vr(VA), 1024 * n))
    for n in range(36):
        k, tt = n >> 1, n & 1
        a('s_waitcnt vmcnt(%d) lgkmcnt(%d)' % (17 - k, min(NB - 1, 35 - n)))
        mfma(a, 4 + 4 * tt, RING3 + 4 * k, slot(n), None if k == 0 else 4 + 4 * tt)
        if n + NB < 36:
            a('ds_read_b128 %s, %s offset:%d' % (vr(slot(n), 4), vr(VA), 1024 * (n + NB)))
    stamp(a, 'gem')
    resid_store(1, 4, 20, 29)
    stamp(a, 'rst')
    a('s_setprio 0')
    a('s_waitcnt vmcnt(0)')
    a('s_branch s2_done')
    a.label('s2_hi')
    a('s_cmp_eq_u32 s12, 11')
    a('s_cbranch_scc0 s2_hw')
    mem_wait(a, 'e1b', CBO, CBW, VZ, 5)
    a('v_lshlrev_b32 v4, 2, v0')
    a('s_mov_b64 exec, 0xff')
    a('ds_write_b32 v4, %s offset:%d' % (vr(VZ), FLG))
    a('s_mov_b64 exec, -1')
    a('s_waitcnt lgkmcnt(0)')
    a.label('s2_hw')
    a('s_barrier')
    stamp(a, 'e1b')
    a('v_add_u32 v4, %d, v1' % OI)
    a('s_setprio 2')
    a('s_waitcnt vmcnt(0)')
    a('s_barrier')
    stamp(a, 'o')
    b2 = lambda k, tt: B2 + ((k % 4) * 2 + tt) * 4
    for k in range(4):
        for tt in range(2):
            a('ds_read_b128 %s, v4 offset:%d' % (vr(b2(k, tt), 4), 2048 * k + 1024 * tt))
    for k in range(18):
        w = 's_waitcnt lgkmcnt(%d)' % min(6, 2 * (17 - k))
        if k >= NPRE:
            w += ' vmcnt(%d)' % (2 * (17 - k))
        a(w)
        for j in range(2):
            for tt in range(2):
                d = AC2 + (2 * j + tt) * 4
                mfma(a, d, wr(k, j), b2(k, tt), None if k == 0 else d)
        if k + NPRE < 18:
            wo_ld(k + NPRE)
        if k + 4 < 18:
            for tt in range(2):
                a('ds_read_b128 %s, v4 offset:%d' % (vr(b2(k, tt), 4), 2048 * (k + 4) + 1024 * tt))
    stamp(a, 'gem')
    resid_store(2, AC2, B2, 25)
    stamp(a, 'rst')
    a('s_setprio 0')
    a('s_waitcnt vmcnt(0)')
    a.label('s2_done')
    stamp(a, 's2d')
    group_sync('e2')
    a('s_barrier')
    stamp(a, 'e2')

    ACC = 4; RING = RING3; BF = RING + 72; RS = BF + 32
    VA = RS + 4; VT = VA + 3; VC = VT + 1; VK = VC + 1
    acc = lambda j, tt: ACC + (j * 4 + tt) * 4
    ring3 = lambda k, j: RING + ((k % 6) * 3 + j) * 4
    bf = lambda p, tt: BF + (p * 4 + tt) * 4
    load_x(X1)
    a('s_lshl_b32 s4, s20, 2')
    a('v_mov_b32 %s, s4' % vr(VK))
    a('s_mul_i32 s16, s13, 12\ns_add_u32 s16, s16, s28\ns_mul_i32 s16, s16, 55296\ns_add_u32 s16, s16, %d' % W1)
    a('s_mov_b32 s17, s19')
    for b in range(3):
        a('s_mul_i32 s4, s17, 18432\ns_add_u32 s%d, s4, s16' % (30 + b))
        a('s_mul_i32 s4, s17, 24576\ns_add_u32 s4, s4, %d' % XI)
        a('v_add_u32 %s, s4, v1' % vr(VA + b))
        if b < 2:
            a('s_add_u32 s17, s17, 1\ns_cmp_eq_u32 s17, 3\ns_cselect_b32 s17, 0, s17')
    a('s_lshl_b32 s4, s21, 3\ns_lshl_b32 s27, 1, s4')
    a('s_mov_b32 s18, s21')
    a('s_mov_b32 s34, 0\ns_mov_b32 s35, 0')
    a('s_waitcnt vmcnt(0)')
    a('s_barrier')
    stamp(a, 'x3')
    a('s_cmp_lt_u32 s12, 7')
    a('s_cbranch_scc1 s3_filled')
    a('s_cmp_eq_u32 s12, 7')
    a('s_cbranch_scc1 s3_fill')
    a('s_setprio %d' % P3_SPRIO)
    a('s_lshl_b32 s4, s20, 10\ns_add_u32 s4, s4, %d' % XI)
    a('v_add_u32 %s, s4, v1' % vr(VC))
    a('v_add_u32 %s, %d, %s' % (vr(VT), 9 * 4096, vr(VC)))
    for k in range(4):
        a('v_mov_b32 %s, 0x%x' % (vr(BF + k), ONES))
    rdk = lambda k: a('ds_read_b128 %s, %s offset:%d' % (vr(RING + 4 * k, 4), vr(VC if k < 9 else VT), 4096 * (k % 9)))
    for k in range(12):
        rdk(k)
    for k in range(18):
        a('s_waitcnt lgkmcnt(%d)' % min(11, 17 - k))
        f = RING + 4 * k
        mfma(a, ACC, BF, f, None if k == 0 else ACC)
        mfma(a, ACC + 4, f, f, None if k == 0 else ACC + 4)
        if k + 12 < 18:
            rdk(k + 12)
    diag_select(a, ACC + 1, ACC + 4)
    rstd_from(a, ACC + 2, ACC, ACC + 1)
    a('s_lshl_b32 s4, s20, 6')
    a('v_lshl_add_u32 %s, v2, 2, s4' % vr(VT))
    a('v_mov_b32 %s, 0x1000000' % vr(VC))
    a('s_mov_b32 exec_lo, 0x00f0000f\ns_mov_b32 exec_hi, 0xf0000f00')
    a('ds_write_b32 %s, %s' % (vr(VT), vr(ACC + 2)))
    a('s_mov_b64 exec, 1')
    a('ds_add_u32 %s, %s offset:%d' % (vr(VZ), vr(VC), CNT))
    a('s_mov_b64 exec, -1')
    a.label('s3_tok')
    a('s_sub_u32 s33, s18, %d' % P3_LEAD)
    lds_spin(a, 's3_tk', VT, VK, TOK, 0, 0, ge=33)
    a.label('s3_fill')
    a('s_mov_b32 s15, s30')
    for k in range(6):
        for j in range(3):
            a('buffer_load_dwordx4 %s, v1, s[8:11], s15 offen offset:%d' % (vr(ring3(k, j), 4), 1024 * j))
        if k < 5:
            a('s_add_u32 s15, s15, 3072')
    a.label('s3_filled')
    a('v_mov_b32 %s, 1' % vr(VC))
    a('s_setprio 2')
    a('s_cmp_lt_u32 s18, 3')
    a('s_cbranch_scc1 s3_pass')
    lds_spin(a, 's3_w2', VT, VZ, CNT, 0xff, 0x04)
    a('s_setprio 1')
    a.label('s3_pass')

    def rd(k, tt):
        a('ds_read_b128 %s, %s offset:%d' % (vr(bf(k & 1, tt), 4), vr(VA + k // 6), 4096 * (k % 6) + 1024 * tt))
    for tt in range(4):
        rd(0, tt)
    a('s_waitcnt vmcnt(17) lgkmcnt(0)')
    issued = 18
    for k in range(18):
        for n in range(12):
            j, tt = n >> 2, n & 3
            if j & 1:
                tt = 3 - tt
            mfma(a, acc(j, tt), ring3(k, j), bf(k & 1, tt), None if k == 0 else acc(j, tt))
            if n == 0 and k < 12:
                a('s_add_u32 s15, s15, 3072' if k % 6 else 's_mov_b32 s15, s%d' % (31 + k // 6))
            if n in (0, 1, 4, 5) and k < 17:
                rd(k + 1, n if n < 2 else n - 2)
            if n in (2, 6, 10) and k * 3 + j + 1 < 54:
                a('s_waitcnt vmcnt(%d)%s' % (issued - (k * 3 + j + 2), ' lgkmcnt(0)' if n == 10 else ''))
            if n in (3, 7, 11) and k < 12:
                a('buffer_load_dwordx4 %s, v1, s[8:11], s15 offen offset:%d' % (vr(ring3(k, j), 4), 1024 * j))
                issued += 1
            if k == P3_TOK + 1 and n == 7:
                a('s_mov_b64 exec, 1')
                a('ds_add_u32 %s, %s offset:%d' % (vr(VK), vr(VC), TOK))
                a('s_mov_b64 exec, -1')
            if k in (4, 10):
                m = 34 if k == 4 else 35
                if n == 6:
                    a('ds_read_b32 %s, %s offset:%d' % (vr(VT), vr(VZ), CNT))
                if n == 10:
                    a('v_readfirstlane_b32 s4, %s' % vr(VT))
                if n == 11:
                    a('s_andn2_b32 s4, s%d, s4' % m)
                    a('s_cbranch_scc1 s3_slow%d' % k)
                    a.label('s3_back%d' % k)
    a('s_setprio 0')
    a('s_lshr_b32 s24, s28, 1\ns_mul_i32 s24, s24, 3\ns_and_b32 s25, s28, 1')
    a('s_cmp_ge_u32 s18, 3')
    a('s_cbranch_scc1 s3_epib')
    stamp(a, 'pa')
    lds_spin(a, 's3_w1', VT, VZ, CNT, 0xff000000, 0x04000000)
    a('v_lshlrev_b32 %s, 2, v2' % vr(VT))
    for tt in range(4):
        a('ds_read_b32 %s, %s offset:%d' % (vr(RS + tt), vr(VT), 64 * tt))
    a('s_lshl_b32 s4, s25, 1\ns_add_u32 s4, s4, s24\ns_lshl_b32 s4, s4, 12\ns_add_u32 s4, s4, %d' % HI)
    a('s_add_u32 s5, s24, 1\ns_lshl_b32 s5, s5, 12\ns_lshl_b32 s6, s25, 3\ns_add_u32 s5, s5, s6\ns_add_u32 s5, s5, %d' % HI)
    a('s_waitcnt lgkmcnt(0)')
    a('v_add_u32 %s, s4, v1' % vr(VT))
    a('v_add_u32 %s, s5, v1' % vr(VC))
    C = BF + 28
    for tt in range(4):
        a('v_mul_f32 %s, 0x%x, %s' % (vr(C + tt), NLOG2E, vr(RS + tt)))
    T = BF
    units = [[(0, u), (1, u)] for u in range(4)] + [[(2, 0), (2, 1)], [(2, 2), (2, 3)]]
    for u, un in enumerate(units):
        idx = [(j, tt, r) for j, tt in un for r in range(4)]
        for n, (j, tt, r) in enumerate(idx):
            a('v_mul_f32 %s, %s, %s' % (vr(T + n), vr(acc(j, tt) + r), vr(C + tt)))
        for n in range(8):
            a('v_exp_f32 %s, %s' % (vr(T + n), vr(T + n)))
        for n in range(8):
            a('v_add_f32 %s, 1.0, %s' % (vr(T + n), vr(T + n)))
        for n in range(8):
            a('v_rcp_f32 %s, %s' % (vr(T + n), vr(T + n)))
        for n, (j, tt, r) in enumerate(idx):
            a('v_mul_f32 %s, %s, %s' % (vr(T + n), vr(acc(j, tt) + r), vr(T + n)))
        P = BF + 8 + 4 * (u % 4)
        for n in range(4):
            a('v_cvt_pk_bf16_f32 %s, %s, %s' % (vr(P + n), vr(T + 2 * n), vr(T + 2 * n + 1)))
        if u < 4:
            a('ds_write_b128 %s, %s offset:%d' % (vr(VT), vr(P, 4), 1024 * u))
        else:
            a('ds_write_b64 %s, %s offset:%d' % (vr(VC), vr(P, 2), 1024 * un[0][1]))
            a('ds_write_b64 %s, %s offset:%d' % (vr(VC), vr(P + 2, 2), 1024 * un[1][1]))
    a('v_mov_b32 %s, s27' % vr(VT))
    a('s_mov_b64 exec, 1')
    a('ds_add_u32 %s, %s offset:%d' % (vr(VZ), vr(VT), CNT))
    a('s_mov_b64 exec, -1')
    for b in range(3):
        a('s_add_u32 s%d, s%d, %d' % (30 + b, 30 + b, W2 - W1))
        a('v_add_u32 %s, %d, %s' % (vr(VA + b), HI - XI, vr(VA + b)))
    a('s_add_u32 s18, s18, 3')
    a('s_mov_b32 s34, 0x0400\ns_mov_b32 s35, 0x040000')
    a('s_branch s3_tok')
    for k, m in ((4, 0x0400), (10, 0x040000)):
        a.label('s3_slow%d' % k)
        lds_spin(a, 's3_sl%d' % k, VT, VZ, CNT, m, m)
        a('s_branch s3_back%d' % k)
    a.label('s3_epib')
    stamp(a, 'pb')
    a('s_setprio %d' % EPB_PRIO)
    a('s_lshl_b32 s4, s13, 5\ns_add_u32 s4, s4, s14\ns_mul_i32 s4, s4, 12\ns_add_u32 s4, s4, s28\ns_mul_i32 s4, s4, 6144')
    a('s_add_u32 s6, s4, s%d\ns_add_u32 s7, s6, 4096' % PRT)
    for u, un in enumerate(units):
        P = BF + 4 * u
        for n, (j, tt) in enumerate(un):
            for r in range(4):
                a('v_mul_f32 %s, %s, %s' % (vr(acc(j, tt) + r), vr(acc(j, tt) + r), vr(RS + tt)))
            a('v_cvt_pk_bf16_f32 %s, %s, %s' % (vr(P + 2 * n), vr(acc(j, tt)), vr(acc(j, tt) + 1)))
            a('v_cvt_pk_bf16_f32 %s, %s, %s' % (vr(P + 2 * n + 1), vr(acc(j, tt) + 2), vr(acc(j, tt) + 3)))
        a('buffer_store_dwordx4 %s, v1, s[8:11], s%d offen offset:%d sc1' % (vr(P, 4), 6 + (u >> 2), 1024 * (u & 3)))
    a('s_mul_i32 s22, s14, 12\ns_add_u32 s4, s22, s28\ns_lshl_b32 s4, s4, 7\ns_add_u32 s6, s4, %d' % FL_RF)
    a('v_mov_b32 v4, 1')
    a('s_and_b32 s23, s28, 12\ns_lshr_b32 s4, s13, 1\ns_add_u32 s23, s23, s4')
    a('s_add_u32 s22, s22, s23')
    a('s_lshl_b32 s7, s22, 7\ns_add_u32 s7, s7, %d' % FL_RF)
    a('s_and_b32 s29, s13, 1')
    a('s_lshr_b32 s24, s23, 1\ns_mul_i32 s24, s24, 3\ns_and_b32 s25, s23, 1')
    a('s_lshl_b32 s26, s29, 1')
    a('s_cmp_eq_u32 s20, 2')
    a('s_cbranch_scc1 s3_mix')
    a('s_add_u32 s26, s26, s20\ns_mov_b32 s16, s26')
    a('s_lshl_b32 s4, s25, 1\ns_add_u32 s24, s24, s4\ns_mov_b32 s25, 0')
    a('s_branch s3_adr')
    a.label('s3_mix')
    a('s_add_u32 s16, s29, 4\ns_add_u32 s24, s24, 1\ns_lshl_b32 s25, s25, 3')
    a.label('s3_adr')
    a('s_mul_i32 s22, s22, 6\ns_add_u32 s16, s16, s22\ns_lshl_b32 s16, s16, 10\ns_add_u32 s16, s16, s%d' % PRT)
    a('s_lshl_b32 s4, s24, 2\ns_add_u32 s4, s4, s26\ns_lshl_b32 s4, s4, 10\ns_add_u32 s4, s4, s25\ns_add_u32 s4, s4, %d' % XI)
    a('v_add_u32 v6, s4, v1')
    a('s_lshl_b32 s4, s14, 2\ns_add_u32 s4, s4, s26\ns_mul_i32 s17, s4, 18432\ns_add_u32 s17, s17, s25')
    a('s_mov_b32 s39, 0x20000')
    a('s_cmp_eq_u32 s%d, 0' % LAY)
    a('s_cbranch_scc0 s3_fin')
    a('s_mov_b32 s36, s8\ns_mov_b32 s37, s9\ns_mov_b32 s38, s10')
    a('s_lshl_b32 s4, s24, 10\ns_add_u32 s17, s17, s4\ns_add_u32 s17, s17, %d' % (X0 + ACT))
    a('v_mov_b32 v7, v1')
    a('s_branch s3_pub')
    a.label('s3_fin')
    a('s_mov_b32 s36, s94\ns_mov_b32 s37, s95\ns_mov_b32 s38, %d' % ACT)
    a('s_lshl_b32 s4, s24, 6\ns_add_u32 s17, s17, s4')
    a('v_mul_u32_u24 v7, 1152, v2')
    a('v_lshl_add_u32 v7, v3, 4, v7')
    a.label('s3_pub')
    stamp(a, 'pst')
    a('s_waitcnt vmcnt(0)')
    stamp(a, 'pdr')
    mem_arrive(a, 6, VZ, 4)
    a('s_cmp_eq_u32 s20, 3')
    a('s_cbranch_scc1 s3_red_done')
    RX = 8; PP = 20; AC = 12
    a('ds_read_b64 %s, v6' % vr(RX, 2))
    a('s_cmp_eq_u32 s20, 2')
    a('s_cselect_b32 s4, 1024, 8')
    a('v_add_u32 v6, s4, v6')
    a('ds_read_b64 %s, v6' % vr(RX + 2, 2))
    if RED_MODE == 0:
        mem_wait(a, 's3_rw', 7, RFW, VZ, 5, backoff=(18, 5))
        stamp(a, 'rw0')
        a('s_add_u32 s33, s18, 2\ns_min_u32 s33, s33, 6')
        lds_spin(a, 's3_t6r', VT, VK, TOK, 0, 0, ge=33)
    else:
        a('s_mov_b32 s33, 6' if RED_MODE == 1 else 's_add_u32 s33, s18, 2\ns_min_u32 s33, s33, 6')
        lds_spin(a, 's3_t6r', VT, VK, TOK, 0, 0, ge=33)
        stamp(a, 'rw0')
        mem_wait(a, 's3_rw', 7, RFW, VZ, 5)
    stamp(a, 'rw1')
    for c in range(8):
        a('buffer_load_dwordx4 %s, v1, s[8:11], s16 offen sc1' % vr(PP + 4 * c, 4))
        if c < 7:
            a('s_add_u32 s16, s16, %d' % ACT)
    a('s_waitcnt lgkmcnt(0)')
    for n in range(4):
        a('v_lshlrev_b32 %s, 16, %s' % (vr(AC + 2 * n), vr(RX + n)))
        a('v_and_b32 %s, 0xffff0000, %s' % (vr(AC + 2 * n + 1), vr(RX + n)))
    for c in range(8):
        a('s_waitcnt vmcnt(%d)' % (7 - c))
        for n in range(4):
            a('v_lshlrev_b32 %s, 16, %s' % (vr(RX + n), vr(PP + 4 * c + n)))
            a('v_and_b32 %s, 0xffff0000, %s' % (vr(PP + 4 * c + n), vr(PP + 4 * c + n)))
        for n in range(4):
            a('v_add_f32 %s, %s, %s' % (vr(AC + 2 * n), vr(AC + 2 * n), vr(RX + n)))
            a('v_add_f32 %s, %s, %s' % (vr(AC + 2 * n + 1), vr(AC + 2 * n + 1), vr(PP + 4 * c + n)))
    for n in range(4):
        a('v_cvt_pk_bf16_f32 %s, %s, %s' % (vr(RX + n), vr(AC + 2 * n), vr(AC + 2 * n + 1)))
    stamp(a, 'rsum')
    a('s_cmp_eq_u32 s20, 2')
    a('s_cbranch_scc1 s3_stm')
    a('buffer_store_dwordx4 %s, v7, s[36:39], s17 offen sc1' % vr(RX, 4))
    a('s_branch s3_red_done')
    a.label('s3_stm')
    a('buffer_store_dwordx2 %s, v7, s[36:39], s17 offen sc1' % vr(RX, 2))
    a('s_add_u32 s17, s17, 18432')
    a('buffer_store_dwordx2 %s, v7, s[36:39], s17 offen sc1' % vr(RX + 2, 2))
    a.label('s3_red_done')
    a('s_setprio 0')
    a('s_cmp_eq_u32 s%d, 0' % LAY)
    a('s_cbranch_scc0 mega_fin')
    a('s_waitcnt vmcnt(0)')
    if STAMPS:
        stamp_end(a, 6, 12, 12, 12, base_v=8)
        a('s_mov_b64 exec, -1')
        a('s_waitcnt vmcnt(0)')
        stamp(a, 0)
    a('s_mov_b32 s%d, 1\ns_mov_b32 s%d, %d\ns_mov_b32 s%d, 64\ns_mov_b32 s%d, 16' % (LAY, LOFF, ACT, CBW, RFW))
    a('s_add_u32 s%d, s%d, %d\ns_add_u32 s%d, s%d, %d' % (SOF, SOF, 32 * HS, PRT, PRT, PART_STEP))
    a('s_cmp_ge_u32 s12, 7')
    a('s_cbranch_scc1 s3_nf')
    a('s_mov_b32 s33, 6')
    lds_spin(a, 's3_t6', VT, VK, TOK, 0, 0, ge=33)
    s1_fill()
    a.label('s3_nf')
    stamp(a, 'fil')
    group_sync('e4')
    a('s_barrier')
    stamp(a, 'e4')
    a('s_branch s1_again')
    a.label('mega_fin')
    stamp_end(a, 7, 12, 12, 12, base_v=8)
    a.label('mega_end')
    a('s_endpgm')
    return ('mega_kernel', a, 168, 100, (256, 768, LDS))


def gen_empty(n=''):
    a = Asm()
    a('s_endpgm')
    return ('empty%s_kernel' % n, a, 8, 16, (256, 256, 0))


def gen_chain(slot):
    a = Asm()
    a('s_cmp_ge_u32 s2, 32')
    a('s_cbranch_scc1 chain_end')
    a('s_load_dwordx2 s[8:9], s[0:1], %d' % (8 * slot))
    a('s_mov_b32 s10, %d\ns_mov_b32 s11, 0x20000' % ACT)
    a('s_mul_i32 s4, s2, %d' % (64 * 1024))
    a('v_mov_b32 v1, 0')
    a('s_mov_b64 exec, 1')
    a('s_waitcnt lgkmcnt(0)')
    for k in range(64):
        a('buffer_load_dword v2, v1, s[8:11], s4 offen')
        a('s_waitcnt vmcnt(0)')
        a('v_and_b32 v2, 0, v2')
        a('v_add_u32 v1, 1024, v1')
        a('v_add_u32 v1, v2, v1')
    a.label('chain_end')
    a('s_endpgm')
    return ('chain_kernel', a, 8, 16, (32, 64, 0))


PRE = []
RED_MODE = 1
EPB_PRIO = 3
PREP_RANGES = ((0, 8), (8, 80), (80, 152), (152, 264), (264, 300), (300, 428))
NCX = 4
S2_WE = 18
S2_W0 = 0
S2_W1 = 0
P3_LEAD = 1
PART_STEP = 8 * ACT
MID = []
KD_PF = False
P3_SLEEP = 0
P3_TOK = 10
P3_EPRIO2 = 0
P3_SPRIO = 3
PF1 = []
PF2 = []
PF3 = None
P0_LD = ''
P1_NCX = 4
P2_NCX = 4
P1_ST = ' sc1'
P2_W0 = 4
P2_W1 = 2
CODE_PF = True
PREP_ST = ' sc1'
PREP_XLD = ' nt'
P3_LD = ''
P3_SNAKE = True
P3_EPRIO = 0
PF = False
P3_NODS = False
P3_NOLD = False
PRIO = True
P3_NCX = 4
P3_ST = ' sc1'


def build():
    ks = [gen_prep(), gen_mega()]
    for e in sorted(set(MID)):
        ks.append(gen_empty(e[5:]))
    geo = {k[0]: k[4] for k in ks}
    order = ['prep'] + MID + ['mega']
    hdr = ['; generated by gen/gen.py (hand-written generator); see that file for the layouts']
    for o in order:
        g, b, l = geo[o + '_kernel']
        hdr.append('; @launch kernel=%s_kernel grid=(%d,1,1) block=(%d,1,1) lds=%d' % (o, g, b, l))
    out = '\n'.join(hdr) + '\n.amdgcn_target "amdgcn-amd-amdhsa--gfx950"\n'
    descs = ''
    for name, a, nv, ns, _ in ks:
        c, d = kernel_text(name, a, nv, ns)
        out += c
        descs += d
    out += 'code_end:\n'
    return out + '.section .rodata,"a"\n.p2align 6\nkd_begin:\n' + descs + 'kd_end:\n'


if __name__ == '__main__':
    path = sys.argv[1] if len(sys.argv) > 1 else 'cdna_kernels/%s.s' % NAME
    for o in sys.argv[2:]:
        k, v = o.split('=')
        globals()[k] = eval(v)
    open(path, 'w').write(build())
    print('wrote', path)
```

```python
import sys
from asmlib import Asm, vr, sr, kernel_text

NAME = 'interleave_layers__linear_attn_block__dense_activation_silu__prompt'
S, D, F = 2048, 576, 4608
ACT = S * D * 2
WQ_HG = 258048
WQ = 0
WO = WQ + 8 * WQ_HG
W1 = WO + 36 * 18432
W2 = W1 + D * F * 2
X0 = W2 + D * F * 2
X1 = X0 + 2 * ACT
PQ = X1 + 2 * ACT
HS = 1536
SS = PQ + 2 * ACT
FL = SS + 64 * HS
FL_GB = FL
FL_CB = FL + 32 * 128
FL_RF = FL + 64 * 128
ZERO_BYTES = 64 * HS + 448 * 128
PART = SS + ZERO_BYTES
WS_BYTES = 268435456
OOB = 0x80000000
LOG2E = 0x3fb8aa3b
NLOG2E = 0xbfb8aa3b
EPS6 = 0x358637bd
EPS5 = 0x3727c5ac
INV576 = 0x3ae38e39
ONES = 0x3f803f80
MF = 'v_mfma_f32_16x16x32_bf16'


def mfma(a, d, x, y, c=None):
    a('%s %s, %s, %s, %s' % (MF, vr(d, 4), vr(x, 4), vr(y, 4), '0' if c is None else vr(c, 4)))


def ws_srd(a):
    a('s_load_dwordx2 s[8:9], s[0:1], 64')
    a('s_mov_b32 s10, 0x%x' % WS_BYTES)
    a('s_mov_b32 s11, 0x20000')


def wave_id(a, sdst, vtmp):
    a('v_lshrrev_b32 %s, 6, v0' % vr(vtmp))
    a('v_readfirstlane_b32 %s, %s' % (sr(sdst), vr(vtmp)))
    a('v_and_b32 v0, 63, v0')


DBG = 128 << 20
STAMPS = False
DBGOUT = 0


SEL = ['x1', 's1m', 's1d', 'e1a', 'e1b', 'o', 's2d', 'x3', 'pa', 'pb']


def stamp(a, i):
    if isinstance(i, str):
        if i not in SEL:
            return
        i = SEL.index(i) + 1
    if STAMPS:
        a('s_mem%stime s[%d:%d]' % ('real' if STAMPS == 2 else '', 60 + 2 * i, 61 + 2 * i))


def stamp_begin(a):
    if STAMPS:
        a('s_memrealtime s[56:57]')
        stamp(a, 0)


def stamp_end(a, kid, n, s_wave, nw, base_v=2):
    if not STAMPS:
        return
    a('s_waitcnt vmcnt(0)')
    stamp(a, n - 1)
    a('s_memrealtime s[58:59]')
    a('s_getreg_b32 s55, hwreg(HW_REG_XCC_ID)')
    a('s_getreg_b32 s54, hwreg(HW_REG_HW_ID)')
    a('s_mov_b64 exec, -1')
    a('s_mul_i32 s4, s2, %d\ns_add_u32 s4, s4, %s\ns_lshl_b32 s4, s4, 6\ns_add_u32 s4, s4, %d' % (nw, sr(s_wave), DBG + (kid << 20)))
    a('s_waitcnt lgkmcnt(0)')
    d, o = base_v, base_v + 1
    a('v_mov_b32 v%d, 0' % d)
    for i in range(n):
        a('v_writelane_b32 v%d, s%d, %d' % (d, 60 + 2 * i, i))
    a('v_writelane_b32 v%d, s54, 12' % d)
    a('v_writelane_b32 v%d, s55, 13' % d)
    a('v_writelane_b32 v%d, s56, 14' % d)
    a('v_writelane_b32 v%d, s58, 15' % d)
    a('v_mbcnt_lo_u32_b32 v%d, -1, 0' % o)
    a('v_lshlrev_b32 v%d, 2, v%d' % (o, o))
    a('s_mov_b64 exec, 0xffff')
    a('buffer_store_dword v%d, v%d, s[8:11], s4 offen' % (d, o))
    if DBGOUT and kid in (0, 6, 7):
        L = 'dbgo%d_%d' % (kid, len(a.lines))
        a('s_cmp_eq_u32 s2, %d\ns_cbranch_scc0 %s' % (DBGOUT, L))
        a('s_cmp_eq_u32 %s, %d\ns_cbranch_scc0 %s' % (sr(s_wave), 0 if kid == 0 else 8, L))
        a('s_load_dwordx2 s[40:41], s[0:1], 56')
        a('s_mov_b32 s42, 1024\ns_mov_b32 s43, 0x20000')
        a('s_waitcnt lgkmcnt(0)')
        if kid == 0:
            a('s_mov_b64 exec, 0xc000')
            a('buffer_store_dword v%d, v%d, s[40:43], 0 offen' % (d, o))
            a('buffer_store_dword v%d, v%d, s[40:43], 0 offen offset:512' % (d, o))
        else:
            a('s_sub_u32 s40, s40, 512\ns_subb_u32 s41, s41, 0')
            a('v_writelane_b32 v%d, s58, 6' % d)
            a('s_mov_b64 exec, 0x7f')
            a('buffer_store_dword v%d, v%d, s[40:43], 0 offen offset:%d' % (d, o, 28 * (kid - 6)))
            a('buffer_store_dword v%d, v%d, s[40:43], 0 offen offset:%d' % (d, o, 512 + 28 * (kid - 6)))
        a.label(L)


def conv_unit(a, L, nw, s_u, s_w, lds_base, lds_cs):
    nk = 18 // nw
    FR = 24; ON = 8; CS = FR + 16 * nk
    fr = lambda k, c: FR + (k * 4 + c) * 4
    a('s_mov_b32 s14, %d\ns_mov_b32 s15, 0x20000' % (D * F * 2))
    a('s_cmp_ge_u32 %s, 72' % sr(s_u))
    a('s_cbranch_scc1 %s_w2' % L)
    a('s_mov_b32 s12, s30\ns_mov_b32 s13, s31')
    a('s_mov_b32 s18, 9216\ns_lshl_b32 s19, %s, 7\ns_mov_b32 s16, %d\ns_lshl_b32 s21, %s, 2' % (sr(s_u), W1, sr(s_u)))
    a('s_branch %s_go' % L)
    a.label('%s_w2' % L)
    a('s_mov_b32 s12, s32\ns_mov_b32 s13, s33')
    a('s_sub_u32 s21, %s, 72' % sr(s_u))
    a('s_mul_i32 s4, s21, 7282\ns_lshr_b32 s4, s4, 16')
    a('s_mul_i32 s5, s4, 9\ns_sub_u32 s5, s21, s5\ns_lshl_b32 s5, s5, 7')
    a('s_mul_i32 s19, s4, %d\ns_add_u32 s19, s19, s5' % (576 * 1152))
    a('s_mov_b32 s18, 1152\ns_mov_b32 s16, %d\ns_lshl_b32 s21, s21, 2' % W2)
    a.label('%s_go' % L)
    a('s_mul_i32 s4, %s, s18\ns_mul_i32 s4, s4, %d\ns_add_u32 s19, s19, s4' % (sr(s_w), 32 * nk))
    a('s_mul_i32 s22, %s, %d\ns_add_u32 s22, s22, %d' % (sr(s_w), 4096 * nk, lds_base))
    a('s_lshl_b32 s17, s18, 3')
    a('v_lshrrev_b32 v4, 3, v0')
    a('v_mul_lo_u32 v4, v4, s18')
    a('v_and_b32 v5, 7, v0')
    a('v_lshrrev_b32 v6, 2, v0')
    a('v_and_b32 v6, 4, v6')
    a('v_xor_b32 v5, v5, v6')
    a('v_lshl_add_u32 v4, v5, 4, v4')
    a('s_mov_b32 s23, s22')
    for n in range(4 * nk):
        a('s_mov_b32 m0, s23')
        a('s_add_u32 s23, s23, 1024')
        a('buffer_load_dwordx4 v4, s[12:15], s19 offen nt lds')
        a('s_add_u32 s19, s19, s17')
    a('v_lshrrev_b32 v5, 4, v0')
    a('v_bfe_u32 v6, v0, 2, 2')
    a('v_lshl_add_u32 v5, v5, 3, v6')
    a('v_lshlrev_b32 v5, 7, v5')
    a('v_and_b32 v6, 3, v0')
    a('v_lshl_add_u32 v5, v6, 4, v5')
    a('v_and_b32 v6, 8, v0')
    a('v_lshl_add_u32 v5, v6, 3, v5')
    a('v_add_u32 v5, s22, v5')
    a('v_xor_b32 v6, 64, v5')
    for c in range(4):
        a('s_add_u32 s4, s21, %d\ns_mul_i32 s5, s4, 43691\ns_lshr_b32 s5, s5, 17' % c)
        a('s_mul_i32 s6, s5, 3\ns_sub_u32 s4, s4, s6')
        a('s_and_b32 s6, s5, 1\ns_lshl_b32 s6, s6, 1\ns_add_u32 s4, s4, s6')
        a('s_cmp_ge_u32 s4, 3\ns_cselect_b32 s6, 3, 0\ns_sub_u32 s4, s4, s6')
        a('s_mul_i32 s6, s5, 54\ns_add_u32 s4, s4, s6\ns_mul_i32 s6, %s, %d\ns_add_u32 s4, s4, s6' % (sr(s_w), 3 * nk))
        a('s_lshl_b32 s4, s4, 10\ns_add_u32 s%d, s4, s16' % (24 + c))
    for k in range(4):
        a('v_mov_b32 %s, 0x%x' % (vr(ON + k), ONES))
    for k in range(nk):
        a('s_waitcnt vmcnt(%d)' % (4 * (nk - 1 - k)))
        for c in range(4):
            for hi in range(2):
                a('ds_read_b64_tr_b16 %s, v%d offset:%d' % (vr(fr(k, c) + 2 * hi, 2), 5 + (c >> 1), 4096 * k + 512 * hi + 8 * (c & 1)))
        if k + 1 < nk:
            a('s_waitcnt lgkmcnt(4)')
    a('s_waitcnt lgkmcnt(0)')
    a('s_cmp_ge_u32 %s, 72' % sr(s_u))
    a('s_cbranch_scc1 %s_st' % L)
    for k in range(nk):
        for c in range(4):
            mfma(a, CS + 4 * c, ON, fr(k, c), None if k == 0 else CS + 4 * c)
    a('v_and_b32 v4, 15, v0')
    a('v_mul_u32_u24 v4, %d, v4' % (16 * nw))
    a('s_lshl_b32 s4, %s, 4' % sr(s_w))
    a('v_add_u32 v5, s4, v4')
    for c in range(4):
        a('v_mov_b32 %s, %s' % (vr(ON + c), vr(CS + 4 * c)))
    a('ds_write_b128 v5, %s offset:%d' % (vr(ON, 4), lds_cs))
    a('s_waitcnt lgkmcnt(0)')
    a('s_barrier')
    for w in range(nw):
        a('ds_read_b128 %s, v4 offset:%d' % (vr(CS + 4 * w, 4), lds_cs + 16 * w))
    a('s_waitcnt lgkmcnt(0)')
    for c in range(4):
        for w in range(1, nw):
            a('v_add_f32 %s, %s, %s' % (vr(CS + c), vr(CS + c), vr(CS + 4 * w + c)))
        a('v_mul_f32 %s, 0x%x, %s' % (vr(CS + c), INV576, vr(CS + c)))
    for k in range(nk):
        for c in range(4):
            f = fr(k, c)
            for p in range(4):
                a('v_lshlrev_b32 %s, 16, %s' % (vr(12 + 2 * p), vr(f + p)))
                a('v_and_b32 %s, 0xffff0000, %s' % (vr(13 + 2 * p), vr(f + p)))
            for p in range(8):
                a('v_sub_f32 %s, %s, %s' % (vr(12 + p), vr(12 + p), vr(CS + c)))
            for p in range(4):
                a('v_cvt_pk_bf16_f32 %s, %s, %s' % (vr(f + p), vr(12 + 2 * p), vr(13 + 2 * p)))
    a.label('%s_st' % L)
    for k in range(nk):
        for c in range(4):
            a('buffer_store_dwordx4 %s, v1, s[8:11], s%d offen%s' % (vr(fr(k, c), 4), 24 + c, PREP_ST))
            a('s_add_u32 s%d, s%d, 3072' % (24 + c, 24 + c))
    return CS + 4 * max(4, nw)


def gen_prep():
    a = Asm()
    NM = 8; NT = 144; NG = 148; NX = 128
    LCS = 0; LB = 2048
    a('s_cmp_ge_u32 s2, %d' % (NM + NT + NG + NX))
    a('s_cbranch_scc1 prep_end')
    stamp_begin(a)
    ws_srd(a)
    a('s_load_dwordx4 s[24:27], s[0:1], 0')
    a('s_load_dwordx2 s[28:29], s[0:1], 16')
    a('s_load_dwordx2 s[30:31], s[0:1], 32')
    a('s_load_dwordx2 s[32:33], s[0:1], 40')
    wave_id(a, 3, 1)
    a('v_lshlrev_b32 v1, 4, v0')
    a('v_and_b32 v2, 15, v0')
    a('v_lshrrev_b32 v3, 4, v0')
    a('s_cmp_lt_u32 s2, %d' % NM)
    a('s_cbranch_scc1 prep_misc')
    a('s_sub_u32 s20, s2, %d' % NM)
    a('s_waitcnt lgkmcnt(0)')
    a('s_cmp_ge_u32 s2, %d' % (NM + NT))
    a('s_cbranch_scc1 prep_gx')
    nv = conv_unit(a, 'prep_c', 6, 20, 3, LB, LCS)
    stamp_end(a, 0, 2, 3, 6)
    a('s_endpgm')
    a.label('prep_gx')
    a('s_mov_b32 s15, 0x20000')
    a('s_sub_u32 s20, s20, %d' % NT)
    a('s_cmp_ge_u32 s20, %d' % NG)
    a('s_cbranch_scc1 prep_x')
    V = 16
    a('v_lshrrev_b32 v5, 2, v2')
    a('v_and_b32 v6, 3, v2')
    a('s_mov_b64 s[6:7], -1')
    a('s_mul_i32 s21, s3, 3')
    a('s_cmp_ge_u32 s20, 112')
    a('s_cbranch_scc1 prep_wo')
    a('s_mov_b32 s12, s26\ns_mov_b32 s13, s27\ns_mov_b32 s14, %d' % (D * 3 * D * 2))
    a('s_mul_i32 s4, s20, 4682\ns_lshr_b32 s4, s4, 16')
    a('s_mul_i32 s5, s4, 14\ns_sub_u32 s5, s20, s5')
    a('s_lshr_b32 s35, s5, 1\ns_and_b32 s36, s5, 1')
    a('s_mul_i32 s16, s4, 7\ns_add_u32 s16, s16, s35\ns_mul_i32 s16, s16, 36\ns_add_u32 s16, s16, s36')
    a('s_lshl_b32 s17, s21, 1\ns_add_u32 s16, s16, s17\ns_lshl_b32 s16, s16, 10\ns_add_u32 s16, s16, %d' % WQ)
    a('s_mov_b32 s17, 2048')
    a('s_mul_i32 s34, s4, 72')
    a('s_cmp_ge_u32 s5, 12')
    a('s_cbranch_scc1 prep_wq_x')
    a('s_sub_u32 s37, s5, 8')
    a('s_add_u32 s36, s36, 1\ns_mul_i32 s36, s36, 576')
    a('s_cmp_ge_u32 s5, 8')
    a('s_cselect_b32 s35, s37, s35\ns_cselect_b32 s36, 0, s36')
    a('s_mul_i32 s35, s35, 18\ns_add_u32 s34, s34, s35\ns_add_u32 s34, s34, s36')
    a('v_add_u32 v8, s34, v2')
    a('s_branch prep_wq_go')
    a.label('prep_wq_x')
    a('s_add_u32 s34, s34, 16')
    a('s_cmp_eq_u32 s5, 13')
    a('s_cbranch_scc1 prep_wq_qx')
    a('v_mul_u32_u24 v8, 18, v6')
    a('v_lshrrev_b32 v9, 3, v2')
    a('v_mad_u32_u24 v8, v9, 64, v8')
    a('v_lshl_add_u32 v8, v9, 9, v8')
    a('v_and_b32 v9, 1, v5')
    a('s_add_u32 s34, s34, 576')
    a('v_add3_u32 v8, v8, v9, s34')
    a('s_branch prep_wq_go')
    a.label('prep_wq_qx')
    a('v_mul_u32_u24 v9, 18, v5')
    a('v_add3_u32 v8, v9, v6, s34')
    a('s_mov_b32 s6, 0x33333333\ns_mov_b32 s7, 0x33333333')
    a.label('prep_wq_go')
    a('v_mul_u32_u24 v9, %d, v3' % (8 * 3456))
    a('v_lshl_add_u32 v9, v8, 1, v9')
    a('v_mov_b32 v10, 0x%x' % OOB)
    a('v_cndmask_b32 v9, v10, v9, s[6:7]')
    a('s_mul_i32 s19, s21, %d' % (32 * 3456))
    for k in range(3):
        for i in range(8):
            a('buffer_load_ushort %s, v9, s[12:15], s19 offen offset:%d' % (vr(V + k * 8 + i), 3456 * (i & 1)))
            if i & 1:
                a('s_add_u32 s19, s19, %d' % (3456 * (2 if i < 7 else 26)))
    a('s_waitcnt vmcnt(0)')
    for k in range(24):
        a('v_lshlrev_b32 %s, 16, %s' % (vr(V + k), vr(V + k)))
    for k in range(4):
        a('v_add_f32 v%d, %s, %s' % (11 + k, vr(V + k), vr(V + 4 + k)))
    for k in range(8, 24):
        a('v_add_f32 v%d, v%d, %s' % (11 + k % 4, 11 + k % 4, vr(V + k)))
    a('v_add_f32 v11, v11, v12\nv_add_f32 v13, v13, v14\nv_add_f32 v11, v11, v13')
    a('s_lshl_b32 s4, s3, 8')
    a('v_lshl_add_u32 v12, v0, 2, s4')
    a('ds_write_b32 v12, v11')
    a('v_lshlrev_b32 v12, 2, v2')
    a('s_waitcnt lgkmcnt(0)')
    a('s_barrier')
    for n in range(12):
        a('ds_read2_b32 %s, v12 offset0:%d offset1:%d' % (vr(40 + 2 * n, 2), 32 * (n % 8), 32 * (n % 8) + 16))
        if n == 7:
            a('v_add_u32 v12, 1024, v12')
    a('s_waitcnt lgkmcnt(0)')
    for st in (12, 6, 3):
        for n in range(st):
            a('v_add_f32 %s, %s, %s' % (vr(40 + n), vr(40 + n), vr(40 + st + n)))
    a('v_add_f32 v40, v40, v41\nv_add_f32 v40, v40, v42')
    a('v_mul_f32 v11, 0x%x, v40' % INV576)
    for k in range(24):
        a('v_sub_f32 %s, %s, v11' % (vr(V + k), vr(V + k)))
    a('s_branch prep_pack')
    a.label('prep_wo')
    a('s_mov_b32 s12, s28\ns_mov_b32 s13, s29\ns_mov_b32 s14, %d' % (D * D * 2))
    a('s_sub_u32 s22, s20, 112')
    a('s_mul_i32 s16, s22, 18\ns_add_u32 s16, s16, s21\ns_lshl_b32 s16, s16, 10\ns_add_u32 s16, s16, %d' % WO)
    a('s_mov_b32 s17, 1024')
    a('s_lshr_b32 s4, s22, 1\ns_lshl_b32 s4, s4, 5\ns_and_b32 s5, s22, 1\ns_lshl_b32 s5, s5, 2\ns_add_u32 s4, s4, s5')
    a('v_lshl_add_u32 v7, v5, 3, v6')
    a('v_add_u32 v8, s4, v7')
    for k in range(3):
        a('s_add_u32 s4, s21, %d' % k)
        a('s_mul_i32 s19, s4, %d' % (36 * 1152))
        a('s_sub_u32 s5, s4, 16\ns_mul_i32 s5, s5, %d\ns_add_u32 s5, s5, %d' % (288 * 1152, 16 * 1152))
        a('s_cmp_lt_u32 s4, 16')
        a('s_cselect_b32 s19, s19, s5')
        a('s_cselect_b32 s34, %d, %d' % (2, 72))
        a('s_cselect_b32 s35, %d, %d' % (16, 72))
        a('s_cselect_b32 s36, %d, %d' % (4, 18))
        a('s_mul_i32 s34, s34, 1152\ns_mul_i32 s35, s35, 1152\ns_mul_i32 s36, s36, 1152')
        a('v_mul_lo_u32 v9, v3, s36')
        a('v_lshl_add_u32 v9, v8, 1, v9')
        for i in range(8):
            a('buffer_load_ushort %s, v9, s[12:15], s19 offen offset:%d' % (vr(V + k * 8 + i), 1152 * (i & 1)))
            if i in (1, 3, 5):
                a('s_add_u32 s19, s19, s%d' % (35 if i == 3 else 34))
    a('s_waitcnt vmcnt(0)')
    for k in range(24):
        a('v_lshlrev_b32 %s, 16, %s' % (vr(V + k), vr(V + k)))
    a.label('prep_pack')
    for k in range(3):
        b = V + k * 8
        for p in range(4):
            a('v_cvt_pk_bf16_f32 %s, %s, %s' % (vr(b + p), vr(b + 2 * p), vr(b + 2 * p + 1)))
        a('buffer_store_dwordx4 %s, v1, s[8:11], s16 offen%s' % (vr(b, 4), PREP_ST))
        a('s_add_u32 s16, s16, s17')
    stamp_end(a, 0, 2, 3, 6)
    a('s_endpgm')
    a.label('prep_x')
    a('s_mov_b32 s12, s24\ns_mov_b32 s13, s25\ns_mov_b32 s14, %d' % ACT)
    a('s_sub_u32 s20, s20, %d' % NG)
    a('s_mul_i32 s19, s20, %d\ns_mul_i32 s6, s3, 192\ns_add_u32 s19, s19, s6' % (16 * 1152))
    a('v_mul_u32_u24 v9, 1152, v2')
    a('v_lshl_add_u32 v9, v3, 4, v9')
    a('s_mul_i32 s16, s20, 6\ns_add_u32 s16, s16, s3\ns_mul_i32 s16, s16, 3072\ns_add_u32 s16, s16, %d' % X0)
    for k in range(3):
        a('buffer_load_dwordx4 %s, v9, s[12:15], s19 offen offset:%d%s' % (vr(V + 4 * k, 4), 64 * k, PREP_XLD))
    for k in range(3):
        a('s_waitcnt vmcnt(2)')
        a('buffer_store_dwordx4 %s, v1, s[8:11], s16 offen offset:%d%s' % (vr(V + 4 * k, 4), 1024 * k, PREP_ST))
    stamp_end(a, 0, 2, 3, 6)
    a('s_endpgm')
    a.label('prep_misc')
    if CODE_PF:
        a('s_getpc_b64 s[4:5]')
        a.label('prep_pc')
        a('s_sub_u32 s4, s4, prep_pc-prep_kernel')
        a('s_subb_u32 s5, s5, 0')
        a('s_lshl_b32 s6, s3, 13')
        a('v_lshl_add_u32 v4, v0, 7, s6')
        a('v_min_u32 v4, code_end-prep_kernel-4, v4')
        a('global_load_dword v5, v4, s[4:5]')
    if KD_PF:
        a('s_getpc_b64 s[4:5]')
        a('s_add_u32 s4, s4, kd_begin@rel32@lo+4')
        a('s_addc_u32 s5, s5, kd_begin@rel32@hi+12')
        a('v_lshlrev_b32 v4, 6, v0')
        a('v_min_u32 v4, kd_end-kd_begin-4, v4')
        a('global_load_dword v6, v4, s[4:5]')
    a('s_mul_i32 s16, s2, 6\ns_add_u32 s16, s16, s3')
    a('s_cmp_ge_u32 s16, %d' % (ZERO_BYTES // 4096))
    a('s_cbranch_scc1 prep_nz')
    a('s_lshl_b32 s16, s16, 12\ns_add_u32 s16, s16, %d' % SS)
    for k in range(4):
        a('v_mov_b32 v%d, 0' % (V + k))
    a('s_waitcnt lgkmcnt(0)')
    for k in range(4):
        a('buffer_store_dwordx4 %s, v1, s[8:11], s16 offen offset:%d' % (vr(V, 4), 1024 * k))
    a.label('prep_nz')
    a('s_waitcnt lgkmcnt(0)')
    a('s_waitcnt vmcnt(0)')
    stamp_end(a, 0, 2, 3, 6)
    a.label('prep_end')
    a('s_endpgm')
    return ('prep_kernel', a, max(nv, 64), 96 if STAMPS else 40, (NM + NT + NG + NX, 384, LB + 73728))


def xcd_map(a, ncx, s_c, s_r, nc=8):
    lg = ncx.bit_length() - 1
    ng = nc // ncx
    lgg = ng.bit_length() - 1
    a('s_and_b32 s4, s2, 7\ns_lshr_b32 s5, s2, 3')
    a('s_and_b32 s6, s4, %d\ns_lshl_b32 s6, s6, %d\ns_and_b32 s7, s5, %d\ns_add_u32 %s, s6, s7' % (ng - 1, lg, ncx - 1, sr(s_c)))
    a('s_lshr_b32 s6, s4, %d\ns_mul_i32 s6, s6, %d\ns_lshr_b32 s7, s5, %d\ns_add_u32 %s, s6, s7' % (lgg, 32 // ncx, lg, sr(s_r)))


def l2_touch(a, base, part_bytes, ncx, nc, v_t, v_d, share=1, s_sub=None):
    ng = nc // ncx
    lines = ncx * part_bytes // 128
    per = -(-lines // (32 * share))
    n = -(-per // 64)
    a('s_and_b32 s4, s2, %d\ns_mul_i32 s4, s4, %d\ns_add_u32 s4, s4, %d' % (ng - 1, ncx * part_bytes, base))
    a('s_lshr_b32 s5, s2, 3')
    if share > 1:
        a('s_mul_i32 s5, s5, %d\ns_add_u32 s5, s5, %s' % (share, sr(s_sub)))
    a('s_mul_i32 s5, s5, %d' % per)
    for i in range(n):
        a('v_add_u32 %s, %d, v0' % (vr(v_t), 64 * i))
        if (i + 1) * 64 > per:
            a('v_min_u32 %s, %d, %s' % (vr(v_t), per - 1, vr(v_t)))
        a('v_add_u32 %s, s5, %s' % (vr(v_t), vr(v_t)))
        a('v_min_u32 %s, %d, %s' % (vr(v_t), lines - 1, vr(v_t)))
        a('v_lshlrev_b32 %s, 7, %s' % (vr(v_t), vr(v_t)))
        a('buffer_load_dword %s, %s, s[8:11], s4 offen' % (vr(v_d), vr(v_t)))


def x_dma(a, nk, s_g, s_l, v_l16):
    for k in range(nk):
        a('s_mov_b32 m0, %s' % sr(s_l))
        if k < nk - 1:
            a('s_add_u32 %s, %s, 4096' % (sr(s_l), sr(s_l)))
        else:
            a('s_nop 0')
        a('buffer_load_dwordx4 %s, s[8:11], %s offen sc1 lds' % (vr(v_l16), sr(s_g)))
        if k < nk - 1:
            a('s_add_u32 %s, %s, 1024' % (sr(s_g), sr(s_g)))


def stats_prepass(a, nk, v_addr, v_fr, v_ones, v_res, v_t, v_g, v_tmp, v_dst):
    for k in range(nk):
        a('ds_read_b128 %s, %s offset:%d' % (vr(v_fr + 4 * k, 4), vr(v_addr), 4096 * k))
    for k in range(4):
        a('v_mov_b32 %s, 0x%x' % (vr(v_ones + k), ONES))
    for k in range(nk):
        a('s_waitcnt lgkmcnt(%d)' % (nk - 1 - k))
        f = v_fr + 4 * k
        mfma(a, v_res, v_ones, f, None if k == 0 else v_res)
        mfma(a, v_res + 4, f, f, None if k == 0 else v_res + 4)
    a('s_mov_b32 s40, 0x22222222\ns_mov_b32 s41, 0x22222222')
    a('s_mov_b32 s42, 0x44444444\ns_mov_b32 s43, 0x44444444')
    a('s_mov_b32 s44, 0x88888888\ns_mov_b32 s45, 0x88888888')
    a('v_cndmask_b32 %s, %s, %s, s[40:41]' % (vr(v_res + 1), vr(v_res + 4), vr(v_res + 5)))
    a('v_cndmask_b32 %s, %s, %s, s[42:43]' % (vr(v_res + 1), vr(v_res + 1), vr(v_res + 6)))
    a('v_cndmask_b32 %s, %s, %s, s[44:45]' % (vr(v_res + 1), vr(v_res + 1), vr(v_res + 7)))
    a('s_mov_b32 exec_lo, 0x00f0000f\ns_mov_b32 exec_hi, 0xf0000f00')
    a('ds_write_b64 %s, %s' % (vr(v_dst), vr(v_res, 2)))
    a('s_mov_b64 exec, -1')


def stats_final(a, nparts, lds_stats, v_lane, v_tmp):
    a('v_lshlrev_b32 %s, 3, %s' % (vr(v_tmp + 6), vr(v_lane)))
    for p in range(nparts):
        a('ds_read_b64 %s, %s offset:%d' % (vr(v_tmp + 2 * p, 2), vr(v_tmp + 6), p * 512))
    a('s_waitcnt lgkmcnt(0)')
    for p in range(1, nparts):
        a('v_add_f32 %s, %s, %s' % (vr(v_tmp), vr(v_tmp), vr(v_tmp + 2 * p)))
        a('v_add_f32 %s, %s, %s' % (vr(v_tmp + 1), vr(v_tmp + 1), vr(v_tmp + 2 * p + 1)))
    a('v_mul_f32 %s, 0x%x, %s' % (vr(v_tmp), INV576, vr(v_tmp)))
    a('v_mul_f32 %s, 0x%x, %s' % (vr(v_tmp + 1), INV576, vr(v_tmp + 1)))
    a('v_fma_f32 %s, -%s, %s, %s' % (vr(v_tmp + 1), vr(v_tmp), vr(v_tmp), vr(v_tmp + 1)))
    a('v_max_f32 %s, 0, %s' % (vr(v_tmp + 1), vr(v_tmp + 1)))
    a('v_add_f32 %s, 0x%x, %s' % (vr(v_tmp + 1), EPS5, vr(v_tmp + 1)))
    a('v_rsq_f32 %s, %s' % (vr(v_tmp), vr(v_tmp + 1)))


def diag_select(a, dst, src):
    a('s_mov_b32 s40, 0x22222222\ns_mov_b32 s41, 0x22222222')
    a('s_mov_b32 s42, 0x44444444\ns_mov_b32 s43, 0x44444444')
    a('s_mov_b32 s44, 0x88888888\ns_mov_b32 s45, 0x88888888')
    a('v_cndmask_b32 %s, %s, %s, s[40:41]' % (vr(dst), vr(src), vr(src + 1)))
    a('v_cndmask_b32 %s, %s, %s, s[42:43]' % (vr(dst), vr(dst), vr(src + 2)))
    a('v_cndmask_b32 %s, %s, %s, s[44:45]' % (vr(dst), vr(dst), vr(src + 3)))


def rstd_from(a, dst, vsum, vsq):
    a('v_mul_f32 %s, 0x%x, %s' % (vr(vsum), INV576, vr(vsum)))
    a('v_mul_f32 %s, 0x%x, %s' % (vr(vsq), INV576, vr(vsq)))
    a('v_fma_f32 %s, -%s, %s, %s' % (vr(vsq), vr(vsum), vr(vsum), vr(vsq)))
    a('v_max_f32 %s, 0, %s' % (vr(vsq), vr(vsq)))
    a('v_add_f32 %s, 0x%x, %s' % (vr(vsq), EPS5, vr(vsq)))
    a('v_rsq_f32 %s, %s' % (vr(dst), vr(vsq)))


SPIN_CAP = 1 << 18


def lds_spin(a, name, v_tmp, v_addr, off, mask, want, ge=None):
    a('s_mov_b32 s5, 0')
    a.label(name)
    a('ds_read_b32 %s, %s offset:%d' % (vr(v_tmp), vr(v_addr), off))
    a('s_waitcnt lgkmcnt(0)')
    a('v_readfirstlane_b32 s4, %s' % vr(v_tmp))
    if ge is None:
        a('s_and_b32 s4, s4, 0x%x' % mask)
        a('s_cmp_eq_u32 s4, 0x%x' % want)
    else:
        a('s_cmp_ge_u32 s4, %s' % sr(ge))
    a('s_cbranch_scc1 %s_ok' % name)
    a('s_sleep 1')
    a('s_add_u32 s5, s5, 1')
    a('s_cmp_lt_u32 s5, 0x%x' % SPIN_CAP)
    a('s_cbranch_scc1 %s' % name)
    a('s_endpgm')
    a.label(name + '_ok')


def mem_arrive(a, s_off, v_zero, v_one):
    a('s_mov_b64 exec, 1')
    a('buffer_atomic_add %s, %s, s[8:11], %s offen sc1' % (vr(v_one), vr(v_zero), sr(s_off)))
    a('s_mov_b64 exec, -1')


def mem_wait(a, name, s_off, s_want, v_zero, v_tmp, backoff=None):
    a('s_mov_b32 s5, 0')
    a('s_mov_b64 exec, 1')
    a.label(name)
    a('buffer_load_dword %s, %s, s[8:11], %s offen sc1' % (vr(v_tmp), vr(v_zero), sr(s_off)))
    a('s_waitcnt vmcnt(0)')
    a('v_readfirstlane_b32 s4, %s' % vr(v_tmp))
    a('s_cmp_ge_u32 s4, %s' % sr(s_want))
    a('s_cbranch_scc1 %s_ok' % name)
    if backoff:
        a('s_cmp_eq_u32 %s, %d' % (sr(backoff[0]), backoff[1]))
        a('s_cbranch_scc1 %s_ns' % name)
        a('s_sleep 12')
        a.label(name + '_ns')
    a('s_add_u32 s5, s5, 1')
    a('s_cmp_lt_u32 s5, 0x%x' % SPIN_CAP)
    a('s_cbranch_scc1 %s' % name)
    a('s_endpgm')
    a.label(name + '_ok')
    a('s_mov_b64 exec, -1')


def gen_mega():
    a = Asm()
    RSL = 0; FLG = 512; CNT = 516; TOK = 528; XF = 1024; XI = 3072; HI = XI + 73728
    OI = HI; SL = HI + 36864
    LDS = SL + 32 * HS
    VZ = 167
    LAY, LOFF, GBO, GBW, CBO, CBW, RFW, SOF, PRT = 86, 87, 88, 89, 90, 91, 92, 96, 97
    a('s_cmp_ge_u32 s2, 256')
    a('s_cbranch_scc1 mega_end')
    stamp_begin(a)
    ws_srd(a)
    a('s_load_dwordx2 s[94:95], s[0:1], 48')
    wave_id(a, 12, 1)
    a('v_lshlrev_b32 v1, 4, v0')
    a('v_and_b32 v2, 15, v0')
    a('v_lshrrev_b32 v3, 4, v0')
    a('v_mov_b32 %s, 0' % vr(VZ))
    xcd_map(a, NCX, 13, 14)
    a('s_and_b32 s20, s12, 3\ns_lshr_b32 s21, s12, 2')
    a('s_mul_i32 s4, s14, 21846\ns_lshr_b32 s4, s4, 16\ns_mul_i32 s4, s4, 3\ns_sub_u32 s19, s14, s4')
    a('s_lshl_b32 s4, s19, 2\ns_add_u32 s28, s12, s4\ns_cmp_ge_u32 s28, 12\ns_cselect_b32 s4, 12, 0\ns_sub_u32 s28, s28, s4')
    a('s_mov_b32 s%d, 0\ns_mov_b32 s%d, 0\ns_mov_b32 s%d, 0\ns_mov_b32 s%d, 32\ns_mov_b32 s%d, 8' % (LAY, LOFF, GBW, CBW, RFW))
    a('s_lshl_b32 s4, s14, 7\ns_add_u32 s%d, s4, %d' % (GBO, FL_GB))
    a('s_lshl_b32 s4, s13, 7\ns_add_u32 s%d, s4, %d' % (CBO, FL_CB))
    a('s_mov_b32 s%d, %d\ns_mov_b32 s%d, %d' % (SOF, SS, PRT, PART))
    a('s_lshl_b32 s4, s14, 2\ns_add_u32 s4, s4, s20\ns_mul_i32 s4, s4, 18\ns_mul_i32 s5, s21, 6\ns_add_u32 s4, s4, s5')
    a('s_lshl_b32 s98, s4, 10')
    a('s_mul_i32 s5, s21, 24\ns_add_u32 s5, s5, s20\ns_lshl_b32 s5, s5, 10\ns_add_u32 s99, s5, %d' % XI)

    def load_x(base):
        a('s_add_u32 s22, s98, s%d\ns_add_u32 s22, s22, %d\ns_mov_b32 s23, s99' % (LOFF, base))
        x_dma(a, 6, 22, 23, 1)

    def group_sync(name):
        a('s_add_u32 s%d, s%d, 8' % (GBW, GBW))
        a('s_barrier')
        a('s_cmp_eq_u32 s12, 11')
        a('s_cbranch_scc0 %s_go' % name)
        a('v_mov_b32 v4, 1')
        mem_arrive(a, GBO, VZ, 4)
        mem_wait(a, name, GBO, GBW, VZ, 5)
        a.label('%s_go' % name)

    ACC = 8; RING = ACC + 32; BF = RING + 72
    VA = 4; VB = 5; VT = 6
    acc = lambda j, tt: ACC + (j * 4 + tt) * 4
    ring = lambda k, j: 40 + ((k % 9) * 2 + j) * 4
    bf = lambda p, tt: BF + (p * 4 + tt) * 4

    def s1_fill():
        a('s_mul_i32 s15, s13, 7\ns_add_u32 s15, s15, s12\ns_mul_i32 s15, s15, 36864\ns_add_u32 s15, s15, %d' % WQ)
        for k in range(9):
            for j in range(2):
                a('buffer_load_dwordx4 %s, v1, s[8:11], s15 offen offset:%d' % (vr(ring(k, j), 4), 2048 * (k & 1) + 1024 * j))
            if k & 1:
                a('s_add_u32 s15, s15, 4096')

    a('ds_write_b32 %s, %s offset:%d' % (vr(VZ), vr(VZ), FLG))
    a('s_waitcnt lgkmcnt(0)')
    load_x(X0)
    a('s_barrier')
    a('s_lshr_b32 s26, 0x43, s12\ns_and_b32 s26, s26, 1')
    a('s_cbranch_scc1 s1_f1')
    a('s_waitcnt vmcnt(0)')
    a('s_barrier')
    a('s_cmp_ge_u32 s12, 7')
    a('s_cbranch_scc1 s1_go')
    a.label('s1_f1')
    s1_fill()
    a('s_cmp_eq_u32 s26, 0')
    a('s_cbranch_scc1 s1_go')
    a('s_waitcnt vmcnt(18)')
    a('s_barrier')
    a('s_branch s1_go')
    a.label('s1_again')
    load_x(X0)
    a('s_waitcnt vmcnt(0)')
    a('s_barrier')
    a.label('s1_go')
    stamp(a, 'x1')
    a('s_cmp_ge_u32 s12, 8')
    a('s_cbranch_scc1 s1_wo')
    a('v_add_u32 %s, %d, v1' % (vr(VA), XI))
    a('v_add_u32 %s, %d, v1' % (vr(VB), XI + 9 * 4096))

    def rdx(k, tt):
        v, o = (VA, 4096 * k + 1024 * tt) if k < 9 else (VB, 4096 * (k - 9) + 1024 * tt)
        a('ds_read_b128 %s, %s offset:%d' % (vr(bf(k & 1, tt), 4), vr(v), o))
    for tt in range(4):
        rdx(0, tt)
    a('s_cmp_lt_u32 s12, 4')
    a('s_cbranch_scc1 s1_nn')
    a('s_cmp_eq_u32 s12, 6')
    a('s_cbranch_scc1 s1_nt')
    a('s_cmp_eq_u32 s12, 7')
    a('s_cbranch_scc1 s1_stats')

    def main(orient):
        issued = 18
        a('s_waitcnt vmcnt(17) lgkmcnt(0)')
        for k in range(18):
            for n in range(8):
                j, tt = n >> 2, n & 3
                if j:
                    tt = 3 - tt
                c = None if k == 0 else acc(j, tt)
                if orient[j] == 'N':
                    mfma(a, acc(j, tt), bf(k & 1, tt), ring(k, j), c)
                else:
                    mfma(a, acc(j, tt), ring(k, j), bf(k & 1, tt), c)
                if n < 2 and k < 17:
                    rdx(k + 1, 2 * n); rdx(k + 1, 2 * n + 1)
                if n == 2:
                    a('s_waitcnt vmcnt(%d)' % (issued - (2 * k + 2)))
                if n in (3, 7) and k < 9:
                    kk = k + 9
                    a('buffer_load_dwordx4 %s, v1, s[8:11], s15 offen offset:%d' % (vr(ring(kk, j), 4), 2048 * (kk & 1) + 1024 * j))
                    issued += 1
                    if n == 7 and (kk & 1):
                        a('s_add_u32 s15, s15, 4096')
                if n == 6 and k < 17:
                    a('s_waitcnt vmcnt(%d) lgkmcnt(0)' % (issued - (2 * k + 3)))
        stamp(a, 's1m')
        lds_spin(a, 's1_s' + orient, VT, VZ, FLG, 2, 2)

    def rs_n(RS):
        a('v_lshlrev_b32 %s, 4, v3' % vr(VT))
        for n in range(8):
            a('ds_read_b128 %s, %s offset:%d' % (vr(RS + 4 * n, 4), vr(VT), RSL + 64 * n))

    def rs_t(RS):
        a('v_lshlrev_b32 %s, 2, v2' % vr(VT))
        for n in range(8):
            a('ds_read_b32 %s, %s offset:%d' % (vr(RS + n), vr(VT), RSL + 64 * n))

    def phi4(items, T):
        n = len(items)
        for i, (d, x, s1, s2) in enumerate(items):
            a('v_mul_f32 %s, %s, %s' % (vr(T + i), vr(x), vr(s2)))
        for i in range(n):
            a('v_min_f32 %s, 0, %s' % (vr(T + i), vr(T + i)))
        for i in range(n):
            a('v_exp_f32 %s, %s' % (vr(T + i), vr(T + i)))
        for i, (d, x, s1, s2) in enumerate(items):
            a('v_max_f32 %s, 0, %s' % (vr(d), vr(x)))
        for i in range(n):
            a('v_add_f32 %s, 0x%x, %s' % (vr(T + i), EPS6, vr(T + i)))
        for i, (d, x, s1, s2) in enumerate(items):
            a('v_fma_f32 %s, %s, %s, %s' % (vr(d), vr(d), vr(s1), vr(T + i)))

    RS = RING; TMP = RING + 32; F0 = RING + 48; ON = RING + 64
    pq_base = 's_lshl_b32 s6, s14, 4\ns_add_u32 s6, s6, s13\ns_mul_i32 s6, s6, 4608\ns_add_u32 s6, s6, s%d\ns_add_u32 s6, s6, %d' % (LOFF, PQ)
    main('TT')
    rs_t(RS)
    a(pq_base)
    a('s_lshl_b32 s5, s20, 10\ns_add_u32 s6, s6, s5\ns_add_u32 s7, s6, %d' % (8 * 4608))
    a('s_waitcnt lgkmcnt(0)')
    for tt in range(4):
        phi4([(acc(j, tt) + r, acc(j, tt) + r, RS + tt, RS + 4 + tt) for j in range(2) for r in range(4)], TMP)
        P = BF + 4 * tt
        for j in range(2):
            a('v_cvt_pk_bf16_f32 %s, %s, %s' % (vr(P + 2 * j), vr(acc(j, tt)), vr(acc(j, tt) + 1)))
            a('v_cvt_pk_bf16_f32 %s, %s, %s' % (vr(P + 2 * j + 1), vr(acc(j, tt) + 2), vr(acc(j, tt) + 3)))
        a('buffer_store_dwordx4 %s, v1, s[8:11], s%d offen offset:%d sc1' % (vr(P, 4), 6 + (tt >> 1), 2048 * (tt & 1)))
    a('s_branch s1_done')
    a.label('s1_nn')
    main('NN')
    rs_n(RS)
    FK = F0; FV = F0 + 8; DV = BF; FX = BF + 16
    for k in range(4):
        a('v_mov_b32 %s, 0x%x' % (vr(ON + k), ONES))
    a('s_lshl_b32 s4, s13, 2\ns_add_u32 s4, s4, s20\ns_mul_i32 s6, s4, %d\ns_add_u32 s6, s6, s%d' % (HS, SOF))
    a('s_waitcnt lgkmcnt(0)')
    for tp in range(2):
        phi4([(acc(0, tt) + r, acc(0, tt) + r, RS + 4 * tt + r, RS + 16 + 4 * tt + r) for tt in (2 * tp, 2 * tp + 1) for r in range(4)], TMP)
        for tt in (2 * tp, 2 * tp + 1):
            for r in range(4):
                a('v_mul_f32 %s, %s, %s' % (vr(acc(1, tt) + r), vr(acc(1, tt) + r), vr(RS + 4 * tt + r)))
            for j, Fb in enumerate((FK, FV)):
                d = Fb + 2 * tt
                a('v_cvt_pk_bf16_f32 %s, %s, %s' % (vr(d), vr(acc(j, tt)), vr(acc(j, tt) + 1)))
                a('v_cvt_pk_bf16_f32 %s, %s, %s' % (vr(d + 1), vr(acc(j, tt) + 2), vr(acc(j, tt) + 3)))
        c = (lambda x: None) if tp == 0 else (lambda x: x)
        mfma(a, DV, FV + 4 * tp, FK + 4 * tp, c(DV))
        mfma(a, DV + 4, ON, FK + 4 * tp, c(DV + 4))
    a('v_and_b32 %s, 0x3c0, v1' % vr(VA))
    a('s_lshl_b32 s5, s20, 4')
    a('v_add_u32 %s, s5, %s' % (vr(VA), vr(VA)))
    a('v_lshlrev_b32 %s, 2, v0' % vr(VB))
    for r in range(4):
        a('buffer_atomic_add_f32 %s, %s, s[8:11], s6 offen offset:%d' % (vr(DV + r), vr(VB), 256 * r))
    a('s_mov_b64 exec, 0xffff')
    a('buffer_atomic_add_f32 %s, %s, s[8:11], s6 offen offset:1152' % (vr(DV + 4), vr(VB)))
    a('s_mov_b64 exec, -1')
    lds_spin(a, 's1_w', VT, VZ, FLG, 1, 1)
    a('ds_read_b128 %s, %s offset:%d' % (vr(FX, 4), vr(VA), XF))
    a('ds_read_b128 %s, %s offset:%d' % (vr(FX + 4, 4), vr(VA), XF + 1024))
    a('v_lshlrev_b32 %s, 3, v2' % vr(VT))
    a('v_lshl_add_u32 %s, v3, 2, %s' % (vr(VT), vr(VT)))
    a('v_add_u32 %s, 384, %s' % (vr(VT), vr(VT)))
    a('s_mov_b32 s40, -1\ns_mov_b32 s41, 0')
    a('v_cndmask_b32 %s, %s, %s, s[40:41]' % (vr(VT), vr(VB), vr(VT)))
    a('s_waitcnt lgkmcnt(0)')
    for tp in range(2):
        c = (lambda x: None) if tp == 0 else (lambda x: x)
        mfma(a, DV + 8, FX + 4 * tp, FV + 4 * tp, c(DV + 8))
        mfma(a, DV + 12, FX + 4 * tp, FK + 4 * tp, c(DV + 12))
    a('v_cndmask_b32 %s, %s, %s, s[40:41]' % (vr(DV + 8), vr(DV + 12), vr(DV + 8)))
    a('buffer_atomic_add_f32 %s, %s, s[8:11], s6 offen offset:896' % (vr(DV + 8), vr(VT)))
    a('s_branch s1_done')
    a.label('s1_nt')
    a('s_setprio 2')
    main('NT')
    rs_n(RS)
    FX = F0; PH = BF + 16
    for k in range(4):
        a('v_mov_b32 %s, 0x%x' % (vr(ON + k), ONES))
    a('s_mov_b32 s46, 0x00ff00ff\ns_mov_b32 s47, 0x00ff00ff')
    a('s_waitcnt lgkmcnt(0)')
    for tp in range(2):
        tts = (2 * tp, 2 * tp + 1)
        phi4([(PH + 4 * (tt & 1) + r, acc(0, tt) + r, RS + 4 * tt + r, RS + 16 + 4 * tt + r) for tt in tts for r in range(4)], TMP)
        for tt in tts:
            for r in range(4):
                a('v_mul_f32 %s, %s, %s' % (vr(acc(0, tt) + r), vr(acc(0, tt) + r), vr(RS + 4 * tt + r)))
                a('v_cndmask_b32 %s, %s, %s, s[46:47]' % (vr(acc(0, tt) + r), vr(acc(0, tt) + r), vr(PH + 4 * (tt & 1) + r)))
            a('v_cvt_pk_bf16_f32 %s, %s, %s' % (vr(FX + 2 * tt), vr(acc(0, tt)), vr(acc(0, tt) + 1)))
            a('v_cvt_pk_bf16_f32 %s, %s, %s' % (vr(FX + 2 * tt + 1), vr(acc(0, tt) + 2), vr(acc(0, tt) + 3)))
        a('ds_write_b128 v1, %s offset:%d' % (vr(FX + 4 * tp, 4), XF + 1024 * tp))
    a('v_mov_b32 %s, 3' % vr(VT))
    a('ds_write_b32 %s, %s offset:%d' % (vr(VZ), vr(VT), FLG))
    a('s_setprio 0')
    for tp in range(2):
        c = (lambda x: None) if tp == 0 else (lambda x: x)
        mfma(a, DV, FX + 4 * tp, FX + 4 * tp, c(DV))
        mfma(a, DV + 4, ON, FX + 4 * tp, c(DV + 4))
    rs_t(RS)
    a('v_and_b32 %s, 3, v2' % vr(VA))
    a('v_mul_u32_u24 %s, %d, %s' % (vr(VA), HS, vr(VA)))
    a('v_and_b32 %s, 4, v2' % vr(VB))
    a('v_add_u32 %s, %s, %s' % (vr(VA), vr(VA), vr(VB)))
    a('v_add_u32 %s, 2, v3' % vr(VB))
    a('v_and_b32 %s, 3, %s' % (vr(VB), vr(VB)))
    a('v_lshl_add_u32 %s, %s, 3, %s' % (vr(VA), vr(VB), vr(VA)))
    a('s_mul_i32 s6, s13, %d\ns_add_u32 s6, s6, s%d' % (4 * HS, SOF))
    diag_select(a, DV + 8, DV)
    a('s_mov_b32 s40, 0xffff\ns_mov_b32 s41, 0')
    a('v_cndmask_b32 %s, %s, %s, s[40:41]' % (vr(DV + 8), vr(DV + 8), vr(DV + 4)))
    a('s_mov_b32 exec_lo, 0xff\ns_mov_b32 exec_hi, 0x00ff00ff')
    a('buffer_atomic_add_f32 %s, %s, s[8:11], s6 offen offset:%d' % (vr(DV + 8), vr(VA), 1280 + 128))
    a('s_mov_b64 exec, -1')
    a(pq_base)
    a('s_add_u32 s6, s6, 4096\ns_add_u32 s7, s6, %d' % (8 * 4608))
    a('v_lshlrev_b32 %s, 3, v0' % vr(VB))
    a('s_waitcnt lgkmcnt(0)')
    phi4([(acc(1, tt) + r, acc(1, tt) + r, RS + tt, RS + 4 + tt) for tt in range(4) for r in range(2)], TMP)
    for tt in range(4):
        a('v_cvt_pk_bf16_f32 %s, %s, %s' % (vr(PH + tt), vr(acc(1, tt)), vr(acc(1, tt) + 1)))
    for tp in range(2):
        a('buffer_store_dwordx2 %s, %s, s[8:11], s%d offen sc1' % (vr(PH + 2 * tp, 2), vr(VB), 6 + tp))
    a('s_branch s1_done')
    a.label('s1_stats')
    a('s_setprio 3')
    for k in range(4):
        a('v_mov_b32 %s, 0x%x' % (vr(RING + k), ONES))
    for k in range(18):
        if k < 17:
            for tt in range(4):
                rdx(k + 1, tt)
        a('s_waitcnt lgkmcnt(%d)' % (4 if k < 17 else 0))
        for tt in range(4):
            mfma(a, acc(0, tt), RING, bf(k & 1, tt), None if k == 0 else acc(0, tt))
            mfma(a, acc(1, tt), bf(k & 1, tt), bf(k & 1, tt), None if k == 0 else acc(1, tt))
    a('v_lshlrev_b32 %s, 2, v2' % vr(VT))
    for tt in range(4):
        diag_select(a, acc(0, tt) + 1, acc(1, tt))
        rstd_from(a, acc(0, tt) + 2, acc(0, tt), acc(0, tt) + 1)
        a('v_mul_f32 %s, 0x%x, %s' % (vr(acc(0, tt) + 3), LOG2E, vr(acc(0, tt) + 2)))
    a('s_mov_b32 exec_lo, 0x00f0000f\ns_mov_b32 exec_hi, 0xf0000f00')
    for tt in range(4):
        a('ds_write_b32 %s, %s offset:%d' % (vr(VT), vr(acc(0, tt) + 2), RSL + 64 * tt))
        a('ds_write_b32 %s, %s offset:%d' % (vr(VT), vr(acc(0, tt) + 3), RSL + 256 + 64 * tt))
    a('s_mov_b64 exec, -1')
    a('v_mov_b32 %s, 2' % vr(VA))
    a('ds_write_b32 %s, %s offset:%d' % (vr(VZ), vr(VA), FLG))
    a('s_setprio 0')
    stamp(a, 's1m')
    a('s_branch s1_done')
    AC2 = 8; B2 = 24; WR = 56; NPRE = 13
    wr = lambda k, j: WR + ((k % NPRE) * 2 + j) * 4
    a.label('s1_wo')
    a('s_and_b32 s24, s13, 3')
    a('s_mul_i32 s25, s24, 9\ns_and_b32 s4, s24, 1\ns_add_u32 s25, s25, s4\ns_lshl_b32 s4, s20, 1\ns_add_u32 s25, s25, s4')
    a('s_mul_i32 s16, s25, 18432\ns_add_u32 s16, s16, %d\ns_add_u32 s17, s16, 18432' % WO)

    def wo_ld(k):
        for j in range(2):
            a('buffer_load_dwordx4 %s, v1, s[8:11], s%d offen offset:%d' % (vr(wr(k, j), 4), 16 + j, 1024 * (k % 4)))
        if k % 4 == 3:
            a('s_add_u32 s16, s16, 4096\ns_add_u32 s17, s17, 4096')
    for k in range(NPRE):
        wo_ld(k)
    stamp(a, 's1m')
    a('s_branch s1_join')
    a.label('s1_done')
    a('s_waitcnt vmcnt(0)')
    a.label('s1_join')
    stamp(a, 's1d')
    group_sync('e1a')
    a('s_cmp_eq_u32 s12, 11')
    a('s_cbranch_scc0 e1_x')
    mem_arrive(a, CBO, VZ, 4)
    a.label('e1_x')
    a('s_barrier')
    stamp(a, 'e1a')

    RING3 = 52
    FR = 124; QF = 20; XP = 4
    VA = 156; VB = 157; VC = 158; VD = 159; EX = 160; VT = 161; QX = 162
    f1 = lambda hh: FR + 8 * hh
    f2 = lambda hh: FR + 8 * hh + 4
    qf = lambda tt, hh: QF + (tt * 4 + hh) * 4
    a('s_cmp_ge_u32 s12, 8')
    a('s_cbranch_scc1 s2_hi')
    a('s_lshl_b32 s23, s14, 1\ns_lshr_b32 s4, s13, 2\ns_add_u32 s23, s23, s4')
    a('s_lshl_b32 s23, s23, 3\ns_add_u32 s23, s23, s12\ns_mul_i32 s23, s23, 4608\ns_add_u32 s23, s23, s%d\ns_add_u32 s23, s23, %d' % (LOFF, PQ))
    a('s_add_u32 s24, s23, 4096')
    a('v_lshlrev_b32 %s, 3, v0' % vr(VT))
    for tt in range(2):
        for p in range(2):
            a('buffer_load_dwordx4 %s, v1, s[8:11], s23 offen offset:%d sc1' % (vr(qf(tt, 2 * p), 4), 2048 * tt + 1024 * p))
    a('buffer_load_dwordx2 %s, %s, s[8:11], s24 offen sc1' % (vr(QX, 2), vr(VT)))
    a('v_and_b32 %s, 3, v2' % vr(VT))
    a('v_lshrrev_b32 %s, 2, v2' % vr(VA))
    a('v_lshl_add_u32 %s, %s, 2, %s' % (vr(VA), vr(VT), vr(VA)))
    a('v_lshlrev_b32 %s, 6, %s' % (vr(VA), vr(VA)))
    a('v_lshl_add_u32 %s, v3, 4, %s' % (vr(VA), vr(VA)))
    a('v_min_u32 %s, 2, %s' % (vr(VT), vr(VT)))
    a('v_lshlrev_b32 %s, 6, %s' % (vr(VB), vr(VT)))
    a('v_lshl_add_u32 %s, v3, 4, %s' % (vr(VB), vr(VB)))
    a('v_mul_u32_u24 %s, %d, v3' % (vr(VD), HS))
    a('v_lshl_add_u32 %s, v2, 3, %s' % (vr(VC), vr(VD)))
    a('v_lshl_add_u32 %s, %s, 3, %s' % (vr(VD), vr(VT), vr(VD)))
    a('s_mul_i32 s25, s12, %d\ns_add_u32 s22, s25, s%d\ns_add_u32 s25, s25, %d' % (4 * HS, SOF, SL))
    for v in (VA, VB, VC, VD):
        a('v_add_u32 %s, s25, %s' % (vr(v), vr(v)))
    for hh in range(4):
        a('s_mov_b32 s%d, 0x%x\ns_mov_b32 s%d, 0x%x' % (
            40 + 2 * hh, (0xffff << (16 * hh)) & 0xffffffff, 41 + 2 * hh, ((0xffff << (16 * hh)) >> 32) & 0xffffffff))
    a('s_mul_i32 s16, s13, 12\ns_add_u32 s16, s16, s28\ns_mul_i32 s16, s16, 55296\ns_mul_i32 s4, s19, 18432\ns_add_u32 s16, s16, s4\ns_add_u32 s16, s16, %d' % W1)
    a('s_and_b32 s4, s13, 3\ns_mul_i32 s29, s4, 9\ns_and_b32 s4, s4, 1\ns_xor_b32 s4, s4, 1\ns_lshl_b32 s4, s4, 3\ns_add_u32 s29, s29, s4')
    a('s_mul_i32 s4, s29, 18432\ns_add_u32 s4, s4, %d' % WO)
    a('s_cmp_eq_u32 s12, 7\ns_cselect_b32 s16, s4, s16')
    nW = [0]

    def wld(n):
        for _ in range(n):
            k = nW[0]
            a('buffer_load_dwordx4 %s, v1, s[8:11], s16 offen offset:%d' % (vr(RING3 + 4 * k, 4), 1024 * (k % 4)))
            if k % 4 == 3:
                a('s_add_u32 s16, s16, 4096')
            nW[0] += 1
    wld(S2_WE)
    a('s_waitcnt vmcnt(%d)' % S2_WE)
    for tt in range(2):
        for p in range(2):
            q0, q1 = qf(tt, 2 * p), qf(tt, 2 * p + 1)
            a('v_mov_b32 %s, %s' % (vr(q1), vr(q0 + 2)))
            a('v_mov_b32 %s, %s' % (vr(q1 + 1), vr(q0 + 3)))
            for q in (q0, q1):
                a('v_mov_b32 %s, %s' % (vr(q + 2), vr(QX + tt)))
                a('v_mov_b32 %s, 0' % vr(q + 3))
    a('s_mov_b32 m0, s25')
    a('s_barrier')
    stamp(a, 'e1b')
    for n in range(6):
        if n == 4:
            a('s_add_u32 m0, s25, 4096\ns_add_u32 s22, s22, 4096')
        a('buffer_load_dwordx4 v1, s[8:11], s22 offen offset:%d sc1 lds' % (1024 * (n % 4)))
    a('s_waitcnt vmcnt(0)')
    stamp(a, 'sld')
    a('ds_read_b64 %s, %s offset:1280' % (vr(XP, 2), vr(VC)))
    a('ds_read_b64 %s, %s offset:%d' % (vr(XP + 2, 2), vr(VD), 1280 + 128))
    for hh in range(4):
        a('ds_read_b128 %s, %s offset:%d' % (vr(f1(hh), 4), vr(VA), HS * hh))
        a('ds_read_b128 %s, %s offset:%d' % (vr(f2(hh), 4), vr(VB), HS * hh + 1024))
    wld(S2_W0)
    a('s_waitcnt lgkmcnt(8)')
    a('v_cvt_pk_bf16_f32 %s, %s, %s' % (vr(XP), vr(XP), vr(XP + 1)))
    a('v_cvt_pk_bf16_f32 %s, %s, %s' % (vr(XP + 2), vr(XP + 2), vr(XP + 3)))
    for hh in range(4):
        a('s_waitcnt lgkmcnt(%d)' % (6 - 2 * hh))
        for f, x in ((f1(hh), XP), (f2(hh), XP + 2)):
            a('v_cvt_pk_bf16_f32 %s, %s, %s' % (vr(f), vr(f), vr(f + 1)))
            a('v_cvt_pk_bf16_f32 %s, %s, %s' % (vr(f + 1), vr(f + 2), vr(f + 3)))
            a('v_cndmask_b32 %s, 0, %s, s[%d:%d]' % (vr(f + 2), vr(x), 40 + 2 * hh, 41 + 2 * hh))
            a('v_mov_b32 %s, 0' % vr(f + 3))
    stamp(a, 'scv')
    a('s_lshl_b32 s4, s12, 12\ns_add_u32 s4, s4, %d' % OI)
    a('v_add_u32 %s, s4, v1' % vr(VA))
    a('s_add_u32 s4, s21, 16\ns_lshl_b32 s4, s4, 11\ns_lshl_b32 s5, s20, 2\ns_add_u32 s4, s4, s5\ns_add_u32 s4, s4, %d' % OI)
    a('v_add_u32 %s, s4, v1' % vr(VB))
    for tt in range(2):
        for p in range(2):
            for n in range(2):
                mfma(a, XP + 8 * n + 4, f2(2 * p + n), qf(tt, 2 * p + n))
            for n in range(2):
                mfma(a, XP + 8 * n, f1(2 * p + n), qf(tt, 2 * p + n))
            wld(S2_W1)
            O = qf(tt, 2 * p)
            for n in range(2):
                d2 = XP + 8 * n + 4
                a('v_add_f32 %s, 0x%x, %s' % (vr(d2 + 2), EPS6, vr(d2 + 2)))
            for n in range(2):
                d2 = XP + 8 * n + 4
                a('v_rcp_f32 %s, %s' % (vr(d2 + 2), vr(d2 + 2)))
            for n in range(2):
                hh = 2 * p + n
                d1 = XP + 8 * n; d2 = d1 + 4
                for r in (4, 5, 0, 1, 2, 3):
                    a('v_mul_f32 %s, %s, %s' % (vr(d1 + r), vr(d1 + r), vr(d2 + 2)))
                a('v_cvt_pk_bf16_f32 %s, %s, %s' % (vr(O + 2 * n), vr(d1), vr(d1 + 1)))
                a('v_cvt_pk_bf16_f32 %s, %s, %s' % (vr(O + 2 * n + 1), vr(d1 + 2), vr(d1 + 3)))
                if hh == 0:
                    a('v_cvt_pk_bf16_f32 %s, %s, %s' % (vr(EX), vr(d2), vr(d2 + 1)))
                else:
                    a('v_cvt_pk_bf16_f32 %s, %s, %s' % (vr(VT), vr(d2), vr(d2 + 1)))
                    a('v_cndmask_b32 %s, %s, %s, s[%d:%d]' % (vr(EX), vr(EX), vr(VT), 40 + 2 * hh, 41 + 2 * hh))
            a('ds_write_b128 %s, %s offset:%d' % (vr(VA), vr(O, 4), 2048 * p + 1024 * tt))
        a('ds_write_b32 %s, %s offset:%d' % (vr(VB), vr(EX), 1024 * tt))
    stamp(a, 'st1')
    a('s_waitcnt lgkmcnt(0)')
    a('s_barrier')
    stamp(a, 'o')
    a('s_cmp_eq_u32 s12, 7')
    a('s_cbranch_scc0 s2_n7')
    a('s_setprio 3')
    a.label('s2_n7')
    wld(18 - nW[0])
    a('s_cmp_eq_u32 s12, 7')
    a('s_cbranch_scc0 s2_done')

    def resid_store(nt, AC, T, s_ct):
        a('s_lshr_b32 s4, %s, 1\ns_lshr_b32 s5, s13, 2\ns_lshl_b32 s5, s5, 1' % sr(s_ct))
        a('s_and_b32 s24, %s, 1\ns_lshl_b32 s24, s24, 3' % sr(s_ct))
        a('s_lshl_b32 s6, s4, 2\ns_add_u32 s6, s6, s5\ns_lshl_b32 s6, s6, 10\ns_add_u32 s6, s6, s24\ns_add_u32 s6, s6, %d' % XI)
        a('v_add_u32 %s, s6, v1' % vr(T + 24))
        for tt in range(2):
            a('ds_read_b%d %s, %s offset:%d' % (64 * nt, vr(T + 4 * tt, 2 * nt), vr(T + 24), 1024 * tt))
        a('s_lshl_b32 s6, s14, 2\ns_add_u32 s6, s6, s5\ns_mul_i32 s6, s6, 18\ns_add_u32 s6, s6, s4\ns_lshl_b32 s6, s6, 10')
        a('s_add_u32 s6, s6, s24\ns_add_u32 s6, s6, s%d\ns_add_u32 s6, s6, %d\ns_add_u32 s7, s6, 18432' % (LOFF, X1))
        a('s_waitcnt lgkmcnt(0)')
        for tt in range(2):
            U = T + 8 + 8 * tt
            for h in range(2 * nt):
                a('v_lshlrev_b32 %s, 16, %s' % (vr(U + 2 * h), vr(T + 4 * tt + h)))
                a('v_and_b32 %s, 0xffff0000, %s' % (vr(U + 2 * h + 1), vr(T + 4 * tt + h)))
            for j in range(nt):
                for r in range(4):
                    a('v_add_f32 %s, %s, %s' % (vr(U + 4 * j + r), vr(U + 4 * j + r), vr(AC + (2 * j + tt) * 4 + r)))
            for h in range(2 * nt):
                a('v_cvt_pk_bf16_f32 %s, %s, %s' % (vr(T + 4 * tt + h), vr(U + 2 * h), vr(U + 2 * h + 1)))
            a('buffer_store_dwordx%d %s, v1, s[8:11], s%d offen sc1' % (2 * nt, vr(T + 4 * tt, 2 * nt), 6 + tt))

    NB = 8
    slot = lambda n: FR + 4 * (n % NB)
    a('v_add_u32 %s, %d, v1' % (vr(VA), OI))
    for n in range(NB):
        a('ds_read_b128 %s, %s offset:%d' % (vr(slot(n), 4), vr(VA), 1024 * n))
    for n in range(36):
        k, tt = n >> 1, n & 1
        a('s_waitcnt vmcnt(%d) lgkmcnt(%d)' % (17 - k, min(NB - 1, 35 - n)))
        mfma(a, 4 + 4 * tt, RING3 + 4 * k, slot(n), None if k == 0 else 4 + 4 * tt)
        if n + NB < 36:
            a('ds_read_b128 %s, %s offset:%d' % (vr(slot(n), 4), vr(VA), 1024 * (n + NB)))
    stamp(a, 'gem')
    resid_store(1, 4, 20, 29)
    stamp(a, 'rst')
    a('s_setprio 0')
    a('s_waitcnt vmcnt(0)')
    a('s_branch s2_done')
    a.label('s2_hi')
    a('s_cmp_eq_u32 s12, 11')
    a('s_cbranch_scc0 s2_hw')
    mem_wait(a, 'e1b', CBO, CBW, VZ, 5)
    a('v_lshlrev_b32 v4, 2, v0')
    a('s_mov_b64 exec, 0xff')
    a('ds_write_b32 v4, %s offset:%d' % (vr(VZ), FLG))
    a('s_mov_b64 exec, -1')
    a('s_waitcnt lgkmcnt(0)')
    a.label('s2_hw')
    a('s_barrier')
    stamp(a, 'e1b')
    a('v_add_u32 v4, %d, v1' % OI)
    a('s_setprio 2')
    a('s_waitcnt vmcnt(0)')
    a('s_barrier')
    stamp(a, 'o')
    b2 = lambda k, tt: B2 + ((k % 4) * 2 + tt) * 4
    for k in range(4):
        for tt in range(2):
            a('ds_read_b128 %s, v4 offset:%d' % (vr(b2(k, tt), 4), 2048 * k + 1024 * tt))
    for k in range(18):
        w = 's_waitcnt lgkmcnt(%d)' % min(6, 2 * (17 - k))
        if k >= NPRE:
            w += ' vmcnt(%d)' % (2 * (17 - k))
        a(w)
        for j in range(2):
            for tt in range(2):
                d = AC2 + (2 * j + tt) * 4
                mfma(a, d, wr(k, j), b2(k, tt), None if k == 0 else d)
        if k + NPRE < 18:
            wo_ld(k + NPRE)
        if k + 4 < 18:
            for tt in range(2):
                a('ds_read_b128 %s, v4 offset:%d' % (vr(b2(k, tt), 4), 2048 * (k + 4) + 1024 * tt))
    stamp(a, 'gem')
    resid_store(2, AC2, B2, 25)
    stamp(a, 'rst')
    a('s_setprio 0')
    a('s_waitcnt vmcnt(0)')
    a.label('s2_done')
    stamp(a, 's2d')
    group_sync('e2')
    a('s_barrier')
    stamp(a, 'e2')

    ACC = 4; RING = RING3; BF = RING + 72; RS = BF + 32
    VA = RS + 4; VT = VA + 3; VC = VT + 1; VK = VC + 1
    acc = lambda j, tt: ACC + (j * 4 + tt) * 4
    ring3 = lambda k, j: RING + ((k % 6) * 3 + j) * 4
    bf = lambda p, tt: BF + (p * 4 + tt) * 4
    load_x(X1)
    a('s_lshl_b32 s4, s20, 2')
    a('v_mov_b32 %s, s4' % vr(VK))
    a('s_mul_i32 s16, s13, 12\ns_add_u32 s16, s16, s28\ns_mul_i32 s16, s16, 55296\ns_add_u32 s16, s16, %d' % W1)
    a('s_mov_b32 s17, s19')
    for b in range(3):
        a('s_mul_i32 s4, s17, 18432\ns_add_u32 s%d, s4, s16' % (30 + b))
        a('s_mul_i32 s4, s17, 24576\ns_add_u32 s4, s4, %d' % XI)
        a('v_add_u32 %s, s4, v1' % vr(VA + b))
        if b < 2:
            a('s_add_u32 s17, s17, 1\ns_cmp_eq_u32 s17, 3\ns_cselect_b32 s17, 0, s17')
    a('s_lshl_b32 s4, s21, 3\ns_lshl_b32 s27, 1, s4')
    a('s_mov_b32 s18, s21')
    a('s_mov_b32 s34, 0\ns_mov_b32 s35, 0')
    a('s_waitcnt vmcnt(0)')
    a('s_barrier')
    stamp(a, 'x3')
    a('s_cmp_lt_u32 s12, 7')
    a('s_cbranch_scc1 s3_filled')
    a('s_cmp_eq_u32 s12, 7')
    a('s_cbranch_scc1 s3_fill')
    a('s_setprio %d' % P3_SPRIO)
    a('s_lshl_b32 s4, s20, 10\ns_add_u32 s4, s4, %d' % XI)
    a('v_add_u32 %s, s4, v1' % vr(VC))
    a('v_add_u32 %s, %d, %s' % (vr(VT), 9 * 4096, vr(VC)))
    for k in range(4):
        a('v_mov_b32 %s, 0x%x' % (vr(BF + k), ONES))
    rdk = lambda k: a('ds_read_b128 %s, %s offset:%d' % (vr(RING + 4 * k, 4), vr(VC if k < 9 else VT), 4096 * (k % 9)))
    for k in range(12):
        rdk(k)
    for k in range(18):
        a('s_waitcnt lgkmcnt(%d)' % min(11, 17 - k))
        f = RING + 4 * k
        mfma(a, ACC, BF, f, None if k == 0 else ACC)
        mfma(a, ACC + 4, f, f, None if k == 0 else ACC + 4)
        if k + 12 < 18:
            rdk(k + 12)
    diag_select(a, ACC + 1, ACC + 4)
    rstd_from(a, ACC + 2, ACC, ACC + 1)
    a('s_lshl_b32 s4, s20, 6')
    a('v_lshl_add_u32 %s, v2, 2, s4' % vr(VT))
    a('v_mov_b32 %s, 0x1000000' % vr(VC))
    a('s_mov_b32 exec_lo, 0x00f0000f\ns_mov_b32 exec_hi, 0xf0000f00')
    a('ds_write_b32 %s, %s' % (vr(VT), vr(ACC + 2)))
    a('s_mov_b64 exec, 1')
    a('ds_add_u32 %s, %s offset:%d' % (vr(VZ), vr(VC), CNT))
    a('s_mov_b64 exec, -1')
    a.label('s3_tok')
    a('s_sub_u32 s33, s18, %d' % P3_LEAD)
    lds_spin(a, 's3_tk', VT, VK, TOK, 0, 0, ge=33)
    a.label('s3_fill')
    a('s_mov_b32 s15, s30')
    for k in range(6):
        for j in range(3):
            a('buffer_load_dwordx4 %s, v1, s[8:11], s15 offen offset:%d' % (vr(ring3(k, j), 4), 1024 * j))
        if k < 5:
            a('s_add_u32 s15, s15, 3072')
    a.label('s3_filled')
    a('v_mov_b32 %s, 1' % vr(VC))
    a('s_setprio 2')
    a('s_cmp_lt_u32 s18, 3')
    a('s_cbranch_scc1 s3_pass')
    lds_spin(a, 's3_w2', VT, VZ, CNT, 0xff, 0x04)
    a('s_setprio 1')
    a.label('s3_pass')

    def rd(k, tt):
        a('ds_read_b128 %s, %s offset:%d' % (vr(bf(k & 1, tt), 4), vr(VA + k // 6), 4096 * (k % 6) + 1024 * tt))
    for tt in range(4):
        rd(0, tt)
    a('s_waitcnt vmcnt(17) lgkmcnt(0)')
    issued = 18
    for k in range(18):
        for n in range(12):
            j, tt = n >> 2, n & 3
            if j & 1:
                tt = 3 - tt
            mfma(a, acc(j, tt), ring3(k, j), bf(k & 1, tt), None if k == 0 else acc(j, tt))
            if n == 0 and k < 12:
                a('s_add_u32 s15, s15, 3072' if k % 6 else 's_mov_b32 s15, s%d' % (31 + k // 6))
            if n in (0, 1, 4, 5) and k < 17:
                rd(k + 1, n if n < 2 else n - 2)
            if n in (2, 6, 10) and k * 3 + j + 1 < 54:
                a('s_waitcnt vmcnt(%d)%s' % (issued - (k * 3 + j + 2), ' lgkmcnt(0)' if n == 10 else ''))
            if n in (3, 7, 11) and k < 12:
                a('buffer_load_dwordx4 %s, v1, s[8:11], s15 offen offset:%d' % (vr(ring3(k, j), 4), 1024 * j))
                issued += 1
            if k == P3_TOK + 1 and n == 7:
                a('s_mov_b64 exec, 1')
                a('ds_add_u32 %s, %s offset:%d' % (vr(VK), vr(VC), TOK))
                a('s_mov_b64 exec, -1')
            if k in (4, 10):
                m = 34 if k == 4 else 35
                if n == 6:
                    a('ds_read_b32 %s, %s offset:%d' % (vr(VT), vr(VZ), CNT))
                if n == 10:
                    a('v_readfirstlane_b32 s4, %s' % vr(VT))
                if n == 11:
                    a('s_andn2_b32 s4, s%d, s4' % m)
                    a('s_cbranch_scc1 s3_slow%d' % k)
                    a.label('s3_back%d' % k)
    a('s_setprio 0')
    a('s_lshr_b32 s24, s28, 1\ns_mul_i32 s24, s24, 3\ns_and_b32 s25, s28, 1')
    a('s_cmp_ge_u32 s18, 3')
    a('s_cbranch_scc1 s3_epib')
    stamp(a, 'pa')
    lds_spin(a, 's3_w1', VT, VZ, CNT, 0xff000000, 0x04000000)
    a('v_lshlrev_b32 %s, 2, v2' % vr(VT))
    for tt in range(4):
        a('ds_read_b32 %s, %s offset:%d' % (vr(RS + tt), vr(VT), 64 * tt))
    a('s_lshl_b32 s4, s25, 1\ns_add_u32 s4, s4, s24\ns_lshl_b32 s4, s4, 12\ns_add_u32 s4, s4, %d' % HI)
    a('s_add_u32 s5, s24, 1\ns_lshl_b32 s5, s5, 12\ns_lshl_b32 s6, s25, 3\ns_add_u32 s5, s5, s6\ns_add_u32 s5, s5, %d' % HI)
    a('s_waitcnt lgkmcnt(0)')
    a('v_add_u32 %s, s4, v1' % vr(VT))
    a('v_add_u32 %s, s5, v1' % vr(VC))
    C = BF + 28
    for tt in range(4):
        a('v_mul_f32 %s, 0x%x, %s' % (vr(C + tt), NLOG2E, vr(RS + tt)))
    T = BF
    units = [[(0, u), (1, u)] for u in range(4)] + [[(2, 0), (2, 1)], [(2, 2), (2, 3)]]
    for u, un in enumerate(units):
        idx = [(j, tt, r) for j, tt in un for r in range(4)]
        for n, (j, tt, r) in enumerate(idx):
            a('v_mul_f32 %s, %s, %s' % (vr(T + n), vr(acc(j, tt) + r), vr(C + tt)))
        for n in range(8):
            a('v_exp_f32 %s, %s' % (vr(T + n), vr(T + n)))
        for n in range(8):
            a('v_add_f32 %s, 1.0, %s' % (vr(T + n), vr(T + n)))
        for n in range(8):
            a('v_rcp_f32 %s, %s' % (vr(T + n), vr(T + n)))
        for n, (j, tt, r) in enumerate(idx):
            a('v_mul_f32 %s, %s, %s' % (vr(T + n), vr(acc(j, tt) + r), vr(T + n)))
        P = BF + 8 + 4 * (u % 4)
        for n in range(4):
            a('v_cvt_pk_bf16_f32 %s, %s, %s' % (vr(P + n), vr(T + 2 * n), vr(T + 2 * n + 1)))
        if u < 4:
            a('ds_write_b128 %s, %s offset:%d' % (vr(VT), vr(P, 4), 1024 * u))
        else:
            a('ds_write_b64 %s, %s offset:%d' % (vr(VC), vr(P, 2), 1024 * un[0][1]))
            a('ds_write_b64 %s, %s offset:%d' % (vr(VC), vr(P + 2, 2), 1024 * un[1][1]))
    a('v_mov_b32 %s, s27' % vr(VT))
    a('s_mov_b64 exec, 1')
    a('ds_add_u32 %s, %s offset:%d' % (vr(VZ), vr(VT), CNT))
    a('s_mov_b64 exec, -1')
    for b in range(3):
        a('s_add_u32 s%d, s%d, %d' % (30 + b, 30 + b, W2 - W1))
        a('v_add_u32 %s, %d, %s' % (vr(VA + b), HI - XI, vr(VA + b)))
    a('s_add_u32 s18, s18, 3')
    a('s_mov_b32 s34, 0x0400\ns_mov_b32 s35, 0x040000')
    a('s_branch s3_tok')
    for k, m in ((4, 0x0400), (10, 0x040000)):
        a.label('s3_slow%d' % k)
        lds_spin(a, 's3_sl%d' % k, VT, VZ, CNT, m, m)
        a('s_branch s3_back%d' % k)
    a.label('s3_epib')
    stamp(a, 'pb')
    a('s_setprio %d' % EPB_PRIO)
    a('s_lshl_b32 s4, s13, 5\ns_add_u32 s4, s4, s14\ns_mul_i32 s4, s4, 12\ns_add_u32 s4, s4, s28\ns_mul_i32 s4, s4, 6144')
    a('s_add_u32 s6, s4, s%d\ns_add_u32 s7, s6, 4096' % PRT)
    for u, un in enumerate(units):
        P = BF + 4 * u
        for n, (j, tt) in enumerate(un):
            for r in range(4):
                a('v_mul_f32 %s, %s, %s' % (vr(acc(j, tt) + r), vr(acc(j, tt) + r), vr(RS + tt)))
            a('v_cvt_pk_bf16_f32 %s, %s, %s' % (vr(P + 2 * n), vr(acc(j, tt)), vr(acc(j, tt) + 1)))
            a('v_cvt_pk_bf16_f32 %s, %s, %s' % (vr(P + 2 * n + 1), vr(acc(j, tt) + 2), vr(acc(j, tt) + 3)))
        a('buffer_store_dwordx4 %s, v1, s[8:11], s%d offen offset:%d sc1' % (vr(P, 4), 6 + (u >> 2), 1024 * (u & 3)))
    a('s_mul_i32 s22, s14, 12\ns_add_u32 s4, s22, s28\ns_lshl_b32 s4, s4, 7\ns_add_u32 s6, s4, %d' % FL_RF)
    a('v_mov_b32 v4, 1')
    a('s_and_b32 s23, s28, 12\ns_lshr_b32 s4, s13, 1\ns_add_u32 s23, s23, s4')
    a('s_add_u32 s22, s22, s23')
    a('s_lshl_b32 s7, s22, 7\ns_add_u32 s7, s7, %d' % FL_RF)
    a('s_and_b32 s29, s13, 1')
    a('s_lshr_b32 s24, s23, 1\ns_mul_i32 s24, s24, 3\ns_and_b32 s25, s23, 1')
    a('s_lshl_b32 s26, s29, 1')
    a('s_cmp_eq_u32 s20, 2')
    a('s_cbranch_scc1 s3_mix')
    a('s_add_u32 s26, s26, s20\ns_mov_b32 s16, s26')
    a('s_lshl_b32 s4, s25, 1\ns_add_u32 s24, s24, s4\ns_mov_b32 s25, 0')
    a('s_branch s3_adr')
    a.label('s3_mix')
    a('s_add_u32 s16, s29, 4\ns_add_u32 s24, s24, 1\ns_lshl_b32 s25, s25, 3')
    a.label('s3_adr')
    a('s_mul_i32 s22, s22, 6\ns_add_u32 s16, s16, s22\ns_lshl_b32 s16, s16, 10\ns_add_u32 s16, s16, s%d' % PRT)
    a('s_lshl_b32 s4, s24, 2\ns_add_u32 s4, s4, s26\ns_lshl_b32 s4, s4, 10\ns_add_u32 s4, s4, s25\ns_add_u32 s4, s4, %d' % XI)
    a('v_add_u32 v6, s4, v1')
    a('s_lshl_b32 s4, s14, 2\ns_add_u32 s4, s4, s26\ns_mul_i32 s17, s4, 18432\ns_add_u32 s17, s17, s25')
    a('s_mov_b32 s39, 0x20000')
    a('s_cmp_eq_u32 s%d, 0' % LAY)
    a('s_cbranch_scc0 s3_fin')
    a('s_mov_b32 s36, s8\ns_mov_b32 s37, s9\ns_mov_b32 s38, s10')
    a('s_lshl_b32 s4, s24, 10\ns_add_u32 s17, s17, s4\ns_add_u32 s17, s17, %d' % (X0 + ACT))
    a('v_mov_b32 v7, v1')
    a('s_branch s3_pub')
    a.label('s3_fin')
    a('s_mov_b32 s36, s94\ns_mov_b32 s37, s95\ns_mov_b32 s38, %d' % ACT)
    a('s_lshl_b32 s4, s24, 6\ns_add_u32 s17, s17, s4')
    a('v_mul_u32_u24 v7, 1152, v2')
    a('v_lshl_add_u32 v7, v3, 4, v7')
    a.label('s3_pub')
    stamp(a, 'pst')
    a('s_waitcnt vmcnt(0)')
    stamp(a, 'pdr')
    mem_arrive(a, 6, VZ, 4)
    a('s_cmp_eq_u32 s20, 3')
    a('s_cbranch_scc1 s3_red_done')
    RX = 8; PP = 20; AC = 12
    a('ds_read_b64 %s, v6' % vr(RX, 2))
    a('s_cmp_eq_u32 s20, 2')
    a('s_cselect_b32 s4, 1024, 8')
    a('v_add_u32 v6, s4, v6')
    a('ds_read_b64 %s, v6' % vr(RX + 2, 2))
    if RED_MODE == 0:
        mem_wait(a, 's3_rw', 7, RFW, VZ, 5, backoff=(18, 5))
        stamp(a, 'rw0')
        a('s_add_u32 s33, s18, 2\ns_min_u32 s33, s33, 6')
        lds_spin(a, 's3_t6r', VT, VK, TOK, 0, 0, ge=33)
    else:
        a('s_mov_b32 s33, 6' if RED_MODE == 1 else 's_add_u32 s33, s18, 2\ns_min_u32 s33, s33, 6')
        lds_spin(a, 's3_t6r', VT, VK, TOK, 0, 0, ge=33)
        stamp(a, 'rw0')
        mem_wait(a, 's3_rw', 7, RFW, VZ, 5)
    stamp(a, 'rw1')
    for c in range(8):
        a('buffer_load_dwordx4 %s, v1, s[8:11], s16 offen sc1' % vr(PP + 4 * c, 4))
        if c < 7:
            a('s_add_u32 s16, s16, %d' % ACT)
    a('s_waitcnt lgkmcnt(0)')
    for n in range(4):
        a('v_lshlrev_b32 %s, 16, %s' % (vr(AC + 2 * n), vr(RX + n)))
        a('v_and_b32 %s, 0xffff0000, %s' % (vr(AC + 2 * n + 1), vr(RX + n)))
    for c in range(8):
        a('s_waitcnt vmcnt(%d)' % (7 - c))
        for n in range(4):
            a('v_lshlrev_b32 %s, 16, %s' % (vr(RX + n), vr(PP + 4 * c + n)))
            a('v_and_b32 %s, 0xffff0000, %s' % (vr(PP + 4 * c + n), vr(PP + 4 * c + n)))
        for n in range(4):
            a('v_add_f32 %s, %s, %s' % (vr(AC + 2 * n), vr(AC + 2 * n), vr(RX + n)))
            a('v_add_f32 %s, %s, %s' % (vr(AC + 2 * n + 1), vr(AC + 2 * n + 1), vr(PP + 4 * c + n)))
    for n in range(4):
        a('v_cvt_pk_bf16_f32 %s, %s, %s' % (vr(RX + n), vr(AC + 2 * n), vr(AC + 2 * n + 1)))
    stamp(a, 'rsum')
    a('s_cmp_eq_u32 s20, 2')
    a('s_cbranch_scc1 s3_stm')
    a('buffer_store_dwordx4 %s, v7, s[36:39], s17 offen sc1' % vr(RX, 4))
    a('s_branch s3_red_done')
    a.label('s3_stm')
    a('buffer_store_dwordx2 %s, v7, s[36:39], s17 offen sc1' % vr(RX, 2))
    a('s_add_u32 s17, s17, 18432')
    a('buffer_store_dwordx2 %s, v7, s[36:39], s17 offen sc1' % vr(RX + 2, 2))
    a.label('s3_red_done')
    a('s_setprio 0')
    a('s_cmp_eq_u32 s%d, 0' % LAY)
    a('s_cbranch_scc0 mega_fin')
    a('s_waitcnt vmcnt(0)')
    if STAMPS:
        stamp_end(a, 6, 12, 12, 12, base_v=8)
        a('s_mov_b64 exec, -1')
        a('s_waitcnt vmcnt(0)')
        stamp(a, 0)
    a('s_mov_b32 s%d, 1\ns_mov_b32 s%d, %d\ns_mov_b32 s%d, 64\ns_mov_b32 s%d, 16' % (LAY, LOFF, ACT, CBW, RFW))
    a('s_add_u32 s%d, s%d, %d\ns_add_u32 s%d, s%d, %d' % (SOF, SOF, 32 * HS, PRT, PRT, PART_STEP))
    a('s_cmp_ge_u32 s12, 7')
    a('s_cbranch_scc1 s3_nf')
    a('s_mov_b32 s33, 6')
    lds_spin(a, 's3_t6', VT, VK, TOK, 0, 0, ge=33)
    s1_fill()
    a.label('s3_nf')
    stamp(a, 'fil')
    group_sync('e4')
    a('s_barrier')
    stamp(a, 'e4')
    a('s_branch s1_again')
    a.label('mega_fin')
    stamp_end(a, 7, 12, 12, 12, base_v=8)
    a.label('mega_end')
    a('s_endpgm')
    return ('mega_kernel', a, 168, 100, (256, 768, LDS))


def gen_empty(n=''):
    a = Asm()
    a('s_endpgm')
    return ('empty%s_kernel' % n, a, 8, 16, (256, 256, 0))


def gen_chain(slot):
    a = Asm()
    a('s_cmp_ge_u32 s2, 32')
    a('s_cbranch_scc1 chain_end')
    a('s_load_dwordx2 s[8:9], s[0:1], %d' % (8 * slot))
    a('s_mov_b32 s10, %d\ns_mov_b32 s11, 0x20000' % ACT)
    a('s_mul_i32 s4, s2, %d' % (64 * 1024))
    a('v_mov_b32 v1, 0')
    a('s_mov_b64 exec, 1')
    a('s_waitcnt lgkmcnt(0)')
    for k in range(64):
        a('buffer_load_dword v2, v1, s[8:11], s4 offen')
        a('s_waitcnt vmcnt(0)')
        a('v_and_b32 v2, 0, v2')
        a('v_add_u32 v1, 1024, v1')
        a('v_add_u32 v1, v2, v1')
    a.label('chain_end')
    a('s_endpgm')
    return ('chain_kernel', a, 8, 16, (32, 64, 0))


PRE = []
RED_MODE = 2
EPB_PRIO = 3
PREP_RANGES = ((0, 8), (8, 80), (80, 152), (152, 264), (264, 300), (300, 428))
NCX = 4
S2_WE = 9
S2_W0 = 3
S2_W1 = 1
P3_LEAD = 0
PART_STEP = 0
MID = []
KD_PF = False
P3_SLEEP = 0
P3_TOK = 10
P3_EPRIO2 = 0
P3_SPRIO = 3
PF1 = []
PF2 = []
PF3 = None
P0_LD = ''
P1_NCX = 4
P2_NCX = 4
P1_ST = ' sc1'
P2_W0 = 4
P2_W1 = 2
CODE_PF = True
PREP_ST = ' sc1'
PREP_XLD = ' nt'
P3_LD = ''
P3_SNAKE = True
P3_EPRIO = 0
PF = False
P3_NODS = False
P3_NOLD = False
PRIO = True
P3_NCX = 4
P3_ST = ' sc1'


def build():
    ks = [gen_prep(), gen_mega()]
    for e in sorted(set(MID)):
        ks.append(gen_empty(e[5:]))
    geo = {k[0]: k[4] for k in ks}
    order = ['prep'] + MID + ['mega']
    hdr = ['; generated by gen/gen.py (hand-written generator); see that file for the layouts']
    for o in order:
        g, b, l = geo[o + '_kernel']
        hdr.append('; @launch kernel=%s_kernel grid=(%d,1,1) block=(%d,1,1) lds=%d' % (o, g, b, l))
    out = '\n'.join(hdr) + '\n.amdgcn_target "amdgcn-amd-amdhsa--gfx950"\n'
    descs = ''
    for name, a, nv, ns, _ in ks:
        c, d = kernel_text(name, a, nv, ns)
        out += c
        descs += d
    out += 'code_end:\n'
    return out + '.section .rodata,"a"\n.p2align 6\nkd_begin:\n' + descs + 'kd_end:\n'


if __name__ == '__main__':
    path = sys.argv[1] if len(sys.argv) > 1 else 'cdna_kernels/%s.s' % NAME
    for o in sys.argv[2:]:
        k, v = o.split('=')
        globals()[k] = eval(v)
    open(path, 'w').write(build())
    print('wrote', path)
```

```python
import sys
from asmlib import Asm, vr, sr, kernel_text

NAME = 'interleave_layers__linear_attn_block__dense_activation_silu__prompt'
S, D, F = 2048, 576, 4608
ACT = S * D * 2
WQ_HG = 258048
WQ = 0
WO = WQ + 8 * WQ_HG
W1 = WO + 36 * 18432
W2 = W1 + D * F * 2
X0 = W2 + D * F * 2
X1 = X0 + 2 * ACT
PQ = X1 + 2 * ACT
HS = 1536
SS = PQ + 2 * ACT
FL = SS + 64 * HS
FL_GB = FL
FL_CB = FL + 32 * 128
FL_RF = FL + 64 * 128
ZERO_BYTES = 64 * HS + 448 * 128
PART = SS + ZERO_BYTES
WS_BYTES = 268435456
OOB = 0x80000000
LOG2E = 0x3fb8aa3b
NLOG2E = 0xbfb8aa3b
EPS6 = 0x358637bd
EPS5 = 0x3727c5ac
INV576 = 0x3ae38e39
ONES = 0x3f803f80
MF = 'v_mfma_f32_16x16x32_bf16'


def mfma(a, d, x, y, c=None):
    a('%s %s, %s, %s, %s' % (MF, vr(d, 4), vr(x, 4), vr(y, 4), '0' if c is None else vr(c, 4)))


def ws_srd(a):
    a('s_load_dwordx2 s[8:9], s[0:1], 64')
    a('s_mov_b32 s10, 0x%x' % WS_BYTES)
    a('s_mov_b32 s11, 0x20000')


def wave_id(a, sdst, vtmp):
    a('v_lshrrev_b32 %s, 6, v0' % vr(vtmp))
    a('v_readfirstlane_b32 %s, %s' % (sr(sdst), vr(vtmp)))
    a('v_and_b32 v0, 63, v0')


DBG = 128 << 20
STAMPS = False
AMP = None
DBGOUT = 0


SEL = ['x1', 's1m', 's1d', 'e1a', 'e1b', 'o', 's2d', 'x3', 'pa', 'pb']


def stamp(a, i):
    if isinstance(i, str):
        if i not in SEL:
            return
        i = SEL.index(i) + 1
    if STAMPS:
        a('s_mem%stime s[%d:%d]' % ('real' if STAMPS == 2 else '', 60 + 2 * i, 61 + 2 * i))


def stamp_begin(a):
    if STAMPS:
        a('s_memrealtime s[56:57]')
        stamp(a, 0)


def stamp_end(a, kid, n, s_wave, nw, base_v=2):
    if not STAMPS:
        return
    a('s_waitcnt vmcnt(0)')
    stamp(a, n - 1)
    a('s_memrealtime s[58:59]')
    a('s_getreg_b32 s55, hwreg(HW_REG_XCC_ID)')
    a('s_getreg_b32 s54, hwreg(HW_REG_HW_ID)')
    a('s_mov_b64 exec, -1')
    a('s_mul_i32 s4, s2, %d\ns_add_u32 s4, s4, %s\ns_lshl_b32 s4, s4, 6\ns_add_u32 s4, s4, %d' % (nw, sr(s_wave), DBG + (kid << 20)))
    a('s_waitcnt lgkmcnt(0)')
    d, o = base_v, base_v + 1
    a('v_mov_b32 v%d, 0' % d)
    for i in range(n):
        a('v_writelane_b32 v%d, s%d, %d' % (d, 60 + 2 * i, i))
    a('v_writelane_b32 v%d, s54, 12' % d)
    a('v_writelane_b32 v%d, s55, 13' % d)
    a('v_writelane_b32 v%d, s56, 14' % d)
    a('v_writelane_b32 v%d, s58, 15' % d)
    a('v_mbcnt_lo_u32_b32 v%d, -1, 0' % o)
    a('v_lshlrev_b32 v%d, 2, v%d' % (o, o))
    a('s_mov_b64 exec, 0xffff')
    a('buffer_store_dword v%d, v%d, s[8:11], s4 offen' % (d, o))
    if DBGOUT and kid in (0, 6, 7):
        L = 'dbgo%d_%d' % (kid, len(a.lines))
        a('s_cmp_eq_u32 s2, %d\ns_cbranch_scc0 %s' % (DBGOUT, L))
        a('s_cmp_eq_u32 %s, %d\ns_cbranch_scc0 %s' % (sr(s_wave), 0 if kid == 0 else 8, L))
        a('s_load_dwordx2 s[40:41], s[0:1], 56')
        a('s_mov_b32 s42, 1024\ns_mov_b32 s43, 0x20000')
        a('s_waitcnt lgkmcnt(0)')
        if kid == 0:
            a('s_mov_b64 exec, 0xc000')
            a('buffer_store_dword v%d, v%d, s[40:43], 0 offen' % (d, o))
            a('buffer_store_dword v%d, v%d, s[40:43], 0 offen offset:512' % (d, o))
        else:
            a('s_sub_u32 s40, s40, 512\ns_subb_u32 s41, s41, 0')
            a('v_writelane_b32 v%d, s58, 6' % d)
            a('s_mov_b64 exec, 0x7f')
            a('buffer_store_dword v%d, v%d, s[40:43], 0 offen offset:%d' % (d, o, 28 * (kid - 6)))
            a('buffer_store_dword v%d, v%d, s[40:43], 0 offen offset:%d' % (d, o, 512 + 28 * (kid - 6)))
        a.label(L)


def conv_unit(a, L, nw, s_u, s_w, lds_base, lds_cs):
    nk = 18 // nw
    FR = 24; ON = 8; CS = FR + 16 * nk
    fr = lambda k, c: FR + (k * 4 + c) * 4
    a('s_mov_b32 s14, %d\ns_mov_b32 s15, 0x20000' % (D * F * 2))
    a('s_cmp_ge_u32 %s, 72' % sr(s_u))
    a('s_cbranch_scc1 %s_w2' % L)
    a('s_mov_b32 s12, s30\ns_mov_b32 s13, s31')
    a('s_mov_b32 s18, 9216\ns_lshl_b32 s19, %s, 7\ns_mov_b32 s16, %d\ns_lshl_b32 s21, %s, 2' % (sr(s_u), W1, sr(s_u)))
    a('s_branch %s_go' % L)
    a.label('%s_w2' % L)
    a('s_mov_b32 s12, s32\ns_mov_b32 s13, s33')
    a('s_sub_u32 s21, %s, 72' % sr(s_u))
    a('s_mul_i32 s4, s21, 7282\ns_lshr_b32 s4, s4, 16')
    a('s_mul_i32 s5, s4, 9\ns_sub_u32 s5, s21, s5\ns_lshl_b32 s5, s5, 7')
    a('s_mul_i32 s19, s4, %d\ns_add_u32 s19, s19, s5' % (576 * 1152))
    a('s_mov_b32 s18, 1152\ns_mov_b32 s16, %d\ns_lshl_b32 s21, s21, 2' % W2)
    a.label('%s_go' % L)
    a('s_mul_i32 s4, %s, s18\ns_mul_i32 s4, s4, %d\ns_add_u32 s19, s19, s4' % (sr(s_w), 32 * nk))
    a('s_mul_i32 s22, %s, %d\ns_add_u32 s22, s22, %d' % (sr(s_w), 4096 * nk, lds_base))
    a('s_lshl_b32 s17, s18, 3')
    a('v_lshrrev_b32 v4, 3, v0')
    a('v_mul_lo_u32 v4, v4, s18')
    a('v_and_b32 v5, 7, v0')
    a('v_lshrrev_b32 v6, 2, v0')
    a('v_and_b32 v6, 4, v6')
    a('v_xor_b32 v5, v5, v6')
    a('v_lshl_add_u32 v4, v5, 4, v4')
    a('s_mov_b32 s23, s22')
    for n in range(4 * nk):
        a('s_mov_b32 m0, s23')
        a('s_add_u32 s23, s23, 1024')
        a('buffer_load_dwordx4 v4, s[12:15], s19 offen nt lds')
        a('s_add_u32 s19, s19, s17')
    a('v_lshrrev_b32 v5, 4, v0')
    a('v_bfe_u32 v6, v0, 2, 2')
    a('v_lshl_add_u32 v5, v5, 3, v6')
    a('v_lshlrev_b32 v5, 7, v5')
    a('v_and_b32 v6, 3, v0')
    a('v_lshl_add_u32 v5, v6, 4, v5')
    a('v_and_b32 v6, 8, v0')
    a('v_lshl_add_u32 v5, v6, 3, v5')
    a('v_add_u32 v5, s22, v5')
    a('v_xor_b32 v6, 64, v5')
    for c in range(4):
        a('s_add_u32 s4, s21, %d\ns_mul_i32 s5, s4, 43691\ns_lshr_b32 s5, s5, 17' % c)
        a('s_mul_i32 s6, s5, 3\ns_sub_u32 s4, s4, s6')
        a('s_and_b32 s6, s5, 1\ns_lshl_b32 s6, s6, 1\ns_add_u32 s4, s4, s6')
        a('s_cmp_ge_u32 s4, 3\ns_cselect_b32 s6, 3, 0\ns_sub_u32 s4, s4, s6')
        a('s_mul_i32 s6, s5, 54\ns_add_u32 s4, s4, s6\ns_mul_i32 s6, %s, %d\ns_add_u32 s4, s4, s6' % (sr(s_w), 3 * nk))
        a('s_lshl_b32 s4, s4, 10\ns_add_u32 s%d, s4, s16' % (24 + c))
    for k in range(4):
        a('v_mov_b32 %s, 0x%x' % (vr(ON + k), ONES))
    for k in range(nk):
        a('s_waitcnt vmcnt(%d)' % (4 * (nk - 1 - k)))
        for c in range(4):
            for hi in range(2):
                a('ds_read_b64_tr_b16 %s, v%d offset:%d' % (vr(fr(k, c) + 2 * hi, 2), 5 + (c >> 1), 4096 * k + 512 * hi + 8 * (c & 1)))
        if k + 1 < nk:
            a('s_waitcnt lgkmcnt(4)')
    a('s_waitcnt lgkmcnt(0)')
    a('s_cmp_ge_u32 %s, 72' % sr(s_u))
    a('s_cbranch_scc1 %s_st' % L)
    for k in range(nk):
        for c in range(4):
            mfma(a, CS + 4 * c, ON, fr(k, c), None if k == 0 else CS + 4 * c)
    a('v_and_b32 v4, 15, v0')
    a('v_mul_u32_u24 v4, %d, v4' % (16 * nw))
    a('s_lshl_b32 s4, %s, 4' % sr(s_w))
    a('v_add_u32 v5, s4, v4')
    for c in range(4):
        a('v_mov_b32 %s, %s' % (vr(ON + c), vr(CS + 4 * c)))
    a('ds_write_b128 v5, %s offset:%d' % (vr(ON, 4), lds_cs))
    a('s_waitcnt lgkmcnt(0)')
    a('s_barrier')
    for w in range(nw):
        a('ds_read_b128 %s, v4 offset:%d' % (vr(CS + 4 * w, 4), lds_cs + 16 * w))
    a('s_waitcnt lgkmcnt(0)')
    for c in range(4):
        for w in range(1, nw):
            a('v_add_f32 %s, %s, %s' % (vr(CS + c), vr(CS + c), vr(CS + 4 * w + c)))
        a('v_mul_f32 %s, 0x%x, %s' % (vr(CS + c), INV576, vr(CS + c)))
    for k in range(nk):
        for c in range(4):
            f = fr(k, c)
            for p in range(4):
                a('v_lshlrev_b32 %s, 16, %s' % (vr(12 + 2 * p), vr(f + p)))
                a('v_and_b32 %s, 0xffff0000, %s' % (vr(13 + 2 * p), vr(f + p)))
            for p in range(8):
                a('v_sub_f32 %s, %s, %s' % (vr(12 + p), vr(12 + p), vr(CS + c)))
            for p in range(4):
                a('v_cvt_pk_bf16_f32 %s, %s, %s' % (vr(f + p), vr(12 + 2 * p), vr(13 + 2 * p)))
    a.label('%s_st' % L)
    for k in range(nk):
        for c in range(4):
            a('buffer_store_dwordx4 %s, v1, s[8:11], s%d offen%s' % (vr(fr(k, c), 4), 24 + c, PREP_ST))
            a('s_add_u32 s%d, s%d, 3072' % (24 + c, 24 + c))
    return CS + 4 * max(4, nw)


def gen_prep():
    a = Asm()
    NM = 8; NT = 144; NG = 148; NX = 128
    LCS = 0; LB = 2048
    a('s_cmp_ge_u32 s2, %d' % (NM + NT + NG + NX))
    a('s_cbranch_scc1 prep_end')
    stamp_begin(a)
    ws_srd(a)
    a('s_load_dwordx4 s[24:27], s[0:1], 0')
    a('s_load_dwordx2 s[28:29], s[0:1], 16')
    a('s_load_dwordx2 s[30:31], s[0:1], 32')
    a('s_load_dwordx2 s[32:33], s[0:1], 40')
    wave_id(a, 3, 1)
    a('v_lshlrev_b32 v1, 4, v0')
    a('v_and_b32 v2, 15, v0')
    a('v_lshrrev_b32 v3, 4, v0')
    a('s_cmp_lt_u32 s2, %d' % NM)
    a('s_cbranch_scc1 prep_misc')
    a('s_sub_u32 s20, s2, %d' % NM)
    a('s_waitcnt lgkmcnt(0)')
    a('s_cmp_ge_u32 s2, %d' % (NM + NT))
    a('s_cbranch_scc1 prep_gx')
    nv = conv_unit(a, 'prep_c', 6, 20, 3, LB, LCS)
    stamp_end(a, 0, 2, 3, 6)
    a('s_endpgm')
    a.label('prep_gx')
    a('s_mov_b32 s15, 0x20000')
    a('s_sub_u32 s20, s20, %d' % NT)
    a('s_cmp_ge_u32 s20, %d' % NG)
    a('s_cbranch_scc1 prep_x')
    V = 16
    a('v_lshrrev_b32 v5, 2, v2')
    a('v_and_b32 v6, 3, v2')
    a('s_mov_b64 s[6:7], -1')
    a('s_mul_i32 s21, s3, 3')
    a('s_cmp_ge_u32 s20, 112')
    a('s_cbranch_scc1 prep_wo')
    a('s_mov_b32 s12, s26\ns_mov_b32 s13, s27\ns_mov_b32 s14, %d' % (D * 3 * D * 2))
    a('s_mul_i32 s4, s20, 4682\ns_lshr_b32 s4, s4, 16')
    a('s_mul_i32 s5, s4, 14\ns_sub_u32 s5, s20, s5')
    a('s_lshr_b32 s35, s5, 1\ns_and_b32 s36, s5, 1')
    a('s_mul_i32 s16, s4, 7\ns_add_u32 s16, s16, s35\ns_mul_i32 s16, s16, 36\ns_add_u32 s16, s16, s36')
    a('s_lshl_b32 s17, s21, 1\ns_add_u32 s16, s16, s17\ns_lshl_b32 s16, s16, 10\ns_add_u32 s16, s16, %d' % WQ)
    a('s_mov_b32 s17, 2048')
    a('s_mul_i32 s34, s4, 72')
    a('s_cmp_ge_u32 s5, 12')
    a('s_cbranch_scc1 prep_wq_x')
    a('s_sub_u32 s37, s5, 8')
    a('s_add_u32 s36, s36, 1\ns_mul_i32 s36, s36, 576')
    a('s_cmp_ge_u32 s5, 8')
    a('s_cselect_b32 s35, s37, s35\ns_cselect_b32 s36, 0, s36')
    a('s_mul_i32 s35, s35, 18\ns_add_u32 s34, s34, s35\ns_add_u32 s34, s34, s36')
    a('v_add_u32 v8, s34, v2')
    a('s_branch prep_wq_go')
    a.label('prep_wq_x')
    a('s_add_u32 s34, s34, 16')
    a('s_cmp_eq_u32 s5, 13')
    a('s_cbranch_scc1 prep_wq_qx')
    a('v_mul_u32_u24 v8, 18, v6')
    a('v_lshrrev_b32 v9, 3, v2')
    a('v_mad_u32_u24 v8, v9, 64, v8')
    a('v_lshl_add_u32 v8, v9, 9, v8')
    a('v_and_b32 v9, 1, v5')
    a('s_add_u32 s34, s34, 576')
    a('v_add3_u32 v8, v8, v9, s34')
    a('s_branch prep_wq_go')
    a.label('prep_wq_qx')
    a('v_mul_u32_u24 v9, 18, v5')
    a('v_add3_u32 v8, v9, v6, s34')
    a('s_mov_b32 s6, 0x33333333\ns_mov_b32 s7, 0x33333333')
    a.label('prep_wq_go')
    a('v_mul_u32_u24 v9, %d, v3' % (8 * 3456))
    a('v_lshl_add_u32 v9, v8, 1, v9')
    a('v_mov_b32 v10, 0x%x' % OOB)
    a('v_cndmask_b32 v9, v10, v9, s[6:7]')
    a('s_mul_i32 s19, s21, %d' % (32 * 3456))
    for k in range(3):
        for i in range(8):
            a('buffer_load_ushort %s, v9, s[12:15], s19 offen offset:%d' % (vr(V + k * 8 + i), 3456 * (i & 1)))
            if i & 1:
                a('s_add_u32 s19, s19, %d' % (3456 * (2 if i < 7 else 26)))
    a('s_waitcnt vmcnt(0)')
    for k in range(24):
        a('v_lshlrev_b32 %s, 16, %s' % (vr(V + k), vr(V + k)))
    for k in range(4):
        a('v_add_f32 v%d, %s, %s' % (11 + k, vr(V + k), vr(V + 4 + k)))
    for k in range(8, 24):
        a('v_add_f32 v%d, v%d, %s' % (11 + k % 4, 11 + k % 4, vr(V + k)))
    a('v_add_f32 v11, v11, v12\nv_add_f32 v13, v13, v14\nv_add_f32 v11, v11, v13')
    a('s_lshl_b32 s4, s3, 8')
    a('v_lshl_add_u32 v12, v0, 2, s4')
    a('ds_write_b32 v12, v11')
    a('v_lshlrev_b32 v12, 2, v2')
    a('s_waitcnt lgkmcnt(0)')
    a('s_barrier')
    for n in range(12):
        a('ds_read2_b32 %s, v12 offset0:%d offset1:%d' % (vr(40 + 2 * n, 2), 32 * (n % 8), 32 * (n % 8) + 16))
        if n == 7:
            a('v_add_u32 v12, 1024, v12')
    a('s_waitcnt lgkmcnt(0)')
    for st in (12, 6, 3):
        for n in range(st):
            a('v_add_f32 %s, %s, %s' % (vr(40 + n), vr(40 + n), vr(40 + st + n)))
    a('v_add_f32 v40, v40, v41\nv_add_f32 v40, v40, v42')
    a('v_mul_f32 v11, 0x%x, v40' % INV576)
    for k in range(24):
        a('v_sub_f32 %s, %s, v11' % (vr(V + k), vr(V + k)))
    a('s_branch prep_pack')
    a.label('prep_wo')
    a('s_mov_b32 s12, s28\ns_mov_b32 s13, s29\ns_mov_b32 s14, %d' % (D * D * 2))
    a('s_sub_u32 s22, s20, 112')
    a('s_mul_i32 s16, s22, 18\ns_add_u32 s16, s16, s21\ns_lshl_b32 s16, s16, 10\ns_add_u32 s16, s16, %d' % WO)
    a('s_mov_b32 s17, 1024')
    a('s_lshr_b32 s4, s22, 1\ns_lshl_b32 s4, s4, 5\ns_and_b32 s5, s22, 1\ns_lshl_b32 s5, s5, 2\ns_add_u32 s4, s4, s5')
    a('v_lshl_add_u32 v7, v5, 3, v6')
    a('v_add_u32 v8, s4, v7')
    for k in range(3):
        a('s_add_u32 s4, s21, %d' % k)
        a('s_mul_i32 s19, s4, %d' % (36 * 1152))
        a('s_sub_u32 s5, s4, 16\ns_mul_i32 s5, s5, %d\ns_add_u32 s5, s5, %d' % (288 * 1152, 16 * 1152))
        a('s_cmp_lt_u32 s4, 16')
        a('s_cselect_b32 s19, s19, s5')
        a('s_cselect_b32 s34, %d, %d' % (2, 72))
        a('s_cselect_b32 s35, %d, %d' % (16, 72))
        a('s_cselect_b32 s36, %d, %d' % (4, 18))
        a('s_mul_i32 s34, s34, 1152\ns_mul_i32 s35, s35, 1152\ns_mul_i32 s36, s36, 1152')
        a('v_mul_lo_u32 v9, v3, s36')
        a('v_lshl_add_u32 v9, v8, 1, v9')
        for i in range(8):
            a('buffer_load_ushort %s, v9, s[12:15], s19 offen offset:%d' % (vr(V + k * 8 + i), 1152 * (i & 1)))
            if i in (1, 3, 5):
                a('s_add_u32 s19, s19, s%d' % (35 if i == 3 else 34))
    a('s_waitcnt vmcnt(0)')
    for k in range(24):
        a('v_lshlrev_b32 %s, 16, %s' % (vr(V + k), vr(V + k)))
    a.label('prep_pack')
    for k in range(3):
        b = V + k * 8
        for p in range(4):
            a('v_cvt_pk_bf16_f32 %s, %s, %s' % (vr(b + p), vr(b + 2 * p), vr(b + 2 * p + 1)))
        a('buffer_store_dwordx4 %s, v1, s[8:11], s16 offen%s' % (vr(b, 4), PREP_ST))
        a('s_add_u32 s16, s16, s17')
    stamp_end(a, 0, 2, 3, 6)
    a('s_endpgm')
    a.label('prep_x')
    a('s_mov_b32 s12, s24\ns_mov_b32 s13, s25\ns_mov_b32 s14, %d' % ACT)
    a('s_sub_u32 s20, s20, %d' % NG)
    a('s_mul_i32 s19, s20, %d\ns_mul_i32 s6, s3, 192\ns_add_u32 s19, s19, s6' % (16 * 1152))
    a('v_mul_u32_u24 v9, 1152, v2')
    a('v_lshl_add_u32 v9, v3, 4, v9')
    a('s_mul_i32 s16, s20, 6\ns_add_u32 s16, s16, s3\ns_mul_i32 s16, s16, 3072\ns_add_u32 s16, s16, %d' % X0)
    for k in range(3):
        a('buffer_load_dwordx4 %s, v9, s[12:15], s19 offen offset:%d%s' % (vr(V + 4 * k, 4), 64 * k, PREP_XLD))
    for k in range(3):
        a('s_waitcnt vmcnt(2)')
        a('buffer_store_dwordx4 %s, v1, s[8:11], s16 offen offset:%d%s' % (vr(V + 4 * k, 4), 1024 * k, PREP_ST))
    stamp_end(a, 0, 2, 3, 6)
    a('s_endpgm')
    a.label('prep_misc')
    if AMP:
        a('s_memrealtime s[34:35]')
        a('s_waitcnt lgkmcnt(0)')
        a('v_mov_b32 v8, s34')
        a('v_mov_b32 v9, 0')
        a('s_mov_b32 s4, %d' % (DBG - 4096))
        a('buffer_store_dword v8, v9, s[8:11], s4 offen')
    if CODE_PF:
        a('s_getpc_b64 s[4:5]')
        a.label('prep_pc')
        a('s_sub_u32 s4, s4, prep_pc-prep_kernel')
        a('s_subb_u32 s5, s5, 0')
        a('s_lshl_b32 s6, s3, 13')
        a('v_lshl_add_u32 v4, v0, 7, s6')
        a('v_min_u32 v4, code_end-prep_kernel-4, v4')
        a('global_load_dword v5, v4, s[4:5]')
    if KD_PF:
        a('s_getpc_b64 s[4:5]')
        a('s_add_u32 s4, s4, kd_begin@rel32@lo+4')
        a('s_addc_u32 s5, s5, kd_begin@rel32@hi+12')
        a('v_lshlrev_b32 v4, 6, v0')
        a('v_min_u32 v4, kd_end-kd_begin-4, v4')
        a('global_load_dword v6, v4, s[4:5]')
    a('s_mul_i32 s16, s2, 6\ns_add_u32 s16, s16, s3')
    a('s_cmp_ge_u32 s16, %d' % (ZERO_BYTES // 4096))
    a('s_cbranch_scc1 prep_nz')
    a('s_lshl_b32 s16, s16, 12\ns_add_u32 s16, s16, %d' % SS)
    for k in range(4):
        a('v_mov_b32 v%d, 0' % (V + k))
    a('s_waitcnt lgkmcnt(0)')
    for k in range(4):
        a('buffer_store_dwordx4 %s, v1, s[8:11], s16 offen offset:%d' % (vr(V, 4), 1024 * k))
    a.label('prep_nz')
    a('s_waitcnt lgkmcnt(0)')
    a('s_waitcnt vmcnt(0)')
    stamp_end(a, 0, 2, 3, 6)
    a.label('prep_end')
    a('s_endpgm')
    return ('prep_kernel', a, max(nv, 64), 96 if STAMPS else 40, (NM + NT + NG + NX, 384, LB + 73728))


def xcd_map(a, ncx, s_c, s_r, nc=8):
    lg = ncx.bit_length() - 1
    ng = nc // ncx
    lgg = ng.bit_length() - 1
    a('s_and_b32 s4, s2, 7\ns_lshr_b32 s5, s2, 3')
    a('s_and_b32 s6, s4, %d\ns_lshl_b32 s6, s6, %d\ns_and_b32 s7, s5, %d\ns_add_u32 %s, s6, s7' % (ng - 1, lg, ncx - 1, sr(s_c)))
    a('s_lshr_b32 s6, s4, %d\ns_mul_i32 s6, s6, %d\ns_lshr_b32 s7, s5, %d\ns_add_u32 %s, s6, s7' % (lgg, 32 // ncx, lg, sr(s_r)))


def l2_touch(a, base, part_bytes, ncx, nc, v_t, v_d, share=1, s_sub=None):
    ng = nc // ncx
    lines = ncx * part_bytes // 128
    per = -(-lines // (32 * share))
    n = -(-per // 64)
    a('s_and_b32 s4, s2, %d\ns_mul_i32 s4, s4, %d\ns_add_u32 s4, s4, %d' % (ng - 1, ncx * part_bytes, base))
    a('s_lshr_b32 s5, s2, 3')
    if share > 1:
        a('s_mul_i32 s5, s5, %d\ns_add_u32 s5, s5, %s' % (share, sr(s_sub)))
    a('s_mul_i32 s5, s5, %d' % per)
    for i in range(n):
        a('v_add_u32 %s, %d, v0' % (vr(v_t), 64 * i))
        if (i + 1) * 64 > per:
            a('v_min_u32 %s, %d, %s' % (vr(v_t), per - 1, vr(v_t)))
        a('v_add_u32 %s, s5, %s' % (vr(v_t), vr(v_t)))
        a('v_min_u32 %s, %d, %s' % (vr(v_t), lines - 1, vr(v_t)))
        a('v_lshlrev_b32 %s, 7, %s' % (vr(v_t), vr(v_t)))
        a('buffer_load_dword %s, %s, s[8:11], s4 offen' % (vr(v_d), vr(v_t)))


def x_dma(a, nk, s_g, s_l, v_l16):
    for k in range(nk):
        a('s_mov_b32 m0, %s' % sr(s_l))
        if k < nk - 1:
            a('s_add_u32 %s, %s, 4096' % (sr(s_l), sr(s_l)))
        else:
            a('s_nop 0')
        a('buffer_load_dwordx4 %s, s[8:11], %s offen sc1 lds' % (vr(v_l16), sr(s_g)))
        if k < nk - 1:
            a('s_add_u32 %s, %s, 1024' % (sr(s_g), sr(s_g)))


def stats_prepass(a, nk, v_addr, v_fr, v_ones, v_res, v_t, v_g, v_tmp, v_dst):
    for k in range(nk):
        a('ds_read_b128 %s, %s offset:%d' % (vr(v_fr + 4 * k, 4), vr(v_addr), 4096 * k))
    for k in range(4):
        a('v_mov_b32 %s, 0x%x' % (vr(v_ones + k), ONES))
    for k in range(nk):
        a('s_waitcnt lgkmcnt(%d)' % (nk - 1 - k))
        f = v_fr + 4 * k
        mfma(a, v_res, v_ones, f, None if k == 0 else v_res)
        mfma(a, v_res + 4, f, f, None if k == 0 else v_res + 4)
    a('s_mov_b32 s40, 0x22222222\ns_mov_b32 s41, 0x22222222')
    a('s_mov_b32 s42, 0x44444444\ns_mov_b32 s43, 0x44444444')
    a('s_mov_b32 s44, 0x88888888\ns_mov_b32 s45, 0x88888888')
    a('v_cndmask_b32 %s, %s, %s, s[40:41]' % (vr(v_res + 1), vr(v_res + 4), vr(v_res + 5)))
    a('v_cndmask_b32 %s, %s, %s, s[42:43]' % (vr(v_res + 1), vr(v_res + 1), vr(v_res + 6)))
    a('v_cndmask_b32 %s, %s, %s, s[44:45]' % (vr(v_res + 1), vr(v_res + 1), vr(v_res + 7)))
    a('s_mov_b32 exec_lo, 0x00f0000f\ns_mov_b32 exec_hi, 0xf0000f00')
    a('ds_write_b64 %s, %s' % (vr(v_dst), vr(v_res, 2)))
    a('s_mov_b64 exec, -1')


def stats_final(a, nparts, lds_stats, v_lane, v_tmp):
    a('v_lshlrev_b32 %s, 3, %s' % (vr(v_tmp + 6), vr(v_lane)))
    for p in range(nparts):
        a('ds_read_b64 %s, %s offset:%d' % (vr(v_tmp + 2 * p, 2), vr(v_tmp + 6), p * 512))
    a('s_waitcnt lgkmcnt(0)')
    for p in range(1, nparts):
        a('v_add_f32 %s, %s, %s' % (vr(v_tmp), vr(v_tmp), vr(v_tmp + 2 * p)))
        a('v_add_f32 %s, %s, %s' % (vr(v_tmp + 1), vr(v_tmp + 1), vr(v_tmp + 2 * p + 1)))
    a('v_mul_f32 %s, 0x%x, %s' % (vr(v_tmp), INV576, vr(v_tmp)))
    a('v_mul_f32 %s, 0x%x, %s' % (vr(v_tmp + 1), INV576, vr(v_tmp + 1)))
    a('v_fma_f32 %s, -%s, %s, %s' % (vr(v_tmp + 1), vr(v_tmp), vr(v_tmp), vr(v_tmp + 1)))
    a('v_max_f32 %s, 0, %s' % (vr(v_tmp + 1), vr(v_tmp + 1)))
    a('v_add_f32 %s, 0x%x, %s' % (vr(v_tmp + 1), EPS5, vr(v_tmp + 1)))
    a('v_rsq_f32 %s, %s' % (vr(v_tmp), vr(v_tmp + 1)))


def diag_select(a, dst, src):
    a('s_mov_b32 s40, 0x22222222\ns_mov_b32 s41, 0x22222222')
    a('s_mov_b32 s42, 0x44444444\ns_mov_b32 s43, 0x44444444')
    a('s_mov_b32 s44, 0x88888888\ns_mov_b32 s45, 0x88888888')
    a('v_cndmask_b32 %s, %s, %s, s[40:41]' % (vr(dst), vr(src), vr(src + 1)))
    a('v_cndmask_b32 %s, %s, %s, s[42:43]' % (vr(dst), vr(dst), vr(src + 2)))
    a('v_cndmask_b32 %s, %s, %s, s[44:45]' % (vr(dst), vr(dst), vr(src + 3)))


def rstd_from(a, dst, vsum, vsq):
    a('v_mul_f32 %s, 0x%x, %s' % (vr(vsum), INV576, vr(vsum)))
    a('v_mul_f32 %s, 0x%x, %s' % (vr(vsq), INV576, vr(vsq)))
    a('v_fma_f32 %s, -%s, %s, %s' % (vr(vsq), vr(vsum), vr(vsum), vr(vsq)))
    a('v_max_f32 %s, 0, %s' % (vr(vsq), vr(vsq)))
    a('v_add_f32 %s, 0x%x, %s' % (vr(vsq), EPS5, vr(vsq)))
    a('v_rsq_f32 %s, %s' % (vr(dst), vr(vsq)))


SPIN_CAP = 1 << 18


def lds_spin(a, name, v_tmp, v_addr, off, mask, want, ge=None):
    a('s_mov_b32 s5, 0')
    a.label(name)
    a('ds_read_b32 %s, %s offset:%d' % (vr(v_tmp), vr(v_addr), off))
    a('s_waitcnt lgkmcnt(0)')
    a('v_readfirstlane_b32 s4, %s' % vr(v_tmp))
    if ge is None:
        a('s_and_b32 s4, s4, 0x%x' % mask)
        a('s_cmp_eq_u32 s4, 0x%x' % want)
    else:
        a('s_cmp_ge_u32 s4, %s' % sr(ge))
    a('s_cbranch_scc1 %s_ok' % name)
    a('s_sleep 1')
    a('s_add_u32 s5, s5, 1')
    a('s_cmp_lt_u32 s5, 0x%x' % SPIN_CAP)
    a('s_cbranch_scc1 %s' % name)
    a('s_endpgm')
    a.label(name + '_ok')


def mem_arrive(a, s_off, v_zero, v_one):
    a('s_mov_b64 exec, 1')
    a('buffer_atomic_add %s, %s, s[8:11], %s offen sc1' % (vr(v_one), vr(v_zero), sr(s_off)))
    a('s_mov_b64 exec, -1')


def mem_wait(a, name, s_off, s_want, v_zero, v_tmp, backoff=None):
    a('s_mov_b32 s5, 0')
    a('s_mov_b64 exec, 1')
    a.label(name)
    a('buffer_load_dword %s, %s, s[8:11], %s offen sc1' % (vr(v_tmp), vr(v_zero), sr(s_off)))
    a('s_waitcnt vmcnt(0)')
    a('v_readfirstlane_b32 s4, %s' % vr(v_tmp))
    a('s_cmp_ge_u32 s4, %s' % sr(s_want))
    a('s_cbranch_scc1 %s_ok' % name)
    if backoff:
        a('s_cmp_eq_u32 %s, %d' % (sr(backoff[0]), backoff[1]))
        a('s_cbranch_scc1 %s_ns' % name)
        a('s_sleep 12')
        a.label(name + '_ns')
    a('s_add_u32 s5, s5, 1')
    a('s_cmp_lt_u32 s5, 0x%x' % SPIN_CAP)
    a('s_cbranch_scc1 %s' % name)
    a('s_endpgm')
    a.label(name + '_ok')
    a('s_mov_b64 exec, -1')


def gen_mega():
    a = Asm()
    RSL = 0; FLG = 512; CNT = 516; TOK = 528; XF = 1024; XI = 3072; HI = XI + 73728
    OI = HI; SL = HI + 36864
    LDS = SL + 32 * HS
    VZ = 167
    LAY, LOFF, GBO, GBW, CBO, CBW, RFW, SOF, PRT = 86, 87, 88, 89, 90, 91, 92, 96, 97
    a('s_cmp_ge_u32 s2, 256')
    a('s_cbranch_scc1 mega_end')
    stamp_begin(a)
    ws_srd(a)
    a('s_load_dwordx2 s[94:95], s[0:1], 48')
    if AMP:
        a('s_memrealtime s[84:85]')
    wave_id(a, 12, 1)
    a('v_lshlrev_b32 v1, 4, v0')
    a('v_and_b32 v2, 15, v0')
    a('v_lshrrev_b32 v3, 4, v0')
    a('v_mov_b32 %s, 0' % vr(VZ))
    xcd_map(a, NCX, 13, 14)
    a('s_and_b32 s20, s12, 3\ns_lshr_b32 s21, s12, 2')
    a('s_mul_i32 s4, s14, 21846\ns_lshr_b32 s4, s4, 16\ns_mul_i32 s4, s4, 3\ns_sub_u32 s19, s14, s4')
    a('s_lshl_b32 s4, s19, 2\ns_add_u32 s28, s12, s4\ns_cmp_ge_u32 s28, 12\ns_cselect_b32 s4, 12, 0\ns_sub_u32 s28, s28, s4')
    a('s_mov_b32 s%d, 0\ns_mov_b32 s%d, 0\ns_mov_b32 s%d, 0\ns_mov_b32 s%d, 32\ns_mov_b32 s%d, 8' % (LAY, LOFF, GBW, CBW, RFW))
    a('s_lshl_b32 s4, s14, 7\ns_add_u32 s%d, s4, %d' % (GBO, FL_GB))
    a('s_lshl_b32 s4, s13, 7\ns_add_u32 s%d, s4, %d' % (CBO, FL_CB))
    a('s_mov_b32 s%d, %d\ns_mov_b32 s%d, %d' % (SOF, SS, PRT, PART))
    a('s_lshl_b32 s4, s14, 2\ns_add_u32 s4, s4, s20\ns_mul_i32 s4, s4, 18\ns_mul_i32 s5, s21, 6\ns_add_u32 s4, s4, s5')
    a('s_lshl_b32 s98, s4, 10')
    a('s_mul_i32 s5, s21, 24\ns_add_u32 s5, s5, s20\ns_lshl_b32 s5, s5, 10\ns_add_u32 s99, s5, %d' % XI)

    def load_x(base):
        a('s_add_u32 s22, s98, s%d\ns_add_u32 s22, s22, %d\ns_mov_b32 s23, s99' % (LOFF, base))
        x_dma(a, 6, 22, 23, 1)

    def group_sync(name):
        a('s_add_u32 s%d, s%d, 8' % (GBW, GBW))
        a('s_barrier')
        a('s_cmp_eq_u32 s12, 11')
        a('s_cbranch_scc0 %s_go' % name)
        a('v_mov_b32 v4, 1')
        mem_arrive(a, GBO, VZ, 4)
        mem_wait(a, name, GBO, GBW, VZ, 5)
        a.label('%s_go' % name)

    ACC = 8; RING = ACC + 32; BF = RING + 72
    VA = 4; VB = 5; VT = 6
    acc = lambda j, tt: ACC + (j * 4 + tt) * 4
    ring = lambda k, j: 40 + ((k % 9) * 2 + j) * 4
    bf = lambda p, tt: BF + (p * 4 + tt) * 4

    def s1_fill():
        a('s_mul_i32 s15, s13, 7\ns_add_u32 s15, s15, s12\ns_mul_i32 s15, s15, 36864\ns_add_u32 s15, s15, %d' % WQ)
        for k in range(9):
            for j in range(2):
                a('buffer_load_dwordx4 %s, v1, s[8:11], s15 offen offset:%d' % (vr(ring(k, j), 4), 2048 * (k & 1) + 1024 * j))
            if k & 1:
                a('s_add_u32 s15, s15, 4096')

    a('ds_write_b32 %s, %s offset:%d' % (vr(VZ), vr(VZ), FLG))
    a('s_waitcnt lgkmcnt(0)')
    load_x(X0)
    a('s_barrier')
    a('s_lshr_b32 s26, 0x43, s12\ns_and_b32 s26, s26, 1')
    a('s_cbranch_scc1 s1_f1')
    a('s_waitcnt vmcnt(0)')
    a('s_barrier')
    a('s_cmp_ge_u32 s12, 7')
    a('s_cbranch_scc1 s1_go')
    a.label('s1_f1')
    s1_fill()
    a('s_cmp_eq_u32 s26, 0')
    a('s_cbranch_scc1 s1_go')
    a('s_waitcnt vmcnt(18)')
    a('s_barrier')
    a('s_branch s1_go')
    a.label('s1_again')
    load_x(X0)
    a('s_waitcnt vmcnt(0)')
    a('s_barrier')
    a.label('s1_go')
    stamp(a, 'x1')
    a('s_cmp_ge_u32 s12, 8')
    a('s_cbranch_scc1 s1_wo')
    a('v_add_u32 %s, %d, v1' % (vr(VA), XI))
    a('v_add_u32 %s, %d, v1' % (vr(VB), XI + 9 * 4096))

    def rdx(k, tt):
        v, o = (VA, 4096 * k + 1024 * tt) if k < 9 else (VB, 4096 * (k - 9) + 1024 * tt)
        a('ds_read_b128 %s, %s offset:%d' % (vr(bf(k & 1, tt), 4), vr(v), o))
    for tt in range(4):
        rdx(0, tt)
    a('s_cmp_lt_u32 s12, 4')
    a('s_cbranch_scc1 s1_nn')
    a('s_cmp_eq_u32 s12, 6')
    a('s_cbranch_scc1 s1_nt')
    a('s_cmp_eq_u32 s12, 7')
    a('s_cbranch_scc1 s1_stats')

    def main(orient):
        issued = 18
        a('s_waitcnt vmcnt(17) lgkmcnt(0)')
        for k in range(18):
            for n in range(8):
                j, tt = n >> 2, n & 3
                if j:
                    tt = 3 - tt
                c = None if k == 0 else acc(j, tt)
                if orient[j] == 'N':
                    mfma(a, acc(j, tt), bf(k & 1, tt), ring(k, j), c)
                else:
                    mfma(a, acc(j, tt), ring(k, j), bf(k & 1, tt), c)
                if n < 2 and k < 17:
                    rdx(k + 1, 2 * n); rdx(k + 1, 2 * n + 1)
                if n == 2:
                    a('s_waitcnt vmcnt(%d)' % (issued - (2 * k + 2)))
                if n in (3, 7) and k < 9:
                    kk = k + 9
                    a('buffer_load_dwordx4 %s, v1, s[8:11], s15 offen offset:%d' % (vr(ring(kk, j), 4), 2048 * (kk & 1) + 1024 * j))
                    issued += 1
                    if n == 7 and (kk & 1):
                        a('s_add_u32 s15, s15, 4096')
                if n == 6 and k < 17:
                    a('s_waitcnt vmcnt(%d) lgkmcnt(0)' % (issued - (2 * k + 3)))
        stamp(a, 's1m')
        lds_spin(a, 's1_s' + orient, VT, VZ, FLG, 2, 2)

    def rs_n(RS):
        a('v_lshlrev_b32 %s, 4, v3' % vr(VT))
        for n in range(8):
            a('ds_read_b128 %s, %s offset:%d' % (vr(RS + 4 * n, 4), vr(VT), RSL + 64 * n))

    def rs_t(RS):
        a('v_lshlrev_b32 %s, 2, v2' % vr(VT))
        for n in range(8):
            a('ds_read_b32 %s, %s offset:%d' % (vr(RS + n), vr(VT), RSL + 64 * n))

    def phi4(items, T):
        n = len(items)
        for i, (d, x, s1, s2) in enumerate(items):
            a('v_mul_f32 %s, %s, %s' % (vr(T + i), vr(x), vr(s2)))
        for i in range(n):
            a('v_min_f32 %s, 0, %s' % (vr(T + i), vr(T + i)))
        for i in range(n):
            a('v_exp_f32 %s, %s' % (vr(T + i), vr(T + i)))
        for i, (d, x, s1, s2) in enumerate(items):
            a('v_max_f32 %s, 0, %s' % (vr(d), vr(x)))
        for i in range(n):
            a('v_add_f32 %s, 0x%x, %s' % (vr(T + i), EPS6, vr(T + i)))
        for i, (d, x, s1, s2) in enumerate(items):
            a('v_fma_f32 %s, %s, %s, %s' % (vr(d), vr(d), vr(s1), vr(T + i)))

    RS = RING; TMP = RING + 32; F0 = RING + 48; ON = RING + 64
    pq_base = 's_lshl_b32 s6, s14, 4\ns_add_u32 s6, s6, s13\ns_mul_i32 s6, s6, 4608\ns_add_u32 s6, s6, s%d\ns_add_u32 s6, s6, %d' % (LOFF, PQ)
    main('TT')
    rs_t(RS)
    a(pq_base)
    a('s_lshl_b32 s5, s20, 10\ns_add_u32 s6, s6, s5\ns_add_u32 s7, s6, %d' % (8 * 4608))
    a('s_waitcnt lgkmcnt(0)')
    for tt in range(4):
        phi4([(acc(j, tt) + r, acc(j, tt) + r, RS + tt, RS + 4 + tt) for j in range(2) for r in range(4)], TMP)
        P = BF + 4 * tt
        for j in range(2):
            a('v_cvt_pk_bf16_f32 %s, %s, %s' % (vr(P + 2 * j), vr(acc(j, tt)), vr(acc(j, tt) + 1)))
            a('v_cvt_pk_bf16_f32 %s, %s, %s' % (vr(P + 2 * j + 1), vr(acc(j, tt) + 2), vr(acc(j, tt) + 3)))
        a('buffer_store_dwordx4 %s, v1, s[8:11], s%d offen offset:%d sc1' % (vr(P, 4), 6 + (tt >> 1), 2048 * (tt & 1)))
    a('s_branch s1_done')
    a.label('s1_nn')
    main('NN')
    rs_n(RS)
    FK = F0; FV = F0 + 8; DV = BF; FX = BF + 16
    for k in range(4):
        a('v_mov_b32 %s, 0x%x' % (vr(ON + k), ONES))
    a('s_lshl_b32 s4, s13, 2\ns_add_u32 s4, s4, s20\ns_mul_i32 s6, s4, %d\ns_add_u32 s6, s6, s%d' % (HS, SOF))
    a('s_waitcnt lgkmcnt(0)')
    for tp in range(2):
        phi4([(acc(0, tt) + r, acc(0, tt) + r, RS + 4 * tt + r, RS + 16 + 4 * tt + r) for tt in (2 * tp, 2 * tp + 1) for r in range(4)], TMP)
        for tt in (2 * tp, 2 * tp + 1):
            for r in range(4):
                a('v_mul_f32 %s, %s, %s' % (vr(acc(1, tt) + r), vr(acc(1, tt) + r), vr(RS + 4 * tt + r)))
            for j, Fb in enumerate((FK, FV)):
                d = Fb + 2 * tt
                a('v_cvt_pk_bf16_f32 %s, %s, %s' % (vr(d), vr(acc(j, tt)), vr(acc(j, tt) + 1)))
                a('v_cvt_pk_bf16_f32 %s, %s, %s' % (vr(d + 1), vr(acc(j, tt) + 2), vr(acc(j, tt) + 3)))
        c = (lambda x: None) if tp == 0 else (lambda x: x)
        mfma(a, DV, FV + 4 * tp, FK + 4 * tp, c(DV))
        mfma(a, DV + 4, ON, FK + 4 * tp, c(DV + 4))
    a('v_and_b32 %s, 0x3c0, v1' % vr(VA))
    a('s_lshl_b32 s5, s20, 4')
    a('v_add_u32 %s, s5, %s' % (vr(VA), vr(VA)))
    a('v_lshlrev_b32 %s, 2, v0' % vr(VB))
    for r in range(4):
        a('buffer_atomic_add_f32 %s, %s, s[8:11], s6 offen offset:%d' % (vr(DV + r), vr(VB), 256 * r))
    a('s_mov_b64 exec, 0xffff')
    a('buffer_atomic_add_f32 %s, %s, s[8:11], s6 offen offset:1152' % (vr(DV + 4), vr(VB)))
    a('s_mov_b64 exec, -1')
    lds_spin(a, 's1_w', VT, VZ, FLG, 1, 1)
    a('ds_read_b128 %s, %s offset:%d' % (vr(FX, 4), vr(VA), XF))
    a('ds_read_b128 %s, %s offset:%d' % (vr(FX + 4, 4), vr(VA), XF + 1024))
    a('v_lshlrev_b32 %s, 3, v2' % vr(VT))
    a('v_lshl_add_u32 %s, v3, 2, %s' % (vr(VT), vr(VT)))
    a('v_add_u32 %s, 384, %s' % (vr(VT), vr(VT)))
    a('s_mov_b32 s40, -1\ns_mov_b32 s41, 0')
    a('v_cndmask_b32 %s, %s, %s, s[40:41]' % (vr(VT), vr(VB), vr(VT)))
    a('s_waitcnt lgkmcnt(0)')
    for tp in range(2):
        c = (lambda x: None) if tp == 0 else (lambda x: x)
        mfma(a, DV + 8, FX + 4 * tp, FV + 4 * tp, c(DV + 8))
        mfma(a, DV + 12, FX + 4 * tp, FK + 4 * tp, c(DV + 12))
    a('v_cndmask_b32 %s, %s, %s, s[40:41]' % (vr(DV + 8), vr(DV + 12), vr(DV + 8)))
    a('buffer_atomic_add_f32 %s, %s, s[8:11], s6 offen offset:896' % (vr(DV + 8), vr(VT)))
    a('s_branch s1_done')
    a.label('s1_nt')
    a('s_setprio 2')
    main('NT')
    rs_n(RS)
    FX = F0; PH = BF + 16
    for k in range(4):
        a('v_mov_b32 %s, 0x%x' % (vr(ON + k), ONES))
    a('s_mov_b32 s46, 0x00ff00ff\ns_mov_b32 s47, 0x00ff00ff')
    a('s_waitcnt lgkmcnt(0)')
    for tp in range(2):
        tts = (2 * tp, 2 * tp + 1)
        phi4([(PH + 4 * (tt & 1) + r, acc(0, tt) + r, RS + 4 * tt + r, RS + 16 + 4 * tt + r) for tt in tts for r in range(4)], TMP)
        for tt in tts:
            for r in range(4):
                a('v_mul_f32 %s, %s, %s' % (vr(acc(0, tt) + r), vr(acc(0, tt) + r), vr(RS + 4 * tt + r)))
                a('v_cndmask_b32 %s, %s, %s, s[46:47]' % (vr(acc(0, tt) + r), vr(acc(0, tt) + r), vr(PH + 4 * (tt & 1) + r)))
            a('v_cvt_pk_bf16_f32 %s, %s, %s' % (vr(FX + 2 * tt), vr(acc(0, tt)), vr(acc(0, tt) + 1)))
            a('v_cvt_pk_bf16_f32 %s, %s, %s' % (vr(FX + 2 * tt + 1), vr(acc(0, tt) + 2), vr(acc(0, tt) + 3)))
        a('ds_write_b128 v1, %s offset:%d' % (vr(FX + 4 * tp, 4), XF + 1024 * tp))
    a('v_mov_b32 %s, 3' % vr(VT))
    a('ds_write_b32 %s, %s offset:%d' % (vr(VZ), vr(VT), FLG))
    a('s_setprio 0')
    for tp in range(2):
        c = (lambda x: None) if tp == 0 else (lambda x: x)
        mfma(a, DV, FX + 4 * tp, FX + 4 * tp, c(DV))
        mfma(a, DV + 4, ON, FX + 4 * tp, c(DV + 4))
    rs_t(RS)
    a('v_and_b32 %s, 3, v2' % vr(VA))
    a('v_mul_u32_u24 %s, %d, %s' % (vr(VA), HS, vr(VA)))
    a('v_and_b32 %s, 4, v2' % vr(VB))
    a('v_add_u32 %s, %s, %s' % (vr(VA), vr(VA), vr(VB)))
    a('v_add_u32 %s, 2, v3' % vr(VB))
    a('v_and_b32 %s, 3, %s' % (vr(VB), vr(VB)))
    a('v_lshl_add_u32 %s, %s, 3, %s' % (vr(VA), vr(VB), vr(VA)))
    a('s_mul_i32 s6, s13, %d\ns_add_u32 s6, s6, s%d' % (4 * HS, SOF))
    diag_select(a, DV + 8, DV)
    a('s_mov_b32 s40, 0xffff\ns_mov_b32 s41, 0')
    a('v_cndmask_b32 %s, %s, %s, s[40:41]' % (vr(DV + 8), vr(DV + 8), vr(DV + 4)))
    a('s_mov_b32 exec_lo, 0xff\ns_mov_b32 exec_hi, 0x00ff00ff')
    a('buffer_atomic_add_f32 %s, %s, s[8:11], s6 offen offset:%d' % (vr(DV + 8), vr(VA), 1280 + 128))
    a('s_mov_b64 exec, -1')
    a(pq_base)
    a('s_add_u32 s6, s6, 4096\ns_add_u32 s7, s6, %d' % (8 * 4608))
    a('v_lshlrev_b32 %s, 3, v0' % vr(VB))
    a('s_waitcnt lgkmcnt(0)')
    phi4([(acc(1, tt) + r, acc(1, tt) + r, RS + tt, RS + 4 + tt) for tt in range(4) for r in range(2)], TMP)
    for tt in range(4):
        a('v_cvt_pk_bf16_f32 %s, %s, %s' % (vr(PH + tt), vr(acc(1, tt)), vr(acc(1, tt) + 1)))
    for tp in range(2):
        a('buffer_store_dwordx2 %s, %s, s[8:11], s%d offen sc1' % (vr(PH + 2 * tp, 2), vr(VB), 6 + tp))
    a('s_branch s1_done')
    a.label('s1_stats')
    a('s_setprio 3')
    for k in range(4):
        a('v_mov_b32 %s, 0x%x' % (vr(RING + k), ONES))
    for k in range(18):
        if k < 17:
            for tt in range(4):
                rdx(k + 1, tt)
        a('s_waitcnt lgkmcnt(%d)' % (4 if k < 17 else 0))
        for tt in range(4):
            mfma(a, acc(0, tt), RING, bf(k & 1, tt), None if k == 0 else acc(0, tt))
            mfma(a, acc(1, tt), bf(k & 1, tt), bf(k & 1, tt), None if k == 0 else acc(1, tt))
    a('v_lshlrev_b32 %s, 2, v2' % vr(VT))
    for tt in range(4):
        diag_select(a, acc(0, tt) + 1, acc(1, tt))
        rstd_from(a, acc(0, tt) + 2, acc(0, tt), acc(0, tt) + 1)
        a('v_mul_f32 %s, 0x%x, %s' % (vr(acc(0, tt) + 3), LOG2E, vr(acc(0, tt) + 2)))
    a('s_mov_b32 exec_lo, 0x00f0000f\ns_mov_b32 exec_hi, 0xf0000f00')
    for tt in range(4):
        a('ds_write_b32 %s, %s offset:%d' % (vr(VT), vr(acc(0, tt) + 2), RSL + 64 * tt))
        a('ds_write_b32 %s, %s offset:%d' % (vr(VT), vr(acc(0, tt) + 3), RSL + 256 + 64 * tt))
    a('s_mov_b64 exec, -1')
    a('v_mov_b32 %s, 2' % vr(VA))
    a('ds_write_b32 %s, %s offset:%d' % (vr(VZ), vr(VA), FLG))
    a('s_setprio 0')
    stamp(a, 's1m')
    a('s_branch s1_done')
    AC2 = 8; B2 = 24; WR = 56; NPRE = 13
    wr = lambda k, j: WR + ((k % NPRE) * 2 + j) * 4
    a.label('s1_wo')
    a('s_and_b32 s24, s13, 3')
    a('s_mul_i32 s25, s24, 9\ns_and_b32 s4, s24, 1\ns_add_u32 s25, s25, s4\ns_lshl_b32 s4, s20, 1\ns_add_u32 s25, s25, s4')
    a('s_mul_i32 s16, s25, 18432\ns_add_u32 s16, s16, %d\ns_add_u32 s17, s16, 18432' % WO)

    def wo_ld(k):
        for j in range(2):
            a('buffer_load_dwordx4 %s, v1, s[8:11], s%d offen offset:%d' % (vr(wr(k, j), 4), 16 + j, 1024 * (k % 4)))
        if k % 4 == 3:
            a('s_add_u32 s16, s16, 4096\ns_add_u32 s17, s17, 4096')
    for k in range(NPRE):
        wo_ld(k)
    stamp(a, 's1m')
    a('s_branch s1_join')
    a.label('s1_done')
    a('s_waitcnt vmcnt(0)')
    a.label('s1_join')
    stamp(a, 's1d')
    group_sync('e1a')
    a('s_cmp_eq_u32 s12, 11')
    a('s_cbranch_scc0 e1_x')
    mem_arrive(a, CBO, VZ, 4)
    a.label('e1_x')
    a('s_barrier')
    stamp(a, 'e1a')

    RING3 = 52
    FR = 124; QF = 20; XP = 4
    VA = 156; VB = 157; VC = 158; VD = 159; EX = 160; VT = 161; QX = 162
    f1 = lambda hh: FR + 8 * hh
    f2 = lambda hh: FR + 8 * hh + 4
    qf = lambda tt, hh: QF + (tt * 4 + hh) * 4
    a('s_cmp_ge_u32 s12, 8')
    a('s_cbranch_scc1 s2_hi')
    a('s_lshl_b32 s23, s14, 1\ns_lshr_b32 s4, s13, 2\ns_add_u32 s23, s23, s4')
    a('s_lshl_b32 s23, s23, 3\ns_add_u32 s23, s23, s12\ns_mul_i32 s23, s23, 4608\ns_add_u32 s23, s23, s%d\ns_add_u32 s23, s23, %d' % (LOFF, PQ))
    a('s_add_u32 s24, s23, 4096')
    a('v_lshlrev_b32 %s, 3, v0' % vr(VT))
    for tt in range(2):
        for p in range(2):
            a('buffer_load_dwordx4 %s, v1, s[8:11], s23 offen offset:%d sc1' % (vr(qf(tt, 2 * p), 4), 2048 * tt + 1024 * p))
    a('buffer_load_dwordx2 %s, %s, s[8:11], s24 offen sc1' % (vr(QX, 2), vr(VT)))
    a('v_and_b32 %s, 3, v2' % vr(VT))
    a('v_lshrrev_b32 %s, 2, v2' % vr(VA))
    a('v_lshl_add_u32 %s, %s, 2, %s' % (vr(VA), vr(VT), vr(VA)))
    a('v_lshlrev_b32 %s, 6, %s' % (vr(VA), vr(VA)))
    a('v_lshl_add_u32 %s, v3, 4, %s' % (vr(VA), vr(VA)))
    a('v_min_u32 %s, 2, %s' % (vr(VT), vr(VT)))
    a('v_lshlrev_b32 %s, 6, %s' % (vr(VB), vr(VT)))
    a('v_lshl_add_u32 %s, v3, 4, %s' % (vr(VB), vr(VB)))
    a('v_mul_u32_u24 %s, %d, v3' % (vr(VD), HS))
    a('v_lshl_add_u32 %s, v2, 3, %s' % (vr(VC), vr(VD)))
    a('v_lshl_add_u32 %s, %s, 3, %s' % (vr(VD), vr(VT), vr(VD)))
    a('s_mul_i32 s25, s12, %d\ns_add_u32 s22, s25, s%d\ns_add_u32 s25, s25, %d' % (4 * HS, SOF, SL))
    for v in (VA, VB, VC, VD):
        a('v_add_u32 %s, s25, %s' % (vr(v), vr(v)))
    for hh in range(4):
        a('s_mov_b32 s%d, 0x%x\ns_mov_b32 s%d, 0x%x' % (
            40 + 2 * hh, (0xffff << (16 * hh)) & 0xffffffff, 41 + 2 * hh, ((0xffff << (16 * hh)) >> 32) & 0xffffffff))
    a('s_mul_i32 s16, s13, 12\ns_add_u32 s16, s16, s28\ns_mul_i32 s16, s16, 55296\ns_mul_i32 s4, s19, 18432\ns_add_u32 s16, s16, s4\ns_add_u32 s16, s16, %d' % W1)
    a('s_and_b32 s4, s13, 3\ns_mul_i32 s29, s4, 9\ns_and_b32 s4, s4, 1\ns_xor_b32 s4, s4, 1\ns_lshl_b32 s4, s4, 3\ns_add_u32 s29, s29, s4')
    a('s_mul_i32 s4, s29, 18432\ns_add_u32 s4, s4, %d' % WO)
    a('s_cmp_eq_u32 s12, 7\ns_cselect_b32 s16, s4, s16')
    nW = [0]

    def wld(n):
        for _ in range(n):
            k = nW[0]
            a('buffer_load_dwordx4 %s, v1, s[8:11], s16 offen offset:%d' % (vr(RING3 + 4 * k, 4), 1024 * (k % 4)))
            if k % 4 == 3:
                a('s_add_u32 s16, s16, 4096')
            nW[0] += 1
    wld(S2_WE)
    a('s_waitcnt vmcnt(%d)' % S2_WE)
    for tt in range(2):
        for p in range(2):
            q0, q1 = qf(tt, 2 * p), qf(tt, 2 * p + 1)
            a('v_mov_b32 %s, %s' % (vr(q1), vr(q0 + 2)))
            a('v_mov_b32 %s, %s' % (vr(q1 + 1), vr(q0 + 3)))
            for q in (q0, q1):
                a('v_mov_b32 %s, %s' % (vr(q + 2), vr(QX + tt)))
                a('v_mov_b32 %s, 0' % vr(q + 3))
    a('s_mov_b32 m0, s25')
    a('s_barrier')
    stamp(a, 'e1b')
    for n in range(6):
        if n == 4:
            a('s_add_u32 m0, s25, 4096\ns_add_u32 s22, s22, 4096')
        a('buffer_load_dwordx4 v1, s[8:11], s22 offen offset:%d sc1 lds' % (1024 * (n % 4)))
    a('s_waitcnt vmcnt(0)')
    stamp(a, 'sld')
    a('ds_read_b64 %s, %s offset:1280' % (vr(XP, 2), vr(VC)))
    a('ds_read_b64 %s, %s offset:%d' % (vr(XP + 2, 2), vr(VD), 1280 + 128))
    for hh in range(4):
        a('ds_read_b128 %s, %s offset:%d' % (vr(f1(hh), 4), vr(VA), HS * hh))
        a('ds_read_b128 %s, %s offset:%d' % (vr(f2(hh), 4), vr(VB), HS * hh + 1024))
    wld(S2_W0)
    a('s_waitcnt lgkmcnt(8)')
    a('v_cvt_pk_bf16_f32 %s, %s, %s' % (vr(XP), vr(XP), vr(XP + 1)))
    a('v_cvt_pk_bf16_f32 %s, %s, %s' % (vr(XP + 2), vr(XP + 2), vr(XP + 3)))
    for hh in range(4):
        a('s_waitcnt lgkmcnt(%d)' % (6 - 2 * hh))
        for f, x in ((f1(hh), XP), (f2(hh), XP + 2)):
            a('v_cvt_pk_bf16_f32 %s, %s, %s' % (vr(f), vr(f), vr(f + 1)))
            a('v_cvt_pk_bf16_f32 %s, %s, %s' % (vr(f + 1), vr(f + 2), vr(f + 3)))
            a('v_cndmask_b32 %s, 0, %s, s[%d:%d]' % (vr(f + 2), vr(x), 40 + 2 * hh, 41 + 2 * hh))
            a('v_mov_b32 %s, 0' % vr(f + 3))
    stamp(a, 'scv')
    a('s_lshl_b32 s4, s12, 12\ns_add_u32 s4, s4, %d' % OI)
    a('v_add_u32 %s, s4, v1' % vr(VA))
    a('s_add_u32 s4, s21, 16\ns_lshl_b32 s4, s4, 11\ns_lshl_b32 s5, s20, 2\ns_add_u32 s4, s4, s5\ns_add_u32 s4, s4, %d' % OI)
    a('v_add_u32 %s, s4, v1' % vr(VB))
    for tt in range(2):
        for p in range(2):
            for n in range(2):
                mfma(a, XP + 8 * n + 4, f2(2 * p + n), qf(tt, 2 * p + n))
            for n in range(2):
                mfma(a, XP + 8 * n, f1(2 * p + n), qf(tt, 2 * p + n))
            wld(S2_W1)
            O = qf(tt, 2 * p)
            for n in range(2):
                d2 = XP + 8 * n + 4
                a('v_add_f32 %s, 0x%x, %s' % (vr(d2 + 2), EPS6, vr(d2 + 2)))
            for n in range(2):
                d2 = XP + 8 * n + 4
                a('v_rcp_f32 %s, %s' % (vr(d2 + 2), vr(d2 + 2)))
            for n in range(2):
                hh = 2 * p + n
                d1 = XP + 8 * n; d2 = d1 + 4
                for r in (4, 5, 0, 1, 2, 3):
                    a('v_mul_f32 %s, %s, %s' % (vr(d1 + r), vr(d1 + r), vr(d2 + 2)))
                a('v_cvt_pk_bf16_f32 %s, %s, %s' % (vr(O + 2 * n), vr(d1), vr(d1 + 1)))
                a('v_cvt_pk_bf16_f32 %s, %s, %s' % (vr(O + 2 * n + 1), vr(d1 + 2), vr(d1 + 3)))
                if hh == 0:
                    a('v_cvt_pk_bf16_f32 %s, %s, %s' % (vr(EX), vr(d2), vr(d2 + 1)))
                else:
                    a('v_cvt_pk_bf16_f32 %s, %s, %s' % (vr(VT), vr(d2), vr(d2 + 1)))
                    a('v_cndmask_b32 %s, %s, %s, s[%d:%d]' % (vr(EX), vr(EX), vr(VT), 40 + 2 * hh, 41 + 2 * hh))
            a('ds_write_b128 %s, %s offset:%d' % (vr(VA), vr(O, 4), 2048 * p + 1024 * tt))
        a('ds_write_b32 %s, %s offset:%d' % (vr(VB), vr(EX), 1024 * tt))
    stamp(a, 'st1')
    a('s_waitcnt lgkmcnt(0)')
    a('s_barrier')
    stamp(a, 'o')
    a('s_cmp_eq_u32 s12, 7')
    a('s_cbranch_scc0 s2_n7')
    a('s_setprio 3')
    a.label('s2_n7')
    wld(18 - nW[0])
    a('s_cmp_eq_u32 s12, 7')
    a('s_cbranch_scc0 s2_done')

    def resid_store(nt, AC, T, s_ct):
        a('s_lshr_b32 s4, %s, 1\ns_lshr_b32 s5, s13, 2\ns_lshl_b32 s5, s5, 1' % sr(s_ct))
        a('s_and_b32 s24, %s, 1\ns_lshl_b32 s24, s24, 3' % sr(s_ct))
        a('s_lshl_b32 s6, s4, 2\ns_add_u32 s6, s6, s5\ns_lshl_b32 s6, s6, 10\ns_add_u32 s6, s6, s24\ns_add_u32 s6, s6, %d' % XI)
        a('v_add_u32 %s, s6, v1' % vr(T + 24))
        for tt in range(2):
            a('ds_read_b%d %s, %s offset:%d' % (64 * nt, vr(T + 4 * tt, 2 * nt), vr(T + 24), 1024 * tt))
        a('s_lshl_b32 s6, s14, 2\ns_add_u32 s6, s6, s5\ns_mul_i32 s6, s6, 18\ns_add_u32 s6, s6, s4\ns_lshl_b32 s6, s6, 10')
        a('s_add_u32 s6, s6, s24\ns_add_u32 s6, s6, s%d\ns_add_u32 s6, s6, %d\ns_add_u32 s7, s6, 18432' % (LOFF, X1))
        a('s_waitcnt lgkmcnt(0)')
        for tt in range(2):
            U = T + 8 + 8 * tt
            for h in range(2 * nt):
                a('v_lshlrev_b32 %s, 16, %s' % (vr(U + 2 * h), vr(T + 4 * tt + h)))
                a('v_and_b32 %s, 0xffff0000, %s' % (vr(U + 2 * h + 1), vr(T + 4 * tt + h)))
            for j in range(nt):
                for r in range(4):
                    a('v_add_f32 %s, %s, %s' % (vr(U + 4 * j + r), vr(U + 4 * j + r), vr(AC + (2 * j + tt) * 4 + r)))
            for h in range(2 * nt):
                a('v_cvt_pk_bf16_f32 %s, %s, %s' % (vr(T + 4 * tt + h), vr(U + 2 * h), vr(U + 2 * h + 1)))
            a('buffer_store_dwordx%d %s, v1, s[8:11], s%d offen sc1' % (2 * nt, vr(T + 4 * tt, 2 * nt), 6 + tt))

    NB = 8
    slot = lambda n: FR + 4 * (n % NB)
    a('v_add_u32 %s, %d, v1' % (vr(VA), OI))
    for n in range(NB):
        a('ds_read_b128 %s, %s offset:%d' % (vr(slot(n), 4), vr(VA), 1024 * n))
    for n in range(36):
        k, tt = n >> 1, n & 1
        a('s_waitcnt vmcnt(%d) lgkmcnt(%d)' % (17 - k, min(NB - 1, 35 - n)))
        mfma(a, 4 + 4 * tt, RING3 + 4 * k, slot(n), None if k == 0 else 4 + 4 * tt)
        if n + NB < 36:
            a('ds_read_b128 %s, %s offset:%d' % (vr(slot(n), 4), vr(VA), 1024 * (n + NB)))
    stamp(a, 'gem')
    resid_store(1, 4, 20, 29)
    stamp(a, 'rst')
    a('s_setprio 0')
    a('s_waitcnt vmcnt(0)')
    a('s_branch s2_done')
    a.label('s2_hi')
    a('s_cmp_eq_u32 s12, 11')
    a('s_cbranch_scc0 s2_hw')
    mem_wait(a, 'e1b', CBO, CBW, VZ, 5)
    a('v_lshlrev_b32 v4, 2, v0')
    a('s_mov_b64 exec, 0xff')
    a('ds_write_b32 v4, %s offset:%d' % (vr(VZ), FLG))
    a('s_mov_b64 exec, -1')
    a('s_waitcnt lgkmcnt(0)')
    a.label('s2_hw')
    a('s_barrier')
    stamp(a, 'e1b')
    a('v_add_u32 v4, %d, v1' % OI)
    a('s_setprio 2')
    a('s_waitcnt vmcnt(0)')
    a('s_barrier')
    stamp(a, 'o')
    b2 = lambda k, tt: B2 + ((k % 4) * 2 + tt) * 4
    for k in range(4):
        for tt in range(2):
            a('ds_read_b128 %s, v4 offset:%d' % (vr(b2(k, tt), 4), 2048 * k + 1024 * tt))
    for k in range(18):
        w = 's_waitcnt lgkmcnt(%d)' % min(6, 2 * (17 - k))
        if k >= NPRE:
            w += ' vmcnt(%d)' % (2 * (17 - k))
        a(w)
        for j in range(2):
            for tt in range(2):
                d = AC2 + (2 * j + tt) * 4
                mfma(a, d, wr(k, j), b2(k, tt), None if k == 0 else d)
        if k + NPRE < 18:
            wo_ld(k + NPRE)
        if k + 4 < 18:
            for tt in range(2):
                a('ds_read_b128 %s, v4 offset:%d' % (vr(b2(k, tt), 4), 2048 * (k + 4) + 1024 * tt))
    stamp(a, 'gem')
    resid_store(2, AC2, B2, 25)
    stamp(a, 'rst')
    a('s_setprio 0')
    a('s_waitcnt vmcnt(0)')
    a.label('s2_done')
    stamp(a, 's2d')
    group_sync('e2')
    a('s_barrier')
    stamp(a, 'e2')

    ACC = 4; RING = RING3; BF = RING + 72; RS = BF + 32
    VA = RS + 4; VT = VA + 3; VC = VT + 1; VK = VC + 1
    acc = lambda j, tt: ACC + (j * 4 + tt) * 4
    ring3 = lambda k, j: RING + ((k % 6) * 3 + j) * 4
    bf = lambda p, tt: BF + (p * 4 + tt) * 4
    load_x(X1)
    a('s_lshl_b32 s4, s20, 2')
    a('v_mov_b32 %s, s4' % vr(VK))
    a('s_mul_i32 s16, s13, 12\ns_add_u32 s16, s16, s28\ns_mul_i32 s16, s16, 55296\ns_add_u32 s16, s16, %d' % W1)
    a('s_mov_b32 s17, s19')
    for b in range(3):
        a('s_mul_i32 s4, s17, 18432\ns_add_u32 s%d, s4, s16' % (30 + b))
        a('s_mul_i32 s4, s17, 24576\ns_add_u32 s4, s4, %d' % XI)
        a('v_add_u32 %s, s4, v1' % vr(VA + b))
        if b < 2:
            a('s_add_u32 s17, s17, 1\ns_cmp_eq_u32 s17, 3\ns_cselect_b32 s17, 0, s17')
    a('s_lshl_b32 s4, s21, 3\ns_lshl_b32 s27, 1, s4')
    a('s_mov_b32 s18, s21')
    a('s_mov_b32 s34, 0\ns_mov_b32 s35, 0')
    a('s_waitcnt vmcnt(0)')
    a('s_barrier')
    stamp(a, 'x3')
    a('s_cmp_lt_u32 s12, 7')
    a('s_cbranch_scc1 s3_filled')
    a('s_cmp_eq_u32 s12, 7')
    a('s_cbranch_scc1 s3_fill')
    a('s_setprio %d' % P3_SPRIO)
    a('s_lshl_b32 s4, s20, 10\ns_add_u32 s4, s4, %d' % XI)
    a('v_add_u32 %s, s4, v1' % vr(VC))
    a('v_add_u32 %s, %d, %s' % (vr(VT), 9 * 4096, vr(VC)))
    for k in range(4):
        a('v_mov_b32 %s, 0x%x' % (vr(BF + k), ONES))
    rdk = lambda k: a('ds_read_b128 %s, %s offset:%d' % (vr(RING + 4 * k, 4), vr(VC if k < 9 else VT), 4096 * (k % 9)))
    for k in range(12):
        rdk(k)
    for k in range(18):
        a('s_waitcnt lgkmcnt(%d)' % min(11, 17 - k))
        f = RING + 4 * k
        mfma(a, ACC, BF, f, None if k == 0 else ACC)
        mfma(a, ACC + 4, f, f, None if k == 0 else ACC + 4)
        if k + 12 < 18:
            rdk(k + 12)
    diag_select(a, ACC + 1, ACC + 4)
    rstd_from(a, ACC + 2, ACC, ACC + 1)
    a('s_lshl_b32 s4, s20, 6')
    a('v_lshl_add_u32 %s, v2, 2, s4' % vr(VT))
    a('v_mov_b32 %s, 0x1000000' % vr(VC))
    a('s_mov_b32 exec_lo, 0x00f0000f\ns_mov_b32 exec_hi, 0xf0000f00')
    a('ds_write_b32 %s, %s' % (vr(VT), vr(ACC + 2)))
    a('s_mov_b64 exec, 1')
    a('ds_add_u32 %s, %s offset:%d' % (vr(VZ), vr(VC), CNT))
    a('s_mov_b64 exec, -1')
    a.label('s3_tok')
    a('s_sub_u32 s33, s18, %d' % P3_LEAD)
    lds_spin(a, 's3_tk', VT, VK, TOK, 0, 0, ge=33)
    a.label('s3_fill')
    a('s_mov_b32 s15, s30')
    for k in range(6):
        for j in range(3):
            a('buffer_load_dwordx4 %s, v1, s[8:11], s15 offen offset:%d' % (vr(ring3(k, j), 4), 1024 * j))
        if k < 5:
            a('s_add_u32 s15, s15, 3072')
    a.label('s3_filled')
    a('v_mov_b32 %s, 1' % vr(VC))
    a('s_setprio 2')
    a('s_cmp_lt_u32 s18, 3')
    a('s_cbranch_scc1 s3_pass')
    lds_spin(a, 's3_w2', VT, VZ, CNT, 0xff, 0x04)
    a('s_setprio 1')
    a.label('s3_pass')

    def rd(k, tt):
        a('ds_read_b128 %s, %s offset:%d' % (vr(bf(k & 1, tt), 4), vr(VA + k // 6), 4096 * (k % 6) + 1024 * tt))
    for tt in range(4):
        rd(0, tt)
    a('s_waitcnt vmcnt(17) lgkmcnt(0)')
    issued = 18
    for k in range(18):
        for n in range(12):
            j, tt = n >> 2, n & 3
            if j & 1:
                tt = 3 - tt
            mfma(a, acc(j, tt), ring3(k, j), bf(k & 1, tt), None if k == 0 else acc(j, tt))
            if n == 0 and k < 12:
                a('s_add_u32 s15, s15, 3072' if k % 6 else 's_mov_b32 s15, s%d' % (31 + k // 6))
            if n in (0, 1, 4, 5) and k < 17:
                rd(k + 1, n if n < 2 else n - 2)
            if n in (2, 6, 10) and k * 3 + j + 1 < 54:
                a('s_waitcnt vmcnt(%d)%s' % (issued - (k * 3 + j + 2), ' lgkmcnt(0)' if n == 10 else ''))
            if n in (3, 7, 11) and k < 12:
                a('buffer_load_dwordx4 %s, v1, s[8:11], s15 offen offset:%d' % (vr(ring3(k, j), 4), 1024 * j))
                issued += 1
            if k == P3_TOK + 1 and n == 7:
                a('s_mov_b64 exec, 1')
                a('ds_add_u32 %s, %s offset:%d' % (vr(VK), vr(VC), TOK))
                a('s_mov_b64 exec, -1')
            if k in (4, 10):
                m = 34 if k == 4 else 35
                if n == 6:
                    a('ds_read_b32 %s, %s offset:%d' % (vr(VT), vr(VZ), CNT))
                if n == 10:
                    a('v_readfirstlane_b32 s4, %s' % vr(VT))
                if n == 11:
                    a('s_andn2_b32 s4, s%d, s4' % m)
                    a('s_cbranch_scc1 s3_slow%d' % k)
                    a.label('s3_back%d' % k)
    a('s_setprio 0')
    a('s_lshr_b32 s24, s28, 1\ns_mul_i32 s24, s24, 3\ns_and_b32 s25, s28, 1')
    a('s_cmp_ge_u32 s18, 3')
    a('s_cbranch_scc1 s3_epib')
    stamp(a, 'pa')
    lds_spin(a, 's3_w1', VT, VZ, CNT, 0xff000000, 0x04000000)
    a('v_lshlrev_b32 %s, 2, v2' % vr(VT))
    for tt in range(4):
        a('ds_read_b32 %s, %s offset:%d' % (vr(RS + tt), vr(VT), 64 * tt))
    a('s_lshl_b32 s4, s25, 1\ns_add_u32 s4, s4, s24\ns_lshl_b32 s4, s4, 12\ns_add_u32 s4, s4, %d' % HI)
    a('s_add_u32 s5, s24, 1\ns_lshl_b32 s5, s5, 12\ns_lshl_b32 s6, s25, 3\ns_add_u32 s5, s5, s6\ns_add_u32 s5, s5, %d' % HI)
    a('s_waitcnt lgkmcnt(0)')
    a('v_add_u32 %s, s4, v1' % vr(VT))
    a('v_add_u32 %s, s5, v1' % vr(VC))
    C = BF + 28
    for tt in range(4):
        a('v_mul_f32 %s, 0x%x, %s' % (vr(C + tt), NLOG2E, vr(RS + tt)))
    T = BF
    units = [[(0, u), (1, u)] for u in range(4)] + [[(2, 0), (2, 1)], [(2, 2), (2, 3)]]
    for u, un in enumerate(units):
        idx = [(j, tt, r) for j, tt in un for r in range(4)]
        for n, (j, tt, r) in enumerate(idx):
            a('v_mul_f32 %s, %s, %s' % (vr(T + n), vr(acc(j, tt) + r), vr(C + tt)))
        for n in range(8):
            a('v_exp_f32 %s, %s' % (vr(T + n), vr(T + n)))
        for n in range(8):
            a('v_add_f32 %s, 1.0, %s' % (vr(T + n), vr(T + n)))
        for n in range(8):
            a('v_rcp_f32 %s, %s' % (vr(T + n), vr(T + n)))
        for n, (j, tt, r) in enumerate(idx):
            a('v_mul_f32 %s, %s, %s' % (vr(T + n), vr(acc(j, tt) + r), vr(T + n)))
        P = BF + 8 + 4 * (u % 4)
        for n in range(4):
            a('v_cvt_pk_bf16_f32 %s, %s, %s' % (vr(P + n), vr(T + 2 * n), vr(T + 2 * n + 1)))
        if u < 4:
            a('ds_write_b128 %s, %s offset:%d' % (vr(VT), vr(P, 4), 1024 * u))
        else:
            a('ds_write_b64 %s, %s offset:%d' % (vr(VC), vr(P, 2), 1024 * un[0][1]))
            a('ds_write_b64 %s, %s offset:%d' % (vr(VC), vr(P + 2, 2), 1024 * un[1][1]))
    a('v_mov_b32 %s, s27' % vr(VT))
    a('s_mov_b64 exec, 1')
    a('ds_add_u32 %s, %s offset:%d' % (vr(VZ), vr(VT), CNT))
    a('s_mov_b64 exec, -1')
    for b in range(3):
        a('s_add_u32 s%d, s%d, %d' % (30 + b, 30 + b, W2 - W1))
        a('v_add_u32 %s, %d, %s' % (vr(VA + b), HI - XI, vr(VA + b)))
    a('s_add_u32 s18, s18, 3')
    a('s_mov_b32 s34, 0x0400\ns_mov_b32 s35, 0x040000')
    a('s_branch s3_tok')
    for k, m in ((4, 0x0400), (10, 0x040000)):
        a.label('s3_slow%d' % k)
        lds_spin(a, 's3_sl%d' % k, VT, VZ, CNT, m, m)
        a('s_branch s3_back%d' % k)
    a.label('s3_epib')
    stamp(a, 'pb')
    a('s_setprio %d' % EPB_PRIO)
    a('s_lshl_b32 s4, s13, 5\ns_add_u32 s4, s4, s14\ns_mul_i32 s4, s4, 12\ns_add_u32 s4, s4, s28\ns_mul_i32 s4, s4, 6144')
    a('s_add_u32 s6, s4, s%d\ns_add_u32 s7, s6, 4096' % PRT)
    for u, un in enumerate(units):
        P = BF + 4 * u
        for n, (j, tt) in enumerate(un):
            for r in range(4):
                a('v_mul_f32 %s, %s, %s' % (vr(acc(j, tt) + r), vr(acc(j, tt) + r), vr(RS + tt)))
            a('v_cvt_pk_bf16_f32 %s, %s, %s' % (vr(P + 2 * n), vr(acc(j, tt)), vr(acc(j, tt) + 1)))
            a('v_cvt_pk_bf16_f32 %s, %s, %s' % (vr(P + 2 * n + 1), vr(acc(j, tt) + 2), vr(acc(j, tt) + 3)))
        a('buffer_store_dwordx4 %s, v1, s[8:11], s%d offen offset:%d sc1' % (vr(P, 4), 6 + (u >> 2), 1024 * (u & 3)))
    a('s_mul_i32 s22, s14, 12\ns_add_u32 s4, s22, s28\ns_lshl_b32 s4, s4, 7\ns_add_u32 s6, s4, %d' % FL_RF)
    a('v_mov_b32 v4, 1')
    a('s_and_b32 s23, s28, 12\ns_lshr_b32 s4, s13, 1\ns_add_u32 s23, s23, s4')
    a('s_add_u32 s22, s22, s23')
    a('s_lshl_b32 s7, s22, 7\ns_add_u32 s7, s7, %d' % FL_RF)
    a('s_and_b32 s29, s13, 1')
    a('s_lshr_b32 s24, s23, 1\ns_mul_i32 s24, s24, 3\ns_and_b32 s25, s23, 1')
    a('s_lshl_b32 s26, s29, 1')
    a('s_cmp_eq_u32 s20, 2')
    a('s_cbranch_scc1 s3_mix')
    a('s_add_u32 s26, s26, s20\ns_mov_b32 s16, s26')
    a('s_lshl_b32 s4, s25, 1\ns_add_u32 s24, s24, s4\ns_mov_b32 s25, 0')
    a('s_branch s3_adr')
    a.label('s3_mix')
    a('s_add_u32 s16, s29, 4\ns_add_u32 s24, s24, 1\ns_lshl_b32 s25, s25, 3')
    a.label('s3_adr')
    a('s_mul_i32 s22, s22, 6\ns_add_u32 s16, s16, s22\ns_lshl_b32 s16, s16, 10\ns_add_u32 s16, s16, s%d' % PRT)
    a('s_lshl_b32 s4, s24, 2\ns_add_u32 s4, s4, s26\ns_lshl_b32 s4, s4, 10\ns_add_u32 s4, s4, s25\ns_add_u32 s4, s4, %d' % XI)
    a('v_add_u32 v6, s4, v1')
    a('s_lshl_b32 s4, s14, 2\ns_add_u32 s4, s4, s26\ns_mul_i32 s17, s4, 18432\ns_add_u32 s17, s17, s25')
    a('s_mov_b32 s39, 0x20000')
    a('s_cmp_eq_u32 s%d, 0' % LAY)
    a('s_cbranch_scc0 s3_fin')
    a('s_mov_b32 s36, s8\ns_mov_b32 s37, s9\ns_mov_b32 s38, s10')
    a('s_lshl_b32 s4, s24, 10\ns_add_u32 s17, s17, s4\ns_add_u32 s17, s17, %d' % (X0 + ACT))
    a('v_mov_b32 v7, v1')
    a('s_branch s3_pub')
    a.label('s3_fin')
    a('s_mov_b32 s36, s94\ns_mov_b32 s37, s95\ns_mov_b32 s38, %d' % ACT)
    a('s_lshl_b32 s4, s24, 6\ns_add_u32 s17, s17, s4')
    a('v_mul_u32_u24 v7, 1152, v2')
    a('v_lshl_add_u32 v7, v3, 4, v7')
    a.label('s3_pub')
    stamp(a, 'pst')
    a('s_waitcnt vmcnt(0)')
    stamp(a, 'pdr')
    mem_arrive(a, 6, VZ, 4)
    a('s_cmp_eq_u32 s20, 3')
    a('s_cbranch_scc1 s3_red_done')
    RX = 8; PP = 20; AC = 12
    a('ds_read_b64 %s, v6' % vr(RX, 2))
    a('s_cmp_eq_u32 s20, 2')
    a('s_cselect_b32 s4, 1024, 8')
    a('v_add_u32 v6, s4, v6')
    a('ds_read_b64 %s, v6' % vr(RX + 2, 2))
    if RED_MODE == 0:
        mem_wait(a, 's3_rw', 7, RFW, VZ, 5, backoff=(18, 5))
        stamp(a, 'rw0')
        a('s_add_u32 s33, s18, 2\ns_min_u32 s33, s33, 6')
        lds_spin(a, 's3_t6r', VT, VK, TOK, 0, 0, ge=33)
    else:
        a('s_mov_b32 s33, 6' if RED_MODE == 1 else 's_add_u32 s33, s18, 2\ns_min_u32 s33, s33, 6')
        lds_spin(a, 's3_t6r', VT, VK, TOK, 0, 0, ge=33)
        stamp(a, 'rw0')
        mem_wait(a, 's3_rw', 7, RFW, VZ, 5)
    stamp(a, 'rw1')
    for c in range(8):
        a('buffer_load_dwordx4 %s, v1, s[8:11], s16 offen sc1' % vr(PP + 4 * c, 4))
        if c < 7:
            a('s_add_u32 s16, s16, %d' % ACT)
    a('s_waitcnt lgkmcnt(0)')
    for n in range(4):
        a('v_lshlrev_b32 %s, 16, %s' % (vr(AC + 2 * n), vr(RX + n)))
        a('v_and_b32 %s, 0xffff0000, %s' % (vr(AC + 2 * n + 1), vr(RX + n)))
    for c in range(8):
        a('s_waitcnt vmcnt(%d)' % (7 - c))
        for n in range(4):
            a('v_lshlrev_b32 %s, 16, %s' % (vr(RX + n), vr(PP + 4 * c + n)))
            a('v_and_b32 %s, 0xffff0000, %s' % (vr(PP + 4 * c + n), vr(PP + 4 * c + n)))
        for n in range(4):
            a('v_add_f32 %s, %s, %s' % (vr(AC + 2 * n), vr(AC + 2 * n), vr(RX + n)))
            a('v_add_f32 %s, %s, %s' % (vr(AC + 2 * n + 1), vr(AC + 2 * n + 1), vr(PP + 4 * c + n)))
    for n in range(4):
        a('v_cvt_pk_bf16_f32 %s, %s, %s' % (vr(RX + n), vr(AC + 2 * n), vr(AC + 2 * n + 1)))
    stamp(a, 'rsum')
    a('s_cmp_eq_u32 s20, 2')
    a('s_cbranch_scc1 s3_stm')
    a('buffer_store_dwordx4 %s, v7, s[36:39], s17 offen sc1' % vr(RX, 4))
    a('s_branch s3_red_done')
    a.label('s3_stm')
    a('buffer_store_dwordx2 %s, v7, s[36:39], s17 offen sc1' % vr(RX, 2))
    a('s_add_u32 s17, s17, 18432')
    a('buffer_store_dwordx2 %s, v7, s[36:39], s17 offen sc1' % vr(RX + 2, 2))
    a.label('s3_red_done')
    a('s_setprio 0')
    a('s_cmp_eq_u32 s%d, 0' % LAY)
    a('s_cbranch_scc0 mega_fin')
    a('s_waitcnt vmcnt(0)')
    if STAMPS:
        stamp_end(a, 6, 12, 12, 12, base_v=8)
        a('s_mov_b64 exec, -1')
        a('s_waitcnt vmcnt(0)')
        stamp(a, 0)
    a('s_mov_b32 s%d, 1\ns_mov_b32 s%d, %d\ns_mov_b32 s%d, 64\ns_mov_b32 s%d, 16' % (LAY, LOFF, ACT, CBW, RFW))
    a('s_add_u32 s%d, s%d, %d\ns_add_u32 s%d, s%d, %d' % (SOF, SOF, 32 * HS, PRT, PRT, PART_STEP))
    a('s_cmp_ge_u32 s12, 7')
    a('s_cbranch_scc1 s3_nf')
    a('s_mov_b32 s33, 6')
    lds_spin(a, 's3_t6', VT, VK, TOK, 0, 0, ge=33)
    s1_fill()
    a.label('s3_nf')
    stamp(a, 'fil')
    group_sync('e4')
    a('s_barrier')
    stamp(a, 'e4')
    a('s_branch s1_again')
    a.label('mega_fin')
    if AMP:
        a('s_cmp_eq_u32 s2, 20\ns_cbranch_scc0 amp_x')
        a('s_cmp_eq_u32 s12, 8\ns_cbranch_scc0 amp_x')
        a('s_waitcnt vmcnt(0)')
        a('s_mov_b32 s4, %d' % (DBG - 4096))
        a('buffer_load_dword v8, %s, s[8:11], s4 offen' % vr(VZ))
        a('s_memrealtime s[40:41]')
        a('s_waitcnt vmcnt(0) lgkmcnt(0)')
        a('v_readfirstlane_b32 s42, v8')
        if AMP == 'all':
            a('s_sub_u32 s43, s40, s42')
        elif AMP == 'mega':
            a('s_sub_u32 s43, s40, s84')
        elif AMP == 'prep':
            a('s_sub_u32 s43, s84, s42')
        else:
            a('s_mov_b32 s43, 0')
        a('s_min_u32 s43, s43, 50000')
        a.label('amp_l')
        a('s_memrealtime s[44:45]')
        a('s_waitcnt lgkmcnt(0)')
        a('s_sub_u32 s44, s44, s40')
        a('s_cmp_lt_u32 s44, s43')
        a('s_cbranch_scc1 amp_l')
        a.label('amp_x')
    stamp_end(a, 7, 12, 12, 12, base_v=8)
    a.label('mega_end')
    a('s_endpgm')
    return ('mega_kernel', a, 168, 100, (256, 768, LDS))


def gen_empty(n=''):
    a = Asm()
    a('s_endpgm')
    return ('empty%s_kernel' % n, a, 8, 16, (256, 256, 0))


def gen_chain(slot):
    a = Asm()
    a('s_cmp_ge_u32 s2, 32')
    a('s_cbranch_scc1 chain_end')
    a('s_load_dwordx2 s[8:9], s[0:1], %d' % (8 * slot))
    a('s_mov_b32 s10, %d\ns_mov_b32 s11, 0x20000' % ACT)
    a('s_mul_i32 s4, s2, %d' % (64 * 1024))
    a('v_mov_b32 v1, 0')
    a('s_mov_b64 exec, 1')
    a('s_waitcnt lgkmcnt(0)')
    for k in range(64):
        a('buffer_load_dword v2, v1, s[8:11], s4 offen')
        a('s_waitcnt vmcnt(0)')
        a('v_and_b32 v2, 0, v2')
        a('v_add_u32 v1, 1024, v1')
        a('v_add_u32 v1, v2, v1')
    a.label('chain_end')
    a('s_endpgm')
    return ('chain_kernel', a, 8, 16, (32, 64, 0))


PRE = []
RED_MODE = 2
EPB_PRIO = 3
PREP_RANGES = ((0, 8), (8, 80), (80, 152), (152, 264), (264, 300), (300, 428))
NCX = 4
S2_WE = 9
S2_W0 = 3
S2_W1 = 1
P3_LEAD = 0
PART_STEP = 0
MID = []
KD_PF = False
P3_SLEEP = 0
P3_TOK = 10
P3_EPRIO2 = 0
P3_SPRIO = 3
PF1 = []
PF2 = []
PF3 = None
P0_LD = ''
P1_NCX = 4
P2_NCX = 4
P1_ST = ' sc1'
P2_W0 = 4
P2_W1 = 2
CODE_PF = True
PREP_ST = ' sc1'
PREP_XLD = ' nt'
P3_LD = ''
P3_SNAKE = True
P3_EPRIO = 0
PF = False
P3_NODS = False
P3_NOLD = False
PRIO = True
P3_NCX = 4
P3_ST = ' sc1'


def build():
    ks = [gen_prep(), gen_mega()]
    for e in sorted(set(MID)):
        ks.append(gen_empty(e[5:]))
    geo = {k[0]: k[4] for k in ks}
    order = ['prep'] + MID + ['mega']
    hdr = ['; generated by gen/gen.py (hand-written generator); see that file for the layouts']
    for o in order:
        g, b, l = geo[o + '_kernel']
        hdr.append('; @launch kernel=%s_kernel grid=(%d,1,1) block=(%d,1,1) lds=%d' % (o, g, b, l))
    out = '\n'.join(hdr) + '\n.amdgcn_target "amdgcn-amd-amdhsa--gfx950"\n'
    descs = ''
    for name, a, nv, ns, _ in ks:
        c, d = kernel_text(name, a, nv, ns)
        out += c
        descs += d
    out += 'code_end:\n'
    return out + '.section .rodata,"a"\n.p2align 6\nkd_begin:\n' + descs + 'kd_end:\n'


if __name__ == '__main__':
    path = sys.argv[1] if len(sys.argv) > 1 else 'cdna_kernels/%s.s' % NAME
    for o in sys.argv[2:]:
        k, v = o.split('=')
        globals()[k] = eval(v)
    open(path, 'w').write(build())
    print('wrote', path)
```

```python
import sys
from asmlib import Asm, vr, sr, kernel_text

NAME = 'interleave_layers__linear_attn_block__dense_activation_silu__prompt'
S, D, F = 2048, 576, 4608
ACT = S * D * 2
WQ_HG = 258048
WQ = 0
WO = WQ + 8 * WQ_HG
W1 = WO + 36 * 18432
W2 = W1 + D * F * 2
X0 = W2 + D * F * 2
X1 = X0 + 2 * ACT
PQ = X1 + 2 * ACT
HS = 1536
SS = PQ + 2 * ACT
FL = SS + 64 * HS
FL_GB = FL
FL_CB = FL + 32 * 128
FL_RF = FL + 64 * 128
FL_GT = FL + 448 * 128
ZERO_BYTES = 64 * HS + 576 * 128
PART = SS + ZERO_BYTES
WS_BYTES = 268435456
OOB = 0x80000000
LOG2E = 0x3fb8aa3b
NLOG2E = 0xbfb8aa3b
EPS6 = 0x358637bd
EPS5 = 0x3727c5ac
INV576 = 0x3ae38e39
ONES = 0x3f803f80
MF = 'v_mfma_f32_16x16x32_bf16'


def mfma(a, d, x, y, c=None):
    a('%s %s, %s, %s, %s' % (MF, vr(d, 4), vr(x, 4), vr(y, 4), '0' if c is None else vr(c, 4)))


def ws_srd(a):
    a('s_load_dwordx2 s[8:9], s[0:1], 64')
    a('s_mov_b32 s10, 0x%x' % WS_BYTES)
    a('s_mov_b32 s11, 0x20000')


def wave_id(a, sdst, vtmp):
    a('v_lshrrev_b32 %s, 6, v0' % vr(vtmp))
    a('v_readfirstlane_b32 %s, %s' % (sr(sdst), vr(vtmp)))
    a('v_and_b32 v0, 63, v0')


DBG = 128 << 20
STAMPS = False
AMP = None
DBGOUT = 0


SEL = ['x1', 's1m', 's1d', 'e1a', 'e1b', 'o', 's2d', 'x3', 'pa', 'pb']


def stamp(a, i):
    if isinstance(i, str):
        if i not in SEL:
            return
        i = SEL.index(i) + 1
    if STAMPS:
        a('s_mem%stime s[%d:%d]' % ('real' if STAMPS == 2 else '', 60 + 2 * i, 61 + 2 * i))


def stamp_begin(a):
    if STAMPS:
        a('s_memrealtime s[56:57]')
        stamp(a, 0)


def stamp_end(a, kid, n, s_wave, nw, base_v=2):
    if not STAMPS:
        return
    a('s_waitcnt vmcnt(0)')
    stamp(a, n - 1)
    a('s_memrealtime s[58:59]')
    a('s_getreg_b32 s55, hwreg(HW_REG_XCC_ID)')
    a('s_getreg_b32 s54, hwreg(HW_REG_HW_ID)')
    a('s_mov_b64 exec, -1')
    a('s_mul_i32 s4, s2, %d\ns_add_u32 s4, s4, %s\ns_lshl_b32 s4, s4, 6\ns_add_u32 s4, s4, %d' % (nw, sr(s_wave), DBG + (kid << 20)))
    a('s_waitcnt lgkmcnt(0)')
    d, o = base_v, base_v + 1
    a('v_mov_b32 v%d, 0' % d)
    for i in range(n):
        a('v_writelane_b32 v%d, s%d, %d' % (d, 60 + 2 * i, i))
    a('v_writelane_b32 v%d, s54, 12' % d)
    a('v_writelane_b32 v%d, s55, 13' % d)
    a('v_writelane_b32 v%d, s56, 14' % d)
    a('v_writelane_b32 v%d, s58, 15' % d)
    a('v_mbcnt_lo_u32_b32 v%d, -1, 0' % o)
    a('v_lshlrev_b32 v%d, 2, v%d' % (o, o))
    a('s_mov_b64 exec, 0xffff')
    a('buffer_store_dword v%d, v%d, s[8:11], s4 offen' % (d, o))
    if DBGOUT and kid in (0, 6, 7):
        L = 'dbgo%d_%d' % (kid, len(a.lines))
        a('s_cmp_eq_u32 s2, %d\ns_cbranch_scc0 %s' % (DBGOUT, L))
        a('s_cmp_eq_u32 %s, %d\ns_cbranch_scc0 %s' % (sr(s_wave), 0 if kid == 0 else 8, L))
        a('s_load_dwordx2 s[40:41], s[0:1], 56')
        a('s_mov_b32 s42, 1024\ns_mov_b32 s43, 0x20000')
        a('s_waitcnt lgkmcnt(0)')
        if kid == 0:
            a('s_mov_b64 exec, 0xc000')
            a('buffer_store_dword v%d, v%d, s[40:43], 0 offen' % (d, o))
            a('buffer_store_dword v%d, v%d, s[40:43], 0 offen offset:512' % (d, o))
        else:
            a('s_sub_u32 s40, s40, 512\ns_subb_u32 s41, s41, 0')
            a('v_writelane_b32 v%d, s58, 6' % d)
            a('s_mov_b64 exec, 0x7f')
            a('buffer_store_dword v%d, v%d, s[40:43], 0 offen offset:%d' % (d, o, 28 * (kid - 6)))
            a('buffer_store_dword v%d, v%d, s[40:43], 0 offen offset:%d' % (d, o, 512 + 28 * (kid - 6)))
        a.label(L)


def centre(a, nw, nk, nt, fr, ON, CS, s_w, lds_cs, store):
    for k in range(4):
        a('v_mov_b32 %s, 0x%x' % (vr(ON + k), ONES))
    for k in range(nk):
        for c in range(nt):
            mfma(a, CS + 4 * c, ON, fr(k, c), None if k == 0 else CS + 4 * c)
    a('v_mul_u32_u24 v4, %d, v2' % (32 * nw))
    a('s_lshl_b32 s4, %s, 5' % sr(s_w))
    a('v_add_u32 v5, s4, v4')
    for c in range(4):
        a('v_mov_b32 %s, %s' % (vr(ON + c), vr(CS + 4 * c)))
    a('ds_write_b128 v5, %s offset:%d' % (vr(ON, 4), lds_cs))
    if nt > 4:
        a('ds_write_b32 v5, %s offset:%d' % (vr(CS + 16), lds_cs + 16))
    a('s_waitcnt lgkmcnt(0)')
    a('s_barrier')
    for w in range(nw):
        a('ds_read_b128 %s, v4 offset:%d' % (vr(CS + 4 * w, 4), lds_cs + 32 * w))
        if nt > 4:
            a('ds_read_b32 %s, v4 offset:%d' % (vr(CS + 4 * nw + w), lds_cs + 32 * w + 16))
    a('s_waitcnt lgkmcnt(0)')
    mean = [CS + c for c in range(4)] + [CS + 4 * nw]
    for c in range(nt):
        for w in range(1, nw):
            a('v_add_f32 %s, %s, %s' % (vr(mean[c]), vr(mean[c]), vr(CS + 4 * w + c if c < 4 else CS + 4 * nw + w)))
    for c in range(nt):
        a('v_mul_f32 %s, 0x%x, %s' % (vr(CS + 8 + 2 * c), INV576 | 0x80000000, vr(mean[c])))
    for k in range(nk):
        for c in range(nt):
            f = fr(k, c)
            for p in range(4):
                a('v_lshlrev_b32 %s, 16, %s' % (vr(12 + 2 * p), vr(f + p)))
                a('v_and_b32 %s, 0xffff0000, %s' % (vr(13 + 2 * p), vr(f + p)))
            for p in range(4):
                a('v_pk_add_f32 %s, %s, %s op_sel_hi:[1,0]' % (vr(12 + 2 * p, 2), vr(12 + 2 * p, 2), vr(CS + 8 + 2 * c, 2)))
            for p in range(4):
                a('v_cvt_pk_bf16_f32 %s, %s, %s' % (vr(f + p), vr(12 + 2 * p), vr(13 + 2 * p)))
            store(k, c)


def gen_prep():
    a = Asm()
    NM = 72; NW = 6; NK = 3
    U_W2 = 72; U_WO = 144; U_WQ = 153; NU = 177
    LCS = 0; LB = 3072; LW = 19328
    FR = 24; ON = 8
    a('s_cmp_ge_u32 s2, %d' % (NM + NU))
    a('s_cbranch_scc1 prep_end')
    stamp_begin(a)
    ws_srd(a)
    a('s_load_dwordx4 s[24:27], s[0:1], 0')
    a('s_load_dwordx2 s[28:29], s[0:1], 16')
    a('s_load_dwordx4 s[32:35], s[0:1], 32')
    wave_id(a, 3, 1)
    a('v_lshlrev_b32 v1, 4, v0')
    a('v_and_b32 v2, 15, v0')
    a('v_lshrrev_b32 v3, 4, v0')
    a('s_mov_b32 s15, 0x20000')
    a('s_cmp_lt_u32 s2, %d' % NM)
    a('s_cbranch_scc1 prep_misc')
    a('s_sub_u32 s20, s2, %d' % (NM + 24))
    a('s_cmp_lt_u32 s2, %d' % (NM + 24))
    a('s_cselect_b32 s4, %d, 0' % NU)
    a('s_add_u32 s20, s20, s4')
    a('s_lshr_b32 s5, s20, 3\ns_add_u32 s4, s20, s5\ns_and_b32 s4, s4, 7\ns_lshl_b32 s5, s5, 3\ns_add_u32 s4, s4, s5')
    a('s_cmp_lt_u32 s20, 72\ns_cselect_b32 s20, s4, s20')
    a('s_mul_i32 s22, s3, %d\ns_add_u32 s22, s22, %d' % (LW, LB))
    a('s_mov_b32 s23, s22')
    a('v_bfe_u32 v6, v0, 2, 2')
    a('v_lshl_add_u32 v7, v3, 3, v6')
    a('s_cmp_ge_u32 s20, %d' % U_WQ)
    a('s_cbranch_scc1 prep_q')
    fr = lambda k, c: FR + (k * 4 + c) * 4
    CS = FR + 16 * NK
    a('v_lshrrev_b32 v8, 3, v0')
    a('v_and_b32 v5, 7, v0')
    a('v_lshrrev_b32 v6, 2, v0')
    a('v_and_b32 v6, 4, v6')
    a('v_xor_b32 v5, v5, v6')
    a('v_lshlrev_b32 v9, 4, v5')
    a('s_cmp_ge_u32 s20, %d' % U_WO)
    a('s_cbranch_scc1 prep_wo')
    a('s_mov_b32 s14, %d' % (D * F * 2))
    a('s_cmp_ge_u32 s20, %d' % U_W2)
    a('s_cbranch_scc1 prep_w2')
    a('s_mov_b32 s18, 9216\ns_lshl_b32 s19, s20, 7\ns_mov_b32 s16, %d\ns_lshl_b32 s21, s20, 2' % W1)
    a('s_waitcnt lgkmcnt(0)')
    a('s_mov_b32 s12, s32\ns_mov_b32 s13, s33')
    a('s_branch prep_w12')
    a.label('prep_w2')
    a('s_sub_u32 s21, s20, %d' % U_W2)
    a('s_mul_i32 s4, s21, 7282\ns_lshr_b32 s4, s4, 16')
    a('s_mul_i32 s5, s4, 9\ns_sub_u32 s5, s21, s5\ns_lshl_b32 s5, s5, 7')
    a('s_mul_i32 s19, s4, %d\ns_add_u32 s19, s19, s5' % (576 * 1152))
    a('s_mov_b32 s18, 1152\ns_mov_b32 s16, %d\ns_lshl_b32 s21, s21, 2' % W2)
    a('s_waitcnt lgkmcnt(0)')
    a('s_mov_b32 s12, s34\ns_mov_b32 s13, s35')
    a.label('prep_w12')
    a('s_mul_i32 s4, s3, s18\ns_mul_i32 s4, s4, %d\ns_add_u32 s19, s19, s4' % (32 * NK))
    a('s_lshl_b32 s17, s18, 3')
    a('v_mul_lo_u32 v4, v8, s18')
    a('v_add_u32 v4, v4, v9')
    for n in range(4 * NK):
        a('s_mov_b32 m0, s23')
        a('s_add_u32 s23, s23, 1024')
        a('buffer_load_dwordx4 v4, s[12:15], s19 offen nt lds')
        a('s_add_u32 s19, s19, s17')
    for c in range(4):
        a('s_add_u32 s4, s21, %d\ns_mul_i32 s5, s4, 43691\ns_lshr_b32 s5, s5, 17' % c)
        a('s_mul_i32 s6, s5, 3\ns_sub_u32 s4, s4, s6')
        a('s_and_b32 s6, s5, 1\ns_lshl_b32 s6, s6, 1\ns_add_u32 s4, s4, s6')
        a('s_cmp_ge_u32 s4, 3\ns_cselect_b32 s6, 3, 0\ns_sub_u32 s4, s4, s6')
        a('s_mul_i32 s6, s5, 54\ns_add_u32 s4, s4, s6\ns_mul_i32 s6, s3, %d\ns_add_u32 s4, s4, s6' % (3 * NK))
        a('s_lshl_b32 s4, s4, 10\ns_add_u32 s%d, s4, s16' % (36 + c))
    a('s_mov_b32 s17, 3072')
    a('s_branch prep_tr')
    a.label('prep_wo')
    a('s_sub_u32 s21, s20, %d' % U_WO)
    a('v_lshrrev_b32 v10, 2, v8\nv_and_b32 v11, 3, v8')
    a('v_mad_u32_u24 v10, v10, 20, v11')
    a('v_mul_u32_u24 v10, 1152, v10')
    a('v_add_u32 v10, v10, v9')
    a('v_lshrrev_b32 v11, 1, v8\nv_mul_u32_u24 v11, 72, v11\nv_and_b32 v4, 1, v8\nv_add_u32 v11, v11, v4')
    a('v_mul_u32_u24 v11, 1152, v11')
    a('v_add_u32 v11, v11, v9')
    a('s_mov_b32 s14, %d' % (D * D * 2))
    a('s_lshl_b32 s18, s21, 7')
    a('s_waitcnt lgkmcnt(0)')
    a('s_mov_b32 s12, s28\ns_mov_b32 s13, s29')
    for k in range(NK):
        a('s_mul_i32 s4, s3, %d\ns_add_u32 s4, s4, %d' % (NK, k))
        a('s_mul_i32 s19, s4, 36\ns_sub_u32 s5, s4, 16\ns_mul_i32 s5, s5, 288\ns_add_u32 s5, s5, 16')
        a('s_cmp_lt_u32 s4, 16')
        a('s_cselect_b32 s19, s19, s5\ns_cselect_b32 s30, 4, 2\ns_cselect_b32 s31, 4, 34\ns_cselect_b64 vcc, -1, 0')
        a('s_mul_i32 s19, s19, 1152\ns_add_u32 s19, s19, s18\ns_mul_i32 s30, s30, 1152\ns_mul_i32 s31, s31, 1152')
        a('v_cndmask_b32 v4, v11, v10, vcc')
        for g in range(4):
            a('s_mov_b32 m0, s23')
            a('s_add_u32 s23, s23, 1024')
            a('buffer_load_dwordx4 v4, s[12:15], s19 offen nt lds')
            if g < 3:
                a('s_add_u32 s19, s19, s%d' % (31 if g == 1 else 30))
    for c in range(4):
        a('s_lshl_b32 s4, s21, 2\ns_add_u32 s4, s4, %d\ns_mul_i32 s4, s4, 18\ns_mul_i32 s5, s3, %d\ns_add_u32 s4, s4, s5' % (c, NK))
        a('s_lshl_b32 s4, s4, 10\ns_add_u32 s%d, s4, %d' % (36 + c, WO))
    a('s_mov_b32 s17, 1024')
    a.label('prep_tr')
    stamp(a, 1)
    a('v_lshlrev_b32 v5, 7, v7')
    a('v_and_b32 v6, 3, v0')
    a('v_lshl_add_u32 v5, v6, 4, v5')
    a('v_and_b32 v6, 8, v0')
    a('v_lshl_add_u32 v5, v6, 3, v5')
    a('v_add_u32 v5, s22, v5')
    a('v_xor_b32 v6, 64, v5')
    for k in range(NK):
        a('s_waitcnt vmcnt(%d)' % (4 * (NK - 1 - k)))
        for c in range(4):
            for hi in range(2):
                a('ds_read_b64_tr_b16 %s, v%d offset:%d' % (vr(fr(k, c) + 2 * hi, 2), 5 + (c >> 1), 4096 * k + 512 * hi + 8 * (c & 1)))
        a('s_waitcnt lgkmcnt(%d)' % (4 if k + 1 < NK else 0))
    stamp(a, 2)
    a('s_cmp_ge_u32 s20, %d' % U_W2)
    a('s_cbranch_scc1 prep_st')

    def st4(k, c):
        a('buffer_store_dwordx4 %s, v1, s[8:11], s%d offen%s' % (vr(fr(k, c), 4), 36 + c, PREP_ST))
        a('s_add_u32 s%d, s%d, s17' % (36 + c, 36 + c))
    centre(a, NW, NK, 4, fr, ON, CS, 3, LCS, st4)
    stamp(a, 3)
    stamp_end(a, 0, 5, 3, 6)
    a('s_endpgm')
    a.label('prep_st')
    for k in range(NK):
        for c in range(4):
            st4(k, c)
    stamp(a, 3)
    stamp_end(a, 0, 5, 3, 6)
    a('s_endpgm')
    a.label('prep_q')
    fq = lambda k, c: FR + (k * 5 + c) * 4
    CQ = FR + 20 * NK
    a('s_sub_u32 s21, s20, %d' % U_WQ)
    a('s_and_b32 s30, s21, 7\ns_lshr_b32 s31, s21, 3')
    a('v_mul_u32_u24 v4, 43, v0\nv_lshrrev_b32 v4, 9, v4')
    a('v_mul_u32_u24 v5, %d, v4' % (3456 - 192))
    a('v_add_u32 v4, v5, v1')
    a('s_mul_i32 s19, s3, %d\ns_mul_i32 s4, s31, 1152\ns_add_u32 s19, s19, s4\ns_mul_i32 s4, s30, 144' % (96 * 3456))
    a('s_and_b32 s5, s4, 63\ns_sub_u32 s4, s4, s5\ns_add_u32 s19, s19, s4\ns_add_u32 s22, s22, s5')
    a('s_mov_b32 s14, %d' % (D * 3 * D * 2))
    a('s_waitcnt lgkmcnt(0)')
    a('s_mov_b32 s12, s26\ns_mov_b32 s13, s27')
    for n in range(20):
        a('s_mov_b32 m0, s23')
        a('s_add_u32 s23, s23, 960')
        if n == 19:
            a('s_mov_b64 exec, 0xfff')
        a('buffer_load_dwordx4 v4, s[12:15], s19 offen%s lds' % PREP_QLD)
        a('s_add_u32 s19, s19, %d' % (5 * 3456))
    a('s_mov_b64 exec, -1')
    stamp(a, 1)
    a('v_mul_u32_u24 v7, 192, v7')
    a('v_add_u32 v7, s22, v7')
    a('v_and_b32 v6, 3, v0')
    a('v_lshl_add_u32 v5, v6, 3, v7')
    a('s_cmp_eq_u32 s31, 0\ns_cselect_b32 s4, 1, 0')
    a('v_lshrrev_b32 v6, s4, v0\nv_and_b32 v6, 1, v6')
    a('v_mul_u32_u24 v6, 72, v6')
    a('v_add_u32 v6, v6, v7')
    a('s_mul_i32 s16, s30, 252\ns_mul_i32 s4, s3, %d\ns_add_u32 s16, s16, s4' % (2 * NK))
    a('s_cmp_eq_u32 s31, 0')
    for c in range(4):
        a('s_cselect_b32 s%d, %d, %d' % (36 + c, 8 + c, 2 * c))
    a('s_cselect_b32 s40, 13, 12')
    a('s_cselect_b32 s42, -1, 0x00ff00ff')
    a('s_lshr_b32 s5, s31, 1')
    a('s_lshl_b32 s6, s5, 3\ns_lshl_b32 s42, s42, s6')
    for c in range(5):
        if c < 4:
            a('s_add_u32 s%d, s%d, s5' % (36 + c, 36 + c))
        a('s_lshr_b32 s4, s%d, 1\ns_mul_i32 s4, s4, 34\ns_add_u32 s4, s4, s%d\ns_add_u32 s4, s4, s16' % (36 + c, 36 + c))
        a('s_lshl_b32 s4, s4, 10\ns_add_u32 s%d, s4, %d' % (36 + c, WQ))
    for k in range(NK):
        a('s_waitcnt vmcnt(%d)' % (13, 7, 0)[k])
        for c in range(5):
            for hi in range(2):
                a('ds_read_b64_tr_b16 %s, v%d offset:%d' % (vr(fq(k, c) + 2 * hi, 2), 5 if c < 4 else 6, 6144 * k + 768 * hi + (0, 40, 72, 112, 32)[c]))
        a('s_waitcnt lgkmcnt(%d)' % (4 if k + 1 < NK else 0))
    stamp(a, 2)

    def st5(k, c):
        if c == 4:
            a('s_mov_b32 exec_lo, s42\ns_mov_b32 exec_hi, s42')
        a('buffer_store_dwordx4 %s, v1, s[8:11], s%d offen offset:%d%s' % (vr(fq(k, c), 4), 36 + c, 2048 * (k & 1), PREP_ST))
        if c == 4:
            a('s_mov_b64 exec, -1')
        if k == 1:
            a('s_add_u32 s%d, s%d, 4096' % (36 + c, 36 + c))
    centre(a, NW, NK, 5, fq, ON, CQ, 3, LCS, st5)
    stamp(a, 3)
    stamp_end(a, 0, 5, 3, 6)
    a('s_endpgm')
    a.label('prep_misc')
    if AMP:
        a('s_memrealtime s[34:35]')
        a('s_waitcnt lgkmcnt(0)')
        a('v_mov_b32 v8, s34')
        a('v_mov_b32 v9, 0')
        a('s_mov_b32 s4, %d' % (DBG - 4096))
        a('buffer_store_dword v8, v9, s[8:11], s4 offen')
    a('s_and_b32 s30, s2, 7\ns_lshr_b32 s31, s2, 3\ns_mul_i32 s31, s31, 6\ns_add_u32 s31, s31, s3')
    a('s_getpc_b64 s[4:5]')
    a.label('prep_pc')
    a('s_sub_u32 s4, s4, prep_pc-prep_kernel')
    a('s_subb_u32 s5, s5, 0')
    a('s_mul_i32 s6, s31, 768')
    a('v_lshl_add_u32 v4, v0, 7, s6')
    a('v_min_u32 v4, code_end-prep_kernel-4, v4')
    a('s_mov_b64 exec, 63')
    a('global_load_dword v5, v4, s[4:5]')
    a('s_mov_b64 exec, -1')
    a('s_mul_i32 s19, s31, %d\ns_add_u32 s19, s19, %d' % (8 * 9216, 144 * 9216 + 384))
    a('s_sub_u32 s4, 3, s30\ns_and_b32 s4, s4, 7\ns_lshl_b32 s4, s4, 10\ns_add_u32 s19, s19, s4')
    a('v_and_b32 v4, 7, v0\nv_mul_u32_u24 v4, 9216, v4\nv_and_b32 v8, 8, v0')
    a('v_lshl_add_u32 v4, v8, 10, v4')
    a('v_lshlrev_b32 v8, 7, v0')
    a('s_cmp_eq_u32 s30, 3\ns_cselect_b32 s4, 8, 0\ns_lshl_b32 s4, 0xff, s4\ns_or_b32 exec_lo, s4, 0xff\ns_mov_b32 exec_hi, 0')
    a('s_mov_b32 s14, %d' % (D * F * 2))
    a('s_waitcnt lgkmcnt(0)')
    a('s_mov_b32 s12, s32\ns_mov_b32 s13, s33')
    a('buffer_load_dword v7, v4, s[12:15], s19 offen')
    a('s_mov_b64 exec, -1')
    a('s_mul_i32 s5, s31, 3641\ns_lshr_b32 s5, s5, 16\ns_mul_i32 s6, s5, 18\ns_sub_u32 s4, s31, s6')
    a('s_mul_i32 s19, s4, %d\ns_mul_i32 s5, s5, 1152\ns_add_u32 s19, s19, s5\ns_lshl_b32 s5, s30, 7\ns_add_u32 s19, s19, s5' % (32 * 3456))
    a('v_lshrrev_b32 v4, 1, v0\nv_mul_u32_u24 v4, 3456, v4\nv_and_b32 v6, 1, v0')
    a('v_lshl_add_u32 v4, v6, 7, v4')
    a('s_mov_b32 s14, %d' % (D * 3 * D * 2))
    a('s_mul_i32 s16, s2, 6\ns_add_u32 s16, s16, s3')
    for k in range(4):
        a('v_mov_b32 v%d, 0' % (16 + k))
    a('s_mov_b32 s12, s26\ns_mov_b32 s13, s27')
    a('buffer_load_dword v6, v4, s[12:15], s19 offen%s' % PREP_HLD)
    a('s_mul_i32 s19, s30, 2304\ns_mul_i32 s4, s31, 43\ns_add_u32 s19, s19, s4\ns_lshl_b32 s19, s19, 7')
    a('s_mov_b32 exec_lo, -1\ns_mov_b32 exec_hi, 0x7ff')
    a('s_mov_b32 s14, %d' % ACT)
    a('s_mov_b32 s12, s24\ns_mov_b32 s13, s25')
    a('buffer_load_dword v9, v8, s[12:15], s19 offen')
    a('s_mov_b64 exec, -1')
    a('s_cmp_ge_u32 s16, %d' % (ZERO_BYTES // 1024))
    a('s_cbranch_scc1 prep_nz')
    a('s_lshl_b32 s16, s16, 10\ns_add_u32 s16, s16, %d' % SS)
    a('buffer_store_dwordx4 v[16:19], v1, s[8:11], s16 offen%s' % PREP_ST)
    a.label('prep_nz')
    stamp_end(a, 0, 5, 3, 6)
    a.label('prep_end')
    a('s_endpgm')
    return ('prep_kernel', a, CQ + 32, 96 if STAMPS else 48, (NM + NU, 384, LB + NW * LW))


def xcd_map(a, ncx, s_c, s_r, nc=8):
    lg = ncx.bit_length() - 1
    ng = nc // ncx
    lgg = ng.bit_length() - 1
    a('s_and_b32 s4, s2, 7\ns_lshr_b32 s5, s2, 3')
    a('s_and_b32 s6, s4, %d\ns_lshl_b32 s6, s6, %d\ns_and_b32 s7, s5, %d\ns_add_u32 %s, s6, s7' % (ng - 1, lg, ncx - 1, sr(s_c)))
    a('s_lshr_b32 s6, s4, %d\ns_mul_i32 s6, s6, %d\ns_lshr_b32 s7, s5, %d\ns_add_u32 %s, s6, s7' % (lgg, 32 // ncx, lg, sr(s_r)))


def l2_touch(a, base, part_bytes, ncx, nc, v_t, v_d, share=1, s_sub=None):
    ng = nc // ncx
    lines = ncx * part_bytes // 128
    per = -(-lines // (32 * share))
    n = -(-per // 64)
    a('s_and_b32 s4, s2, %d\ns_mul_i32 s4, s4, %d\ns_add_u32 s4, s4, %d' % (ng - 1, ncx * part_bytes, base))
    a('s_lshr_b32 s5, s2, 3')
    if share > 1:
        a('s_mul_i32 s5, s5, %d\ns_add_u32 s5, s5, %s' % (share, sr(s_sub)))
    a('s_mul_i32 s5, s5, %d' % per)
    for i in range(n):
        a('v_add_u32 %s, %d, v0' % (vr(v_t), 64 * i))
        if (i + 1) * 64 > per:
            a('v_min_u32 %s, %d, %s' % (vr(v_t), per - 1, vr(v_t)))
        a('v_add_u32 %s, s5, %s' % (vr(v_t), vr(v_t)))
        a('v_min_u32 %s, %d, %s' % (vr(v_t), lines - 1, vr(v_t)))
        a('v_lshlrev_b32 %s, 7, %s' % (vr(v_t), vr(v_t)))
        a('buffer_load_dword %s, %s, s[8:11], s4 offen' % (vr(v_d), vr(v_t)))


def x_dma(a, nk, s_g, s_l, v_l16):
    for k in range(nk):
        a('s_mov_b32 m0, %s' % sr(s_l))
        if k < nk - 1:
            a('s_add_u32 %s, %s, 4096' % (sr(s_l), sr(s_l)))
        else:
            a('s_nop 0')
        a('buffer_load_dwordx4 %s, s[8:11], %s offen sc1 lds' % (vr(v_l16), sr(s_g)))
        if k < nk - 1:
            a('s_add_u32 %s, %s, 1024' % (sr(s_g), sr(s_g)))


def stats_prepass(a, nk, v_addr, v_fr, v_ones, v_res, v_t, v_g, v_tmp, v_dst):
    for k in range(nk):
        a('ds_read_b128 %s, %s offset:%d' % (vr(v_fr + 4 * k, 4), vr(v_addr), 4096 * k))
    for k in range(4):
        a('v_mov_b32 %s, 0x%x' % (vr(v_ones + k), ONES))
    for k in range(nk):
        a('s_waitcnt lgkmcnt(%d)' % (nk - 1 - k))
        f = v_fr + 4 * k
        mfma(a, v_res, v_ones, f, None if k == 0 else v_res)
        mfma(a, v_res + 4, f, f, None if k == 0 else v_res + 4)
    a('s_mov_b32 s40, 0x22222222\ns_mov_b32 s41, 0x22222222')
    a('s_mov_b32 s42, 0x44444444\ns_mov_b32 s43, 0x44444444')
    a('s_mov_b32 s44, 0x88888888\ns_mov_b32 s45, 0x88888888')
    a('v_cndmask_b32 %s, %s, %s, s[40:41]' % (vr(v_res + 1), vr(v_res + 4), vr(v_res + 5)))
    a('v_cndmask_b32 %s, %s, %s, s[42:43]' % (vr(v_res + 1), vr(v_res + 1), vr(v_res + 6)))
    a('v_cndmask_b32 %s, %s, %s, s[44:45]' % (vr(v_res + 1), vr(v_res + 1), vr(v_res + 7)))
    a('s_mov_b32 exec_lo, 0x00f0000f\ns_mov_b32 exec_hi, 0xf0000f00')
    a('ds_write_b64 %s, %s' % (vr(v_dst), vr(v_res, 2)))
    a('s_mov_b64 exec, -1')


def stats_final(a, nparts, lds_stats, v_lane, v_tmp):
    a('v_lshlrev_b32 %s, 3, %s' % (vr(v_tmp + 6), vr(v_lane)))
    for p in range(nparts):
        a('ds_read_b64 %s, %s offset:%d' % (vr(v_tmp + 2 * p, 2), vr(v_tmp + 6), p * 512))
    a('s_waitcnt lgkmcnt(0)')
    for p in range(1, nparts):
        a('v_add_f32 %s, %s, %s' % (vr(v_tmp), vr(v_tmp), vr(v_tmp + 2 * p)))
        a('v_add_f32 %s, %s, %s' % (vr(v_tmp + 1), vr(v_tmp + 1), vr(v_tmp + 2 * p + 1)))
    a('v_mul_f32 %s, 0x%x, %s' % (vr(v_tmp), INV576, vr(v_tmp)))
    a('v_mul_f32 %s, 0x%x, %s' % (vr(v_tmp + 1), INV576, vr(v_tmp + 1)))
    a('v_fma_f32 %s, -%s, %s, %s' % (vr(v_tmp + 1), vr(v_tmp), vr(v_tmp), vr(v_tmp + 1)))
    a('v_max_f32 %s, 0, %s' % (vr(v_tmp + 1), vr(v_tmp + 1)))
    a('v_add_f32 %s, 0x%x, %s' % (vr(v_tmp + 1), EPS5, vr(v_tmp + 1)))
    a('v_rsq_f32 %s, %s' % (vr(v_tmp), vr(v_tmp + 1)))


def diag_select(a, dst, src, masks=(0x22222222, 0x44444444, 0x88888888)):
    for i, m in enumerate(masks):
        a('s_mov_b32 s%d, 0x%x\ns_mov_b32 s%d, 0x%x' % (40 + 2 * i, m, 41 + 2 * i, m))
    a('v_cndmask_b32 %s, %s, %s, s[40:41]' % (vr(dst), vr(src), vr(src + 1)))
    a('v_cndmask_b32 %s, %s, %s, s[42:43]' % (vr(dst), vr(dst), vr(src + 2)))
    a('v_cndmask_b32 %s, %s, %s, s[44:45]' % (vr(dst), vr(dst), vr(src + 3)))


def rstd_from(a, dst, vsum, vsq):
    a('v_mul_f32 %s, 0x%x, %s' % (vr(vsum), INV576, vr(vsum)))
    a('v_mul_f32 %s, 0x%x, %s' % (vr(vsq), INV576, vr(vsq)))
    a('v_fma_f32 %s, -%s, %s, %s' % (vr(vsq), vr(vsum), vr(vsum), vr(vsq)))
    a('v_max_f32 %s, 0, %s' % (vr(vsq), vr(vsq)))
    a('v_add_f32 %s, 0x%x, %s' % (vr(vsq), EPS5, vr(vsq)))
    a('v_rsq_f32 %s, %s' % (vr(dst), vr(vsq)))


SPIN_CAP = 1 << 18


def lds_spin(a, name, v_tmp, v_addr, off, mask, want, ge=None):
    a('s_mov_b32 s5, 0')
    a.label(name)
    a('ds_read_b32 %s, %s offset:%d' % (vr(v_tmp), vr(v_addr), off))
    a('s_waitcnt lgkmcnt(0)')
    a('v_readfirstlane_b32 s4, %s' % vr(v_tmp))
    if ge is None:
        a('s_and_b32 s4, s4, 0x%x' % mask)
        a('s_cmp_eq_u32 s4, 0x%x' % want)
    else:
        a('s_cmp_ge_u32 s4, %s' % sr(ge))
    a('s_cbranch_scc1 %s_ok' % name)
    a('s_sleep 1')
    a('s_add_u32 s5, s5, 1')
    a('s_cmp_lt_u32 s5, 0x%x' % SPIN_CAP)
    a('s_cbranch_scc1 %s' % name)
    a('s_endpgm')
    a.label(name + '_ok')


def mem_arrive(a, s_off, v_zero=None, v_one=None):
    if not SFLAG:
        a('s_mov_b64 exec, 1')
        a('buffer_atomic_add %s, %s, s[8:11], %s offen sc1' % (vr(v_one), vr(v_zero), sr(s_off)))
        a('s_mov_b64 exec, -1')
        return
    a('s_mov_b32 s3, 1')
    a('s_atomic_add s3, s[8:9], %s' % sr(s_off))


def mem_wait(a, name, s_off, s_want, v_zero, v_tmp, backoff=None, arrive=False):
    a('s_mov_b32 s5, 0')
    if not SFLAG:
        if arrive:
            mem_arrive(a, s_off, v_zero, 4)
        a('s_mov_b64 exec, 1')
        a.label(name)
        a('buffer_load_dword %s, %s, s[8:11], %s offen sc1' % (vr(v_tmp), vr(v_zero), sr(s_off)))
        a('s_waitcnt vmcnt(0)')
        a('v_readfirstlane_b32 s4, %s' % vr(v_tmp))
    else:
        if arrive:
            a('s_mov_b32 s4, 1')
            a('s_atomic_add s4, s[8:9], %s glc' % sr(s_off))
            a('s_waitcnt lgkmcnt(0)')
            a('s_add_u32 s4, s4, 1')
            a('s_cmp_ge_u32 s4, %s' % sr(s_want))
            a('s_cbranch_scc1 %s_ok' % name)
        a.label(name)
        a('s_mov_b32 s4, 0')
        a('s_atomic_add s4, s[8:9], %s glc' % sr(s_off))
        a('s_waitcnt lgkmcnt(0)')
    a('s_cmp_ge_u32 s4, %s' % sr(s_want))
    a('s_cbranch_scc1 %s_ok' % name)
    if backoff:
        if backoff[0] is not None:
            a('s_cmp_eq_u32 %s, %d' % (sr(backoff[0]), backoff[1]))
            a('s_cbranch_scc1 %s_ns' % name)
        a('s_sleep %d' % (backoff[2] if len(backoff) > 2 else 12))
        if backoff[0] is not None:
            a.label(name + '_ns')
    a('s_add_u32 s5, s5, 1')
    a('s_cmp_lt_u32 s5, 0x%x' % SPIN_CAP)
    a('s_cbranch_scc1 %s' % name)
    a('s_endpgm')
    a.label(name + '_ok')
    if not SFLAG:
        a('s_mov_b64 exec, -1')


def gen_mega():
    a = Asm()
    RSL = 0; FLG = 512; CNT = 516; XC1 = 520; XC3 = 524; TOK = 528; XF = 1024; XI = 3072; HI = XI + 73728
    OI = HI; SL = HI + 36864
    LDS = SL + 32 * HS
    VZ = 167
    LAY, LOFF, GBO, GBW, CBO, CBW, RFW, SOF, PRT = 86, 87, 88, 89, 90, 91, 92, 96, 97
    a('s_cmp_ge_u32 s2, 256')
    a('s_cbranch_scc1 mega_end')
    stamp_begin(a)
    ws_srd(a)
    a('s_load_dwordx2 s[94:95], s[0:1], 48')
    a('s_load_dwordx2 s[36:37], s[0:1], 0')
    a('s_mov_b32 s38, %d\ns_mov_b32 s39, 0x20000' % ACT)
    if AMP:
        a('s_memrealtime s[84:85]')
    wave_id(a, 12, 1)
    a('v_lshlrev_b32 v1, 4, v0')
    a('v_and_b32 v2, 15, v0')
    a('v_lshrrev_b32 v3, 4, v0')
    a('v_mov_b32 %s, 0' % vr(VZ))
    xcd_map(a, NCX, 13, 14)
    a('s_and_b32 s20, s12, 3\ns_lshr_b32 s21, s12, 2')
    a('s_mul_i32 s4, s14, 21846\ns_lshr_b32 s4, s4, 16\ns_mul_i32 s4, s4, 3\ns_sub_u32 s19, s14, s4')
    a('s_lshl_b32 s4, s19, 2\ns_add_u32 s28, s12, s4\ns_cmp_ge_u32 s28, 12\ns_cselect_b32 s4, 12, 0\ns_sub_u32 s28, s28, s4')
    a('s_mov_b32 s%d, 0\ns_mov_b32 s%d, 0\ns_mov_b32 s%d, 0\ns_mov_b32 s%d, 32\ns_mov_b32 s%d, 8' % (LAY, LOFF, GBW, CBW, RFW))
    a('s_lshl_b32 s4, s14, 7\ns_add_u32 s%d, s4, %d' % (GBO, FL_GB))
    a('s_lshl_b32 s4, s13, 7\ns_add_u32 s%d, s4, %d' % (CBO, FL_CB))
    a('s_mov_b32 s%d, %d\ns_mov_b32 s%d, %d' % (SOF, SS, PRT, PART))
    a('s_mov_b32 s48, s19')
    for b in (1, 2):
        a('s_add_u32 s%d, s%d, 1\ns_cmp_eq_u32 s%d, 3\ns_cselect_b32 s%d, 0, s%d' % (48 + b, 47 + b, 48 + b, 48 + b, 48 + b))
    a('s_lshl_b32 s4, s14, 2\ns_add_u32 s4, s4, s20\ns_mul_i32 s98, s4, 18432')
    a('s_lshl_b32 s5, s20, 11\ns_add_u32 s99, s5, %d' % XI)
    img = lambda k, tt: (k >> 1) * 8192 + tt * 2048 + (k & 1) * 1024

    def load_x(name, base, xc):
        gb, gp, gh = (384, 128, 9216) if base is None else (6144, 2048, 1024)
        ld = 'buffer_load_dwordx4 v4, s[36:39], s23 offen lds' if base is None else 'buffer_load_dwordx4 v1, s[8:11], s23 offen sc1 lds'

        def blk(b):
            a('s_mul_i32 s22, s%d, %d\ns_add_u32 s22, s22, s98\ns_mul_i32 s24, s%d, 24576\ns_add_u32 s24, s24, s99' % (48 + b, gb, 48 + b))
            if base is not None:
                a('s_add_u32 s22, s22, s%d\ns_add_u32 s22, s22, %d' % (LOFF, base))
        a('s_cmp_ge_u32 s12, 8')
        a('s_cbranch_scc1 %s_hi' % name)
        blk(0)
        a('s_mul_i32 s4, s21, %d\ns_add_u32 s22, s22, s4\ns_lshl_b32 s4, s21, 10\ns_add_u32 s24, s24, s4' % gh)
        for p in range(3):
            a('s_add_u32 m0, s24, %d' % (8192 * p))
            a('s_add_u32 s23, s22, %d' % (gp * p))
            a(ld)
        if base is None:
            a('s_barrier')
        a('s_branch %s_x' % name)
        a.label('%s_hi' % name)
        if base is None:
            a('s_barrier')
        for b in (1, 2):
            blk(b)
            for p in range(3):
                for h in range(2):
                    a('s_add_u32 m0, s24, %d' % (8192 * p + 1024 * h))
                    a('s_add_u32 s23, s22, %d' % (gp * p + gh * h))
                    a(ld)
        a.label('%s_x' % name)

    def x_count(xc):
        for n, inc in ((6, 0x100), (0, 0x10000)):
            a('v_mov_b32 v5, 0x%x' % inc)
            a('s_waitcnt vmcnt(%d)' % n)
            a('s_mov_b64 exec, 1')
            a('ds_add_u32 %s, v5 offset:%d' % (vr(VZ), xc))
            a('s_mov_b64 exec, -1')

    def lane_part(dst, tmp, s_b):
        L = 'lp%d' % len(a.lines)
        a('s_lshl_b32 s4, %s, 10' % s_b)
        a('v_add_u32 %s, s4, v1' % vr(dst))
        a('s_cmp_eq_u32 s%d, 0' % LAY)
        a('s_cbranch_scc0 %s' % L)
        a('s_lshl_b32 s4, %s, 2' % s_b)
        a('v_add_u32 %s, s4, v3' % vr(dst))
        a('v_and_b32 %s, 7, v2' % vr(tmp))
        a('v_xor_b32 %s, %s, %s' % (vr(dst), vr(dst), vr(tmp)))
        a('v_lshlrev_b32 %s, 4, %s' % (vr(dst), vr(dst)))
        a('v_lshl_add_u32 %s, v2, 7, %s' % (vr(dst), vr(dst)))
        a.label(L)

    def group_sync(name):
        a('s_add_u32 s%d, s%d, 8' % (GBW, GBW))
        a('s_barrier')
        a('s_cmp_eq_u32 s12, 11')
        a('s_cbranch_scc0 %s_go' % name)
        a('v_mov_b32 v4, 1')
        mem_wait(a, name, GBO, GBW, VZ, 5, arrive=True)
        a.label('%s_go' % name)

    ACC = 8; RING = ACC + 32; BF = RING + 72
    VA = 4; VB = 5; VT = 6
    acc = lambda j, tt: ACC + (j * 4 + tt) * 4
    ring = lambda k, j: 40 + ((k % 9) * 2 + j) * 4
    bf = lambda p, tt: BF + (p * 4 + tt) * 4

    def s1_ld(k, j):
        if j == 0 and not k & 1:
            a('s_add_u32 s15, s%d, %d' % (30 + k // 6, 4096 * ((k % 6) >> 1)))
        a('buffer_load_dwordx4 %s, v1, s[8:11], s15 offen offset:%d' % (vr(ring(k, j), 4), 2048 * (k & 1) + 1024 * j))

    def s1_fill(depth=None):
        a('s_mul_i32 s15, s13, 7\ns_add_u32 s15, s15, s12\ns_mul_i32 s15, s15, 36864\ns_add_u32 s15, s15, %d' % WQ)
        for b in range(3):
            a('s_mul_i32 s4, s%d, 12288\ns_add_u32 s%d, s4, s15' % (48 + b, 30 + b))
        for k in range(9):
            for j in range(2):
                s1_ld(k, j)
                if depth is not None:
                    a('s_waitcnt vmcnt(%d)' % depth)

    a('v_lshlrev_b32 v4, 2, v0')
    a('s_mov_b64 exec, 0xff')
    a('ds_write_b32 v4, %s offset:%d' % (vr(VZ), FLG))
    a('s_mov_b64 exec, -1')
    a('v_lshrrev_b32 v4, 3, v0\nv_and_b32 v5, 7, v0\nv_xor_b32 v5, v5, v4')
    a('v_mul_u32_u24 v4, 1152, v4')
    a('v_lshl_add_u32 v4, v5, 4, v4')
    a('s_waitcnt lgkmcnt(0)')
    load_x('x0', None, XC1)
    a('s_cmp_ge_u32 s12, 8')
    a('s_cbranch_scc0 s1_lo')
    a('s_barrier')
    x_count(XC1)
    a('s_branch s1_wo')
    a.label('s1_lo')
    a('s_lshr_b32 s26, 0x43, s12\ns_and_b32 s26, s26, 1')
    a('s_cbranch_scc1 s1_f1')
    a('s_waitcnt vmcnt(0)')
    a('s_barrier')
    a('s_cmp_ge_u32 s12, 7')
    a('s_cbranch_scc1 s1_go')
    a.label('s1_f1')
    s1_fill()
    a('s_cmp_eq_u32 s26, 0')
    a('s_cbranch_scc1 s1_go')
    a('s_waitcnt vmcnt(18)')
    a('s_barrier')
    a.label('s1_go')
    stamp(a, 'x1')
    VX = 144
    for par in range(2):
        lane_part(VA, VT, str(par))
        for b in range(3):
            a('s_mul_i32 s4, s%d, 24576\ns_add_u32 s4, s4, %d' % (48 + b, XI))
            a('v_add_u32 %s, s4, %s' % (vr(VX + 2 * b + par), vr(VA)))

    a('v_mov_b32 v7, 0x1000000')

    def rdx(k, tt):
        a('ds_read_b128 %s, %s offset:%d' % (vr(bf(k & 1, tt), 4), vr(VX + 2 * (k // 6) + (k & 1)), ((k % 6) >> 1) * 8192 + 2048 * tt))

    slow = []

    def x_check(tag, k, step):
        if k not in (4, 10):
            return
        m = 0x0400 if k == 4 else 0x040000
        if step == 0:
            a('ds_read_b32 %s, %s offset:%d' % (vr(VT), vr(VZ), XC1))
        elif step == 1:
            a('v_readfirstlane_b32 s4, %s' % vr(VT))
        else:
            a('s_andn2_b32 s4, 0x%x, s4' % m)
            a('s_cbranch_scc1 s1_slow%s%d' % (tag, k))
            a.label('s1_back%s%d' % (tag, k))
            slow.append((tag, k, m))
    for tt in range(4):
        rdx(0, tt)
    a('s_cmp_lt_u32 s12, 4')
    a('s_cbranch_scc1 s1_nn')
    a('s_cmp_eq_u32 s12, 6')
    a('s_cbranch_scc1 s1_nt')
    a('s_cmp_eq_u32 s12, 7')
    a('s_cbranch_scc1 s1_stats')

    def main(orient):
        issued = 18
        a('s_waitcnt vmcnt(17) lgkmcnt(0)')
        for k in range(18):
            for n in range(8):
                j, tt = n >> 2, n & 3
                if j:
                    tt = 3 - tt
                c = None if k == 0 else acc(j, tt)
                if orient[j] == 'N':
                    mfma(a, acc(j, tt), bf(k & 1, tt), ring(k, j), c)
                else:
                    mfma(a, acc(j, tt), ring(k, j), bf(k & 1, tt), c)
                if n < 2 and k < 17:
                    rdx(k + 1, 2 * n); rdx(k + 1, 2 * n + 1)
                if n == 2:
                    a('s_waitcnt vmcnt(%d)' % (issued - (2 * k + 2)))
                if n in (3, 7) and k < 9:
                    s1_ld(k + 9, j)
                    issued += 1
                if k == S1_GATE and n == 4:
                    a('s_mov_b64 exec, 1')
                    a('ds_add_u32 %s, v7 offset:%d' % (vr(VZ), XC1))
                    a('s_mov_b64 exec, -1')
                if n == 2:
                    x_check(orient, k, 0)
                if n == 6 and k < 17:
                    a('s_waitcnt vmcnt(%d) lgkmcnt(0)' % (issued - (2 * k + 3)))
                    x_check(orient, k, 1)
                if n == 7:
                    x_check(orient, k, 2)
        stamp(a, 's1m')
        lds_spin(a, 's1_s' + orient, VT, VZ, FLG, 2, 2)

    def rs_n(RS):
        a('v_lshlrev_b32 %s, 4, v3' % vr(VT))
        for n in range(8):
            a('ds_read_b128 %s, %s offset:%d' % (vr(RS + 4 * n, 4), vr(VT), RSL + 64 * n))

    def rs_t(RS):
        a('v_lshlrev_b32 %s, 2, v2' % vr(VT))
        for n in range(8):
            a('ds_read_b32 %s, %s offset:%d' % (vr(RS + n), vr(VT), RSL + 64 * n))

    def phi4(items, T):
        n = len(items)
        for i, (d, x, s1, s2) in enumerate(items):
            a('v_mul_f32 %s, %s, %s' % (vr(T + i), vr(x), vr(s2)))
        for i in range(n):
            a('v_min_f32 %s, 0, %s' % (vr(T + i), vr(T + i)))
        for i in range(n):
            a('v_exp_f32 %s, %s' % (vr(T + i), vr(T + i)))
        for i, (d, x, s1, s2) in enumerate(items):
            a('v_max_f32 %s, 0, %s' % (vr(d), vr(x)))
        for i in range(n):
            a('v_add_f32 %s, 0x%x, %s' % (vr(T + i), EPS6, vr(T + i)))
        for i, (d, x, s1, s2) in enumerate(items):
            a('v_fma_f32 %s, %s, %s, %s' % (vr(d), vr(d), vr(s1), vr(T + i)))

    RS = RING; TMP = RING + 32; F0 = RING + 48; ON = RING + 64
    pq_base = 's_lshl_b32 s6, s14, 4\ns_add_u32 s6, s6, s13\ns_mul_i32 s6, s6, 4608\ns_add_u32 s6, s6, s%d\ns_add_u32 s6, s6, %d' % (LOFF, PQ)
    main('TT')
    rs_t(RS)
    a(pq_base)
    a('s_lshl_b32 s5, s20, 10\ns_add_u32 s6, s6, s5\ns_add_u32 s7, s6, %d' % (8 * 4608))
    a('s_waitcnt lgkmcnt(0)')
    for tt in range(4):
        phi4([(acc(j, tt) + r, acc(j, tt) + r, RS + tt, RS + 4 + tt) for j in range(2) for r in range(4)], TMP)
        P = BF + 4 * tt
        for j in range(2):
            a('v_cvt_pk_bf16_f32 %s, %s, %s' % (vr(P + 2 * j), vr(acc(j, tt)), vr(acc(j, tt) + 1)))
            a('v_cvt_pk_bf16_f32 %s, %s, %s' % (vr(P + 2 * j + 1), vr(acc(j, tt) + 2), vr(acc(j, tt) + 3)))
        a('buffer_store_dwordx4 %s, v1, s[8:11], s%d offen offset:%d sc1' % (vr(P, 4), 6 + (tt >> 1), 2048 * (tt & 1)))
    a('s_branch s1_done')
    a.label('s1_nn')
    main('NN')
    rs_n(RS)
    FK = F0; FV = F0 + 8; DV = BF; FX = BF + 16
    for k in range(4):
        a('v_mov_b32 %s, 0x%x' % (vr(ON + k), ONES))
    a('s_lshl_b32 s4, s13, 2\ns_add_u32 s4, s4, s20\ns_mul_i32 s6, s4, %d\ns_add_u32 s6, s6, s%d' % (HS, SOF))
    a('s_waitcnt lgkmcnt(0)')
    for tp in range(2):
        phi4([(acc(0, tt) + r, acc(0, tt) + r, RS + 4 * tt + r, RS + 16 + 4 * tt + r) for tt in (2 * tp, 2 * tp + 1) for r in range(4)], TMP)
        for tt in (2 * tp, 2 * tp + 1):
            for r in range(4):
                a('v_mul_f32 %s, %s, %s' % (vr(acc(1, tt) + r), vr(acc(1, tt) + r), vr(RS + 4 * tt + r)))
            for j, Fb in enumerate((FK, FV)):
                d = Fb + 2 * tt
                a('v_cvt_pk_bf16_f32 %s, %s, %s' % (vr(d), vr(acc(j, tt)), vr(acc(j, tt) + 1)))
                a('v_cvt_pk_bf16_f32 %s, %s, %s' % (vr(d + 1), vr(acc(j, tt) + 2), vr(acc(j, tt) + 3)))
        c = (lambda x: None) if tp == 0 else (lambda x: x)
        mfma(a, DV, FV + 4 * tp, FK + 4 * tp, c(DV))
        mfma(a, DV + 4, ON, FK + 4 * tp, c(DV + 4))
    a('v_and_b32 %s, 0x380, v1' % vr(VA))
    a('v_and_b32 %s, 4, v2' % vr(VB))
    a('v_lshl_add_u32 %s, %s, 2, %s' % (vr(VA), vr(VB), vr(VA)))
    a('s_lshl_b32 s5, s20, 5')
    a('v_add_u32 %s, s5, %s' % (vr(VA), vr(VA)))
    a('v_lshlrev_b32 %s, 2, v0' % vr(VB))
    for r in range(4):
        a('buffer_atomic_add_f32 %s, %s, s[8:11], s6 offen offset:%d' % (vr(DV + r), vr(VB), 256 * r))
    a('s_mov_b64 exec, 0xffff')
    a('buffer_atomic_add_f32 %s, %s, s[8:11], s6 offen offset:1152' % (vr(DV + 4), vr(VB)))
    a('s_mov_b64 exec, -1')
    lds_spin(a, 's1_w', VT, VZ, FLG, 1, 1)
    a('ds_read_b128 %s, %s offset:%d' % (vr(FX, 4), vr(VA), XF))
    a('ds_read_b128 %s, %s offset:%d' % (vr(FX + 4, 4), vr(VA), XF + 1024))
    a('v_lshlrev_b32 %s, 3, v2' % vr(VT))
    a('v_lshl_add_u32 %s, v3, 2, %s' % (vr(VT), vr(VT)))
    a('v_add_u32 %s, 384, %s' % (vr(VT), vr(VT)))
    a('s_mov_b32 s40, -1\ns_mov_b32 s41, 0')
    a('v_cndmask_b32 %s, %s, %s, s[40:41]' % (vr(VT), vr(VB), vr(VT)))
    a('s_waitcnt lgkmcnt(0)')
    for tp in range(2):
        c = (lambda x: None) if tp == 0 else (lambda x: x)
        mfma(a, DV + 8, FX + 4 * tp, FV + 4 * tp, c(DV + 8))
        mfma(a, DV + 12, FX + 4 * tp, FK + 4 * tp, c(DV + 12))
    a('v_cndmask_b32 %s, %s, %s, s[40:41]' % (vr(DV + 8), vr(DV + 12), vr(DV + 8)))
    a('buffer_atomic_add_f32 %s, %s, s[8:11], s6 offen offset:896' % (vr(DV + 8), vr(VT)))
    a('s_branch s1_done')
    a.label('s1_nt')
    a('s_setprio 2')
    main('NT')
    rs_n(RS)
    FX = F0; PH = BF + 16
    for k in range(4):
        a('v_mov_b32 %s, 0x%x' % (vr(ON + k), ONES))
    a('s_mov_b32 s46, 0x00ff00ff\ns_mov_b32 s47, 0x00ff00ff')
    a('s_waitcnt lgkmcnt(0)')
    for tp in range(2):
        tts = (2 * tp, 2 * tp + 1)
        phi4([(PH + 4 * (tt & 1) + r, acc(0, tt) + r, RS + 4 * tt + r, RS + 16 + 4 * tt + r) for tt in tts for r in range(4)], TMP)
        for tt in tts:
            for r in range(4):
                a('v_mul_f32 %s, %s, %s' % (vr(acc(0, tt) + r), vr(acc(0, tt) + r), vr(RS + 4 * tt + r)))
                a('v_cndmask_b32 %s, %s, %s, s[46:47]' % (vr(acc(0, tt) + r), vr(acc(0, tt) + r), vr(PH + 4 * (tt & 1) + r)))
            a('v_cvt_pk_bf16_f32 %s, %s, %s' % (vr(FX + 2 * tt), vr(acc(0, tt)), vr(acc(0, tt) + 1)))
            a('v_cvt_pk_bf16_f32 %s, %s, %s' % (vr(FX + 2 * tt + 1), vr(acc(0, tt) + 2), vr(acc(0, tt) + 3)))
        a('ds_write_b128 v1, %s offset:%d' % (vr(FX + 4 * tp, 4), XF + 1024 * tp))
    a('v_mov_b32 %s, 3' % vr(VT))
    a('ds_write_b32 %s, %s offset:%d' % (vr(VZ), vr(VT), FLG))
    a('s_setprio 0')
    a('v_and_b32 %s, 0x380, v1' % vr(VA))
    a('v_and_b32 %s, 4, v2' % vr(VB))
    a('v_lshl_add_u32 %s, %s, 2, %s' % (vr(VA), vr(VB), vr(VA)))
    a('v_and_b32 %s, 3, v2' % vr(VB))
    a('v_lshl_add_u32 %s, %s, 5, %s' % (vr(VA), vr(VB), vr(VA)))
    for tp in range(2):
        a('ds_read_b128 %s, %s offset:%d' % (vr(FX + 8 + 4 * tp, 4), vr(VA), XF + 1024 * tp))
    a('s_waitcnt lgkmcnt(0)')
    for tp in range(2):
        c = (lambda x: None) if tp == 0 else (lambda x: x)
        mfma(a, DV, FX + 8 + 4 * tp, FX + 4 * tp, c(DV))
        mfma(a, DV + 4, ON, FX + 4 * tp, c(DV + 4))
    rs_t(RS)
    a('v_bfe_u32 %s, v2, 1, 2' % vr(VA))
    a('v_mul_u32_u24 %s, %d, %s' % (vr(VA), HS, vr(VA)))
    a('v_and_b32 %s, 1, v2' % vr(VB))
    a('v_lshl_add_u32 %s, %s, 2, %s' % (vr(VA), vr(VB), vr(VA)))
    a('v_add_u32 %s, 2, v3' % vr(VB))
    a('v_and_b32 %s, 3, %s' % (vr(VB), vr(VB)))
    a('v_lshl_add_u32 %s, %s, 3, %s' % (vr(VA), vr(VB), vr(VA)))
    a('s_mul_i32 s6, s13, %d\ns_add_u32 s6, s6, s%d' % (4 * HS, SOF))
    diag_select(a, DV + 8, DV, (0x0c0c0c0c, 0x30303030, 0xc0c0c0c0))
    a('s_mov_b32 s40, 0xffff\ns_mov_b32 s41, 0')
    a('v_cndmask_b32 %s, %s, %s, s[40:41]' % (vr(DV + 8), vr(DV + 8), vr(DV + 4)))
    a('s_mov_b32 exec_lo, 0xff\ns_mov_b32 exec_hi, 0x00ff00ff')
    a('buffer_atomic_add_f32 %s, %s, s[8:11], s6 offen offset:%d' % (vr(DV + 8), vr(VA), 1280 + 128))
    a('s_mov_b64 exec, -1')
    a(pq_base)
    a('s_add_u32 s6, s6, 4096\ns_add_u32 s7, s6, %d' % (8 * 4608))
    a('v_lshlrev_b32 %s, 3, v0' % vr(VB))
    a('s_waitcnt lgkmcnt(0)')
    a('s_mov_b32 s40, 0xffff0000\ns_mov_b32 s41, 0xffff0000')
    for tt in range(4):
        for r in range(2):
            a('v_cndmask_b32 %s, %s, %s, s[40:41]' % (vr(acc(1, tt) + r), vr(acc(1, tt) + r), vr(acc(1, tt) + 2 + r)))
    phi4([(acc(1, tt) + r, acc(1, tt) + r, RS + tt, RS + 4 + tt) for tt in range(4) for r in range(2)], TMP)
    for tt in range(4):
        a('v_cvt_pk_bf16_f32 %s, %s, %s' % (vr(PH + tt), vr(acc(1, tt)), vr(acc(1, tt) + 1)))
    for tp in range(2):
        a('buffer_store_dwordx2 %s, %s, s[8:11], s%d offen sc1' % (vr(PH + 2 * tp, 2), vr(VB), 6 + tp))
    a('s_branch s1_done')
    a.label('s1_stats')
    a('s_setprio 3')
    for k in range(4):
        a('v_mov_b32 %s, 0x%x' % (vr(RING + k), ONES))
    for k in range(18):
        if k < 17:
            for tt in range(4):
                rdx(k + 1, tt)
        a('s_waitcnt lgkmcnt(%d)' % (4 if k < 17 else 0))
        x_check('S', k, 0)
        for tt in range(4):
            mfma(a, acc(0, tt), RING, bf(k & 1, tt), None if k == 0 else acc(0, tt))
            mfma(a, acc(1, tt), bf(k & 1, tt), bf(k & 1, tt), None if k == 0 else acc(1, tt))
        if k in (4, 10):
            a('s_waitcnt lgkmcnt(0)')
            x_check('S', k, 1)
            x_check('S', k, 2)
    a('v_lshlrev_b32 %s, 2, v2' % vr(VT))
    for tt in range(4):
        diag_select(a, acc(0, tt) + 1, acc(1, tt))
        rstd_from(a, acc(0, tt) + 2, acc(0, tt), acc(0, tt) + 1)
        a('v_mul_f32 %s, 0x%x, %s' % (vr(acc(0, tt) + 3), LOG2E, vr(acc(0, tt) + 2)))
    a('s_mov_b32 exec_lo, 0x00f0000f\ns_mov_b32 exec_hi, 0xf0000f00')
    for tt in range(4):
        a('ds_write_b32 %s, %s offset:%d' % (vr(VT), vr(acc(0, tt) + 2), RSL + 64 * tt))
        a('ds_write_b32 %s, %s offset:%d' % (vr(VT), vr(acc(0, tt) + 3), RSL + 256 + 64 * tt))
    a('s_mov_b64 exec, -1')
    a('v_mov_b32 %s, 2' % vr(VA))
    a('ds_write_b32 %s, %s offset:%d' % (vr(VZ), vr(VA), FLG))
    a('s_setprio 0')
    stamp(a, 's1m')
    a('s_branch s1_done')
    for tag, k, m in slow:
        a.label('s1_slow%s%d' % (tag, k))
        lds_spin(a, 's1_sl%s%d' % (tag, k), VT, VZ, XC1, m, m)
        a('s_branch s1_back%s%d' % (tag, k))
    AC2 = 8; B2 = 24; WR = 56; NPRE = 13
    wr = lambda k, j: WR + ((k % NPRE) * 2 + j) * 4
    a.label('s1_wo')
    a('s_and_b32 s24, s13, 3')
    a('s_mul_i32 s25, s24, 9\ns_and_b32 s4, s24, 1\ns_add_u32 s25, s25, s4\ns_lshl_b32 s4, s20, 1\ns_add_u32 s25, s25, s4')
    a('s_mul_i32 s16, s25, 18432\ns_add_u32 s16, s16, %d\ns_add_u32 s17, s16, 18432' % WO)

    def wo_ld(k):
        for j in range(2):
            a('buffer_load_dwordx4 %s, v1, s[8:11], s%d offen offset:%d' % (vr(wr(k, j), 4), 16 + j, 1024 * (k % 4)))
        if k % 4 == 3:
            a('s_add_u32 s16, s16, 4096\ns_add_u32 s17, s17, 4096')
    nO = [0]

    def wo_pre(n):
        for k in range(nO[0], nO[0] + n):
            wo_ld(k)
        nO[0] += n
        if n and nO[0] == NPRE and WO_TOUCH:
            a('v_min_u32 v6, %d, v0' % ((18 - NPRE) * 8 - 1))
            a('v_lshlrev_b32 v6, 7, v6')
            for j in range(2):
                a('buffer_load_dword v7, v6, s[8:11], s%d offen offset:%d' % (16 + j, 1024 * (NPRE % 4)))
    if WO_SPLIT[0]:
        gm = 0x040000 | (0x07000000 if S1_GATE >= 0 else 0)
        lds_spin(a, 's1_wog', 4, VZ, XC1, gm, gm)
    wo_pre(WO_SPLIT[0])
    stamp(a, 's1m')
    a('s_branch s1_join')
    a.label('s1_done')
    a('s_waitcnt vmcnt(0)')
    a.label('s1_join')
    stamp(a, 's1d')
    group_sync('e1a')
    a('s_cmp_eq_u32 s12, 11')
    a('s_cbranch_scc0 e1_x')
    mem_arrive(a, CBO, VZ, 4)
    if WO_W1:
        a('s_barrier')
    a.label('e1_x')
    if WO_W1:
        a('s_cmp_lt_u32 s12, 8')
        a('s_cbranch_scc1 e1_y')
        wo_pre(WO_W1)
        a('s_cmp_eq_u32 s12, 11')
        a('s_cbranch_scc1 e1_z')
        a.label('e1_y')
    a('s_barrier')
    a.label('e1_z')
    stamp(a, 'e1a')

    RING3 = 52
    FR = 124; QF = 20; XP = 4
    VA = 156; VB = 157; VC = 158; VD = 159; EX = 160; VT = 161; QX = 162
    f1 = lambda hh: FR + 8 * hh
    f2 = lambda hh: FR + 8 * hh + 4
    qf = lambda tt, hh: QF + (tt * 4 + hh) * 4
    a('s_cmp_ge_u32 s12, 8')
    a('s_cbranch_scc1 s2_hi')
    a('s_lshl_b32 s23, s14, 1\ns_lshr_b32 s4, s13, 2\ns_add_u32 s23, s23, s4')
    a('s_lshl_b32 s23, s23, 3\ns_add_u32 s23, s23, s12\ns_mul_i32 s23, s23, 4608\ns_add_u32 s23, s23, s%d\ns_add_u32 s23, s23, %d' % (LOFF, PQ))
    a('s_add_u32 s24, s23, 4096')
    a('v_lshlrev_b32 %s, 3, v0' % vr(VT))
    for tt in range(2):
        for p in range(2):
            a('buffer_load_dwordx4 %s, v1, s[8:11], s23 offen offset:%d sc1' % (vr(qf(tt, 2 * p), 4), 2048 * tt + 1024 * p))
    a('buffer_load_dwordx2 %s, %s, s[8:11], s24 offen sc1' % (vr(QX, 2), vr(VT)))
    a('v_and_b32 %s, 3, v2' % vr(VT))
    a('v_lshrrev_b32 %s, 2, v2' % vr(VA))
    a('v_lshl_add_u32 %s, %s, 2, %s' % (vr(VA), vr(VT), vr(VA)))
    a('v_lshlrev_b32 %s, 6, %s' % (vr(VA), vr(VA)))
    a('v_lshl_add_u32 %s, v3, 4, %s' % (vr(VA), vr(VA)))
    a('v_min_u32 %s, 2, %s' % (vr(VT), vr(VT)))
    a('v_lshlrev_b32 %s, 6, %s' % (vr(VB), vr(VT)))
    a('v_lshl_add_u32 %s, v3, 4, %s' % (vr(VB), vr(VB)))
    a('v_mul_u32_u24 %s, %d, v3' % (vr(VD), HS))
    a('v_lshl_add_u32 %s, v2, 3, %s' % (vr(VC), vr(VD)))
    a('v_lshl_add_u32 %s, %s, 3, %s' % (vr(VD), vr(VT), vr(VD)))
    a('s_mul_i32 s25, s12, %d\ns_add_u32 s22, s25, s%d\ns_add_u32 s25, s25, %d' % (4 * HS, SOF, SL))
    for v in (VA, VB, VC, VD):
        a('v_add_u32 %s, s25, %s' % (vr(v), vr(v)))
    for hh in range(4):
        a('s_mov_b32 s%d, 0x%x\ns_mov_b32 s%d, 0x%x' % (
            40 + 2 * hh, (0xffff << (16 * hh)) & 0xffffffff, 41 + 2 * hh, ((0xffff << (16 * hh)) >> 32) & 0xffffffff))
    a('s_mul_i32 s16, s13, 12\ns_add_u32 s16, s16, s28\ns_mul_i32 s16, s16, 55296\ns_mul_i32 s4, s19, 18432\ns_add_u32 s16, s16, s4\ns_add_u32 s16, s16, %d' % W1)
    a('s_and_b32 s4, s13, 3\ns_mul_i32 s29, s4, 9\ns_and_b32 s4, s4, 1\ns_xor_b32 s4, s4, 1\ns_lshl_b32 s4, s4, 3\ns_add_u32 s29, s29, s4')
    a('s_mul_i32 s4, s29, 18432\ns_add_u32 s4, s4, %d' % WO)
    a('s_cmp_eq_u32 s12, 7\ns_cselect_b32 s16, s4, s16')
    nW = [0]

    def wld(n):
        for _ in range(n):
            k = nW[0]
            a('buffer_load_dwordx4 %s, v1, s[8:11], s16 offen offset:%d' % (vr(RING3 + 4 * k, 4), 1024 * (k % 4)))
            if k % 4 == 3:
                a('s_add_u32 s16, s16, 4096')
            nW[0] += 1
    wld(S2_WE)
    a('s_waitcnt vmcnt(%d)' % S2_WE)
    for tt in range(2):
        for p in range(2):
            q0, q1 = qf(tt, 2 * p), qf(tt, 2 * p + 1)
            a('v_mov_b32 %s, %s' % (vr(q1), vr(q0 + 2)))
            a('v_mov_b32 %s, %s' % (vr(q1 + 1), vr(q0 + 3)))
            for q in (q0, q1):
                a('v_mov_b32 %s, %s' % (vr(q + 2), vr(QX + tt)))
                a('v_mov_b32 %s, 0' % vr(q + 3))
    a('s_mov_b32 m0, s25')
    a('s_barrier')
    stamp(a, 'e1b')
    for n in range(6):
        if n == 4:
            a('s_add_u32 m0, s25, 4096\ns_add_u32 s22, s22, 4096')
        a('buffer_load_dwordx4 v1, s[8:11], s22 offen offset:%d sc1 lds' % (1024 * (n % 4)))
    a('s_waitcnt vmcnt(0)')
    stamp(a, 'sld')
    a('ds_read_b64 %s, %s offset:1280' % (vr(XP, 2), vr(VC)))
    a('ds_read_b64 %s, %s offset:%d' % (vr(XP + 2, 2), vr(VD), 1280 + 128))
    for hh in range(4):
        a('ds_read_b128 %s, %s offset:%d' % (vr(f1(hh), 4), vr(VA), HS * hh))
        a('ds_read_b128 %s, %s offset:%d' % (vr(f2(hh), 4), vr(VB), HS * hh + 1024))
    wld(S2_W0)
    a('s_waitcnt lgkmcnt(8)')
    a('v_cvt_pk_bf16_f32 %s, %s, %s' % (vr(XP), vr(XP), vr(XP + 1)))
    a('v_cvt_pk_bf16_f32 %s, %s, %s' % (vr(XP + 2), vr(XP + 2), vr(XP + 3)))
    for hh in range(4):
        a('s_waitcnt lgkmcnt(%d)' % (6 - 2 * hh))
        for f, x in ((f1(hh), XP), (f2(hh), XP + 2)):
            a('v_cvt_pk_bf16_f32 %s, %s, %s' % (vr(f), vr(f), vr(f + 1)))
            a('v_cvt_pk_bf16_f32 %s, %s, %s' % (vr(f + 1), vr(f + 2), vr(f + 3)))
            a('v_cndmask_b32 %s, 0, %s, s[%d:%d]' % (vr(f + 2), vr(x), 40 + 2 * hh, 41 + 2 * hh))
            a('v_mov_b32 %s, 0' % vr(f + 3))
    stamp(a, 'scv')
    a('s_lshl_b32 s4, s12, 12\ns_add_u32 s4, s4, %d' % OI)
    a('v_add_u32 %s, s4, v1' % vr(VA))
    a('s_add_u32 s4, s21, 16\ns_lshl_b32 s4, s4, 11\ns_lshl_b32 s5, s20, 2\ns_add_u32 s4, s4, s5\ns_add_u32 s4, s4, %d' % OI)
    a('v_add_u32 %s, s4, v1' % vr(VB))
    for tt in range(2):
        for p in range(2):
            for n in range(2):
                mfma(a, XP + 8 * n + 4, f2(2 * p + n), qf(tt, 2 * p + n))
            for n in range(2):
                mfma(a, XP + 8 * n, f1(2 * p + n), qf(tt, 2 * p + n))
            wld(S2_W1)
            O = qf(tt, 2 * p)
            for n in range(2):
                d2 = XP + 8 * n + 4
                a('v_add_f32 %s, 0x%x, %s' % (vr(d2 + 2), EPS6, vr(d2 + 2)))
            for n in range(2):
                d2 = XP + 8 * n + 4
                a('v_rcp_f32 %s, %s' % (vr(d2 + 2), vr(d2 + 2)))
            for n in range(2):
                hh = 2 * p + n
                d1 = XP + 8 * n; d2 = d1 + 4
                for r in (4, 5, 0, 1, 2, 3):
                    a('v_mul_f32 %s, %s, %s' % (vr(d1 + r), vr(d1 + r), vr(d2 + 2)))
                a('v_cvt_pk_bf16_f32 %s, %s, %s' % (vr(O + 2 * n), vr(d1), vr(d1 + 1)))
                a('v_cvt_pk_bf16_f32 %s, %s, %s' % (vr(O + 2 * n + 1), vr(d1 + 2), vr(d1 + 3)))
                if hh == 0:
                    a('v_cvt_pk_bf16_f32 %s, %s, %s' % (vr(EX), vr(d2), vr(d2 + 1)))
                else:
                    a('v_cvt_pk_bf16_f32 %s, %s, %s' % (vr(VT), vr(d2), vr(d2 + 1)))
                    a('v_cndmask_b32 %s, %s, %s, s[%d:%d]' % (vr(EX), vr(EX), vr(VT), 40 + 2 * hh, 41 + 2 * hh))
            a('ds_write_b128 %s, %s offset:%d' % (vr(VA), vr(O, 4), 2048 * p + 1024 * tt))
        a('ds_write_b32 %s, %s offset:%d' % (vr(VB), vr(EX), 1024 * tt))
    stamp(a, 'st1')
    a('s_waitcnt lgkmcnt(0)')
    a('s_barrier')
    stamp(a, 'o')
    a('s_cmp_eq_u32 s12, 7')
    a('s_cbranch_scc0 s2_n7')
    a('s_setprio 3')
    a.label('s2_n7')
    wld(18 - S2_W5 - nW[0])
    a('s_cmp_eq_u32 s12, 7')
    a('s_cbranch_scc0 s2_done')
    n5 = nW[0]
    wld(S2_W5)

    def resid_store(nt, AC, T, s_ct):
        a('s_bfe_u32 s7, %s, 0x10001' % sr(s_ct))
        lane_part(T + 24, T + 25, 's7')
        a('s_lshr_b32 s4, %s, 1\ns_lshr_b32 s5, s13, 2\ns_lshl_b32 s5, s5, 1' % sr(s_ct))
        a('s_and_b32 s24, %s, 1\ns_lshl_b32 s24, s24, 3' % sr(s_ct))
        a('s_lshr_b32 s6, s4, 1\ns_lshl_b32 s6, s6, 2\ns_add_u32 s6, s6, s5\ns_lshl_b32 s6, s6, 11\ns_add_u32 s6, s6, s24\ns_add_u32 s6, s6, %d' % XI)
        a('v_add_u32 %s, s6, %s' % (vr(T + 24), vr(T + 24)))
        for tt in range(2):
            a('ds_read_b%d %s, %s offset:%d' % (64 * nt, vr(T + 4 * tt, 2 * nt), vr(T + 24), 2048 * tt))
        a('s_lshl_b32 s6, s14, 2\ns_add_u32 s6, s6, s5\ns_mul_i32 s6, s6, 18\ns_add_u32 s6, s6, s4\ns_lshl_b32 s6, s6, 10')
        a('s_add_u32 s6, s6, s24\ns_add_u32 s6, s6, s%d\ns_add_u32 s6, s6, %d\ns_add_u32 s7, s6, 18432' % (LOFF, X1))
        a('s_waitcnt lgkmcnt(0)')
        for tt in range(2):
            U = T + 8 + 8 * tt
            for h in range(2 * nt):
                a('v_lshlrev_b32 %s, 16, %s' % (vr(U + 2 * h), vr(T + 4 * tt + h)))
                a('v_and_b32 %s, 0xffff0000, %s' % (vr(U + 2 * h + 1), vr(T + 4 * tt + h)))
            for j in range(nt):
                for r in range(4):
                    a('v_add_f32 %s, %s, %s' % (vr(U + 4 * j + r), vr(U + 4 * j + r), vr(AC + (2 * j + tt) * 4 + r)))
            for h in range(2 * nt):
                a('v_cvt_pk_bf16_f32 %s, %s, %s' % (vr(T + 4 * tt + h), vr(U + 2 * h), vr(U + 2 * h + 1)))
            a('buffer_store_dwordx%d %s, v1, s[8:11], s%d offen sc1' % (2 * nt, vr(T + 4 * tt, 2 * nt), 6 + tt))

    NB = 8
    slot = lambda n: FR + 4 * (n % NB)
    a('v_add_u32 %s, %d, v1' % (vr(VA), OI))
    for n in range(NB):
        a('ds_read_b128 %s, %s offset:%d' % (vr(slot(n), 4), vr(VA), 1024 * n))
    for n in range(36):
        k, tt = n >> 1, n & 1
        a('s_waitcnt vmcnt(%d) lgkmcnt(%d)' % (17 - k, min(NB - 1, 35 - n)))
        mfma(a, 4 + 4 * tt, RING3 + 4 * k, slot(n), None if k == 0 else 4 + 4 * tt)
        if n + NB < 36:
            a('ds_read_b128 %s, %s offset:%d' % (vr(slot(n), 4), vr(VA), 1024 * (n + NB)))
    stamp(a, 'gem')
    resid_store(1, 4, 20, 29)
    stamp(a, 'rst')
    a('s_setprio 0')
    a('s_waitcnt vmcnt(0)')
    a('s_branch s2_done')
    a.label('s2_hi')
    wo_pre(WO_SPLIT[1])
    a('s_cmp_eq_u32 s12, 11')
    a('s_cbranch_scc0 s2_hw')
    mem_wait(a, 'e1b', CBO, CBW, VZ, 5, backoff=(None, 0, CB_SLEEP) if CB_SLEEP else None)
    a('v_lshlrev_b32 v4, 2, v0')
    a('s_mov_b64 exec, 0xff')
    a('ds_write_b32 v4, %s offset:%d' % (vr(VZ), FLG))
    a('s_mov_b64 exec, -1')
    a('s_waitcnt lgkmcnt(0)')
    a.label('s2_hw')
    a('s_barrier')
    stamp(a, 'e1b')
    wo_pre(WO_SPLIT[2])
    assert nO[0] == NPRE
    a('v_add_u32 v4, %d, v1' % OI)
    a('s_setprio 2')
    a('s_waitcnt vmcnt(0)')
    a('s_barrier')
    stamp(a, 'o')
    b2 = lambda k, tt: B2 + ((k % 4) * 2 + tt) * 4
    for k in range(4):
        for tt in range(2):
            a('ds_read_b128 %s, v4 offset:%d' % (vr(b2(k, tt), 4), 2048 * k + 1024 * tt))
    for k in range(18):
        w = 's_waitcnt lgkmcnt(%d)' % min(6, 2 * (17 - k))
        if k >= NPRE:
            w += ' vmcnt(%d)' % (2 * (17 - k))
        a(w)
        for j in range(2):
            for tt in range(2):
                d = AC2 + (2 * j + tt) * 4
                mfma(a, d, wr(k, j), b2(k, tt), None if k == 0 else d)
        if k + NPRE < 18:
            wo_ld(k + NPRE)
        if k + 4 < 18:
            for tt in range(2):
                a('ds_read_b128 %s, v4 offset:%d' % (vr(b2(k, tt), 4), 2048 * (k + 4) + 1024 * tt))
    stamp(a, 'gem')
    resid_store(2, AC2, B2, 25)
    stamp(a, 'rst')
    a('s_setprio 0')
    a('s_waitcnt vmcnt(0)')
    a.label('s2_done')
    stamp(a, 's2d')
    group_sync('e2')
    if S2_W5:
        a('s_cmp_ge_u32 s12, 7')
        a('s_cbranch_scc1 e2_y')
        nW[0] = n5
        wld(S2_W5)
        a.label('e2_y')
    a('s_barrier')
    stamp(a, 'e2')

    ACC = 4; RING = RING3; BF = RING + 72; RS = BF + 32
    VA = RS + 4; VT = VA + 3; VC = VT + 1; VK = VC + 1; VN = VK + 1
    acc = lambda j, tt: ACC + (j * 4 + tt) * 4
    ring3 = lambda k, j: RING + ((k % 6) * 3 + j) * 4
    bf = lambda p, tt: BF + (p * 4 + tt) * 4
    load_x('x1', X1, XC3)
    a('s_lshl_b32 s4, s20, 2')
    a('v_mov_b32 %s, s4' % vr(VK))
    a('s_mul_i32 s16, s13, 12\ns_add_u32 s16, s16, s28\ns_mul_i32 s16, s16, 55296\ns_add_u32 s16, s16, %d' % W1)
    for b in range(3):
        a('s_mul_i32 s4, s%d, 18432\ns_add_u32 s%d, s4, s16' % (48 + b, 30 + b))
        a('s_mul_i32 s4, s%d, 24576\ns_add_u32 s4, s4, %d' % (48 + b, XI))
        a('v_add_u32 %s, s4, v1' % vr(VA + b))
    a('s_lshl_b32 s4, s21, 3\ns_lshl_b32 s27, 1, s4')
    a('s_mov_b32 s18, s21')
    a('v_mov_b32 %s, %d' % (vr(VN), XC3))
    a('s_cmp_ge_u32 s12, 8')
    a('s_cbranch_scc1 s3_hi')
    a('s_waitcnt vmcnt(0)')
    a('s_barrier')
    stamp(a, 'x3')
    a('s_cmp_lt_u32 s12, 7')
    a('s_cbranch_scc1 s3_filled')
    a('s_branch s3_fill')
    a.label('s3_hi')
    a('s_barrier')
    x_count(XC3)
    stamp(a, 'x3')
    a('s_setprio %d' % P3_SPRIO)
    a('s_lshl_b32 s4, s20, 11\ns_add_u32 s4, s4, %d' % XI)
    a('v_add_u32 %s, s4, v1' % vr(VC))
    a('v_add_u32 %s, %d, %s' % (vr(VT), 5 * 8192, vr(VC)))
    for k in range(4):
        a('v_mov_b32 %s, 0x%x' % (vr(BF + k), ONES))
    rdk = lambda k: a('ds_read_b128 %s, %s offset:%d' % (vr(RING + 4 * k, 4), vr(VC if k < 10 else VT), img(k % 10, 0)))
    for k in range(12):
        rdk(k)
    for k in range(18):
        a('s_waitcnt lgkmcnt(%d)' % min(11, 17 - k))
        f = RING + 4 * k
        mfma(a, ACC, BF, f, None if k == 0 else ACC)
        mfma(a, ACC + 4, f, f, None if k == 0 else ACC + 4)
        if k + 12 < 18:
            rdk(k + 12)
    diag_select(a, ACC + 1, ACC + 4)
    rstd_from(a, ACC + 2, ACC, ACC + 1)
    a('s_lshl_b32 s4, s20, 6')
    a('v_lshl_add_u32 %s, v2, 2, s4' % vr(VT))
    a('v_mov_b32 %s, 0x1000000' % vr(VC))
    a('s_mov_b32 exec_lo, 0x00f0000f\ns_mov_b32 exec_hi, 0xf0000f00')
    a('ds_write_b32 %s, %s' % (vr(VT), vr(ACC + 2)))
    a('s_mov_b64 exec, 1')
    a('ds_add_u32 %s, %s offset:%d' % (vr(VZ), vr(VC), CNT))
    a('s_mov_b64 exec, -1')
    a.label('s3_tok')
    a('s_lshl_b32 s4, s18, 2\ns_lshr_b32 s33, 0x%x, s4\ns_and_b32 s33, s33, 15' % sum(t << (4 * (q + 2)) for q, t in enumerate(P3_THR)))
    lds_spin(a, 's3_tk', VT, VK, TOK, 0, 0, ge=33)
    a.label('s3_fill')
    a('s_mov_b32 s15, s30')
    for k in range(6):
        for j in range(3):
            a('buffer_load_dwordx4 %s, v1, s[8:11], s15 offen offset:%d' % (vr(ring3(k, j), 4), 1024 * j))
        if k < 5:
            a('s_add_u32 s15, s15, 3072')
    a.label('s3_filled')
    a('v_mov_b32 %s, 1' % vr(VC))
    a('s_setprio 2')
    a('s_cmp_lt_u32 s18, 3')
    a('s_cbranch_scc1 s3_pass')
    lds_spin(a, 's3_w2', VT, VZ, CNT, 0xff, 0x04)
    a('s_setprio 1')
    a.label('s3_pass')

    def rd(k, tt):
        a('ds_read_b128 %s, %s offset:%d' % (vr(bf(k & 1, tt), 4), vr(VA + k // 6), img(k % 6, tt)))
    for tt in range(4):
        rd(0, tt)
    a('s_waitcnt vmcnt(17) lgkmcnt(0)')
    issued = 18
    for k in range(18):
        for n in range(12):
            j, tt = n >> 2, n & 3
            if j & 1:
                tt = 3 - tt
            mfma(a, acc(j, tt), ring3(k, j), bf(k & 1, tt), None if k == 0 else acc(j, tt))
            if n == 0 and k < 12:
                a('s_add_u32 s15, s15, 3072' if k % 6 else 's_mov_b32 s15, s%d' % (31 + k // 6))
            if n in (0, 1, 4, 5) and k < 17:
                rd(k + 1, n if n < 2 else n - 2)
            if n in (2, 6, 10) and k * 3 + j + 1 < 54:
                a('s_waitcnt vmcnt(%d)%s' % (issued - (k * 3 + j + 2), ' lgkmcnt(0)' if n == 10 else ''))
            if n in (3, 7, 11) and k < 12:
                a('buffer_load_dwordx4 %s, v1, s[8:11], s15 offen offset:%d' % (vr(ring3(k, j), 4), 1024 * j))
                issued += 1
            if k == P3_TOK + 1 and n == 7:
                a('s_mov_b64 exec, 1')
                a('ds_add_u32 %s, %s offset:%d' % (vr(VK), vr(VC), TOK))
                a('s_mov_b64 exec, -1')
            if k in (4, 10):
                m = 0x0400 if k == 4 else 0x040000
                if n == 6:
                    a('ds_read_b32 %s, %s' % (vr(VT), vr(VN)))
                if n == 10:
                    a('v_readfirstlane_b32 s4, %s' % vr(VT))
                if n == 11:
                    a('s_andn2_b32 s4, 0x%x, s4' % m)
                    a('s_cbranch_scc1 s3_slow%d' % k)
                    a.label('s3_back%d' % k)
    a('s_setprio 0')
    a('s_lshr_b32 s24, s28, 1\ns_mul_i32 s24, s24, 3\ns_and_b32 s25, s28, 1')
    a('s_cmp_ge_u32 s18, 3')
    a('s_cbranch_scc1 s3_epib')
    stamp(a, 'pa')
    lds_spin(a, 's3_w1', VT, VZ, CNT, 0xff000000, 0x04000000)
    a('v_lshlrev_b32 %s, 2, v2' % vr(VT))
    for tt in range(4):
        a('ds_read_b32 %s, %s offset:%d' % (vr(RS + tt), vr(VT), 64 * tt))
    def img_s(dst, ks):
        a('s_lshr_b32 s6, %s, 1\ns_lshl_b32 s6, s6, 13\ns_and_b32 %s, %s, 1\ns_lshl_b32 %s, %s, 10\ns_add_u32 %s, %s, s6' % (ks, dst, ks, dst, dst, dst, dst))
    a('s_lshl_b32 s4, s25, 1\ns_add_u32 s4, s4, s24')
    img_s('s4', 's4')
    a('s_add_u32 s4, s4, %d' % HI)
    a('s_add_u32 s5, s24, 1')
    img_s('s5', 's5')
    a('s_lshl_b32 s6, s25, 3\ns_add_u32 s5, s5, s6\ns_add_u32 s5, s5, %d' % HI)
    a('s_waitcnt lgkmcnt(0)')
    a('v_add_u32 %s, s4, v1' % vr(VT))
    a('v_add_u32 %s, s5, v1' % vr(VC))
    C = BF + 28
    for tt in range(4):
        a('v_mul_f32 %s, 0x%x, %s' % (vr(C + tt), NLOG2E, vr(RS + tt)))
    T = BF
    units = [[(0, u), (1, u)] for u in range(4)] + [[(2, 0), (2, 1)], [(2, 2), (2, 3)]]
    for u, un in enumerate(units):
        idx = [(j, tt, r) for j, tt in un for r in range(4)]
        for n, (j, tt, r) in enumerate(idx):
            a('v_mul_f32 %s, %s, %s' % (vr(T + n), vr(acc(j, tt) + r), vr(C + tt)))
        for n in range(8):
            a('v_exp_f32 %s, %s' % (vr(T + n), vr(T + n)))
        for n in range(8):
            a('v_add_f32 %s, 1.0, %s' % (vr(T + n), vr(T + n)))
        for n in range(8):
            a('v_rcp_f32 %s, %s' % (vr(T + n), vr(T + n)))
        for n, (j, tt, r) in enumerate(idx):
            a('v_mul_f32 %s, %s, %s' % (vr(T + n), vr(acc(j, tt) + r), vr(T + n)))
        P = BF + 8 + 4 * (u % 4)
        for n in range(4):
            a('v_cvt_pk_bf16_f32 %s, %s, %s' % (vr(P + n), vr(T + 2 * n), vr(T + 2 * n + 1)))
        if u < 4:
            a('ds_write_b128 %s, %s offset:%d' % (vr(VT), vr(P, 4), 2048 * u))
        else:
            a('ds_write_b64 %s, %s offset:%d' % (vr(VC), vr(P, 2), 2048 * un[0][1]))
            a('ds_write_b64 %s, %s offset:%d' % (vr(VC), vr(P + 2, 2), 2048 * un[1][1]))
    a('v_mov_b32 %s, s27' % vr(VT))
    a('s_mov_b64 exec, 1')
    a('ds_add_u32 %s, %s offset:%d' % (vr(VZ), vr(VT), CNT))
    a('s_mov_b64 exec, -1')
    for b in range(3):
        a('s_add_u32 s%d, s%d, %d' % (30 + b, 30 + b, W2 - W1))
        a('v_add_u32 %s, %d, %s' % (vr(VA + b), HI - XI, vr(VA + b)))
    a('s_add_u32 s18, s18, 3')
    a('v_mov_b32 %s, %d' % (vr(VN), CNT))
    a('s_branch s3_tok')
    for k, m in ((4, 0x0400), (10, 0x040000)):
        a.label('s3_slow%d' % k)
        lds_spin(a, 's3_sl%d' % k, VT, VN, 0, m, m)
        a('s_branch s3_back%d' % k)
    a.label('s3_epib')
    stamp(a, 'pb')
    a('s_setprio %d' % EPB_PRIO)
    a('s_lshl_b32 s4, s13, 5\ns_add_u32 s4, s4, s14\ns_mul_i32 s4, s4, 12\ns_add_u32 s4, s4, s28\ns_mul_i32 s4, s4, 6144')
    a('s_add_u32 s6, s4, s%d\ns_add_u32 s7, s6, 4096' % PRT)
    for u, un in enumerate(units):
        P = BF + 4 * u
        for n, (j, tt) in enumerate(un):
            for r in range(4):
                a('v_mul_f32 %s, %s, %s' % (vr(acc(j, tt) + r), vr(acc(j, tt) + r), vr(RS + tt)))
            a('v_cvt_pk_bf16_f32 %s, %s, %s' % (vr(P + 2 * n), vr(acc(j, tt)), vr(acc(j, tt) + 1)))
            a('v_cvt_pk_bf16_f32 %s, %s, %s' % (vr(P + 2 * n + 1), vr(acc(j, tt) + 2), vr(acc(j, tt) + 3)))
        a('buffer_store_dwordx4 %s, v1, s[8:11], s%d offen offset:%d sc1' % (vr(P, 4), 6 + (u >> 2), 1024 * (u & 3)))
    a('s_mul_i32 s22, s14, 12\ns_add_u32 s4, s22, s28\ns_lshl_b32 s4, s4, 7\ns_add_u32 s6, s4, %d' % FL_RF)
    a('v_mov_b32 v4, 1')
    a('s_and_b32 s23, s28, 12\ns_lshr_b32 s4, s13, 1\ns_add_u32 s23, s23, s4')
    a('s_add_u32 s22, s22, s23')
    a('s_lshl_b32 s7, s22, 7\ns_add_u32 s7, s7, %d' % FL_RF)
    a('s_and_b32 s29, s13, 1')
    a('s_lshr_b32 s24, s23, 1\ns_mul_i32 s24, s24, 3\ns_and_b32 s25, s23, 1')
    a('s_lshl_b32 s26, s29, 1')
    a('s_cmp_eq_u32 s20, 2')
    a('s_cbranch_scc1 s3_mix')
    a('s_add_u32 s26, s26, s20\ns_mov_b32 s16, s26')
    a('s_lshl_b32 s4, s25, 1\ns_add_u32 s24, s24, s4\ns_mov_b32 s25, 0')
    a('s_branch s3_adr')
    a.label('s3_mix')
    a('s_add_u32 s16, s29, 4\ns_add_u32 s24, s24, 1\ns_lshl_b32 s25, s25, 3')
    a.label('s3_adr')
    a('s_mul_i32 s22, s22, 6\ns_add_u32 s16, s16, s22\ns_lshl_b32 s16, s16, 10\ns_add_u32 s16, s16, s%d' % PRT)
    a('s_lshr_b32 s4, s24, 1\ns_lshl_b32 s4, s4, 2\ns_add_u32 s4, s4, s26\ns_lshl_b32 s4, s4, 1\ns_and_b32 s5, s24, 1\ns_add_u32 s4, s4, s5')
    a('s_lshl_b32 s4, s4, 10\ns_add_u32 s4, s4, s25\ns_add_u32 s4, s4, %d' % XI)
    a('v_add_u32 v6, s4, v1')
    a('s_lshl_b32 s4, s14, 2\ns_add_u32 s4, s4, s26\ns_mul_i32 s17, s4, 18432\ns_add_u32 s17, s17, s25')
    a('s_mov_b32 s39, 0x20000')
    a('s_cmp_eq_u32 s%d, 0' % LAY)
    a('s_cbranch_scc0 s3_fin')
    a('s_mov_b32 s36, s8\ns_mov_b32 s37, s9\ns_mov_b32 s38, s10')
    a('s_lshl_b32 s4, s24, 10\ns_add_u32 s17, s17, s4\ns_add_u32 s17, s17, %d' % (X0 + ACT))
    a('v_mov_b32 v7, v1')
    a('s_branch s3_pub')
    a.label('s3_fin')
    a('s_mov_b32 s36, s94\ns_mov_b32 s37, s95\ns_mov_b32 s38, %d' % ACT)
    a('s_lshl_b32 s4, s24, 6\ns_add_u32 s17, s17, s4')
    a('v_mul_u32_u24 v7, 1152, v2')
    a('v_lshl_add_u32 v7, v3, 4, v7')
    a.label('s3_pub')
    a('s_cmp_eq_u32 s18, 5')
    a('s_cbranch_scc0 s3_pu2')
    a('s_mov_b64 exec, 1')
    a('ds_add_u32 %s, v4 offset:%d' % (vr(VK), TOK))
    a('s_mov_b64 exec, -1')
    a.label('s3_pu2')
    stamp(a, 'pst')
    a('s_waitcnt vmcnt(0)')
    stamp(a, 'pdr')
    mem_arrive(a, 6, VZ, 4)
    a('s_cmp_eq_u32 s20, 3')
    a('s_cbranch_scc1 s3_red_done')
    RX = 8; PP = 20; AC = 12
    a('ds_read_b64 %s, v6' % vr(RX, 2))
    a('s_cmp_eq_u32 s20, 2')
    a('s_cselect_b32 s4, 2048, 8')
    a('v_add_u32 v6, s4, v6')
    a('ds_read_b64 %s, v6' % vr(RX + 2, 2))
    mem_wait(a, 's3_rw', 7, RFW, VZ, 5, backoff=(18, 5, 4))
    stamp(a, 'rw0')
    thr = sum(t << (4 * (4 * l + g)) for l in range(2) for g, t in enumerate(RED_THR[l]))
    a('s_lshl_b32 s4, s%d, 2\ns_add_u32 s4, s4, s21\ns_lshl_b32 s4, s4, 2\ns_lshr_b32 s33, 0x%x, s4\ns_and_b32 s33, s33, 15' % (LAY, thr))
    lds_spin(a, 's3_t6r', VT, VK, TOK, 0, 0, ge=33)
    stamp(a, 'rw1')
    for c in range(8):
        a('buffer_load_dwordx4 %s, v1, s[8:11], s16 offen sc1' % vr(PP + 4 * c, 4))
        if c < 7:
            a('s_add_u32 s16, s16, %d' % ACT)
    a('s_waitcnt lgkmcnt(0)')
    for n in range(4):
        a('v_lshlrev_b32 %s, 16, %s' % (vr(AC + 2 * n), vr(RX + n)))
        a('v_and_b32 %s, 0xffff0000, %s' % (vr(AC + 2 * n + 1), vr(RX + n)))
    for c in range(8):
        a('s_waitcnt vmcnt(%d)' % (7 - c))
        for n in range(4):
            a('v_lshlrev_b32 %s, 16, %s' % (vr(RX + n), vr(PP + 4 * c + n)))
            a('v_and_b32 %s, 0xffff0000, %s' % (vr(PP + 4 * c + n), vr(PP + 4 * c + n)))
        for n in range(4):
            a('v_add_f32 %s, %s, %s' % (vr(AC + 2 * n), vr(AC + 2 * n), vr(RX + n)))
            a('v_add_f32 %s, %s, %s' % (vr(AC + 2 * n + 1), vr(AC + 2 * n + 1), vr(PP + 4 * c + n)))
    for n in range(4):
        a('v_cvt_pk_bf16_f32 %s, %s, %s' % (vr(RX + n), vr(AC + 2 * n), vr(AC + 2 * n + 1)))
    stamp(a, 'rsum')
    a('s_cmp_eq_u32 s20, 2')
    a('s_cbranch_scc1 s3_stm')
    a('buffer_store_dwordx4 %s, v7, s[36:39], s17 offen sc1' % vr(RX, 4))
    a('s_branch s3_red_done')
    a.label('s3_stm')
    a('buffer_store_dwordx2 %s, v7, s[36:39], s17 offen sc1' % vr(RX, 2))
    a('s_add_u32 s17, s17, 18432')
    a('buffer_store_dwordx2 %s, v7, s[36:39], s17 offen sc1' % vr(RX + 2, 2))
    a.label('s3_red_done')
    a('s_setprio 0')
    a('s_cmp_eq_u32 s%d, 0' % LAY)
    a('s_cbranch_scc0 mega_fin')
    a('s_waitcnt vmcnt(0)')
    if STAMPS:
        stamp_end(a, 6, 12, 12, 12, base_v=8)
        a('s_mov_b64 exec, -1')
        a('s_waitcnt vmcnt(0)')
        stamp(a, 0)
    a('s_mov_b32 s%d, 1\ns_mov_b32 s%d, %d\ns_mov_b32 s%d, 64\ns_mov_b32 s%d, 16' % (LAY, LOFF, ACT, CBW, RFW))
    a('s_add_u32 s%d, s%d, %d\ns_add_u32 s%d, s%d, %d' % (SOF, SOF, 32 * HS, PRT, PRT, PART_STEP))
    a('s_lshl_b32 s6, s14, 2\ns_add_u32 s6, s6, s21\ns_lshl_b32 s6, s6, 7\ns_add_u32 s6, s6, %d' % FL_GT)
    a('s_mov_b32 s33, %d' % NX_TOK)
    a('s_cmp_eq_u32 s20, 3')
    a('s_cbranch_scc1 nx_load')
    mem_arrive(a, 6, VZ, 4)
    a('s_cmp_ge_u32 s12, 8')
    a('s_cbranch_scc1 s1_wo')
    lds_spin(a, 'nx_t1', VT, VK, TOK, 0, 0, ge=33)
    a('s_branch nx_fill')
    a.label('nx_load')
    lds_spin(a, 'nx_t2', VT, VK, TOK, 0, 0, ge=33)
    a('s_mov_b32 s7, 24')
    a('s_setprio 3')
    mem_wait(a, 'nx_w', 6, 7, VZ, 5, backoff=(12, 11, NX_SLEEP))
    stamp(a, 'e4')
    a('s_lshr_b32 s4, s28, 2')
    a('s_mul_i32 s22, s4, 6144\ns_mul_i32 s5, s14, 73728\ns_add_u32 s22, s22, s5\ns_add_u32 s22, s22, %d' % (X0 + ACT))
    a('s_mul_i32 s24, s4, 24576\ns_add_u32 s24, s24, %d' % XI)
    for p in range(3):
        for tt in range(4):
            a('s_add_u32 m0, s24, %d' % (8192 * p + 2048 * tt))
            a('s_add_u32 s23, s22, %d' % (2048 * p + 18432 * tt))
            for h in range(2):
                a('buffer_load_dwordx4 v1, s[8:11], s23 offen offset:%d sc1 lds' % (1024 * h))
    a('s_lshl_b32 s4, s27, 2')
    a('v_mov_b32 v5, s4')
    a('s_waitcnt vmcnt(0)')
    a('s_mov_b64 exec, 1')
    a('ds_add_u32 %s, v5 offset:%d' % (vr(VZ), XC1))
    a('s_mov_b64 exec, -1')
    a('s_setprio 0')
    a('s_cmp_eq_u32 s12, 11')
    a('s_cbranch_scc1 s1_wo')
    a('s_cmp_eq_u32 s12, 7')
    a('s_cbranch_scc1 nx_go')
    a.label('nx_fill')
    s1_fill(NX_DEPTH)
    a.label('nx_go')
    stamp(a, 'fil')
    lds_spin(a, 'nx_x0', 6, VZ, XC1, 4, 4)
    a('s_branch s1_go')
    a.label('mega_fin')
    if AMP:
        a('s_cmp_eq_u32 s2, 20\ns_cbranch_scc0 amp_x')
        a('s_cmp_eq_u32 s12, 8\ns_cbranch_scc0 amp_x')
        a('s_waitcnt vmcnt(0)')
        a('s_mov_b32 s4, %d' % (DBG - 4096))
        a('buffer_load_dword v8, %s, s[8:11], s4 offen' % vr(VZ))
        a('s_memrealtime s[40:41]')
        a('s_waitcnt vmcnt(0) lgkmcnt(0)')
        a('v_readfirstlane_b32 s42, v8')
        if AMP == 'all':
            a('s_sub_u32 s43, s40, s42')
        elif AMP == 'mega':
            a('s_sub_u32 s43, s40, s84')
        elif AMP == 'prep':
            a('s_sub_u32 s43, s84, s42')
        else:
            a('s_mov_b32 s43, 0')
        a('s_min_u32 s43, s43, 50000')
        a.label('amp_l')
        a('s_memrealtime s[44:45]')
        a('s_waitcnt lgkmcnt(0)')
        a('s_sub_u32 s44, s44, s40')
        a('s_cmp_lt_u32 s44, s43')
        a('s_cbranch_scc1 amp_l')
        a.label('amp_x')
    stamp_end(a, 7, 12, 12, 12, base_v=8)
    a.label('mega_end')
    a('s_endpgm')
    return ('mega_kernel', a, 168, 100, (256, 768, LDS))


def gen_pf():
    a = Asm()
    a('s_cmp_ge_u32 s2, 256')
    a('s_cbranch_scc1 pf_end')
    ws_srd(a)
    a('s_waitcnt lgkmcnt(0)')
    l2_touch(a, WQ, WQ_HG, NCX, 8, 2, 3)
    l2_touch(a, WO, 9 * 18432, 4, 4, 2, 3)
    a('s_waitcnt vmcnt(0)')
    a.label('pf_end')
    a('s_endpgm')
    return ('pf_kernel', a, 8, 24, (256, 64, 0))


def gen_empty(n=''):
    a = Asm()
    a('s_endpgm')
    return ('empty%s_kernel' % n, a, 8, 16, (256, 256, 0))


def gen_chain(slot):
    a = Asm()
    a('s_cmp_ge_u32 s2, 32')
    a('s_cbranch_scc1 chain_end')
    a('s_load_dwordx2 s[8:9], s[0:1], %d' % (8 * slot))
    a('s_mov_b32 s10, %d\ns_mov_b32 s11, 0x20000' % ACT)
    a('s_mul_i32 s4, s2, %d' % (64 * 1024))
    a('v_mov_b32 v1, 0')
    a('s_mov_b64 exec, 1')
    a('s_waitcnt lgkmcnt(0)')
    for k in range(64):
        a('buffer_load_dword v2, v1, s[8:11], s4 offen')
        a('s_waitcnt vmcnt(0)')
        a('v_and_b32 v2, 0, v2')
        a('v_add_u32 v1, 1024, v1')
        a('v_add_u32 v1, v2, v1')
    a.label('chain_end')
    a('s_endpgm')
    return ('chain_kernel', a, 8, 16, (32, 64, 0))


PRE = []
RED_THR = ((5, 6), (5, 6))
WO_W1 = 7
S2_W5 = 6
WO_SPLIT = (6, 0, 0)
RED_TOUCH = 0
RED_TSTEP = 128
SFLAG = True
CB_SLEEP = 0
NX_TOK = 6
NX_DEPTH = None
NX_SLEEP = 4
S1_GATE = -1
S1_GATEN = 7
WO_TOUCH = True
P3_THR = (2, 3, 4, 5)
RED_MODE = 0
EPB_PRIO = 3
PREP_RANGES = ((0, 64), (64, 136), (136, 208), (208, 217), (217, 241))
PREP_QLD = ''
PREP_HLD = ''
PREP_H3 = True
PREP_ROT = 0
PREP_GLD = ''
NCX = 4
S2_WE = 6
S2_W0 = 2
S2_W1 = 1
P3_LEAD = 0
PART_STEP = 0
MID = []
KD_PF = False
P3_SLEEP = 0
P3_TOK = 10
P3_EPRIO2 = 0
P3_SPRIO = 3
PF1 = []
PF2 = []
PF3 = None
P0_LD = ''
P1_NCX = 4
P2_NCX = 4
P1_ST = ' sc1'
P2_W0 = 4
P2_W1 = 2
CODE_PF = True
PREP_ST = ' sc1'
PREP_XLD = ' nt'
P3_LD = ''
P3_SNAKE = True
P3_EPRIO = 0
PF = False
P3_NODS = False
P3_NOLD = False
PRIO = True
P3_NCX = 4
P3_ST = ' sc1'


def build():
    ks = [gen_prep(), gen_mega()]
    for e in sorted(set(MID)):
        ks.append(gen_pf() if e == 'pf' else gen_empty(e[5:]))
    geo = {k[0]: k[4] for k in ks}
    order = ['prep'] + MID + ['mega']
    hdr = ['; generated by gen/gen.py (hand-written generator); see that file for the layouts']
    for o in order:
        g, b, l = geo[o + '_kernel']
        hdr.append('; @launch kernel=%s_kernel grid=(%d,1,1) block=(%d,1,1) lds=%d' % (o, g, b, l))
    out = '\n'.join(hdr) + '\n.amdgcn_target "amdgcn-amd-amdhsa--gfx950"\n'
    descs = ''
    for name, a, nv, ns, _ in ks:
        c, d = kernel_text(name, a, nv, ns)
        out += c
        descs += d
    out += 'code_end:\n'
    return out + '.section .rodata,"a"\n.p2align 6\nkd_begin:\n' + descs + 'kd_end:\n'


if __name__ == '__main__':
    path = sys.argv[1] if len(sys.argv) > 1 else 'cdna_kernels/%s.s' % NAME
    for o in sys.argv[2:]:
        k, v = o.split('=')
        globals()[k] = eval(v)
    open(path, 'w').write(build())
    print('wrote', path)
```

```python
import sys, re
from asmlib import Asm, vr, sr, kernel_text

NAME = 'interleave_layers__linear_attn_block__dense_activation_silu__prompt'
S, D, F = 2048, 576, 4608
ACT = S * D * 2
WQ_HG = 258048
WQ = 0
WO = WQ + 8 * WQ_HG
W1 = WO + 36 * 18432
W2 = W1 + D * F * 2
X0 = W2 + D * F * 2
X1 = X0 + 2 * ACT
PQ = X1 + 2 * ACT
HS = 1536
SS = PQ + 2 * ACT
FL = SS + 64 * HS
FL_GB = FL
FL_CB = FL + 32 * 128
FL_RF = FL + 64 * 128
FL_GT = FL + 448 * 128
ZERO_BYTES = 64 * HS + 576 * 128
FL_RL = SS + ZERO_BYTES
PART = FL_RL + 4096
WS_BYTES = 268435456
OOB = 0x80000000
LOG2E = 0x3fb8aa3b
NLOG2E = 0xbfb8aa3b
EPS6 = 0x358637bd
EPS5 = 0x3727c5ac
INV576 = 0x3ae38e39
ONES = 0x3f803f80
MF = 'v_mfma_f32_16x16x32_bf16'


def mfma(a, d, x, y, c=None):
    a('%s %s, %s, %s, %s' % (MF, vr(d, 4), vr(x, 4), vr(y, 4), '0' if c is None else vr(c, 4)))


def ws_srd(a):
    a('s_load_dwordx2 s[8:9], s[0:1], 64')
    a('s_mov_b32 s10, 0x%x' % WS_BYTES)
    a('s_mov_b32 s11, 0x20000')


def wave_id(a, sdst, vtmp):
    a('v_lshrrev_b32 %s, 6, v0' % vr(vtmp))
    a('v_readfirstlane_b32 %s, %s' % (sr(sdst), vr(vtmp)))
    a('v_and_b32 v0, 63, v0')


DBG = 128 << 20
STAMPS = False
SINGLE = False
KNAME = NAME + '_kernel'
AMP = None
DBGOUT = 0


SEL = ['x1', 's1m', 's1d', 'e1a', 'e1b', 'o', 's2d', 'x3', 'pa', 'pb']


def stamp(a, i):
    if SINGLE and i in (1, 2, 3):
        return
    if isinstance(i, str):
        if i not in SEL:
            return
        i = SEL.index(i) + 1
    if STAMPS:
        a('s_mem%stime s[%d:%d]' % ('real' if STAMPS == 2 else '', 60 + 2 * i, 61 + 2 * i))


def stamp_begin(a):
    if STAMPS:
        a('s_memrealtime s[56:57]')
        stamp(a, 0)


def stamp_end(a, kid, n, s_wave, nw, base_v=2):
    if not STAMPS:
        return
    a('s_waitcnt vmcnt(0)')
    stamp(a, n - 1)
    a('s_memrealtime s[58:59]')
    a('s_getreg_b32 s55, hwreg(HW_REG_XCC_ID)')
    a('s_getreg_b32 s54, hwreg(HW_REG_HW_ID)')
    a('s_mov_b64 exec, -1')
    a('s_mul_i32 s4, s2, %d\ns_add_u32 s4, s4, %s\ns_lshl_b32 s4, s4, 6\ns_add_u32 s4, s4, %d' % (nw, sr(s_wave), DBG + (kid << 20)))
    a('s_waitcnt lgkmcnt(0)')
    d, o = base_v, base_v + 1
    a('v_mov_b32 v%d, 0' % d)
    for i in range(n):
        a('v_writelane_b32 v%d, s%d, %d' % (d, 60 + 2 * i, i))
    a('v_writelane_b32 v%d, s54, 12' % d)
    a('v_writelane_b32 v%d, s55, 13' % d)
    a('v_writelane_b32 v%d, s56, 14' % d)
    a('v_writelane_b32 v%d, s58, 15' % d)
    a('v_mbcnt_lo_u32_b32 v%d, -1, 0' % o)
    a('v_lshlrev_b32 v%d, 2, v%d' % (o, o))
    a('s_mov_b64 exec, 0xffff')
    a('buffer_store_dword v%d, v%d, s[8:11], s4 offen' % (d, o))
    if DBGOUT and kid in (0, 6, 7):
        L = 'dbgo%d_%d' % (kid, len(a.lines))
        a('s_cmp_eq_u32 s2, %d\ns_cbranch_scc0 %s' % (DBGOUT, L))
        a('s_cmp_eq_u32 %s, %d\ns_cbranch_scc0 %s' % (sr(s_wave), 0 if kid == 0 else 8, L))
        a('s_load_dwordx2 s[40:41], s[0:1], 56')
        a('s_mov_b32 s42, 1024\ns_mov_b32 s43, 0x20000')
        a('s_waitcnt lgkmcnt(0)')
        if kid == 0:
            a('s_mov_b64 exec, 0xc000')
            a('buffer_store_dword v%d, v%d, s[40:43], 0 offen' % (d, o))
            a('buffer_store_dword v%d, v%d, s[40:43], 0 offen offset:512' % (d, o))
        else:
            a('s_sub_u32 s40, s40, 512\ns_subb_u32 s41, s41, 0')
            a('v_writelane_b32 v%d, s58, 6' % d)
            a('s_mov_b64 exec, 0x7f')
            a('buffer_store_dword v%d, v%d, s[40:43], 0 offen offset:%d' % (d, o, 28 * (kid - 6)))
            a('buffer_store_dword v%d, v%d, s[40:43], 0 offen offset:%d' % (d, o, 512 + 28 * (kid - 6)))
        a.label(L)


def centre(a, nw, nk, nt, fr, ON, CS, s_w, lds_cs, store):
    for k in range(4):
        a('v_mov_b32 %s, 0x%x' % (vr(ON + k), ONES))
    for k in range(nk):
        for c in range(nt):
            mfma(a, CS + 4 * c, ON, fr(k, c), None if k == 0 else CS + 4 * c)
    a('v_mul_u32_u24 v4, %d, v2' % (32 * nw))
    a('s_lshl_b32 s4, %s, 5' % sr(s_w))
    a('v_add_u32 v5, s4, v4')
    for c in range(4):
        a('v_mov_b32 %s, %s' % (vr(ON + c), vr(CS + 4 * c)))
    a('ds_write_b128 v5, %s offset:%d' % (vr(ON, 4), lds_cs))
    if nt > 4:
        a('ds_write_b32 v5, %s offset:%d' % (vr(CS + 16), lds_cs + 16))
    a('s_waitcnt lgkmcnt(0)')
    a('s_barrier')
    for w in range(nw):
        a('ds_read_b128 %s, v4 offset:%d' % (vr(CS + 4 * w, 4), lds_cs + 32 * w))
        if nt > 4:
            a('ds_read_b32 %s, v4 offset:%d' % (vr(CS + 4 * nw + w), lds_cs + 32 * w + 16))
    a('s_waitcnt lgkmcnt(0)')
    mean = [CS + c for c in range(4)] + [CS + 4 * nw]
    for c in range(nt):
        for w in range(1, nw):
            a('v_add_f32 %s, %s, %s' % (vr(mean[c]), vr(mean[c]), vr(CS + 4 * w + c if c < 4 else CS + 4 * nw + w)))
    for c in range(nt):
        a('v_mul_f32 %s, 0x%x, %s' % (vr(CS + 8 + 2 * c), INV576 | 0x80000000, vr(mean[c])))
    for k in range(nk):
        for c in range(nt):
            f = fr(k, c)
            for p in range(4):
                a('v_lshlrev_b32 %s, 16, %s' % (vr(12 + 2 * p), vr(f + p)))
                a('v_and_b32 %s, 0xffff0000, %s' % (vr(13 + 2 * p), vr(f + p)))
            for p in range(4):
                a('v_pk_add_f32 %s, %s, %s op_sel_hi:[1,0]' % (vr(12 + 2 * p, 2), vr(12 + 2 * p, 2), vr(CS + 8 + 2 * c, 2)))
            for p in range(4):
                a('v_cvt_pk_bf16_f32 %s, %s, %s' % (vr(f + p), vr(12 + 2 * p), vr(13 + 2 * p)))
            store(k, c)


def gen_prep(a=None):
    stage = a is not None
    if not stage:
        a = Asm()
    E0 = KNAME if stage else 'prep_kernel'

    def fin(barrier_done):
        if not stage:
            stamp_end(a, 0, 5, 3, 6)
            a('s_endpgm')
        else:
            a('s_branch %s' % ('prep_join' if barrier_done else 'prep_bar'))
    NM = 72; NW = 6; NK = 3
    U_W2 = 72; U_WO = 144; U_WQ = 153; NU = 177
    LCS = 0; LB = 3072; LW = 19328
    FR = 24; ON = 8
    if not stage:
        a('s_cmp_ge_u32 s2, %d' % (NM + NU))
        a('s_cbranch_scc1 prep_end')
        stamp_begin(a)
    ws_srd(a)
    a('s_load_dwordx4 s[24:27], s[0:1], 0')
    a('s_load_dwordx2 s[28:29], s[0:1], 16')
    a('s_load_dwordx4 s[32:35], s[0:1], 32')
    wave_id(a, 3, 1)
    a('v_lshlrev_b32 v1, 4, v0')
    a('v_and_b32 v2, 15, v0')
    a('v_lshrrev_b32 v3, 4, v0')
    a('s_mov_b32 s15, 0x20000')
    if stage:
        a('s_cmp_ge_u32 s3, %d' % NW)
        a('s_cbranch_scc1 prep_idle')
        a('s_cmp_ge_u32 s2, %d' % (NM + NU))
        a('s_cbranch_scc1 prep_bar')
    a('s_cmp_lt_u32 s2, %d' % NM)
    a('s_cbranch_scc1 prep_misc')
    a('s_sub_u32 s20, s2, %d' % (NM + 24))
    a('s_cmp_lt_u32 s2, %d' % (NM + 24))
    a('s_cselect_b32 s4, %d, 0' % NU)
    a('s_add_u32 s20, s20, s4')
    a('s_lshr_b32 s5, s20, 3\ns_add_u32 s4, s20, s5\ns_and_b32 s4, s4, 7\ns_lshl_b32 s5, s5, 3\ns_add_u32 s4, s4, s5')
    a('s_cmp_lt_u32 s20, 72\ns_cselect_b32 s20, s4, s20')
    a('s_mul_i32 s22, s3, %d\ns_add_u32 s22, s22, %d' % (LW, LB))
    a('s_mov_b32 s23, s22')
    a('v_bfe_u32 v6, v0, 2, 2')
    a('v_lshl_add_u32 v7, v3, 3, v6')
    a('s_cmp_ge_u32 s20, %d' % U_WQ)
    a('s_cbranch_scc1 prep_q')
    fr = lambda k, c: FR + (k * 4 + c) * 4
    CS = FR + 16 * NK
    a('v_lshrrev_b32 v8, 3, v0')
    a('v_and_b32 v5, 7, v0')
    a('v_lshrrev_b32 v6, 2, v0')
    a('v_and_b32 v6, 4, v6')
    a('v_xor_b32 v5, v5, v6')
    a('v_lshlrev_b32 v9, 4, v5')
    a('s_cmp_ge_u32 s20, %d' % U_WO)
    a('s_cbranch_scc1 prep_wo')
    a('s_mov_b32 s14, %d' % (D * F * 2))
    a('s_cmp_ge_u32 s20, %d' % U_W2)
    a('s_cbranch_scc1 prep_w2')
    a('s_mov_b32 s18, 9216\ns_lshl_b32 s19, s20, 7\ns_mov_b32 s16, %d\ns_lshl_b32 s21, s20, 2' % W1)
    a('s_waitcnt lgkmcnt(0)')
    a('s_mov_b32 s12, s32\ns_mov_b32 s13, s33')
    a('s_branch prep_w12')
    a.label('prep_w2')
    a('s_sub_u32 s21, s20, %d' % U_W2)
    a('s_mul_i32 s4, s21, 7282\ns_lshr_b32 s4, s4, 16')
    a('s_mul_i32 s5, s4, 9\ns_sub_u32 s5, s21, s5\ns_lshl_b32 s5, s5, 7')
    a('s_mul_i32 s19, s4, %d\ns_add_u32 s19, s19, s5' % (576 * 1152))
    a('s_mov_b32 s18, 1152\ns_mov_b32 s16, %d\ns_lshl_b32 s21, s21, 2' % W2)
    a('s_waitcnt lgkmcnt(0)')
    a('s_mov_b32 s12, s34\ns_mov_b32 s13, s35')
    a.label('prep_w12')
    a('s_mul_i32 s4, s3, s18\ns_mul_i32 s4, s4, %d\ns_add_u32 s19, s19, s4' % (32 * NK))
    a('s_lshl_b32 s17, s18, 3')
    a('v_mul_lo_u32 v4, v8, s18')
    a('v_add_u32 v4, v4, v9')
    for n in range(4 * NK):
        a('s_mov_b32 m0, s23')
        a('s_add_u32 s23, s23, 1024')
        a('buffer_load_dwordx4 v4, s[12:15], s19 offen nt lds')
        a('s_add_u32 s19, s19, s17')
    for c in range(4):
        a('s_add_u32 s4, s21, %d\ns_mul_i32 s5, s4, 43691\ns_lshr_b32 s5, s5, 17' % c)
        a('s_mul_i32 s6, s5, 3\ns_sub_u32 s4, s4, s6')
        a('s_and_b32 s6, s5, 1\ns_lshl_b32 s6, s6, 1\ns_add_u32 s4, s4, s6')
        a('s_cmp_ge_u32 s4, 3\ns_cselect_b32 s6, 3, 0\ns_sub_u32 s4, s4, s6')
        a('s_mul_i32 s6, s5, 54\ns_add_u32 s4, s4, s6\ns_mul_i32 s6, s3, %d\ns_add_u32 s4, s4, s6' % (3 * NK))
        a('s_lshl_b32 s4, s4, 10\ns_add_u32 s%d, s4, s16' % (36 + c))
    a('s_mov_b32 s17, 3072')
    a('s_branch prep_tr')
    a.label('prep_wo')
    a('s_sub_u32 s21, s20, %d' % U_WO)
    a('v_lshrrev_b32 v10, 2, v8\nv_and_b32 v11, 3, v8')
    a('v_mad_u32_u24 v10, v10, 20, v11')
    a('v_mul_u32_u24 v10, 1152, v10')
    a('v_add_u32 v10, v10, v9')
    a('v_lshrrev_b32 v11, 1, v8\nv_mul_u32_u24 v11, 72, v11\nv_and_b32 v4, 1, v8\nv_add_u32 v11, v11, v4')
    a('v_mul_u32_u24 v11, 1152, v11')
    a('v_add_u32 v11, v11, v9')
    a('s_mov_b32 s14, %d' % (D * D * 2))
    a('s_lshl_b32 s18, s21, 7')
    a('s_waitcnt lgkmcnt(0)')
    a('s_mov_b32 s12, s28\ns_mov_b32 s13, s29')
    for k in range(NK):
        a('s_mul_i32 s4, s3, %d\ns_add_u32 s4, s4, %d' % (NK, k))
        a('s_mul_i32 s19, s4, 36\ns_sub_u32 s5, s4, 16\ns_mul_i32 s5, s5, 288\ns_add_u32 s5, s5, 16')
        a('s_cmp_lt_u32 s4, 16')
        a('s_cselect_b32 s19, s19, s5\ns_cselect_b32 s30, 4, 2\ns_cselect_b32 s31, 4, 34\ns_cselect_b64 vcc, -1, 0')
        a('s_mul_i32 s19, s19, 1152\ns_add_u32 s19, s19, s18\ns_mul_i32 s30, s30, 1152\ns_mul_i32 s31, s31, 1152')
        a('v_cndmask_b32 v4, v11, v10, vcc')
        for g in range(4):
            a('s_mov_b32 m0, s23')
            a('s_add_u32 s23, s23, 1024')
            a('buffer_load_dwordx4 v4, s[12:15], s19 offen nt lds')
            if g < 3:
                a('s_add_u32 s19, s19, s%d' % (31 if g == 1 else 30))
    for c in range(4):
        a('s_lshl_b32 s4, s21, 2\ns_add_u32 s4, s4, %d\ns_mul_i32 s4, s4, 18\ns_mul_i32 s5, s3, %d\ns_add_u32 s4, s4, s5' % (c, NK))
        a('s_lshl_b32 s4, s4, 10\ns_add_u32 s%d, s4, %d' % (36 + c, WO))
    a('s_mov_b32 s17, 1024')
    a.label('prep_tr')
    stamp(a, 1)
    a('v_lshlrev_b32 v5, 7, v7')
    a('v_and_b32 v6, 3, v0')
    a('v_lshl_add_u32 v5, v6, 4, v5')
    a('v_and_b32 v6, 8, v0')
    a('v_lshl_add_u32 v5, v6, 3, v5')
    a('v_add_u32 v5, s22, v5')
    a('v_xor_b32 v6, 64, v5')
    for k in range(NK):
        a('s_waitcnt vmcnt(%d)' % (4 * (NK - 1 - k)))
        for c in range(4):
            for hi in range(2):
                a('ds_read_b64_tr_b16 %s, v%d offset:%d' % (vr(fr(k, c) + 2 * hi, 2), 5 + (c >> 1), 4096 * k + 512 * hi + 8 * (c & 1)))
        a('s_waitcnt lgkmcnt(%d)' % (4 if k + 1 < NK else 0))
    stamp(a, 2)
    a('s_cmp_ge_u32 s20, %d' % U_W2)
    a('s_cbranch_scc1 prep_st')

    def st4(k, c):
        a('buffer_store_dwordx4 %s, v1, s[8:11], s%d offen%s' % (vr(fr(k, c), 4), 36 + c, PREP_ST))
        a('s_add_u32 s%d, s%d, s17' % (36 + c, 36 + c))
    centre(a, NW, NK, 4, fr, ON, CS, 3, LCS, st4)
    stamp(a, 3)
    fin(True)
    a.label('prep_st')
    for k in range(NK):
        for c in range(4):
            st4(k, c)
    stamp(a, 3)
    fin(False)
    a.label('prep_q')
    fq = lambda k, c: FR + (k * 5 + c) * 4
    CQ = FR + 20 * NK
    a('s_sub_u32 s21, s20, %d' % U_WQ)
    a('s_and_b32 s30, s21, 7\ns_lshr_b32 s31, s21, 3')
    a('v_mul_u32_u24 v4, 43, v0\nv_lshrrev_b32 v4, 9, v4')
    a('v_mul_u32_u24 v5, %d, v4' % (3456 - 192))
    a('v_add_u32 v4, v5, v1')
    a('s_mul_i32 s19, s3, %d\ns_mul_i32 s4, s31, 1152\ns_add_u32 s19, s19, s4\ns_mul_i32 s4, s30, 144' % (96 * 3456))
    a('s_and_b32 s5, s4, 63\ns_sub_u32 s4, s4, s5\ns_add_u32 s19, s19, s4\ns_add_u32 s22, s22, s5')
    a('s_mov_b32 s14, %d' % (D * 3 * D * 2))
    a('s_waitcnt lgkmcnt(0)')
    a('s_mov_b32 s12, s26\ns_mov_b32 s13, s27')
    for n in range(20):
        a('s_mov_b32 m0, s23')
        a('s_add_u32 s23, s23, 960')
        if n == 19:
            a('s_mov_b64 exec, 0xfff')
        a('buffer_load_dwordx4 v4, s[12:15], s19 offen%s lds' % PREP_QLD)
        a('s_add_u32 s19, s19, %d' % (5 * 3456))
    a('s_mov_b64 exec, -1')
    stamp(a, 1)
    a('v_mul_u32_u24 v7, 192, v7')
    a('v_add_u32 v7, s22, v7')
    a('v_and_b32 v6, 3, v0')
    a('v_lshl_add_u32 v5, v6, 3, v7')
    a('s_cmp_eq_u32 s31, 0\ns_cselect_b32 s4, 1, 0')
    a('v_lshrrev_b32 v6, s4, v0\nv_and_b32 v6, 1, v6')
    a('v_mul_u32_u24 v6, 72, v6')
    a('v_add_u32 v6, v6, v7')
    a('s_mul_i32 s16, s30, 252\ns_mul_i32 s4, s3, %d\ns_add_u32 s16, s16, s4' % (2 * NK))
    a('s_cmp_eq_u32 s31, 0')
    for c in range(4):
        a('s_cselect_b32 s%d, %d, %d' % (36 + c, 8 + c, 2 * c))
    a('s_cselect_b32 s40, 13, 12')
    a('s_cselect_b32 s42, -1, 0x00ff00ff')
    a('s_lshr_b32 s5, s31, 1')
    a('s_lshl_b32 s6, s5, 3\ns_lshl_b32 s42, s42, s6')
    for c in range(5):
        if c < 4:
            a('s_add_u32 s%d, s%d, s5' % (36 + c, 36 + c))
        a('s_lshr_b32 s4, s%d, 1\ns_mul_i32 s4, s4, 34\ns_add_u32 s4, s4, s%d\ns_add_u32 s4, s4, s16' % (36 + c, 36 + c))
        a('s_lshl_b32 s4, s4, 10\ns_add_u32 s%d, s4, %d' % (36 + c, WQ))
    for k in range(NK):
        a('s_waitcnt vmcnt(%d)' % (13, 7, 0)[k])
        for c in range(5):
            for hi in range(2):
                a('ds_read_b64_tr_b16 %s, v%d offset:%d' % (vr(fq(k, c) + 2 * hi, 2), 5 if c < 4 else 6, 6144 * k + 768 * hi + (0, 40, 72, 112, 32)[c]))
        a('s_waitcnt lgkmcnt(%d)' % (4 if k + 1 < NK else 0))
    stamp(a, 2)

    def st5(k, c):
        if c == 4:
            a('s_mov_b32 exec_lo, s42\ns_mov_b32 exec_hi, s42')
        a('buffer_store_dwordx4 %s, v1, s[8:11], s%d offen offset:%d%s' % (vr(fq(k, c), 4), 36 + c, 2048 * (k & 1), PREP_ST))
        if c == 4:
            a('s_mov_b64 exec, -1')
        if k == 1:
            a('s_add_u32 s%d, s%d, 4096' % (36 + c, 36 + c))
    centre(a, NW, NK, 5, fq, ON, CQ, 3, LCS, st5)
    stamp(a, 3)
    fin(True)
    a.label('prep_misc')
    if AMP:
        a('s_memrealtime s[34:35]')
        a('s_waitcnt lgkmcnt(0)')
        a('v_mov_b32 v8, s34')
        a('v_mov_b32 v9, 0')
        a('s_mov_b32 s4, %d' % (DBG - 4096))
        a('buffer_store_dword v8, v9, s[8:11], s4 offen')
    a('s_and_b32 s30, s2, 7\ns_lshr_b32 s31, s2, 3\ns_mul_i32 s31, s31, 6\ns_add_u32 s31, s31, s3')
    a('s_getpc_b64 s[4:5]')
    a.label('prep_pc')
    a('s_sub_u32 s4, s4, prep_pc-%s' % E0)
    a('s_subb_u32 s5, s5, 0')
    a('s_mul_i32 s6, s31, 768')
    a('v_lshl_add_u32 v4, v0, 7, s6')
    a('v_min_u32 v4, code_end-%s-4, v4' % E0)
    a('s_mov_b64 exec, 63')
    a('global_load_dword v5, v4, s[4:5]')
    a('s_mov_b64 exec, -1')
    a('s_mul_i32 s19, s31, %d\ns_add_u32 s19, s19, %d' % (8 * 9216, 144 * 9216 + 384))
    a('s_sub_u32 s4, 3, s30\ns_and_b32 s4, s4, 7\ns_lshl_b32 s4, s4, 10\ns_add_u32 s19, s19, s4')
    a('v_and_b32 v4, 7, v0\nv_mul_u32_u24 v4, 9216, v4\nv_and_b32 v8, 8, v0')
    a('v_lshl_add_u32 v4, v8, 10, v4')
    a('v_lshlrev_b32 v8, 7, v0')
    a('s_cmp_eq_u32 s30, 3\ns_cselect_b32 s4, 8, 0\ns_lshl_b32 s4, 0xff, s4\ns_or_b32 exec_lo, s4, 0xff\ns_mov_b32 exec_hi, 0')
    a('s_mov_b32 s14, %d' % (D * F * 2))
    a('s_waitcnt lgkmcnt(0)')
    a('s_mov_b32 s12, s32\ns_mov_b32 s13, s33')
    a('buffer_load_dword v7, v4, s[12:15], s19 offen')
    a('s_mov_b64 exec, -1')
    a('s_mul_i32 s5, s31, 3641\ns_lshr_b32 s5, s5, 16\ns_mul_i32 s6, s5, 18\ns_sub_u32 s4, s31, s6')
    a('s_mul_i32 s19, s4, %d\ns_mul_i32 s5, s5, 1152\ns_add_u32 s19, s19, s5\ns_lshl_b32 s5, s30, 7\ns_add_u32 s19, s19, s5' % (32 * 3456))
    a('v_lshrrev_b32 v4, 1, v0\nv_mul_u32_u24 v4, 3456, v4\nv_and_b32 v6, 1, v0')
    a('v_lshl_add_u32 v4, v6, 7, v4')
    a('s_mov_b32 s14, %d' % (D * 3 * D * 2))
    a('s_mul_i32 s16, s2, 6\ns_add_u32 s16, s16, s3')
    for k in range(4):
        a('v_mov_b32 v%d, 0' % (16 + k))
    a('s_mov_b32 s12, s26\ns_mov_b32 s13, s27')
    a('buffer_load_dword v6, v4, s[12:15], s19 offen%s' % PREP_HLD)
    a('s_mul_i32 s19, s30, 2304\ns_mul_i32 s4, s31, 43\ns_add_u32 s19, s19, s4\ns_lshl_b32 s19, s19, 7')
    a('s_mov_b32 exec_lo, -1\ns_mov_b32 exec_hi, 0x7ff')
    a('s_mov_b32 s14, %d' % ACT)
    a('s_mov_b32 s12, s24\ns_mov_b32 s13, s25')
    a('buffer_load_dword v9, v8, s[12:15], s19 offen')
    a('s_mov_b64 exec, -1')
    a('s_cmp_ge_u32 s16, %d' % (ZERO_BYTES // 1024))
    a('s_cbranch_scc1 prep_nz')
    a('s_lshl_b32 s16, s16, 10\ns_add_u32 s16, s16, %d' % SS)
    a('buffer_store_dwordx4 v[16:19], v1, s[8:11], s16 offen%s' % PREP_ST)
    a.label('prep_nz')
    if stage:
        a('s_branch prep_bar')
        a.label('prep_idle')
        a('s_cmp_eq_u32 s3, 11')
        a('s_cbranch_scc0 prep_bar')
        a('s_and_b32 s51, s2, 31\ns_lshl_b32 s51, s51, 7\ns_add_u32 s51, s51, %d' % FL_RL)
        a('v_mov_b32 v4, 0')
        a('s_mov_b64 exec, 1')
        a('s_waitcnt lgkmcnt(0)')
        a('buffer_store_dword v4, v4, s[8:11], s51 offen sc1')
        a('s_mov_b64 exec, -1')
        a.label('prep_bar')
        a('s_barrier')
        a.label('prep_join')
        return
    stamp_end(a, 0, 5, 3, 6)
    a.label('prep_end')
    a('s_endpgm')
    return ('prep_kernel', a, CQ + 32, 96 if STAMPS else 48, (NM + NU, 384, LB + NW * LW))


def xcd_map(a, ncx, s_c, s_r, nc=8):
    lg = ncx.bit_length() - 1
    ng = nc // ncx
    lgg = ng.bit_length() - 1
    a('s_and_b32 s4, s2, 7\ns_lshr_b32 s5, s2, 3')
    a('s_and_b32 s6, s4, %d\ns_lshl_b32 s6, s6, %d\ns_and_b32 s7, s5, %d\ns_add_u32 %s, s6, s7' % (ng - 1, lg, ncx - 1, sr(s_c)))
    a('s_lshr_b32 s6, s4, %d\ns_mul_i32 s6, s6, %d\ns_lshr_b32 s7, s5, %d\ns_add_u32 %s, s6, s7' % (lgg, 32 // ncx, lg, sr(s_r)))


def l2_touch(a, base, part_bytes, ncx, nc, v_t, v_d, share=1, s_sub=None):
    ng = nc // ncx
    lines = ncx * part_bytes // 128
    per = -(-lines // (32 * share))
    n = -(-per // 64)
    a('s_and_b32 s4, s2, %d\ns_mul_i32 s4, s4, %d\ns_add_u32 s4, s4, %d' % (ng - 1, ncx * part_bytes, base))
    a('s_lshr_b32 s5, s2, 3')
    if share > 1:
        a('s_mul_i32 s5, s5, %d\ns_add_u32 s5, s5, %s' % (share, sr(s_sub)))
    a('s_mul_i32 s5, s5, %d' % per)
    for i in range(n):
        a('v_add_u32 %s, %d, v0' % (vr(v_t), 64 * i))
        if (i + 1) * 64 > per:
            a('v_min_u32 %s, %d, %s' % (vr(v_t), per - 1, vr(v_t)))
        a('v_add_u32 %s, s5, %s' % (vr(v_t), vr(v_t)))
        a('v_min_u32 %s, %d, %s' % (vr(v_t), lines - 1, vr(v_t)))
        a('v_lshlrev_b32 %s, 7, %s' % (vr(v_t), vr(v_t)))
        a('buffer_load_dword %s, %s, s[8:11], s4 offen' % (vr(v_d), vr(v_t)))


def x_dma(a, nk, s_g, s_l, v_l16):
    for k in range(nk):
        a('s_mov_b32 m0, %s' % sr(s_l))
        if k < nk - 1:
            a('s_add_u32 %s, %s, 4096' % (sr(s_l), sr(s_l)))
        else:
            a('s_nop 0')
        a('buffer_load_dwordx4 %s, s[8:11], %s offen sc1 lds' % (vr(v_l16), sr(s_g)))
        if k < nk - 1:
            a('s_add_u32 %s, %s, 1024' % (sr(s_g), sr(s_g)))


def stats_prepass(a, nk, v_addr, v_fr, v_ones, v_res, v_t, v_g, v_tmp, v_dst):
    for k in range(nk):
        a('ds_read_b128 %s, %s offset:%d' % (vr(v_fr + 4 * k, 4), vr(v_addr), 4096 * k))
    for k in range(4):
        a('v_mov_b32 %s, 0x%x' % (vr(v_ones + k), ONES))
    for k in range(nk):
        a('s_waitcnt lgkmcnt(%d)' % (nk - 1 - k))
        f = v_fr + 4 * k
        mfma(a, v_res, v_ones, f, None if k == 0 else v_res)
        mfma(a, v_res + 4, f, f, None if k == 0 else v_res + 4)
    a('s_mov_b32 s40, 0x22222222\ns_mov_b32 s41, 0x22222222')
    a('s_mov_b32 s42, 0x44444444\ns_mov_b32 s43, 0x44444444')
    a('s_mov_b32 s44, 0x88888888\ns_mov_b32 s45, 0x88888888')
    a('v_cndmask_b32 %s, %s, %s, s[40:41]' % (vr(v_res + 1), vr(v_res + 4), vr(v_res + 5)))
    a('v_cndmask_b32 %s, %s, %s, s[42:43]' % (vr(v_res + 1), vr(v_res + 1), vr(v_res + 6)))
    a('v_cndmask_b32 %s, %s, %s, s[44:45]' % (vr(v_res + 1), vr(v_res + 1), vr(v_res + 7)))
    a('s_mov_b32 exec_lo, 0x00f0000f\ns_mov_b32 exec_hi, 0xf0000f00')
    a('ds_write_b64 %s, %s' % (vr(v_dst), vr(v_res, 2)))
    a('s_mov_b64 exec, -1')


def stats_final(a, nparts, lds_stats, v_lane, v_tmp):
    a('v_lshlrev_b32 %s, 3, %s' % (vr(v_tmp + 6), vr(v_lane)))
    for p in range(nparts):
        a('ds_read_b64 %s, %s offset:%d' % (vr(v_tmp + 2 * p, 2), vr(v_tmp + 6), p * 512))
    a('s_waitcnt lgkmcnt(0)')
    for p in range(1, nparts):
        a('v_add_f32 %s, %s, %s' % (vr(v_tmp), vr(v_tmp), vr(v_tmp + 2 * p)))
        a('v_add_f32 %s, %s, %s' % (vr(v_tmp + 1), vr(v_tmp + 1), vr(v_tmp + 2 * p + 1)))
    a('v_mul_f32 %s, 0x%x, %s' % (vr(v_tmp), INV576, vr(v_tmp)))
    a('v_mul_f32 %s, 0x%x, %s' % (vr(v_tmp + 1), INV576, vr(v_tmp + 1)))
    a('v_fma_f32 %s, -%s, %s, %s' % (vr(v_tmp + 1), vr(v_tmp), vr(v_tmp), vr(v_tmp + 1)))
    a('v_max_f32 %s, 0, %s' % (vr(v_tmp + 1), vr(v_tmp + 1)))
    a('v_add_f32 %s, 0x%x, %s' % (vr(v_tmp + 1), EPS5, vr(v_tmp + 1)))
    a('v_rsq_f32 %s, %s' % (vr(v_tmp), vr(v_tmp + 1)))


def diag_select(a, dst, src, masks=(0x22222222, 0x44444444, 0x88888888)):
    for i, m in enumerate(masks):
        a('s_mov_b32 s%d, 0x%x\ns_mov_b32 s%d, 0x%x' % (40 + 2 * i, m, 41 + 2 * i, m))
    a('v_cndmask_b32 %s, %s, %s, s[40:41]' % (vr(dst), vr(src), vr(src + 1)))
    a('v_cndmask_b32 %s, %s, %s, s[42:43]' % (vr(dst), vr(dst), vr(src + 2)))
    a('v_cndmask_b32 %s, %s, %s, s[44:45]' % (vr(dst), vr(dst), vr(src + 3)))


def rstd_from(a, dst, vsum, vsq):
    a('v_mul_f32 %s, 0x%x, %s' % (vr(vsum), INV576, vr(vsum)))
    a('v_mul_f32 %s, 0x%x, %s' % (vr(vsq), INV576, vr(vsq)))
    a('v_fma_f32 %s, -%s, %s, %s' % (vr(vsq), vr(vsum), vr(vsum), vr(vsq)))
    a('v_max_f32 %s, 0, %s' % (vr(vsq), vr(vsq)))
    a('v_add_f32 %s, 0x%x, %s' % (vr(vsq), EPS5, vr(vsq)))
    a('v_rsq_f32 %s, %s' % (vr(dst), vr(vsq)))


SPIN_CAP = 1 << 18


def lds_spin(a, name, v_tmp, v_addr, off, mask, want, ge=None):
    a('s_mov_b32 s5, 0')
    a.label(name)
    a('ds_read_b32 %s, %s offset:%d' % (vr(v_tmp), vr(v_addr), off))
    a('s_waitcnt lgkmcnt(0)')
    a('v_readfirstlane_b32 s4, %s' % vr(v_tmp))
    if ge is None:
        a('s_and_b32 s4, s4, 0x%x' % mask)
        a('s_cmp_eq_u32 s4, 0x%x' % want)
    else:
        a('s_cmp_ge_u32 s4, %s' % sr(ge))
    a('s_cbranch_scc1 %s_ok' % name)
    a('s_sleep 1')
    a('s_add_u32 s5, s5, 1')
    a('s_cmp_lt_u32 s5, 0x%x' % SPIN_CAP)
    a('s_cbranch_scc1 %s' % name)
    a('s_endpgm')
    a.label(name + '_ok')


def mem_arrive(a, s_off, v_zero=None, v_one=None):
    if not SFLAG:
        a('s_mov_b64 exec, 1')
        a('buffer_atomic_add %s, %s, s[8:11], %s offen sc1' % (vr(v_one), vr(v_zero), sr(s_off)))
        a('s_mov_b64 exec, -1')
        return
    a('s_mov_b32 s3, 1')
    a('s_atomic_add s3, s[8:9], %s' % sr(s_off))


def mem_wait(a, name, s_off, s_want, v_zero, v_tmp, backoff=None, arrive=False):
    a('s_mov_b32 s5, 0')
    if not SFLAG:
        if arrive:
            mem_arrive(a, s_off, v_zero, 4)
        a('s_mov_b64 exec, 1')
        a.label(name)
        a('buffer_load_dword %s, %s, s[8:11], %s offen sc1' % (vr(v_tmp), vr(v_zero), sr(s_off)))
        a('s_waitcnt vmcnt(0)')
        a('v_readfirstlane_b32 s4, %s' % vr(v_tmp))
    else:
        if arrive:
            a('s_mov_b32 s4, 1')
            a('s_atomic_add s4, s[8:9], %s glc' % sr(s_off))
            a('s_waitcnt lgkmcnt(0)')
            a('s_add_u32 s4, s4, 1')
            a('s_cmp_ge_u32 s4, %s' % sr(s_want))
            a('s_cbranch_scc1 %s_ok' % name)
        a.label(name)
        a('s_mov_b32 s4, 0')
        a('s_atomic_add s4, s[8:9], %s glc' % sr(s_off))
        a('s_waitcnt lgkmcnt(0)')
    a('s_cmp_ge_u32 s4, %s' % sr(s_want))
    a('s_cbranch_scc1 %s_ok' % name)
    if backoff:
        if backoff[0] is not None:
            a('s_cmp_eq_u32 %s, %d' % (sr(backoff[0]), backoff[1]))
            a('s_cbranch_scc1 %s_ns' % name)
        a('s_sleep %d' % (backoff[2] if len(backoff) > 2 else 12))
        if backoff[0] is not None:
            a.label(name + '_ns')
    a('s_add_u32 s5, s5, 1')
    a('s_cmp_lt_u32 s5, 0x%x' % SPIN_CAP)
    a('s_cbranch_scc1 %s' % name)
    a('s_endpgm')
    a.label(name + '_ok')
    if not SFLAG:
        a('s_mov_b64 exec, -1')


def gen_mega():
    a = Asm()
    RSL = 0; FLG = 512; CNT = 516; XC1 = 520; XC3 = 524; TOK = 528; XF = 1024; XI = 3072; HI = XI + 73728
    OI = HI; SL = HI + 36864
    LDS = SL + 32 * HS
    VZ = 167
    LAY, LOFF, GBO, GBW, CBO, CBW, RFW, SOF, PRT = 86, 87, 88, 89, 90, 91, 92, 96, 97
    a('s_cmp_ge_u32 s2, 256')
    a('s_cbranch_scc1 mega_end')
    stamp_begin(a)
    if AMP:
        a('s_memrealtime s[84:85]')
    a('s_load_dwordx2 s[94:95], s[0:1], 48')
    if SINGLE:
        a('s_load_dwordx2 s[52:53], s[0:1], 56')
        gen_prep(a)
        a('s_waitcnt lgkmcnt(0)')
        a('s_mov_b32 s12, s3\ns_mov_b32 s36, s24\ns_mov_b32 s37, s25')
    else:
        ws_srd(a)
        a('s_load_dwordx2 s[36:37], s[0:1], 0')
        wave_id(a, 12, 1)
        a('v_lshlrev_b32 v1, 4, v0')
        a('v_and_b32 v2, 15, v0')
        a('v_lshrrev_b32 v3, 4, v0')
    a('s_mov_b32 s38, %d\ns_mov_b32 s39, 0x20000' % ACT)
    a('v_mov_b32 %s, 0' % vr(VZ))
    xcd_map(a, NCX, 13, 14)
    a('s_and_b32 s20, s12, 3\ns_lshr_b32 s21, s12, 2')
    a('s_mul_i32 s4, s14, 21846\ns_lshr_b32 s4, s4, 16\ns_mul_i32 s4, s4, 3\ns_sub_u32 s19, s14, s4')
    a('s_lshl_b32 s4, s19, 2\ns_add_u32 s28, s12, s4\ns_cmp_ge_u32 s28, 12\ns_cselect_b32 s4, 12, 0\ns_sub_u32 s28, s28, s4')
    a('s_mov_b32 s%d, 0\ns_mov_b32 s%d, 0\ns_mov_b32 s%d, 0\ns_mov_b32 s%d, 32\ns_mov_b32 s%d, 8' % (LAY, LOFF, GBW, CBW, RFW))
    a('s_lshl_b32 s4, s14, 7\ns_add_u32 s%d, s4, %d' % (GBO, FL_GB))
    a('s_lshl_b32 s4, s13, 7\ns_add_u32 s%d, s4, %d' % (CBO, FL_CB))
    a('s_mov_b32 s%d, %d\ns_mov_b32 s%d, %d' % (SOF, SS, PRT, PART))
    a('s_mov_b32 s48, s19')
    for b in (1, 2):
        a('s_add_u32 s%d, s%d, 1\ns_cmp_eq_u32 s%d, 3\ns_cselect_b32 s%d, 0, s%d' % (48 + b, 47 + b, 48 + b, 48 + b, 48 + b))
    a('s_lshl_b32 s4, s14, 2\ns_add_u32 s4, s4, s20\ns_mul_i32 s98, s4, 18432')
    a('s_lshl_b32 s5, s20, 11\ns_add_u32 s99, s5, %d' % XI)
    img = lambda k, tt: (k >> 1) * 8192 + tt * 2048 + (k & 1) * 1024

    def load_x(name, base, xc):
        gb, gp, gh = (384, 128, 9216) if base is None else (6144, 2048, 1024)
        ld = 'buffer_load_dwordx4 v4, s[36:39], s23 offen lds' if base is None else 'buffer_load_dwordx4 v1, s[8:11], s23 offen sc1 lds'

        def blk(b):
            a('s_mul_i32 s22, s%d, %d\ns_add_u32 s22, s22, s98\ns_mul_i32 s24, s%d, 24576\ns_add_u32 s24, s24, s99' % (48 + b, gb, 48 + b))
            if base is not None:
                a('s_add_u32 s22, s22, s%d\ns_add_u32 s22, s22, %d' % (LOFF, base))
        a('s_cmp_ge_u32 s12, 8')
        a('s_cbranch_scc1 %s_hi' % name)
        blk(0)
        a('s_mul_i32 s4, s21, %d\ns_add_u32 s22, s22, s4\ns_lshl_b32 s4, s21, 10\ns_add_u32 s24, s24, s4' % gh)
        for p in range(3):
            a('s_add_u32 m0, s24, %d' % (8192 * p))
            a('s_add_u32 s23, s22, %d' % (gp * p))
            a(ld)
        if base is None:
            a('s_barrier')
        a('s_branch %s_x' % name)
        a.label('%s_hi' % name)
        if base is None:
            a('s_barrier')
        for b in (1, 2):
            blk(b)
            for p in range(3):
                for h in range(2):
                    a('s_add_u32 m0, s24, %d' % (8192 * p + 1024 * h))
                    a('s_add_u32 s23, s22, %d' % (gp * p + gh * h))
                    a(ld)
        a.label('%s_x' % name)

    def x_count(xc):
        for n, inc in ((6, 0x100), (0, 0x10000)):
            a('v_mov_b32 v5, 0x%x' % inc)
            a('s_waitcnt vmcnt(%d)' % n)
            a('s_mov_b64 exec, 1')
            a('ds_add_u32 %s, v5 offset:%d' % (vr(VZ), xc))
            a('s_mov_b64 exec, -1')

    def lane_part(dst, tmp, s_b):
        L = 'lp%d' % len(a.lines)
        a('s_lshl_b32 s4, %s, 10' % s_b)
        a('v_add_u32 %s, s4, v1' % vr(dst))
        a('s_cmp_eq_u32 s%d, 0' % LAY)
        a('s_cbranch_scc0 %s' % L)
        a('s_lshl_b32 s4, %s, 2' % s_b)
        a('v_add_u32 %s, s4, v3' % vr(dst))
        a('v_and_b32 %s, 7, v2' % vr(tmp))
        a('v_xor_b32 %s, %s, %s' % (vr(dst), vr(dst), vr(tmp)))
        a('v_lshlrev_b32 %s, 4, %s' % (vr(dst), vr(dst)))
        a('v_lshl_add_u32 %s, v2, 7, %s' % (vr(dst), vr(dst)))
        a.label(L)

    def group_sync(name):
        a('s_add_u32 s%d, s%d, 8' % (GBW, GBW))
        a('s_barrier')
        a('s_cmp_eq_u32 s12, 11')
        a('s_cbranch_scc0 %s_go' % name)
        a('v_mov_b32 v4, 1')
        mem_wait(a, name, GBO, GBW, VZ, 5, arrive=True)
        a.label('%s_go' % name)

    ACC = 8; RING = ACC + 32; BF = RING + 72
    VA = 4; VB = 5; VT = 6
    acc = lambda j, tt: ACC + (j * 4 + tt) * 4
    ring = lambda k, j: 40 + ((k % 9) * 2 + j) * 4
    bf = lambda p, tt: BF + (p * 4 + tt) * 4

    def s1_ld(k, j):
        if j == 0 and not k & 1:
            a('s_add_u32 s15, s%d, %d' % (30 + k // 6, 4096 * ((k % 6) >> 1)))
        a('buffer_load_dwordx4 %s, v1, s[8:11], s15 offen offset:%d' % (vr(ring(k, j), 4), 2048 * (k & 1) + 1024 * j))

    def s1_fill(depth=None):
        a('s_mul_i32 s15, s13, 7\ns_add_u32 s15, s15, s12\ns_mul_i32 s15, s15, 36864\ns_add_u32 s15, s15, %d' % WQ)
        for b in range(3):
            a('s_mul_i32 s4, s%d, 12288\ns_add_u32 s%d, s4, s15' % (48 + b, 30 + b))
        for k in range(9):
            for j in range(2):
                s1_ld(k, j)
                if depth is not None:
                    a('s_waitcnt vmcnt(%d)' % depth)

    if SINGLE:
        a('s_waitcnt vmcnt(0)')
        stamp(a, 'pj')
        a('s_barrier')
    a('v_lshlrev_b32 v4, 2, v0')
    a('s_mov_b64 exec, 0xff')
    a('ds_write_b32 v4, %s offset:%d' % (vr(VZ), FLG))
    a('s_mov_b64 exec, -1')
    a('v_lshrrev_b32 v4, 3, v0\nv_and_b32 v5, 7, v0\nv_xor_b32 v5, v5, v4')
    a('v_mul_u32_u24 v4, 1152, v4')
    a('v_lshl_add_u32 v4, v5, 4, v4')
    a('s_waitcnt lgkmcnt(0)')
    if SINGLE:
        a('s_cmp_eq_u32 s12, 11')
        a('s_cbranch_scc0 st_x')
        a('s_mov_b32 s7, 1')
        a('s_atomic_add s7, s[52:53], 0 glc')
        a('v_lshlrev_b32 v6, 7, v0')
        a('v_mov_b32 v7, 1')
        a('s_mov_b32 s6, %d' % FL_RL)
        a('s_waitcnt lgkmcnt(0)')
        a('s_cmp_eq_u32 s7, 255')
        a('s_cbranch_scc0 st_x')
        a('s_mov_b32 exec_hi, 0')
        a('buffer_store_dword v7, v6, s[8:11], s6 offen sc1')
        a('s_mov_b32 exec_hi, -1')
        a.label('st_x')
    load_x('x0', None, XC1)
    if SINGLE:
        a('s_cmp_eq_u32 s12, 11')
        a('s_cbranch_scc0 st_w')
        a('s_mov_b32 s7, 1')
        mem_wait(a, 'st_b', 51, 7, VZ, 5)
        a.label('st_w')
        a('s_cmp_ge_u32 s12, 8')
        a('s_cbranch_scc0 st_lo')
        x_count(XC1)
        a('s_barrier')
        a('s_branch s1_wo')
        a.label('st_lo')
        a('s_waitcnt vmcnt(0)')
        a('s_barrier')
        stamp(a, 'st')
        a('s_cmp_eq_u32 s12, 7')
        a('s_cbranch_scc1 s1_go')
        a('s_cmp_eq_u32 s12, 6')
        a('s_cbranch_scc0 st_f')
        a('s_setprio 2')
        a.label('st_f')
        a('s_mov_b32 s26, 0')
        a('s_branch s1_f1')
    a('s_cmp_ge_u32 s12, 8')
    a('s_cbranch_scc0 s1_lo')
    a('s_barrier')
    x_count(XC1)
    a('s_branch s1_wo')
    a.label('s1_lo')
    a('s_lshr_b32 s26, 0x43, s12\ns_and_b32 s26, s26, 1')
    a('s_cbranch_scc1 s1_f1')
    a('s_waitcnt vmcnt(0)')
    a('s_barrier')
    a('s_cmp_ge_u32 s12, 7')
    a('s_cbranch_scc1 s1_go')
    a.label('s1_f1')
    s1_fill()
    a('s_cmp_eq_u32 s26, 0')
    a('s_cbranch_scc1 s1_go')
    a('s_waitcnt vmcnt(18)')
    a('s_barrier')
    a.label('s1_go')
    stamp(a, 'x1')
    VX = 144
    for par in range(2):
        lane_part(VA, VT, str(par))
        for b in range(3):
            a('s_mul_i32 s4, s%d, 24576\ns_add_u32 s4, s4, %d' % (48 + b, XI))
            a('v_add_u32 %s, s4, %s' % (vr(VX + 2 * b + par), vr(VA)))

    a('v_mov_b32 v7, 0x1000000')

    def rdx(k, tt):
        a('ds_read_b128 %s, %s offset:%d' % (vr(bf(k & 1, tt), 4), vr(VX + 2 * (k // 6) + (k & 1)), ((k % 6) >> 1) * 8192 + 2048 * tt))

    slow = []

    def x_check(tag, k, step):
        if k not in (4, 10):
            return
        m = 0x0400 if k == 4 else 0x040000
        if step == 0:
            a('ds_read_b32 %s, %s offset:%d' % (vr(VT), vr(VZ), XC1))
        elif step == 1:
            a('v_readfirstlane_b32 s4, %s' % vr(VT))
        else:
            a('s_andn2_b32 s4, 0x%x, s4' % m)
            a('s_cbranch_scc1 s1_slow%s%d' % (tag, k))
            a.label('s1_back%s%d' % (tag, k))
            slow.append((tag, k, m))
    for tt in range(4):
        rdx(0, tt)
    a('s_cmp_lt_u32 s12, 4')
    a('s_cbranch_scc1 s1_nn')
    a('s_cmp_eq_u32 s12, 6')
    a('s_cbranch_scc1 s1_nt')
    a('s_cmp_eq_u32 s12, 7')
    a('s_cbranch_scc1 s1_stats')

    def main(orient):
        issued = 18
        a('s_waitcnt vmcnt(17) lgkmcnt(0)')
        for k in range(18):
            for n in range(8):
                j, tt = n >> 2, n & 3
                if j:
                    tt = 3 - tt
                c = None if k == 0 else acc(j, tt)
                if orient[j] == 'N':
                    mfma(a, acc(j, tt), bf(k & 1, tt), ring(k, j), c)
                else:
                    mfma(a, acc(j, tt), ring(k, j), bf(k & 1, tt), c)
                if n < 2 and k < 17:
                    rdx(k + 1, 2 * n); rdx(k + 1, 2 * n + 1)
                if n == 2:
                    a('s_waitcnt vmcnt(%d)' % (issued - (2 * k + 2)))
                if n in (3, 7) and k < 9:
                    s1_ld(k + 9, j)
                    issued += 1
                if k == S1_GATE and n == 4:
                    a('s_mov_b64 exec, 1')
                    a('ds_add_u32 %s, v7 offset:%d' % (vr(VZ), XC1))
                    a('s_mov_b64 exec, -1')
                if n == 2:
                    x_check(orient, k, 0)
                if n == 6 and k < 17:
                    a('s_waitcnt vmcnt(%d) lgkmcnt(0)' % (issued - (2 * k + 3)))
                    x_check(orient, k, 1)
                if n == 7:
                    x_check(orient, k, 2)
        stamp(a, 's1m')
        lds_spin(a, 's1_s' + orient, VT, VZ, FLG, 2, 2)

    def rs_n(RS):
        a('v_lshlrev_b32 %s, 4, v3' % vr(VT))
        for n in range(8):
            a('ds_read_b128 %s, %s offset:%d' % (vr(RS + 4 * n, 4), vr(VT), RSL + 64 * n))

    def rs_t(RS):
        a('v_lshlrev_b32 %s, 2, v2' % vr(VT))
        for n in range(8):
            a('ds_read_b32 %s, %s offset:%d' % (vr(RS + n), vr(VT), RSL + 64 * n))

    def phi4(items, T):
        n = len(items)
        for i, (d, x, s1, s2) in enumerate(items):
            a('v_mul_f32 %s, %s, %s' % (vr(T + i), vr(x), vr(s2)))
        for i in range(n):
            a('v_min_f32 %s, 0, %s' % (vr(T + i), vr(T + i)))
        for i in range(n):
            a('v_exp_f32 %s, %s' % (vr(T + i), vr(T + i)))
        for i, (d, x, s1, s2) in enumerate(items):
            a('v_max_f32 %s, 0, %s' % (vr(d), vr(x)))
        for i in range(n):
            a('v_add_f32 %s, 0x%x, %s' % (vr(T + i), EPS6, vr(T + i)))
        for i, (d, x, s1, s2) in enumerate(items):
            a('v_fma_f32 %s, %s, %s, %s' % (vr(d), vr(d), vr(s1), vr(T + i)))

    RS = RING; TMP = RING + 32; F0 = RING + 48; ON = RING + 64
    pq_base = 's_lshl_b32 s6, s14, 4\ns_add_u32 s6, s6, s13\ns_mul_i32 s6, s6, 4608\ns_add_u32 s6, s6, s%d\ns_add_u32 s6, s6, %d' % (LOFF, PQ)
    main('TT')
    rs_t(RS)
    a(pq_base)
    a('s_lshl_b32 s5, s20, 10\ns_add_u32 s6, s6, s5\ns_add_u32 s7, s6, %d' % (8 * 4608))
    a('s_waitcnt lgkmcnt(0)')
    for tt in range(4):
        phi4([(acc(j, tt) + r, acc(j, tt) + r, RS + tt, RS + 4 + tt) for j in range(2) for r in range(4)], TMP)
        P = BF + 4 * tt
        for j in range(2):
            a('v_cvt_pk_bf16_f32 %s, %s, %s' % (vr(P + 2 * j), vr(acc(j, tt)), vr(acc(j, tt) + 1)))
            a('v_cvt_pk_bf16_f32 %s, %s, %s' % (vr(P + 2 * j + 1), vr(acc(j, tt) + 2), vr(acc(j, tt) + 3)))
        a('buffer_store_dwordx4 %s, v1, s[8:11], s%d offen offset:%d sc1' % (vr(P, 4), 6 + (tt >> 1), 2048 * (tt & 1)))
    a('s_branch s1_done')
    a.label('s1_nn')
    main('NN')
    rs_n(RS)
    FK = F0; FV = F0 + 8; DV = BF; FX = BF + 16
    for k in range(4):
        a('v_mov_b32 %s, 0x%x' % (vr(ON + k), ONES))
    a('s_lshl_b32 s4, s13, 2\ns_add_u32 s4, s4, s20\ns_mul_i32 s6, s4, %d\ns_add_u32 s6, s6, s%d' % (HS, SOF))
    a('s_waitcnt lgkmcnt(0)')
    for tp in range(2):
        phi4([(acc(0, tt) + r, acc(0, tt) + r, RS + 4 * tt + r, RS + 16 + 4 * tt + r) for tt in (2 * tp, 2 * tp + 1) for r in range(4)], TMP)
        for tt in (2 * tp, 2 * tp + 1):
            for r in range(4):
                a('v_mul_f32 %s, %s, %s' % (vr(acc(1, tt) + r), vr(acc(1, tt) + r), vr(RS + 4 * tt + r)))
            for j, Fb in enumerate((FK, FV)):
                d = Fb + 2 * tt
                a('v_cvt_pk_bf16_f32 %s, %s, %s' % (vr(d), vr(acc(j, tt)), vr(acc(j, tt) + 1)))
                a('v_cvt_pk_bf16_f32 %s, %s, %s' % (vr(d + 1), vr(acc(j, tt) + 2), vr(acc(j, tt) + 3)))
        c = (lambda x: None) if tp == 0 else (lambda x: x)
        mfma(a, DV, FV + 4 * tp, FK + 4 * tp, c(DV))
        mfma(a, DV + 4, ON, FK + 4 * tp, c(DV + 4))
    a('v_and_b32 %s, 0x380, v1' % vr(VA))
    a('v_and_b32 %s, 4, v2' % vr(VB))
    a('v_lshl_add_u32 %s, %s, 2, %s' % (vr(VA), vr(VB), vr(VA)))
    a('s_lshl_b32 s5, s20, 5')
    a('v_add_u32 %s, s5, %s' % (vr(VA), vr(VA)))
    a('v_lshlrev_b32 %s, 2, v0' % vr(VB))
    for r in range(4):
        a('buffer_atomic_add_f32 %s, %s, s[8:11], s6 offen offset:%d' % (vr(DV + r), vr(VB), 256 * r))
    a('s_mov_b64 exec, 0xffff')
    a('buffer_atomic_add_f32 %s, %s, s[8:11], s6 offen offset:1152' % (vr(DV + 4), vr(VB)))
    a('s_mov_b64 exec, -1')
    lds_spin(a, 's1_w', VT, VZ, FLG, 1, 1)
    a('ds_read_b128 %s, %s offset:%d' % (vr(FX, 4), vr(VA), XF))
    a('ds_read_b128 %s, %s offset:%d' % (vr(FX + 4, 4), vr(VA), XF + 1024))
    a('v_lshlrev_b32 %s, 3, v2' % vr(VT))
    a('v_lshl_add_u32 %s, v3, 2, %s' % (vr(VT), vr(VT)))
    a('v_add_u32 %s, 384, %s' % (vr(VT), vr(VT)))
    a('s_mov_b32 s40, -1\ns_mov_b32 s41, 0')
    a('v_cndmask_b32 %s, %s, %s, s[40:41]' % (vr(VT), vr(VB), vr(VT)))
    a('s_waitcnt lgkmcnt(0)')
    for tp in range(2):
        c = (lambda x: None) if tp == 0 else (lambda x: x)
        mfma(a, DV + 8, FX + 4 * tp, FV + 4 * tp, c(DV + 8))
        mfma(a, DV + 12, FX + 4 * tp, FK + 4 * tp, c(DV + 12))
    a('v_cndmask_b32 %s, %s, %s, s[40:41]' % (vr(DV + 8), vr(DV + 12), vr(DV + 8)))
    a('buffer_atomic_add_f32 %s, %s, s[8:11], s6 offen offset:896' % (vr(DV + 8), vr(VT)))
    a('s_branch s1_done')
    a.label('s1_nt')
    a('s_setprio 2')
    main('NT')
    rs_n(RS)
    FX = F0; PH = BF + 16
    for k in range(4):
        a('v_mov_b32 %s, 0x%x' % (vr(ON + k), ONES))
    a('s_mov_b32 s46, 0x00ff00ff\ns_mov_b32 s47, 0x00ff00ff')
    a('s_waitcnt lgkmcnt(0)')
    for tp in range(2):
        tts = (2 * tp, 2 * tp + 1)
        phi4([(PH + 4 * (tt & 1) + r, acc(0, tt) + r, RS + 4 * tt + r, RS + 16 + 4 * tt + r) for tt in tts for r in range(4)], TMP)
        for tt in tts:
            for r in range(4):
                a('v_mul_f32 %s, %s, %s' % (vr(acc(0, tt) + r), vr(acc(0, tt) + r), vr(RS + 4 * tt + r)))
                a('v_cndmask_b32 %s, %s, %s, s[46:47]' % (vr(acc(0, tt) + r), vr(acc(0, tt) + r), vr(PH + 4 * (tt & 1) + r)))
            a('v_cvt_pk_bf16_f32 %s, %s, %s' % (vr(FX + 2 * tt), vr(acc(0, tt)), vr(acc(0, tt) + 1)))
            a('v_cvt_pk_bf16_f32 %s, %s, %s' % (vr(FX + 2 * tt + 1), vr(acc(0, tt) + 2), vr(acc(0, tt) + 3)))
        a('ds_write_b128 v1, %s offset:%d' % (vr(FX + 4 * tp, 4), XF + 1024 * tp))
    a('v_mov_b32 %s, 3' % vr(VT))
    a('ds_write_b32 %s, %s offset:%d' % (vr(VZ), vr(VT), FLG))
    a('s_setprio 0')
    a('v_and_b32 %s, 0x380, v1' % vr(VA))
    a('v_and_b32 %s, 4, v2' % vr(VB))
    a('v_lshl_add_u32 %s, %s, 2, %s' % (vr(VA), vr(VB), vr(VA)))
    a('v_and_b32 %s, 3, v2' % vr(VB))
    a('v_lshl_add_u32 %s, %s, 5, %s' % (vr(VA), vr(VB), vr(VA)))
    for tp in range(2):
        a('ds_read_b128 %s, %s offset:%d' % (vr(FX + 8 + 4 * tp, 4), vr(VA), XF + 1024 * tp))
    a('s_waitcnt lgkmcnt(0)')
    for tp in range(2):
        c = (lambda x: None) if tp == 0 else (lambda x: x)
        mfma(a, DV, FX + 8 + 4 * tp, FX + 4 * tp, c(DV))
        mfma(a, DV + 4, ON, FX + 4 * tp, c(DV + 4))
    rs_t(RS)
    a('v_bfe_u32 %s, v2, 1, 2' % vr(VA))
    a('v_mul_u32_u24 %s, %d, %s' % (vr(VA), HS, vr(VA)))
    a('v_and_b32 %s, 1, v2' % vr(VB))
    a('v_lshl_add_u32 %s, %s, 2, %s' % (vr(VA), vr(VB), vr(VA)))
    a('v_add_u32 %s, 2, v3' % vr(VB))
    a('v_and_b32 %s, 3, %s' % (vr(VB), vr(VB)))
    a('v_lshl_add_u32 %s, %s, 3, %s' % (vr(VA), vr(VB), vr(VA)))
    a('s_mul_i32 s6, s13, %d\ns_add_u32 s6, s6, s%d' % (4 * HS, SOF))
    diag_select(a, DV + 8, DV, (0x0c0c0c0c, 0x30303030, 0xc0c0c0c0))
    a('s_mov_b32 s40, 0xffff\ns_mov_b32 s41, 0')
    a('v_cndmask_b32 %s, %s, %s, s[40:41]' % (vr(DV + 8), vr(DV + 8), vr(DV + 4)))
    a('s_mov_b32 exec_lo, 0xff\ns_mov_b32 exec_hi, 0x00ff00ff')
    a('buffer_atomic_add_f32 %s, %s, s[8:11], s6 offen offset:%d' % (vr(DV + 8), vr(VA), 1280 + 128))
    a('s_mov_b64 exec, -1')
    a(pq_base)
    a('s_add_u32 s6, s6, 4096\ns_add_u32 s7, s6, %d' % (8 * 4608))
    a('v_lshlrev_b32 %s, 3, v0' % vr(VB))
    a('s_waitcnt lgkmcnt(0)')
    a('s_mov_b32 s40, 0xffff0000\ns_mov_b32 s41, 0xffff0000')
    for tt in range(4):
        for r in range(2):
            a('v_cndmask_b32 %s, %s, %s, s[40:41]' % (vr(acc(1, tt) + r), vr(acc(1, tt) + r), vr(acc(1, tt) + 2 + r)))
    phi4([(acc(1, tt) + r, acc(1, tt) + r, RS + tt, RS + 4 + tt) for tt in range(4) for r in range(2)], TMP)
    for tt in range(4):
        a('v_cvt_pk_bf16_f32 %s, %s, %s' % (vr(PH + tt), vr(acc(1, tt)), vr(acc(1, tt) + 1)))
    for tp in range(2):
        a('buffer_store_dwordx2 %s, %s, s[8:11], s%d offen sc1' % (vr(PH + 2 * tp, 2), vr(VB), 6 + tp))
    a('s_branch s1_done')
    a.label('s1_stats')
    a('s_setprio 3')
    for k in range(4):
        a('v_mov_b32 %s, 0x%x' % (vr(RING + k), ONES))
    for k in range(18):
        if k < 17:
            for tt in range(4):
                rdx(k + 1, tt)
        a('s_waitcnt lgkmcnt(%d)' % (4 if k < 17 else 0))
        x_check('S', k, 0)
        for tt in range(4):
            mfma(a, acc(0, tt), RING, bf(k & 1, tt), None if k == 0 else acc(0, tt))
            mfma(a, acc(1, tt), bf(k & 1, tt), bf(k & 1, tt), None if k == 0 else acc(1, tt))
        if k in (4, 10):
            a('s_waitcnt lgkmcnt(0)')
            x_check('S', k, 1)
            x_check('S', k, 2)
    a('v_lshlrev_b32 %s, 2, v2' % vr(VT))
    for tt in range(4):
        diag_select(a, acc(0, tt) + 1, acc(1, tt))
        rstd_from(a, acc(0, tt) + 2, acc(0, tt), acc(0, tt) + 1)
        a('v_mul_f32 %s, 0x%x, %s' % (vr(acc(0, tt) + 3), LOG2E, vr(acc(0, tt) + 2)))
    a('s_mov_b32 exec_lo, 0x00f0000f\ns_mov_b32 exec_hi, 0xf0000f00')
    for tt in range(4):
        a('ds_write_b32 %s, %s offset:%d' % (vr(VT), vr(acc(0, tt) + 2), RSL + 64 * tt))
        a('ds_write_b32 %s, %s offset:%d' % (vr(VT), vr(acc(0, tt) + 3), RSL + 256 + 64 * tt))
    a('s_mov_b64 exec, -1')
    a('v_mov_b32 %s, 2' % vr(VA))
    a('ds_write_b32 %s, %s offset:%d' % (vr(VZ), vr(VA), FLG))
    a('s_setprio 0')
    stamp(a, 's1m')
    a('s_branch s1_done')
    for tag, k, m in slow:
        a.label('s1_slow%s%d' % (tag, k))
        lds_spin(a, 's1_sl%s%d' % (tag, k), VT, VZ, XC1, m, m)
        a('s_branch s1_back%s%d' % (tag, k))
    AC2 = 8; B2 = 24; WR = 56; NPRE = 13
    wr = lambda k, j: WR + ((k % NPRE) * 2 + j) * 4
    a.label('s1_wo')
    a('s_and_b32 s24, s13, 3')
    a('s_mul_i32 s25, s24, 9\ns_and_b32 s4, s24, 1\ns_add_u32 s25, s25, s4\ns_lshl_b32 s4, s20, 1\ns_add_u32 s25, s25, s4')
    a('s_mul_i32 s16, s25, 18432\ns_add_u32 s16, s16, %d\ns_add_u32 s17, s16, 18432' % WO)

    def wo_ld(k):
        for j in range(2):
            a('buffer_load_dwordx4 %s, v1, s[8:11], s%d offen offset:%d' % (vr(wr(k, j), 4), 16 + j, 1024 * (k % 4)))
        if k % 4 == 3:
            a('s_add_u32 s16, s16, 4096\ns_add_u32 s17, s17, 4096')
    nO = [0]

    def wo_pre(n):
        for k in range(nO[0], nO[0] + n):
            wo_ld(k)
        nO[0] += n
        if n and nO[0] == NPRE and WO_TOUCH:
            a('v_min_u32 v6, %d, v0' % ((18 - NPRE) * 8 - 1))
            a('v_lshlrev_b32 v6, 7, v6')
            for j in range(2):
                a('buffer_load_dword v7, v6, s[8:11], s%d offen offset:%d' % (16 + j, 1024 * (NPRE % 4)))
    if WO_SPLIT[0]:
        gm = 0x040000 | (0x07000000 if S1_GATE >= 0 else 0)
        lds_spin(a, 's1_wog', 4, VZ, XC1, gm, gm)
    wo_pre(WO_SPLIT[0])
    stamp(a, 's1m')
    a('s_branch s1_join')
    a.label('s1_done')
    a('s_waitcnt vmcnt(0)')
    a.label('s1_join')
    stamp(a, 's1d')
    group_sync('e1a')
    a('s_cmp_eq_u32 s12, 11')
    a('s_cbranch_scc0 e1_x')
    mem_arrive(a, CBO, VZ, 4)
    if WO_W1:
        a('s_barrier')
    a.label('e1_x')
    if WO_W1:
        a('s_cmp_lt_u32 s12, 8')
        a('s_cbranch_scc1 e1_y')
        wo_pre(WO_W1)
        a('s_cmp_eq_u32 s12, 11')
        a('s_cbranch_scc1 e1_z')
        a.label('e1_y')
    a('s_barrier')
    a.label('e1_z')
    stamp(a, 'e1a')

    RING3 = 52
    FR = 124; QF = 20; XP = 4
    VA = 156; VB = 157; VC = 158; VD = 159; EX = 160; VT = 161; QX = 162
    f1 = lambda hh: FR + 8 * hh
    f2 = lambda hh: FR + 8 * hh + 4
    qf = lambda tt, hh: QF + (tt * 4 + hh) * 4
    a('s_cmp_ge_u32 s12, 8')
    a('s_cbranch_scc1 s2_hi')
    a('s_lshl_b32 s23, s14, 1\ns_lshr_b32 s4, s13, 2\ns_add_u32 s23, s23, s4')
    a('s_lshl_b32 s23, s23, 3\ns_add_u32 s23, s23, s12\ns_mul_i32 s23, s23, 4608\ns_add_u32 s23, s23, s%d\ns_add_u32 s23, s23, %d' % (LOFF, PQ))
    a('s_add_u32 s24, s23, 4096')
    a('v_lshlrev_b32 %s, 3, v0' % vr(VT))
    for tt in range(2):
        for p in range(2):
            a('buffer_load_dwordx4 %s, v1, s[8:11], s23 offen offset:%d sc1' % (vr(qf(tt, 2 * p), 4), 2048 * tt + 1024 * p))
    a('buffer_load_dwordx2 %s, %s, s[8:11], s24 offen sc1' % (vr(QX, 2), vr(VT)))
    a('v_and_b32 %s, 3, v2' % vr(VT))
    a('v_lshrrev_b32 %s, 2, v2' % vr(VA))
    a('v_lshl_add_u32 %s, %s, 2, %s' % (vr(VA), vr(VT), vr(VA)))
    a('v_lshlrev_b32 %s, 6, %s' % (vr(VA), vr(VA)))
    a('v_lshl_add_u32 %s, v3, 4, %s' % (vr(VA), vr(VA)))
    a('v_min_u32 %s, 2, %s' % (vr(VT), vr(VT)))
    a('v_lshlrev_b32 %s, 6, %s' % (vr(VB), vr(VT)))
    a('v_lshl_add_u32 %s, v3, 4, %s' % (vr(VB), vr(VB)))
    a('v_mul_u32_u24 %s, %d, v3' % (vr(VD), HS))
    a('v_lshl_add_u32 %s, v2, 3, %s' % (vr(VC), vr(VD)))
    a('v_lshl_add_u32 %s, %s, 3, %s' % (vr(VD), vr(VT), vr(VD)))
    a('s_mul_i32 s25, s12, %d\ns_add_u32 s22, s25, s%d\ns_add_u32 s25, s25, %d' % (4 * HS, SOF, SL))
    for v in (VA, VB, VC, VD):
        a('v_add_u32 %s, s25, %s' % (vr(v), vr(v)))
    for hh in range(4):
        a('s_mov_b32 s%d, 0x%x\ns_mov_b32 s%d, 0x%x' % (
            40 + 2 * hh, (0xffff << (16 * hh)) & 0xffffffff, 41 + 2 * hh, ((0xffff << (16 * hh)) >> 32) & 0xffffffff))
    a('s_mul_i32 s16, s13, 12\ns_add_u32 s16, s16, s28\ns_mul_i32 s16, s16, 55296\ns_mul_i32 s4, s19, 18432\ns_add_u32 s16, s16, s4\ns_add_u32 s16, s16, %d' % W1)
    a('s_and_b32 s4, s13, 3\ns_mul_i32 s29, s4, 9\ns_and_b32 s4, s4, 1\ns_xor_b32 s4, s4, 1\ns_lshl_b32 s4, s4, 3\ns_add_u32 s29, s29, s4')
    a('s_mul_i32 s4, s29, 18432\ns_add_u32 s4, s4, %d' % WO)
    a('s_cmp_eq_u32 s12, 7\ns_cselect_b32 s16, s4, s16')
    nW = [0]

    def wld(n):
        for _ in range(n):
            k = nW[0]
            a('buffer_load_dwordx4 %s, v1, s[8:11], s16 offen offset:%d' % (vr(RING3 + 4 * k, 4), 1024 * (k % 4)))
            if k % 4 == 3:
                a('s_add_u32 s16, s16, 4096')
            nW[0] += 1
    wld(S2_WE)
    a('s_waitcnt vmcnt(%d)' % S2_WE)
    for tt in range(2):
        for p in range(2):
            q0, q1 = qf(tt, 2 * p), qf(tt, 2 * p + 1)
            a('v_mov_b32 %s, %s' % (vr(q1), vr(q0 + 2)))
            a('v_mov_b32 %s, %s' % (vr(q1 + 1), vr(q0 + 3)))
            for q in (q0, q1):
                a('v_mov_b32 %s, %s' % (vr(q + 2), vr(QX + tt)))
                a('v_mov_b32 %s, 0' % vr(q + 3))
    a('s_mov_b32 m0, s25')
    a('s_barrier')
    stamp(a, 'e1b')
    for n in range(6):
        if n == 4:
            a('s_add_u32 m0, s25, 4096\ns_add_u32 s22, s22, 4096')
        a('buffer_load_dwordx4 v1, s[8:11], s22 offen offset:%d sc1 lds' % (1024 * (n % 4)))
    a('s_waitcnt vmcnt(0)')
    stamp(a, 'sld')
    a('ds_read_b64 %s, %s offset:1280' % (vr(XP, 2), vr(VC)))
    a('ds_read_b64 %s, %s offset:%d' % (vr(XP + 2, 2), vr(VD), 1280 + 128))
    for hh in range(4):
        a('ds_read_b128 %s, %s offset:%d' % (vr(f1(hh), 4), vr(VA), HS * hh))
        a('ds_read_b128 %s, %s offset:%d' % (vr(f2(hh), 4), vr(VB), HS * hh + 1024))
    wld(S2_W0)
    a('s_waitcnt lgkmcnt(8)')
    a('v_cvt_pk_bf16_f32 %s, %s, %s' % (vr(XP), vr(XP), vr(XP + 1)))
    a('v_cvt_pk_bf16_f32 %s, %s, %s' % (vr(XP + 2), vr(XP + 2), vr(XP + 3)))
    for hh in range(4):
        a('s_waitcnt lgkmcnt(%d)' % (6 - 2 * hh))
        for f, x in ((f1(hh), XP), (f2(hh), XP + 2)):
            a('v_cvt_pk_bf16_f32 %s, %s, %s' % (vr(f), vr(f), vr(f + 1)))
            a('v_cvt_pk_bf16_f32 %s, %s, %s' % (vr(f + 1), vr(f + 2), vr(f + 3)))
            a('v_cndmask_b32 %s, 0, %s, s[%d:%d]' % (vr(f + 2), vr(x), 40 + 2 * hh, 41 + 2 * hh))
            a('v_mov_b32 %s, 0' % vr(f + 3))
    stamp(a, 'scv')
    a('s_lshl_b32 s4, s12, 12\ns_add_u32 s4, s4, %d' % OI)
    a('v_add_u32 %s, s4, v1' % vr(VA))
    a('s_add_u32 s4, s21, 16\ns_lshl_b32 s4, s4, 11\ns_lshl_b32 s5, s20, 2\ns_add_u32 s4, s4, s5\ns_add_u32 s4, s4, %d' % OI)
    a('v_add_u32 %s, s4, v1' % vr(VB))
    for tt in range(2):
        for p in range(2):
            for n in range(2):
                mfma(a, XP + 8 * n + 4, f2(2 * p + n), qf(tt, 2 * p + n))
            for n in range(2):
                mfma(a, XP + 8 * n, f1(2 * p + n), qf(tt, 2 * p + n))
            wld(S2_W1)
            O = qf(tt, 2 * p)
            for n in range(2):
                d2 = XP + 8 * n + 4
                a('v_add_f32 %s, 0x%x, %s' % (vr(d2 + 2), EPS6, vr(d2 + 2)))
            for n in range(2):
                d2 = XP + 8 * n + 4
                a('v_rcp_f32 %s, %s' % (vr(d2 + 2), vr(d2 + 2)))
            for n in range(2):
                hh = 2 * p + n
                d1 = XP + 8 * n; d2 = d1 + 4
                for r in (4, 5, 0, 1, 2, 3):
                    a('v_mul_f32 %s, %s, %s' % (vr(d1 + r), vr(d1 + r), vr(d2 + 2)))
                a('v_cvt_pk_bf16_f32 %s, %s, %s' % (vr(O + 2 * n), vr(d1), vr(d1 + 1)))
                a('v_cvt_pk_bf16_f32 %s, %s, %s' % (vr(O + 2 * n + 1), vr(d1 + 2), vr(d1 + 3)))
                if hh == 0:
                    a('v_cvt_pk_bf16_f32 %s, %s, %s' % (vr(EX), vr(d2), vr(d2 + 1)))
                else:
                    a('v_cvt_pk_bf16_f32 %s, %s, %s' % (vr(VT), vr(d2), vr(d2 + 1)))
                    a('v_cndmask_b32 %s, %s, %s, s[%d:%d]' % (vr(EX), vr(EX), vr(VT), 40 + 2 * hh, 41 + 2 * hh))
            a('ds_write_b128 %s, %s offset:%d' % (vr(VA), vr(O, 4), 2048 * p + 1024 * tt))
        a('ds_write_b32 %s, %s offset:%d' % (vr(VB), vr(EX), 1024 * tt))
    stamp(a, 'st1')
    a('s_waitcnt lgkmcnt(0)')
    a('s_barrier')
    stamp(a, 'o')
    a('s_cmp_eq_u32 s12, 7')
    a('s_cbranch_scc0 s2_n7')
    a('s_setprio 3')
    a.label('s2_n7')
    wld(18 - S2_W5 - nW[0])
    a('s_cmp_eq_u32 s12, 7')
    a('s_cbranch_scc0 s2_done')
    n5 = nW[0]
    wld(S2_W5)

    def resid_store(nt, AC, T, s_ct):
        a('s_bfe_u32 s7, %s, 0x10001' % sr(s_ct))
        lane_part(T + 24, T + 25, 's7')
        a('s_lshr_b32 s4, %s, 1\ns_lshr_b32 s5, s13, 2\ns_lshl_b32 s5, s5, 1' % sr(s_ct))
        a('s_and_b32 s24, %s, 1\ns_lshl_b32 s24, s24, 3' % sr(s_ct))
        a('s_lshr_b32 s6, s4, 1\ns_lshl_b32 s6, s6, 2\ns_add_u32 s6, s6, s5\ns_lshl_b32 s6, s6, 11\ns_add_u32 s6, s6, s24\ns_add_u32 s6, s6, %d' % XI)
        a('v_add_u32 %s, s6, %s' % (vr(T + 24), vr(T + 24)))
        for tt in range(2):
            a('ds_read_b%d %s, %s offset:%d' % (64 * nt, vr(T + 4 * tt, 2 * nt), vr(T + 24), 2048 * tt))
        a('s_lshl_b32 s6, s14, 2\ns_add_u32 s6, s6, s5\ns_mul_i32 s6, s6, 18\ns_add_u32 s6, s6, s4\ns_lshl_b32 s6, s6, 10')
        a('s_add_u32 s6, s6, s24\ns_add_u32 s6, s6, s%d\ns_add_u32 s6, s6, %d\ns_add_u32 s7, s6, 18432' % (LOFF, X1))
        a('s_waitcnt lgkmcnt(0)')
        for tt in range(2):
            U = T + 8 + 8 * tt
            for h in range(2 * nt):
                a('v_lshlrev_b32 %s, 16, %s' % (vr(U + 2 * h), vr(T + 4 * tt + h)))
                a('v_and_b32 %s, 0xffff0000, %s' % (vr(U + 2 * h + 1), vr(T + 4 * tt + h)))
            for j in range(nt):
                for r in range(4):
                    a('v_add_f32 %s, %s, %s' % (vr(U + 4 * j + r), vr(U + 4 * j + r), vr(AC + (2 * j + tt) * 4 + r)))
            for h in range(2 * nt):
                a('v_cvt_pk_bf16_f32 %s, %s, %s' % (vr(T + 4 * tt + h), vr(U + 2 * h), vr(U + 2 * h + 1)))
            a('buffer_store_dwordx%d %s, v1, s[8:11], s%d offen sc1' % (2 * nt, vr(T + 4 * tt, 2 * nt), 6 + tt))

    NB = 8
    slot = lambda n: FR + 4 * (n % NB)
    a('v_add_u32 %s, %d, v1' % (vr(VA), OI))
    for n in range(NB):
        a('ds_read_b128 %s, %s offset:%d' % (vr(slot(n), 4), vr(VA), 1024 * n))
    for n in range(36):
        k, tt = n >> 1, n & 1
        a('s_waitcnt vmcnt(%d) lgkmcnt(%d)' % (17 - k, min(NB - 1, 35 - n)))
        mfma(a, 4 + 4 * tt, RING3 + 4 * k, slot(n), None if k == 0 else 4 + 4 * tt)
        if n + NB < 36:
            a('ds_read_b128 %s, %s offset:%d' % (vr(slot(n), 4), vr(VA), 1024 * (n + NB)))
    stamp(a, 'gem')
    resid_store(1, 4, 20, 29)
    stamp(a, 'rst')
    a('s_setprio 0')
    a('s_waitcnt vmcnt(0)')
    a('s_branch s2_done')
    a.label('s2_hi')
    wo_pre(WO_SPLIT[1])
    a('s_cmp_eq_u32 s12, 11')
    a('s_cbranch_scc0 s2_hw')
    mem_wait(a, 'e1b', CBO, CBW, VZ, 5, backoff=(None, 0, CB_SLEEP) if CB_SLEEP else None)
    a('v_lshlrev_b32 v4, 2, v0')
    a('s_mov_b64 exec, 0xff')
    a('ds_write_b32 v4, %s offset:%d' % (vr(VZ), FLG))
    a('s_mov_b64 exec, -1')
    a('s_waitcnt lgkmcnt(0)')
    a.label('s2_hw')
    a('s_barrier')
    stamp(a, 'e1b')
    wo_pre(WO_SPLIT[2])
    assert nO[0] == NPRE
    a('v_add_u32 v4, %d, v1' % OI)
    a('s_setprio 2')
    a('s_waitcnt vmcnt(0)')
    a('s_barrier')
    stamp(a, 'o')
    b2 = lambda k, tt: B2 + ((k % 4) * 2 + tt) * 4
    for k in range(4):
        for tt in range(2):
            a('ds_read_b128 %s, v4 offset:%d' % (vr(b2(k, tt), 4), 2048 * k + 1024 * tt))
    for k in range(18):
        w = 's_waitcnt lgkmcnt(%d)' % min(6, 2 * (17 - k))
        if k >= NPRE:
            w += ' vmcnt(%d)' % (2 * (17 - k))
        a(w)
        for j in range(2):
            for tt in range(2):
                d = AC2 + (2 * j + tt) * 4
                mfma(a, d, wr(k, j), b2(k, tt), None if k == 0 else d)
        if k + NPRE < 18:
            wo_ld(k + NPRE)
        if k + 4 < 18:
            for tt in range(2):
                a('ds_read_b128 %s, v4 offset:%d' % (vr(b2(k, tt), 4), 2048 * (k + 4) + 1024 * tt))
    stamp(a, 'gem')
    resid_store(2, AC2, B2, 25)
    stamp(a, 'rst')
    a('s_setprio 0')
    a('s_waitcnt vmcnt(0)')
    a.label('s2_done')
    stamp(a, 's2d')
    group_sync('e2')
    if S2_W5:
        a('s_cmp_ge_u32 s12, 7')
        a('s_cbranch_scc1 e2_y')
        nW[0] = n5
        wld(S2_W5)
        a.label('e2_y')
    a('s_barrier')
    stamp(a, 'e2')

    ACC = 4; RING = RING3; BF = RING + 72; RS = BF + 32
    VA = RS + 4; VT = VA + 3; VC = VT + 1; VK = VC + 1; VN = VK + 1
    acc = lambda j, tt: ACC + (j * 4 + tt) * 4
    ring3 = lambda k, j: RING + ((k % 6) * 3 + j) * 4
    bf = lambda p, tt: BF + (p * 4 + tt) * 4
    load_x('x1', X1, XC3)
    a('s_lshl_b32 s4, s20, 2')
    a('v_mov_b32 %s, s4' % vr(VK))
    a('s_mul_i32 s16, s13, 12\ns_add_u32 s16, s16, s28\ns_mul_i32 s16, s16, 55296\ns_add_u32 s16, s16, %d' % W1)
    for b in range(3):
        a('s_mul_i32 s4, s%d, 18432\ns_add_u32 s%d, s4, s16' % (48 + b, 30 + b))
        a('s_mul_i32 s4, s%d, 24576\ns_add_u32 s4, s4, %d' % (48 + b, XI))
        a('v_add_u32 %s, s4, v1' % vr(VA + b))
    a('s_lshl_b32 s4, s21, 3\ns_lshl_b32 s27, 1, s4')
    a('s_mov_b32 s18, s21')
    a('v_mov_b32 %s, %d' % (vr(VN), XC3))
    a('s_cmp_ge_u32 s12, 8')
    a('s_cbranch_scc1 s3_hi')
    a('s_waitcnt vmcnt(0)')
    a('s_barrier')
    stamp(a, 'x3')
    a('s_cmp_lt_u32 s12, 7')
    a('s_cbranch_scc1 s3_filled')
    a('s_branch s3_fill')
    a.label('s3_hi')
    a('s_barrier')
    x_count(XC3)
    stamp(a, 'x3')
    a('s_setprio %d' % P3_SPRIO)
    a('s_lshl_b32 s4, s20, 11\ns_add_u32 s4, s4, %d' % XI)
    a('v_add_u32 %s, s4, v1' % vr(VC))
    a('v_add_u32 %s, %d, %s' % (vr(VT), 5 * 8192, vr(VC)))
    for k in range(4):
        a('v_mov_b32 %s, 0x%x' % (vr(BF + k), ONES))
    rdk = lambda k: a('ds_read_b128 %s, %s offset:%d' % (vr(RING + 4 * k, 4), vr(VC if k < 10 else VT), img(k % 10, 0)))
    for k in range(12):
        rdk(k)
    for k in range(18):
        a('s_waitcnt lgkmcnt(%d)' % min(11, 17 - k))
        f = RING + 4 * k
        mfma(a, ACC, BF, f, None if k == 0 else ACC)
        mfma(a, ACC + 4, f, f, None if k == 0 else ACC + 4)
        if k + 12 < 18:
            rdk(k + 12)
    diag_select(a, ACC + 1, ACC + 4)
    rstd_from(a, ACC + 2, ACC, ACC + 1)
    a('s_lshl_b32 s4, s20, 6')
    a('v_lshl_add_u32 %s, v2, 2, s4' % vr(VT))
    a('v_mov_b32 %s, 0x1000000' % vr(VC))
    a('s_mov_b32 exec_lo, 0x00f0000f\ns_mov_b32 exec_hi, 0xf0000f00')
    a('ds_write_b32 %s, %s' % (vr(VT), vr(ACC + 2)))
    a('s_mov_b64 exec, 1')
    a('ds_add_u32 %s, %s offset:%d' % (vr(VZ), vr(VC), CNT))
    a('s_mov_b64 exec, -1')
    a.label('s3_tok')
    a('s_lshl_b32 s4, s18, 2\ns_lshr_b32 s33, 0x%x, s4\ns_and_b32 s33, s33, 15' % sum(t << (4 * (q + 2)) for q, t in enumerate(P3_THR)))
    lds_spin(a, 's3_tk', VT, VK, TOK, 0, 0, ge=33)
    a.label('s3_fill')
    a('s_mov_b32 s15, s30')
    for k in range(6):
        for j in range(3):
            a('buffer_load_dwordx4 %s, v1, s[8:11], s15 offen offset:%d' % (vr(ring3(k, j), 4), 1024 * j))
        if k < 5:
            a('s_add_u32 s15, s15, 3072')
    a.label('s3_filled')
    a('v_mov_b32 %s, 1' % vr(VC))
    a('s_setprio 2')
    a('s_cmp_lt_u32 s18, 3')
    a('s_cbranch_scc1 s3_pass')
    lds_spin(a, 's3_w2', VT, VZ, CNT, 0xff, 0x04)
    a('s_setprio 1')
    a.label('s3_pass')

    def rd(k, tt):
        a('ds_read_b128 %s, %s offset:%d' % (vr(bf(k & 1, tt), 4), vr(VA + k // 6), img(k % 6, tt)))
    for tt in range(4):
        rd(0, tt)
    a('s_waitcnt vmcnt(17) lgkmcnt(0)')
    issued = 18
    for k in range(18):
        for n in range(12):
            j, tt = n >> 2, n & 3
            if j & 1:
                tt = 3 - tt
            mfma(a, acc(j, tt), ring3(k, j), bf(k & 1, tt), None if k == 0 else acc(j, tt))
            if n == 0 and k < 12:
                a('s_add_u32 s15, s15, 3072' if k % 6 else 's_mov_b32 s15, s%d' % (31 + k // 6))
            if n in (0, 1, 4, 5) and k < 17:
                rd(k + 1, n if n < 2 else n - 2)
            if n in (2, 6, 10) and k * 3 + j + 1 < 54:
                a('s_waitcnt vmcnt(%d)%s' % (issued - (k * 3 + j + 2), ' lgkmcnt(0)' if n == 10 else ''))
            if n in (3, 7, 11) and k < 12:
                a('buffer_load_dwordx4 %s, v1, s[8:11], s15 offen offset:%d' % (vr(ring3(k, j), 4), 1024 * j))
                issued += 1
            if k == P3_TOK + 1 and n == 7:
                a('s_mov_b64 exec, 1')
                a('ds_add_u32 %s, %s offset:%d' % (vr(VK), vr(VC), TOK))
                a('s_mov_b64 exec, -1')
            if k in (4, 10):
                m = 0x0400 if k == 4 else 0x040000
                if n == 6:
                    a('ds_read_b32 %s, %s' % (vr(VT), vr(VN)))
                if n == 10:
                    a('v_readfirstlane_b32 s4, %s' % vr(VT))
                if n == 11:
                    a('s_andn2_b32 s4, 0x%x, s4' % m)
                    a('s_cbranch_scc1 s3_slow%d' % k)
                    a.label('s3_back%d' % k)
    a('s_setprio 0')
    a('s_lshr_b32 s24, s28, 1\ns_mul_i32 s24, s24, 3\ns_and_b32 s25, s28, 1')
    a('s_cmp_ge_u32 s18, 3')
    a('s_cbranch_scc1 s3_epib')
    stamp(a, 'pa')
    lds_spin(a, 's3_w1', VT, VZ, CNT, 0xff000000, 0x04000000)
    a('v_lshlrev_b32 %s, 2, v2' % vr(VT))
    for tt in range(4):
        a('ds_read_b32 %s, %s offset:%d' % (vr(RS + tt), vr(VT), 64 * tt))
    def img_s(dst, ks):
        a('s_lshr_b32 s6, %s, 1\ns_lshl_b32 s6, s6, 13\ns_and_b32 %s, %s, 1\ns_lshl_b32 %s, %s, 10\ns_add_u32 %s, %s, s6' % (ks, dst, ks, dst, dst, dst, dst))
    a('s_lshl_b32 s4, s25, 1\ns_add_u32 s4, s4, s24')
    img_s('s4', 's4')
    a('s_add_u32 s4, s4, %d' % HI)
    a('s_add_u32 s5, s24, 1')
    img_s('s5', 's5')
    a('s_lshl_b32 s6, s25, 3\ns_add_u32 s5, s5, s6\ns_add_u32 s5, s5, %d' % HI)
    a('s_waitcnt lgkmcnt(0)')
    a('v_add_u32 %s, s4, v1' % vr(VT))
    a('v_add_u32 %s, s5, v1' % vr(VC))
    C = BF + 28
    for tt in range(4):
        a('v_mul_f32 %s, 0x%x, %s' % (vr(C + tt), NLOG2E, vr(RS + tt)))
    T = BF
    units = [[(0, u), (1, u)] for u in range(4)] + [[(2, 0), (2, 1)], [(2, 2), (2, 3)]]
    for u, un in enumerate(units):
        idx = [(j, tt, r) for j, tt in un for r in range(4)]
        for n, (j, tt, r) in enumerate(idx):
            a('v_mul_f32 %s, %s, %s' % (vr(T + n), vr(acc(j, tt) + r), vr(C + tt)))
        for n in range(8):
            a('v_exp_f32 %s, %s' % (vr(T + n), vr(T + n)))
        for n in range(8):
            a('v_add_f32 %s, 1.0, %s' % (vr(T + n), vr(T + n)))
        for n in range(8):
            a('v_rcp_f32 %s, %s' % (vr(T + n), vr(T + n)))
        for n, (j, tt, r) in enumerate(idx):
            a('v_mul_f32 %s, %s, %s' % (vr(T + n), vr(acc(j, tt) + r), vr(T + n)))
        P = BF + 8 + 4 * (u % 4)
        for n in range(4):
            a('v_cvt_pk_bf16_f32 %s, %s, %s' % (vr(P + n), vr(T + 2 * n), vr(T + 2 * n + 1)))
        if u < 4:
            a('ds_write_b128 %s, %s offset:%d' % (vr(VT), vr(P, 4), 2048 * u))
        else:
            a('ds_write_b64 %s, %s offset:%d' % (vr(VC), vr(P, 2), 2048 * un[0][1]))
            a('ds_write_b64 %s, %s offset:%d' % (vr(VC), vr(P + 2, 2), 2048 * un[1][1]))
    a('v_mov_b32 %s, s27' % vr(VT))
    a('s_mov_b64 exec, 1')
    a('ds_add_u32 %s, %s offset:%d' % (vr(VZ), vr(VT), CNT))
    a('s_mov_b64 exec, -1')
    for b in range(3):
        a('s_add_u32 s%d, s%d, %d' % (30 + b, 30 + b, W2 - W1))
        a('v_add_u32 %s, %d, %s' % (vr(VA + b), HI - XI, vr(VA + b)))
    a('s_add_u32 s18, s18, 3')
    a('v_mov_b32 %s, %d' % (vr(VN), CNT))
    a('s_branch s3_tok')
    for k, m in ((4, 0x0400), (10, 0x040000)):
        a.label('s3_slow%d' % k)
        lds_spin(a, 's3_sl%d' % k, VT, VN, 0, m, m)
        a('s_branch s3_back%d' % k)
    a.label('s3_epib')
    stamp(a, 'pb')
    a('s_setprio %d' % EPB_PRIO)
    a('s_lshl_b32 s4, s13, 5\ns_add_u32 s4, s4, s14\ns_mul_i32 s4, s4, 12\ns_add_u32 s4, s4, s28\ns_mul_i32 s4, s4, 6144')
    a('s_add_u32 s6, s4, s%d\ns_add_u32 s7, s6, 4096' % PRT)
    for u, un in enumerate(units):
        P = BF + 4 * u
        for n, (j, tt) in enumerate(un):
            for r in range(4):
                a('v_mul_f32 %s, %s, %s' % (vr(acc(j, tt) + r), vr(acc(j, tt) + r), vr(RS + tt)))
            a('v_cvt_pk_bf16_f32 %s, %s, %s' % (vr(P + 2 * n), vr(acc(j, tt)), vr(acc(j, tt) + 1)))
            a('v_cvt_pk_bf16_f32 %s, %s, %s' % (vr(P + 2 * n + 1), vr(acc(j, tt) + 2), vr(acc(j, tt) + 3)))
        a('buffer_store_dwordx4 %s, v1, s[8:11], s%d offen offset:%d sc1' % (vr(P, 4), 6 + (u >> 2), 1024 * (u & 3)))
    a('s_mul_i32 s22, s14, 12\ns_add_u32 s4, s22, s28\ns_lshl_b32 s4, s4, 7\ns_add_u32 s6, s4, %d' % FL_RF)
    a('v_mov_b32 v4, 1')
    a('s_and_b32 s23, s28, 12\ns_lshr_b32 s4, s13, 1\ns_add_u32 s23, s23, s4')
    a('s_add_u32 s22, s22, s23')
    a('s_lshl_b32 s7, s22, 7\ns_add_u32 s7, s7, %d' % FL_RF)
    a('s_and_b32 s29, s13, 1')
    a('s_lshr_b32 s24, s23, 1\ns_mul_i32 s24, s24, 3\ns_and_b32 s25, s23, 1')
    a('s_lshl_b32 s26, s29, 1')
    a('s_cmp_eq_u32 s20, 2')
    a('s_cbranch_scc1 s3_mix')
    a('s_add_u32 s26, s26, s20\ns_mov_b32 s16, s26')
    a('s_lshl_b32 s4, s25, 1\ns_add_u32 s24, s24, s4\ns_mov_b32 s25, 0')
    a('s_branch s3_adr')
    a.label('s3_mix')
    a('s_add_u32 s16, s29, 4\ns_add_u32 s24, s24, 1\ns_lshl_b32 s25, s25, 3')
    a.label('s3_adr')
    a('s_mul_i32 s22, s22, 6\ns_add_u32 s16, s16, s22\ns_lshl_b32 s16, s16, 10\ns_add_u32 s16, s16, s%d' % PRT)
    a('s_lshr_b32 s4, s24, 1\ns_lshl_b32 s4, s4, 2\ns_add_u32 s4, s4, s26\ns_lshl_b32 s4, s4, 1\ns_and_b32 s5, s24, 1\ns_add_u32 s4, s4, s5')
    a('s_lshl_b32 s4, s4, 10\ns_add_u32 s4, s4, s25\ns_add_u32 s4, s4, %d' % XI)
    a('v_add_u32 v6, s4, v1')
    a('s_lshl_b32 s4, s14, 2\ns_add_u32 s4, s4, s26\ns_mul_i32 s17, s4, 18432\ns_add_u32 s17, s17, s25')
    a('s_mov_b32 s39, 0x20000')
    a('s_cmp_eq_u32 s%d, 0' % LAY)
    a('s_cbranch_scc0 s3_fin')
    a('s_mov_b32 s36, s8\ns_mov_b32 s37, s9\ns_mov_b32 s38, s10')
    a('s_lshl_b32 s4, s24, 10\ns_add_u32 s17, s17, s4\ns_add_u32 s17, s17, %d' % (X0 + ACT))
    a('v_mov_b32 v7, v1')
    a('s_branch s3_pub')
    a.label('s3_fin')
    a('s_mov_b32 s36, s94\ns_mov_b32 s37, s95\ns_mov_b32 s38, %d' % ACT)
    a('s_lshl_b32 s4, s24, 6\ns_add_u32 s17, s17, s4')
    a('v_mul_u32_u24 v7, 1152, v2')
    a('v_lshl_add_u32 v7, v3, 4, v7')
    a.label('s3_pub')
    a('s_cmp_eq_u32 s18, 5')
    a('s_cbranch_scc0 s3_pu2')
    a('s_mov_b64 exec, 1')
    a('ds_add_u32 %s, v4 offset:%d' % (vr(VK), TOK))
    a('s_mov_b64 exec, -1')
    a.label('s3_pu2')
    stamp(a, 'pst')
    a('s_waitcnt vmcnt(0)')
    stamp(a, 'pdr')
    mem_arrive(a, 6, VZ, 4)
    a('s_cmp_eq_u32 s20, 3')
    a('s_cbranch_scc1 s3_red_done')
    RX = 8; PP = 20; AC = 12
    a('ds_read_b64 %s, v6' % vr(RX, 2))
    a('s_cmp_eq_u32 s20, 2')
    a('s_cselect_b32 s4, 2048, 8')
    a('v_add_u32 v6, s4, v6')
    a('ds_read_b64 %s, v6' % vr(RX + 2, 2))
    mem_wait(a, 's3_rw', 7, RFW, VZ, 5, backoff=(18, 5, 4))
    stamp(a, 'rw0')
    thr = sum(t << (4 * (4 * l + g)) for l in range(2) for g, t in enumerate(RED_THR[l]))
    a('s_lshl_b32 s4, s%d, 2\ns_add_u32 s4, s4, s21\ns_lshl_b32 s4, s4, 2\ns_lshr_b32 s33, 0x%x, s4\ns_and_b32 s33, s33, 15' % (LAY, thr))
    lds_spin(a, 's3_t6r', VT, VK, TOK, 0, 0, ge=33)
    stamp(a, 'rw1')
    for c in range(8):
        a('buffer_load_dwordx4 %s, v1, s[8:11], s16 offen sc1' % vr(PP + 4 * c, 4))
        if c < 7:
            a('s_add_u32 s16, s16, %d' % ACT)
    a('s_waitcnt lgkmcnt(0)')
    for n in range(4):
        a('v_lshlrev_b32 %s, 16, %s' % (vr(AC + 2 * n), vr(RX + n)))
        a('v_and_b32 %s, 0xffff0000, %s' % (vr(AC + 2 * n + 1), vr(RX + n)))
    for c in range(8):
        a('s_waitcnt vmcnt(%d)' % (7 - c))
        for n in range(4):
            a('v_lshlrev_b32 %s, 16, %s' % (vr(RX + n), vr(PP + 4 * c + n)))
            a('v_and_b32 %s, 0xffff0000, %s' % (vr(PP + 4 * c + n), vr(PP + 4 * c + n)))
        for n in range(4):
            a('v_add_f32 %s, %s, %s' % (vr(AC + 2 * n), vr(AC + 2 * n), vr(RX + n)))
            a('v_add_f32 %s, %s, %s' % (vr(AC + 2 * n + 1), vr(AC + 2 * n + 1), vr(PP + 4 * c + n)))
    for n in range(4):
        a('v_cvt_pk_bf16_f32 %s, %s, %s' % (vr(RX + n), vr(AC + 2 * n), vr(AC + 2 * n + 1)))
    stamp(a, 'rsum')
    a('s_cmp_eq_u32 s20, 2')
    a('s_cbranch_scc1 s3_stm')
    a('buffer_store_dwordx4 %s, v7, s[36:39], s17 offen sc1' % vr(RX, 4))
    a('s_branch s3_red_done')
    a.label('s3_stm')
    a('buffer_store_dwordx2 %s, v7, s[36:39], s17 offen sc1' % vr(RX, 2))
    a('s_add_u32 s17, s17, 18432')
    a('buffer_store_dwordx2 %s, v7, s[36:39], s17 offen sc1' % vr(RX + 2, 2))
    a.label('s3_red_done')
    a('s_setprio 0')
    a('s_cmp_eq_u32 s%d, 0' % LAY)
    a('s_cbranch_scc0 mega_fin')
    a('s_waitcnt vmcnt(0)')
    if STAMPS:
        stamp_end(a, 6, 12, 12, 12, base_v=8)
        a('s_mov_b64 exec, -1')
        a('s_waitcnt vmcnt(0)')
        stamp(a, 0)
    a('s_mov_b32 s%d, 1\ns_mov_b32 s%d, %d\ns_mov_b32 s%d, 64\ns_mov_b32 s%d, 16' % (LAY, LOFF, ACT, CBW, RFW))
    a('s_add_u32 s%d, s%d, %d\ns_add_u32 s%d, s%d, %d' % (SOF, SOF, 32 * HS, PRT, PRT, PART_STEP))
    a('s_lshl_b32 s6, s14, 2\ns_add_u32 s6, s6, s21\ns_lshl_b32 s6, s6, 7\ns_add_u32 s6, s6, %d' % FL_GT)
    a('s_mov_b32 s33, %d' % NX_TOK)
    a('s_cmp_eq_u32 s20, 3')
    a('s_cbranch_scc1 nx_load')
    mem_arrive(a, 6, VZ, 4)
    a('s_cmp_ge_u32 s12, 8')
    a('s_cbranch_scc1 s1_wo')
    lds_spin(a, 'nx_t1', VT, VK, TOK, 0, 0, ge=33)
    a('s_branch nx_fill')
    a.label('nx_load')
    lds_spin(a, 'nx_t2', VT, VK, TOK, 0, 0, ge=33)
    a('s_mov_b32 s7, 24')
    a('s_setprio 3')
    mem_wait(a, 'nx_w', 6, 7, VZ, 5, backoff=(12, 11, NX_SLEEP))
    stamp(a, 'e4')
    a('s_lshr_b32 s4, s28, 2')
    a('s_mul_i32 s22, s4, 6144\ns_mul_i32 s5, s14, 73728\ns_add_u32 s22, s22, s5\ns_add_u32 s22, s22, %d' % (X0 + ACT))
    a('s_mul_i32 s24, s4, 24576\ns_add_u32 s24, s24, %d' % XI)
    for p in range(3):
        for tt in range(4):
            a('s_add_u32 m0, s24, %d' % (8192 * p + 2048 * tt))
            a('s_add_u32 s23, s22, %d' % (2048 * p + 18432 * tt))
            for h in range(2):
                a('buffer_load_dwordx4 v1, s[8:11], s23 offen offset:%d sc1 lds' % (1024 * h))
    a('s_lshl_b32 s4, s27, 2')
    a('v_mov_b32 v5, s4')
    a('s_waitcnt vmcnt(0)')
    a('s_mov_b64 exec, 1')
    a('ds_add_u32 %s, v5 offset:%d' % (vr(VZ), XC1))
    a('s_mov_b64 exec, -1')
    a('s_setprio 0')
    a('s_cmp_eq_u32 s12, 11')
    a('s_cbranch_scc1 s1_wo')
    a('s_cmp_eq_u32 s12, 7')
    a('s_cbranch_scc1 nx_go')
    a.label('nx_fill')
    s1_fill(NX_DEPTH)
    a.label('nx_go')
    stamp(a, 'fil')
    lds_spin(a, 'nx_x0', 6, VZ, XC1, 4, 4)
    a('s_branch s1_go')
    a.label('mega_fin')
    if AMP:
        a('s_cmp_eq_u32 s2, 20\ns_cbranch_scc0 amp_x')
        a('s_cmp_eq_u32 s12, 8\ns_cbranch_scc0 amp_x')
        a('s_waitcnt vmcnt(0)')
        a('s_mov_b32 s4, %d' % (DBG - 4096))
        a('buffer_load_dword v8, %s, s[8:11], s4 offen' % vr(VZ))
        a('s_memrealtime s[40:41]')
        a('s_waitcnt vmcnt(0) lgkmcnt(0)')
        a('v_readfirstlane_b32 s42, v8')
        if AMP == 'all':
            a('s_sub_u32 s43, s40, s42')
        elif AMP == 'mega':
            a('s_sub_u32 s43, s40, s84')
        elif AMP == 'prep':
            a('s_sub_u32 s43, s84, s42')
        else:
            a('s_mov_b32 s43, 0')
        a('s_min_u32 s43, s43, 50000')
        a.label('amp_l')
        a('s_memrealtime s[44:45]')
        a('s_waitcnt lgkmcnt(0)')
        a('s_sub_u32 s44, s44, s40')
        a('s_cmp_lt_u32 s44, s43')
        a('s_cbranch_scc1 amp_l')
        a.label('amp_x')
    stamp_end(a, 7, 12, 12, 12, base_v=8)
    a.label('mega_end')
    a('s_endpgm')
    if SINGLE:
        a.lines = [l + ' sc1' if re.match(r'buffer_load_dwordx4 v\[\d+:\d+\], v1, s\[8:11\]', l) and 'sc1' not in l else l for l in a.lines]
    return (KNAME if SINGLE else 'mega_kernel', a, 168, 100, (256, 768, LDS))


def gen_pf():
    a = Asm()
    a('s_cmp_ge_u32 s2, 256')
    a('s_cbranch_scc1 pf_end')
    ws_srd(a)
    a('s_waitcnt lgkmcnt(0)')
    l2_touch(a, WQ, WQ_HG, NCX, 8, 2, 3)
    l2_touch(a, WO, 9 * 18432, 4, 4, 2, 3)
    a('s_waitcnt vmcnt(0)')
    a.label('pf_end')
    a('s_endpgm')
    return ('pf_kernel', a, 8, 24, (256, 64, 0))


def gen_empty(n=''):
    a = Asm()
    a('s_endpgm')
    return ('empty%s_kernel' % n, a, 8, 16, (256, 256, 0))


def gen_chain(slot):
    a = Asm()
    a('s_cmp_ge_u32 s2, 32')
    a('s_cbranch_scc1 chain_end')
    a('s_load_dwordx2 s[8:9], s[0:1], %d' % (8 * slot))
    a('s_mov_b32 s10, %d\ns_mov_b32 s11, 0x20000' % ACT)
    a('s_mul_i32 s4, s2, %d' % (64 * 1024))
    a('v_mov_b32 v1, 0')
    a('s_mov_b64 exec, 1')
    a('s_waitcnt lgkmcnt(0)')
    for k in range(64):
        a('buffer_load_dword v2, v1, s[8:11], s4 offen')
        a('s_waitcnt vmcnt(0)')
        a('v_and_b32 v2, 0, v2')
        a('v_add_u32 v1, 1024, v1')
        a('v_add_u32 v1, v2, v1')
    a.label('chain_end')
    a('s_endpgm')
    return ('chain_kernel', a, 8, 16, (32, 64, 0))


PRE = []
RED_THR = ((5, 6), (5, 6))
WO_W1 = 7
S2_W5 = 6
WO_SPLIT = (6, 0, 0)
RED_TOUCH = 0
RED_TSTEP = 128
SFLAG = True
CB_SLEEP = 0
NX_TOK = 6
NX_DEPTH = None
NX_SLEEP = 4
S1_GATE = -1
S1_GATEN = 7
WO_TOUCH = True
P3_THR = (2, 3, 4, 5)
RED_MODE = 0
EPB_PRIO = 3
PREP_RANGES = ((0, 64), (64, 136), (136, 208), (208, 217), (217, 241))
PREP_QLD = ''
PREP_HLD = ''
PREP_H3 = True
PREP_ROT = 0
PREP_GLD = ''
NCX = 4
S2_WE = 6
S2_W0 = 2
S2_W1 = 1
P3_LEAD = 0
PART_STEP = 0
MID = []
KD_PF = False
P3_SLEEP = 0
P3_TOK = 10
P3_EPRIO2 = 0
P3_SPRIO = 3
PF1 = []
PF2 = []
PF3 = None
P0_LD = ''
P1_NCX = 4
P2_NCX = 4
P1_ST = ' sc1'
P2_W0 = 4
P2_W1 = 2
CODE_PF = True
PREP_ST = ' sc1'
PREP_XLD = ' nt'
P3_LD = ''
P3_SNAKE = True
P3_EPRIO = 0
PF = False
P3_NODS = False
P3_NOLD = False
PRIO = True
P3_NCX = 4
P3_ST = ' sc1'


def build():
    if SINGLE:
        name, a, nv, ns, (g, b, l) = gen_mega()
        c, d = kernel_text(name, a, nv, ns)
        hdr = '; generated by gen/gen.py (hand-written generator); see that file for the layouts\n'
        hdr += '; @launch %sgrid=(%d,1,1) block=(%d,1,1) lds=%d\n' % ('kernel=%s ' % name if SINGLE == 'list' else '', g, b, l)
        return hdr + '.amdgcn_target "amdgcn-amd-amdhsa--gfx950"\n' + c + 'code_end:\n' + d
    ks = [gen_prep(), gen_mega()]
    for e in sorted(set(MID)):
        ks.append(gen_pf() if e == 'pf' else gen_empty(e[5:]))
    geo = {k[0]: k[4] for k in ks}
    order = ['prep'] + MID + ['mega']
    hdr = ['; generated by gen/gen.py (hand-written generator); see that file for the layouts']
    for o in order:
        g, b, l = geo[o + '_kernel']
        hdr.append('; @launch kernel=%s_kernel grid=(%d,1,1) block=(%d,1,1) lds=%d' % (o, g, b, l))
    out = '\n'.join(hdr) + '\n.amdgcn_target "amdgcn-amd-amdhsa--gfx950"\n'
    descs = ''
    for name, a, nv, ns, _ in ks:
        c, d = kernel_text(name, a, nv, ns)
        out += c
        descs += d
    out += 'code_end:\n'
    return out + '.section .rodata,"a"\n.p2align 6\nkd_begin:\n' + descs + 'kd_end:\n'


if __name__ == '__main__':
    path = sys.argv[1] if len(sys.argv) > 1 else 'cdna_kernels/%s.s' % NAME
    for o in sys.argv[2:]:
        k, v = o.split('=')
        globals()[k] = eval(v)
    open(path, 'w').write(build())
    print('wrote', path)
```

```python
import sys, re, os
from asmlib import Asm, vr, sr, kernel_text

NAME = 'interleave_layers__linear_attn_block__dense_activation_silu__prompt'
S, D, F = 2048, 576, 4608
ACT = S * D * 2
WQ_HG = 258048
WQ = 0
WO = WQ + 8 * WQ_HG
W1 = WO + 36 * 18432
W2 = W1 + D * F * 2
X0 = W2 + D * F * 2
X1 = X0 + 2 * ACT
PQ = X1 + 2 * ACT
HS = 1536
HSG = int(os.environ.get('HSG', 1536))
FST = int(os.environ.get('FST', 128))
FSH = FST.bit_length() - 1
SS = PQ + 2 * ACT
FL = SS + 64 * HSG
FL_GB = FL
FL_CB = FL + 32 * FST
FL_CW = FL + 40 * FST
FL_C0 = FL + 48 * FST
FL_RF = FL + 64 * FST
FL_GT = FL + 448 * FST
ZERO_KB = -(-(64 * HSG + 576 * FST) // (36 * 1024))
FL_RL = SS + 36 * 1024 * ZERO_KB
PART = FL_RL + 4096
WS_BYTES = 268435456
OOB = 0x80000000
LOG2E = 0x3fb8aa3b
NLOG2E = 0xbfb8aa3b
EPS6 = 0x358637bd
EPS5 = 0x3727c5ac
INV576 = 0x3ae38e39
ONES = 0x3f803f80
MF = 'v_mfma_f32_16x16x32_bf16'


def mfma(a, d, x, y, c=None):
    a('%s %s, %s, %s, %s' % (MF, vr(d, 4), vr(x, 4), vr(y, 4), '0' if c is None else vr(c, 4)))


def ws_srd(a):
    a('s_load_dwordx2 s[8:9], s[0:1], 64')
    a('s_mov_b32 s10, 0x%x' % WS_BYTES)
    a('s_mov_b32 s11, 0x20000')


def wave_id(a, sdst, vtmp):
    a('v_lshrrev_b32 %s, 6, v0' % vr(vtmp))
    a('v_readfirstlane_b32 %s, %s' % (sr(sdst), vr(vtmp)))
    a('v_and_b32 v0, 63, v0')


DBG = 128 << 20
STAMPS = False
SINGLE = 'list'
KNAME = NAME + '_kernel'
AMP = None
DBGOUT = 0


SEL = ['x1', 's1m', 's1d', 'e1a', 'e1b', 'o', 's2d', 'x3', 'pa', 'pb']


def stamp(a, i):
    if SINGLE and i in (1, 2, 3):
        i = 'p%d' % i
    if isinstance(i, str):
        if i not in SEL:
            return
        i = SEL.index(i) + 1
    if STAMPS:
        a('s_mem%stime s[%d:%d]' % ('real' if STAMPS == 2 else '', 60 + 2 * i, 61 + 2 * i))


def stamp_begin(a):
    if STAMPS:
        a('s_memrealtime s[56:57]')
        stamp(a, 0)


def stamp_end(a, kid, n, s_wave, nw, base_v=2):
    if not STAMPS:
        return
    a('s_waitcnt vmcnt(0)')
    stamp(a, n - 1)
    a('s_memrealtime s[58:59]')
    a('s_getreg_b32 s55, hwreg(HW_REG_XCC_ID)')
    a('s_getreg_b32 s54, hwreg(HW_REG_HW_ID)')
    a('s_mov_b64 exec, -1')
    a('s_mul_i32 s4, s2, %d\ns_add_u32 s4, s4, %s\ns_lshl_b32 s4, s4, 6\ns_add_u32 s4, s4, %d' % (nw, sr(s_wave), DBG + (kid << 20)))
    a('s_waitcnt lgkmcnt(0)')
    d, o = base_v, base_v + 1
    a('v_mov_b32 v%d, 0' % d)
    for i in range(n):
        a('v_writelane_b32 v%d, s%d, %d' % (d, 60 + 2 * i, i))
    a('v_writelane_b32 v%d, s54, 12' % d)
    a('v_writelane_b32 v%d, s55, 13' % d)
    a('v_writelane_b32 v%d, s56, 14' % d)
    a('v_writelane_b32 v%d, s58, 15' % d)
    a('v_mbcnt_lo_u32_b32 v%d, -1, 0' % o)
    a('v_lshlrev_b32 v%d, 2, v%d' % (o, o))
    a('s_mov_b64 exec, 0xffff')
    a('buffer_store_dword v%d, v%d, s[8:11], s4 offen' % (d, o))
    if DBGOUT and kid in (0, 6, 7):
        L = 'dbgo%d_%d' % (kid, len(a.lines))
        a('s_cmp_eq_u32 s2, %d\ns_cbranch_scc0 %s' % (DBGOUT, L))
        a('s_cmp_eq_u32 %s, %d\ns_cbranch_scc0 %s' % (sr(s_wave), 0 if kid == 0 else 8, L))
        a('s_load_dwordx2 s[40:41], s[0:1], 56')
        a('s_mov_b32 s42, 1024\ns_mov_b32 s43, 0x20000')
        a('s_waitcnt lgkmcnt(0)')
        if kid == 0:
            a('s_mov_b64 exec, 0xc000')
            a('buffer_store_dword v%d, v%d, s[40:43], 0 offen' % (d, o))
            a('buffer_store_dword v%d, v%d, s[40:43], 0 offen offset:512' % (d, o))
        else:
            a('s_sub_u32 s40, s40, 512\ns_subb_u32 s41, s41, 0')
            a('v_writelane_b32 v%d, s58, 6' % d)
            a('s_mov_b64 exec, 0x7f')
            a('buffer_store_dword v%d, v%d, s[40:43], 0 offen offset:%d' % (d, o, 28 * (kid - 6)))
            a('buffer_store_dword v%d, v%d, s[40:43], 0 offen offset:%d' % (d, o, 512 + 28 * (kid - 6)))
        a.label(L)


def centre(a, nw, nk, nt, fr, ON, CS, s_w, lds_cs, store):
    for k in range(4):
        a('v_mov_b32 %s, 0x%x' % (vr(ON + k), ONES))
    for k in range(nk):
        for c in range(nt):
            mfma(a, CS + 4 * c, ON, fr(k, c), None if k == 0 else CS + 4 * c)
    a('v_mul_u32_u24 v4, %d, v2' % (16 * nw))
    a('s_lshl_b32 s4, %s, 4' % sr(s_w))
    a('v_add_u32 v5, s4, v4')
    for c in range(1, nt):
        a('v_mov_b32 %s, %s' % (vr(CS + c), vr(CS + 4 * c)))
    a('ds_write_b128 v5, %s offset:%d' % (vr(CS, 4), lds_cs))
    a('s_waitcnt lgkmcnt(0)')
    a('s_barrier')
    for w in range(nw):
        a('ds_read_b128 %s, v4 offset:%d' % (vr(CS + 4 * w, 4), lds_cs + 16 * w))
    a('s_waitcnt lgkmcnt(0)')
    for w in range(1, nw):
        for c in range(nt):
            a('v_add_f32 %s, %s, %s' % (vr(CS + c), vr(CS + c), vr(CS + 4 * w + c)))
    for c in range(nt):
        a('v_mul_f32 %s, 0x%x, %s' % (vr(CS + 8 + 2 * c), INV576 | 0x80000000, vr(CS + c)))
    for k in range(nk):
        for c in range(nt):
            f = fr(k, c)
            for p in range(4):
                a('v_lshlrev_b32 %s, 16, %s' % (vr(12 + 2 * p), vr(f + p)))
                a('v_and_b32 %s, 0xffff0000, %s' % (vr(13 + 2 * p), vr(f + p)))
            for p in range(4):
                a('v_pk_add_f32 %s, %s, %s op_sel_hi:[1,0]' % (vr(12 + 2 * p, 2), vr(12 + 2 * p, 2), vr(CS + 8 + 2 * c, 2)))
            for p in range(4):
                a('v_cvt_pk_bf16_f32 %s, %s, %s' % (vr(f + p), vr(12 + 2 * p), vr(13 + 2 * p)))
            store(k, c)


G_W1, G_WO, G_Z, G_H = 48, 192, 210, 216


def gen_prep(a):
    NW = 6; NK = 3
    LCS = 0; LB = 3072; LW = 12288
    FR = 24; ON = 8; CS = FR + 12 * NK
    a('s_load_dwordx4 s[24:27], s[0:1], 0')
    a('s_load_dwordx4 s[32:35], s[0:1], 32')
    a('s_load_dwordx2 s[28:29], s[0:1], 16')
    ws_srd(a)
    wave_id(a, 3, 1)
    a('v_lshlrev_b32 v1, 4, v0')
    a('v_and_b32 v2, 15, v0')
    a('v_lshrrev_b32 v3, 4, v0')
    a('s_mov_b32 s15, 0x20000')
    a('s_and_b32 s30, s2, 7\ns_lshr_b32 s31, s2, 3')
    a('s_cmp_ge_u32 s3, %d' % NW)
    a('s_cbranch_scc1 prep_hi')
    a('s_mov_b32 s47, 0')
    a('s_mul_i32 s22, s3, %d\ns_add_u32 s22, s22, %d' % (LW, LB))
    a('s_cmp_lt_u32 s2, %d' % G_W1)
    a('s_cbranch_scc1 prep_q')
    a('s_cmp_ge_u32 s2, %d' % G_WO)
    a('s_cbranch_scc1 prep_o')
    a('s_sub_u32 s4, s31, %d\ns_and_b32 s5, s4, 1\ns_lshr_b32 s4, s4, 1\ns_lshl_b32 s4, s4, 3\ns_add_u32 s4, s4, s30' % (G_W1 // 8))
    a('s_lshl_b32 s21, s4, 1\ns_add_u32 s21, s21, s5')
    a('s_sub_u32 s20, 5, s3\ns_cmp_eq_u32 s5, %d\ns_cselect_b32 s20, s20, s3' % (1 if PREP_REV else 2))
    a('s_mul_i32 s19, s20, %d\ns_lshl_b32 s4, s21, 6\ns_add_u32 s19, s19, s4' % (96 * 9216))
    a('v_lshrrev_b32 v4, 2, v0\nv_mul_u32_u24 v4, %d, v4' % (9216 - 64))
    a('v_add_u32 v4, v4, v1')
    a('s_mov_b32 s14, %d' % (D * F * 2))
    a('s_waitcnt lgkmcnt(0)')
    a('s_mov_b32 s12, s32\ns_mov_b32 s13, s33')
    for n in range(2 * NK):
        a('s_add_u32 m0, s22, %d' % (1024 * n))
        a('s_add_u32 s4, s19, %d' % (16 * 9216 * n))
        a('buffer_load_dwordx4 v4, s[12:15], s4 offen%s lds' % PREP_1LD)
    for c in range(2):
        a('s_lshl_b32 s4, s21, 1\ns_add_u32 s4, s4, %d\ns_mul_i32 s5, s4, 43691\ns_lshr_b32 s5, s5, 17' % c)
        a('s_mul_i32 s6, s5, 3\ns_sub_u32 s4, s4, s6')
        a('s_and_b32 s6, s5, 1\ns_lshl_b32 s6, s6, 1\ns_add_u32 s4, s4, s6')
        a('s_cmp_ge_u32 s4, 3\ns_cselect_b32 s6, 3, 0\ns_sub_u32 s4, s4, s6')
        a('s_mul_i32 s6, s5, 54\ns_add_u32 s4, s4, s6\ns_mul_i32 s6, s20, %d\ns_add_u32 s4, s4, s6' % (3 * NK))
        a('s_lshl_b32 s4, s4, 10\ns_add_u32 s%d, s4, %d' % (36 + c, W1))
    a('s_mov_b32 s17, 3072\ns_mov_b32 s18, 4\ns_mov_b32 s19, 8')
    a.label('prep_tr')
    stamp(a, 1)
    fr = lambda k, c: FR + (k * 2 + c) * 4
    a('v_lshlrev_b32 v5, 9, v3')
    a('v_and_b32 v6, 12, v0')
    a('v_lshl_add_u32 v5, v6, 4, v5')
    a('v_and_b32 v6, 3, v0')
    a('v_lshl_add_u32 v5, v6, s18, v5')
    a('v_add_u32 v5, s22, v5')
    a('v_add_u32 v6, s19, v5')
    for k in range(NK):
        a('s_waitcnt vmcnt(%d)' % (2 * (NK - 1 - k)))
        for c in range(2):
            for hi in range(2):
                a('ds_read_b64_tr_b16 %s, v%d offset:%d' % (vr(fr(k, c) + 2 * hi, 2), 5 + c, 2048 * k + 256 * hi))
    a('s_waitcnt lgkmcnt(0)')
    stamp(a, 2)

    def st2(k, c):
        a('buffer_store_dwordx4 %s, v1, s[8:11], s%d offen sc1' % (vr(fr(k, c), 4), 36 + c))
        a('s_add_u32 s%d, s%d, s17' % (36 + c, 36 + c))
    a('s_cmp_ge_u32 s2, %d' % G_WO)
    a('s_cbranch_scc1 prep_st')
    centre(a, NW, NK, 2, fr, ON, CS, 3, LCS, st2)
    stamp(a, 3)
    a('s_branch prep_join')
    a.label('prep_q')
    fq = lambda k, c: FR + (k * 3 + c) * 4
    a('s_and_b32 s21, s31, 1\ns_lshr_b32 s31, s31, 1')
    a('s_lshl_b32 s4, s30, 1\ns_add_u32 s4, s4, s21\ns_mul_i32 s4, s4, 72\ns_and_b32 s20, s4, 63\ns_sub_u32 s4, s4, s20')
    a('s_mul_i32 s19, s3, %d\ns_add_u32 s19, s19, s4\ns_mul_i32 s4, s31, 1152\ns_add_u32 s19, s19, s4' % (96 * 3456))
    a('v_lshrrev_b32 v4, 3, v0\nv_mul_u32_u24 v4, %d, v4' % (3456 - 128))
    a('v_add_u32 v4, v4, v1')
    a('s_mov_b32 s14, %d' % (D * 3 * D * 2))
    a('s_waitcnt lgkmcnt(0)')
    a('s_mov_b32 s12, s26\ns_mov_b32 s13, s27')
    for n in range(4 * NK):
        a('s_add_u32 m0, s22, %d' % (1024 * n))
        a('s_add_u32 s4, s19, %d' % (8 * 3456 * n))
        a('buffer_load_dwordx4 v4, s[12:15], s4 offen%s lds' % PREP_QLD)
    stamp(a, 1)
    a('v_bfe_u32 v6, v0, 2, 2')
    a('v_lshl_add_u32 v6, v3, 3, v6')
    a('s_add_u32 s22, s22, s20')
    a('v_lshl_add_u32 v6, v6, 7, s22')
    a('v_and_b32 v5, 3, v0')
    a('v_lshl_add_u32 v5, v5, 3, v6')
    a('s_mul_i32 s16, s30, 252\ns_mul_i32 s4, s3, %d\ns_add_u32 s16, s16, s4' % (2 * NK))
    a('s_lshr_b32 s5, s31, 1')
    a('s_lshl_b32 s6, s21, 1\ns_add_u32 s6, s6, 8\ns_lshl_b32 s7, s21, 2\ns_add_u32 s7, s7, s5')
    a('s_lshl_b32 s18, s5, 1\ns_add_u32 s18, s18, s21\ns_lshl_b32 s18, s18, 2\ns_lshl_b32 s23, s21, 3')
    a('s_cmp_eq_u32 s31, 0')
    a('s_cselect_b32 s36, s6, s7\ns_cselect_b32 s37, 1, 2\ns_cselect_b32 s38, 13, 12')
    a('s_cselect_b32 s42, 0x00ff00ff, 0\ns_cselect_b32 s43, 0, 0x000f000f\ns_cselect_b32 s18, s23, s18')
    a('s_or_b32 s42, s42, s43\ns_lshl_b32 s42, s42, s18')
    a('s_add_u32 s37, s37, s36')
    for c in range(3):
        a('s_lshr_b32 s4, s%d, 1\ns_mul_i32 s4, s4, 34\ns_add_u32 s4, s4, s%d\ns_add_u32 s4, s4, s16' % (36 + c, 36 + c))
        a('s_lshl_b32 s4, s4, 10\ns_add_u32 s%d, s4, %d' % (36 + c, WQ))
    for k in range(NK):
        a('s_waitcnt vmcnt(%d)' % (4 * (NK - 1 - k)))
        for c in range(3):
            for hi in range(2):
                a('ds_read_b64_tr_b16 %s, v%d offset:%d' % (vr(fq(k, c) + 2 * hi, 2), 5 if c < 2 else 6, 4096 * k + 512 * hi + (0, 40, 32)[c]))
        a('s_waitcnt lgkmcnt(%d)' % (6 if k + 1 < NK else 0))
    stamp(a, 2)

    def st3(k, c):
        if c == 2:
            a('s_mov_b32 exec_lo, s42\ns_mov_b32 exec_hi, s42')
        a('buffer_store_dwordx4 %s, v1, s[8:11], s%d offen offset:%d sc1' % (vr(fq(k, c), 4), 36 + c, 2048 * (k & 1)))
        if c == 2:
            a('s_mov_b64 exec, -1')
        if k == 1:
            a('s_add_u32 s%d, s%d, 4096' % (36 + c, 36 + c))
    centre(a, NW, NK, 3, fq, ON, CS, 3, LCS, st3)
    stamp(a, 3)
    a('s_branch prep_join')
    a.label('prep_hi')
    a('s_mov_b32 s47, 1')
    a('s_cmp_ge_u32 s3, 8')
    a('s_cbranch_scc1 prep_i8')
    a('s_lshl_b32 s31, s31, 1\ns_add_u32 s31, s31, s3\ns_sub_u32 s31, s31, %d' % (6 + G_W1 // 4))
    a('s_cmp_ge_u32 s31, %d' % (51 if PREP_QT else 0))
    a('s_cbranch_scc1 prep_bar')
    a('s_setprio 3')
    a('s_mul_i32 s5, s31, 3856\ns_lshr_b32 s5, s5, 16\ns_mul_i32 s6, s5, 17\ns_sub_u32 s4, s31, s6\ns_add_u32 s4, s4, 1')
    a('s_mul_i32 s19, s4, %d\ns_mul_i32 s5, s5, 1152\ns_add_u32 s19, s19, s5\ns_lshl_b32 s5, s30, 7\ns_add_u32 s19, s19, s5' % (32 * 3456))
    a('v_lshrrev_b32 v4, 1, v0\nv_mul_u32_u24 v4, 3456, v4\nv_and_b32 v6, 1, v0')
    a('v_lshl_add_u32 v4, v6, 7, v4')
    a('s_mov_b32 s14, %d' % (D * 3 * D * 2))
    a('s_waitcnt lgkmcnt(0)')
    a('s_mov_b32 s12, s26\ns_mov_b32 s13, s27')
    a('buffer_load_dword v22, v4, s[12:15], s19 offen%s' % PREP_HLD)
    a('s_setprio 0')
    a('s_branch prep_bar')
    a.label('prep_i8')
    a('s_cmp_eq_u32 s3, 11')
    a('s_cbranch_scc1 prep_i11')
    if TLB_STEP:
        a('s_cmp_eq_u32 s3, 9')
        a('s_cbranch_scc0 prep_i9')
        a('v_lshlrev_b32 v4, %d, v0' % TLB_STEP)
        a('s_waitcnt lgkmcnt(0)')
        a('s_mov_b32 s12, s8\ns_mov_b32 s13, s9\ns_mov_b32 s14, %d' % (PART + 8 * ACT + PART_STEP))
        for n in range(-(-(PART + 8 * ACT + PART_STEP) // (64 << TLB_STEP))):
            a('s_mov_b32 s4, %d' % (n * (64 << TLB_STEP)))
            a('buffer_load_dword v20, v4, s[12:15], s4 offen sc1 nt')
        a('s_mov_b32 s12, s94\ns_mov_b32 s13, s95\ns_mov_b32 s14, %d' % ACT)
        a('buffer_load_dword v21, v4, s[12:15], 0 offen sc1 nt')
        a('s_branch prep_bar')
        a.label('prep_i9')
    a('s_cmp_eq_u32 s3, 8')
    a('s_cbranch_scc0 prep_bar')
    a('s_getpc_b64 s[4:5]')
    a.label('prep_pc')
    a('s_sub_u32 s4, s4, prep_pc-%s' % KNAME)
    a('s_subb_u32 s5, s5, 0')
    a('s_mul_i32 s6, s31, 1536')
    a('v_lshl_add_u32 v4, v0, 7, s6')
    a('v_min_u32 v4, code_end-%s-4, v4' % KNAME)
    a('s_mov_b64 exec, 0xfff')
    a('global_load_dword v20, v4, s[4:5]')
    a('s_mov_b64 exec, -1')
    a('s_branch prep_bar')
    a.label('prep_o')
    a('s_cmp_ge_u32 s2, %d' % G_H)
    a('s_cbranch_scc1 prep_x')
    a('s_cmp_ge_u32 s2, %d' % G_Z)
    a('s_cbranch_scc1 prep_z')
    a('s_sub_u32 s21, s2, %d' % G_WO)
    a('s_lshl_b32 s4, s30, 1\ns_lshr_b32 s5, s21, 3\ns_add_u32 s4, s4, s5\ns_cmp_lt_u32 s21, 16\ns_cselect_b32 s21, s4, s21')
    a('s_sub_u32 s23, 5, s3\ns_and_b32 s4, s21, 1\ns_cselect_b32 s23, s23, s3')
    a('v_bfe_u32 v8, v0, 2, 3\nv_lshrrev_b32 v7, 5, v0\nv_and_b32 v9, 3, v0\nv_lshlrev_b32 v9, 4, v9')
    a('v_lshrrev_b32 v10, 2, v8\nv_and_b32 v11, 3, v8')
    a('v_mad_u32_u24 v10, v10, 20, v11')
    a('v_lshl_add_u32 v10, v7, 2, v10')
    a('v_mul_u32_u24 v10, 1152, v10')
    a('v_add_u32 v10, v10, v9')
    a('v_lshrrev_b32 v11, 1, v8\nv_mul_u32_u24 v11, 72, v11\nv_and_b32 v4, 1, v8\nv_add_u32 v11, v11, v4')
    a('v_lshl_add_u32 v11, v7, 1, v11')
    a('v_mul_u32_u24 v11, 1152, v11')
    a('v_add_u32 v11, v11, v9')
    a('s_mov_b32 s14, %d' % (D * D * 2))
    a('s_lshl_b32 s18, s21, 6')
    a('s_waitcnt lgkmcnt(0)')
    a('s_mov_b32 s12, s28\ns_mov_b32 s13, s29')
    for k in range(NK):
        a('s_mul_i32 s4, s23, %d\ns_add_u32 s4, s4, %d' % (NK, k))
        a('s_mul_i32 s19, s4, 36\ns_sub_u32 s5, s4, 16\ns_mul_i32 s5, s5, 288\ns_add_u32 s5, s5, 16')
        a('s_cmp_lt_u32 s4, 16')
        a('s_cselect_b32 s19, s19, s5\ns_cselect_b32 s20, 8, 36\ns_cselect_b64 vcc, -1, 0')
        a('s_mul_i32 s19, s19, 1152\ns_add_u32 s19, s19, s18\ns_mul_i32 s20, s20, 1152\ns_add_u32 s20, s20, s19')
        a('v_cndmask_b32 v4, v11, v10, vcc')
        for h in range(2):
            a('s_add_u32 m0, s22, %d' % (2048 * k + 1024 * h))
            a('s_nop 0')
            a('buffer_load_dwordx4 v4, s[12:15], s%d offen%s lds' % (19 + h, PREP_OLD))
    for c in range(2):
        a('s_lshl_b32 s4, s21, 1\ns_add_u32 s4, s4, %d\ns_mul_i32 s4, s4, 18\ns_mul_i32 s5, s23, %d\ns_add_u32 s4, s4, s5' % (c, NK))
        a('s_lshl_b32 s4, s4, 10\ns_add_u32 s%d, s4, %d' % (36 + c, WO))
    a('s_mov_b32 s17, 1024')
    a('s_lshr_b32 s4, 0x2010, s21\ns_and_b32 s4, s4, 1\ns_cselect_b32 s18, 3, 4\ns_cselect_b32 s19, 32, 8')
    a('s_branch prep_tr')
    a.label('prep_st')
    for k in range(NK):
        for c in range(2):
            st2(k, c)
    stamp(a, 3)
    a('s_branch prep_bar')
    a.label('prep_z')
    a('s_sub_u32 s16, s2, %d\ns_mul_i32 s16, s16, 6\ns_add_u32 s16, s16, s3\ns_mul_i32 s16, s16, %d\ns_add_u32 s16, s16, %d' % (G_Z, 1024 * ZERO_KB, SS))
    for k in range(4):
        a('v_mov_b32 v%d, 0' % (16 + k))
    a('s_waitcnt lgkmcnt(0)')
    for k in range(ZERO_KB):
        a('buffer_store_dwordx4 v[16:19], v1, s[8:11], s16 offen offset:%d sc1' % (1024 * (k % 4)))
        if k % 4 == 3:
            a('s_add_u32 s16, s16, 4096')
    a('s_branch prep_bar')
    a.label('prep_x')
    a('s_mov_b32 s47, 1')
    if PREP_TX:
        a('s_sub_u32 s4, s31, %d\ns_mul_i32 s4, s4, 6\ns_add_u32 s4, s4, s3\ns_mul_i32 s4, s4, 78' % (G_H // 8))
        a('s_mul_i32 s19, s30, 2304\ns_add_u32 s19, s19, s4\ns_lshl_b32 s19, s19, 7\ns_add_u32 s18, s19, %d' % (39 * 128))
        a('v_lshlrev_b32 v4, 7, v0')
        a('s_mov_b32 s14, %d\ns_mov_b32 exec_hi, 0x7f' % ACT)
        a('s_waitcnt lgkmcnt(0)')
        a('s_mov_b32 s12, s24\ns_mov_b32 s13, s25')
        a('buffer_load_dword v20, v4, s[12:15], s19 offen%s' % PREP_XLD)
        a('buffer_load_dword v21, v4, s[12:15], s18 offen%s' % PREP_XLD)
        a('s_mov_b32 exec_hi, -1')
    a('s_branch prep_bar')
    a.label('prep_i11')
    a('s_and_b32 s51, s2, 31\ns_lshl_b32 s51, s51, 7\ns_lshr_b32 s4, s2, 5\ns_lshl_b32 s4, s4, 2\ns_add_u32 s51, s51, s4\ns_add_u32 s51, s51, %d' % FL_RL)
    a('s_mov_b32 s6, 0')
    a('s_waitcnt lgkmcnt(0)')
    a('s_atomic_swap s6, s[8:9], s51 glc')
    a.label('prep_bar')
    a('s_barrier')
    a.label('prep_join')


def late_test(a):
    a('s_sub_u32 s4, s2, %d\ns_cmp_lt_u32 s4, %d\ns_cselect_b32 s4, 0, s2\ns_cmp_lt_u32 s4, %d' % (G_Z, G_H - G_Z, G_W1))


def xcd_map(a, ncx, s_c, s_r, nc=8):
    lg = ncx.bit_length() - 1
    ng = nc // ncx
    lgg = ng.bit_length() - 1
    a('s_and_b32 s4, s2, 7\ns_lshr_b32 s5, s2, 3')
    a('s_and_b32 s6, s4, %d\ns_lshl_b32 s6, s6, %d\ns_and_b32 s7, s5, %d\ns_add_u32 %s, s6, s7' % (ng - 1, lg, ncx - 1, sr(s_c)))
    a('s_lshr_b32 s6, s4, %d\ns_mul_i32 s6, s6, %d\ns_lshr_b32 s7, s5, %d\ns_add_u32 %s, s6, s7' % (lgg, 32 // ncx, lg, sr(s_r)))


def l2_touch(a, base, part_bytes, ncx, nc, v_t, v_d, share=1, s_sub=None):
    ng = nc // ncx
    lines = ncx * part_bytes // 128
    per = -(-lines // (32 * share))
    n = -(-per // 64)
    a('s_and_b32 s4, s2, %d\ns_mul_i32 s4, s4, %d\ns_add_u32 s4, s4, %d' % (ng - 1, ncx * part_bytes, base))
    a('s_lshr_b32 s5, s2, 3')
    if share > 1:
        a('s_mul_i32 s5, s5, %d\ns_add_u32 s5, s5, %s' % (share, sr(s_sub)))
    a('s_mul_i32 s5, s5, %d' % per)
    for i in range(n):
        a('v_add_u32 %s, %d, v0' % (vr(v_t), 64 * i))
        if (i + 1) * 64 > per:
            a('v_min_u32 %s, %d, %s' % (vr(v_t), per - 1, vr(v_t)))
        a('v_add_u32 %s, s5, %s' % (vr(v_t), vr(v_t)))
        a('v_min_u32 %s, %d, %s' % (vr(v_t), lines - 1, vr(v_t)))
        a('v_lshlrev_b32 %s, 7, %s' % (vr(v_t), vr(v_t)))
        a('buffer_load_dword %s, %s, s[8:11], s4 offen' % (vr(v_d), vr(v_t)))


def x_dma(a, nk, s_g, s_l, v_l16):
    for k in range(nk):
        a('s_mov_b32 m0, %s' % sr(s_l))
        if k < nk - 1:
            a('s_add_u32 %s, %s, 4096' % (sr(s_l), sr(s_l)))
        else:
            a('s_nop 0')
        a('buffer_load_dwordx4 %s, s[8:11], %s offen sc1 lds' % (vr(v_l16), sr(s_g)))
        if k < nk - 1:
            a('s_add_u32 %s, %s, 1024' % (sr(s_g), sr(s_g)))


def stats_prepass(a, nk, v_addr, v_fr, v_ones, v_res, v_t, v_g, v_tmp, v_dst):
    for k in range(nk):
        a('ds_read_b128 %s, %s offset:%d' % (vr(v_fr + 4 * k, 4), vr(v_addr), 4096 * k))
    for k in range(4):
        a('v_mov_b32 %s, 0x%x' % (vr(v_ones + k), ONES))
    for k in range(nk):
        a('s_waitcnt lgkmcnt(%d)' % (nk - 1 - k))
        f = v_fr + 4 * k
        mfma(a, v_res, v_ones, f, None if k == 0 else v_res)
        mfma(a, v_res + 4, f, f, None if k == 0 else v_res + 4)
    a('s_mov_b32 s40, 0x22222222\ns_mov_b32 s41, 0x22222222')
    a('s_mov_b32 s42, 0x44444444\ns_mov_b32 s43, 0x44444444')
    a('s_mov_b32 s44, 0x88888888\ns_mov_b32 s45, 0x88888888')
    a('v_cndmask_b32 %s, %s, %s, s[40:41]' % (vr(v_res + 1), vr(v_res + 4), vr(v_res + 5)))
    a('v_cndmask_b32 %s, %s, %s, s[42:43]' % (vr(v_res + 1), vr(v_res + 1), vr(v_res + 6)))
    a('v_cndmask_b32 %s, %s, %s, s[44:45]' % (vr(v_res + 1), vr(v_res + 1), vr(v_res + 7)))
    a('s_mov_b32 exec_lo, 0x00f0000f\ns_mov_b32 exec_hi, 0xf0000f00')
    a('ds_write_b64 %s, %s' % (vr(v_dst), vr(v_res, 2)))
    a('s_mov_b64 exec, -1')


def stats_final(a, nparts, lds_stats, v_lane, v_tmp):
    a('v_lshlrev_b32 %s, 3, %s' % (vr(v_tmp + 6), vr(v_lane)))
    for p in range(nparts):
        a('ds_read_b64 %s, %s offset:%d' % (vr(v_tmp + 2 * p, 2), vr(v_tmp + 6), p * 512))
    a('s_waitcnt lgkmcnt(0)')
    for p in range(1, nparts):
        a('v_add_f32 %s, %s, %s' % (vr(v_tmp), vr(v_tmp), vr(v_tmp + 2 * p)))
        a('v_add_f32 %s, %s, %s' % (vr(v_tmp + 1), vr(v_tmp + 1), vr(v_tmp + 2 * p + 1)))
    a('v_mul_f32 %s, 0x%x, %s' % (vr(v_tmp), INV576, vr(v_tmp)))
    a('v_mul_f32 %s, 0x%x, %s' % (vr(v_tmp + 1), INV576, vr(v_tmp + 1)))
    a('v_fma_f32 %s, -%s, %s, %s' % (vr(v_tmp + 1), vr(v_tmp), vr(v_tmp), vr(v_tmp + 1)))
    a('v_max_f32 %s, 0, %s' % (vr(v_tmp + 1), vr(v_tmp + 1)))
    a('v_add_f32 %s, 0x%x, %s' % (vr(v_tmp + 1), EPS5, vr(v_tmp + 1)))
    a('v_rsq_f32 %s, %s' % (vr(v_tmp), vr(v_tmp + 1)))


def diag_select(a, dst, src, masks=(0x22222222, 0x44444444, 0x88888888)):
    for i, m in enumerate(masks):
        a('s_mov_b32 s%d, 0x%x\ns_mov_b32 s%d, 0x%x' % (40 + 2 * i, m, 41 + 2 * i, m))
    a('v_cndmask_b32 %s, %s, %s, s[40:41]' % (vr(dst), vr(src), vr(src + 1)))
    a('v_cndmask_b32 %s, %s, %s, s[42:43]' % (vr(dst), vr(dst), vr(src + 2)))
    a('v_cndmask_b32 %s, %s, %s, s[44:45]' % (vr(dst), vr(dst), vr(src + 3)))


def rstd_from(a, dst, vsum, vsq):
    a('v_mul_f32 %s, 0x%x, %s' % (vr(vsum), INV576, vr(vsum)))
    a('v_mul_f32 %s, 0x%x, %s' % (vr(vsq), INV576, vr(vsq)))
    a('v_fma_f32 %s, -%s, %s, %s' % (vr(vsq), vr(vsum), vr(vsum), vr(vsq)))
    a('v_max_f32 %s, 0, %s' % (vr(vsq), vr(vsq)))
    a('v_add_f32 %s, 0x%x, %s' % (vr(vsq), EPS5, vr(vsq)))
    a('v_rsq_f32 %s, %s' % (vr(dst), vr(vsq)))


SPIN_CAP = 1 << 18


def lds_spin(a, name, v_tmp, v_addr, off, mask, want, ge=None):
    a('s_mov_b32 s5, 0')
    a.label(name)
    a('ds_read_b32 %s, %s offset:%d' % (vr(v_tmp), vr(v_addr), off))
    a('s_waitcnt lgkmcnt(0)')
    a('v_readfirstlane_b32 s4, %s' % vr(v_tmp))
    if ge is None:
        a('s_and_b32 s4, s4, 0x%x' % mask)
        a('s_cmp_eq_u32 s4, 0x%x' % want)
    else:
        a('s_cmp_ge_u32 s4, %s' % sr(ge))
    a('s_cbranch_scc1 %s_ok' % name)
    a('s_sleep 1')
    a('s_add_u32 s5, s5, 1')
    a('s_cmp_lt_u32 s5, 0x%x' % SPIN_CAP)
    a('s_cbranch_scc1 %s' % name)
    a('s_endpgm')
    a.label(name + '_ok')


def mem_arrive(a, s_off, v_zero=None, v_one=None):
    if not SFLAG:
        a('s_mov_b64 exec, 1')
        a('buffer_atomic_add %s, %s, s[8:11], %s offen sc1' % (vr(v_one), vr(v_zero), sr(s_off)))
        a('s_mov_b64 exec, -1')
        return
    a('s_mov_b32 s3, 1')
    a('s_atomic_add s3, s[8:9], %s' % sr(s_off))


def mem_wait(a, name, s_off, s_want, v_zero, v_tmp, backoff=None, arrive=False):
    a('s_mov_b32 s5, 0')
    if not SFLAG:
        if arrive:
            mem_arrive(a, s_off, v_zero, 4)
        a('s_mov_b64 exec, 1')
        a.label(name)
        a('buffer_load_dword %s, %s, s[8:11], %s offen sc1' % (vr(v_tmp), vr(v_zero), sr(s_off)))
        a('s_waitcnt vmcnt(0)')
        a('v_readfirstlane_b32 s4, %s' % vr(v_tmp))
    else:
        if arrive:
            a('s_mov_b32 s4, 1')
            a('s_atomic_add s4, s[8:9], %s glc' % sr(s_off))
            a('s_waitcnt lgkmcnt(0)')
            a('s_add_u32 s4, s4, 1')
            a('s_cmp_ge_u32 s4, %s' % sr(s_want))
            a('s_cbranch_scc1 %s_ok' % name)
        a.label(name)
        a('s_mov_b32 s4, 0')
        a('s_atomic_add s4, s[8:9], %s glc' % sr(s_off))
        a('s_waitcnt lgkmcnt(0)')
    a('s_cmp_ge_u32 s4, %s' % sr(s_want))
    a('s_cbranch_scc1 %s_ok' % name)
    if backoff:
        if backoff[0] is not None:
            a('s_cmp_eq_u32 %s, %d' % (sr(backoff[0]), backoff[1]))
            a('s_cbranch_scc1 %s_ns' % name)
        a('s_sleep %d' % (backoff[2] if len(backoff) > 2 else 12))
        if backoff[0] is not None:
            a.label(name + '_ns')
    a('s_add_u32 s5, s5, 1')
    a('s_cmp_lt_u32 s5, 0x%x' % SPIN_CAP)
    a('s_cbranch_scc1 %s' % name)
    a('s_endpgm')
    a.label(name + '_ok')
    if not SFLAG:
        a('s_mov_b64 exec, -1')


N_LATE = G_W1 + G_H - G_Z


def start_arrive(a, name):
    a('s_mov_b32 s7, 1')
    a('s_atomic_add s7, s[52:53], 0 glc')
    a('v_lshrrev_b32 v6, 1, v0\nv_lshlrev_b32 v6, 7, v6\nv_and_b32 v7, 1, v0')
    a('v_lshl_add_u32 v6, v7, 4, v6')
    for k in range(4):
        a('v_mov_b32 v%d, 1' % (8 + k))
    a('s_mov_b32 s6, %d' % FL_RL)
    a('s_waitcnt lgkmcnt(0)')
    a('s_cmp_eq_u32 s7, %d' % (N_LATE - 1))
    a('s_cbranch_scc0 %s' % name)
    a('buffer_store_dwordx4 v[8:11], v6, s[8:11], s6 offen sc1')
    a.label(name)


def start_wait(a):
    a('s_mov_b32 s5, 0')
    a.label('st_b')
    a('s_mov_b32 s4, 0')
    a('s_atomic_add s4, s[8:9], s51 glc')
    a('s_waitcnt lgkmcnt(0)')
    a('s_cmp_eq_u32 s4, 1')
    a('s_cbranch_scc1 st_b_ok')
    a('s_add_u32 s5, s5, 1')
    a('s_and_b32 s4, s5, 31')
    a('s_cbranch_scc1 st_b')
    a('s_atomic_add s4, s[52:53], 0 glc')
    a('s_waitcnt lgkmcnt(0)')
    a('s_cmp_ge_u32 s4, %d' % N_LATE)
    a('s_cbranch_scc1 st_b_ok')
    a('s_cmp_lt_u32 s5, 0x%x' % SPIN_CAP)
    a('s_cbranch_scc1 st_b')
    a('s_endpgm')
    a.label('st_b_ok')


def gen_mega():
    a = Asm()
    RSL = 0; FLG = 512; CNT = 516; XC1 = 520; XC3 = 524; TOK = 528; XF = 1024; XI = 3072; HI = XI + 73728
    OI = HI; SL = HI + 36864
    LDS = SL + 32 * HS
    VZ = 167
    LAY, LOFF, GBO, GBW, CBO, CBW, RFW, SOF, PRT = 86, 87, 88, 89, 90, 91, 92, 96, 97
    a('s_cmp_ge_u32 s2, 256')
    a('s_cbranch_scc1 mega_end')
    stamp_begin(a)
    if AMP:
        a('s_memrealtime s[84:85]')
    a('s_load_dwordx2 s[94:95], s[0:1], 48')
    if SINGLE:
        a('s_load_dwordx2 s[52:53], s[0:1], 56')
        gen_prep(a)
        a('s_waitcnt lgkmcnt(0)')
        a('s_mov_b32 s12, s3\ns_mov_b32 s36, s24\ns_mov_b32 s37, s25\ns_mov_b32 s100, s34\ns_mov_b32 s101, s35')
    else:
        ws_srd(a)
        a('s_load_dwordx2 s[36:37], s[0:1], 0')
        wave_id(a, 12, 1)
        a('v_lshlrev_b32 v1, 4, v0')
        a('v_and_b32 v2, 15, v0')
        a('v_lshrrev_b32 v3, 4, v0')
    a('s_mov_b32 s38, %d\ns_mov_b32 s39, 0x20000' % ACT)
    a('v_mov_b32 %s, 0' % vr(VZ))
    xcd_map(a, NCX, 13, 14)
    a('s_and_b32 s20, s12, 3\ns_lshr_b32 s21, s12, 2')
    a('s_mul_i32 s4, s14, 21846\ns_lshr_b32 s4, s4, 16\ns_mul_i32 s4, s4, 3\ns_sub_u32 s19, s14, s4')
    a('s_lshl_b32 s4, s19, 2\ns_add_u32 s28, s12, s4\ns_cmp_ge_u32 s28, 12\ns_cselect_b32 s4, 12, 0\ns_sub_u32 s28, s28, s4')
    a('s_mov_b32 s%d, 0\ns_mov_b32 s%d, 0\ns_mov_b32 s%d, 0\ns_mov_b32 s%d, 32\ns_mov_b32 s%d, 8' % (LAY, LOFF, GBW, CBW, RFW))
    a('s_lshl_b32 s4, s14, %d\ns_add_u32 s%d, s4, %d' % (FSH, GBO, FL_GB))
    a('s_lshl_b32 s4, s13, %d\ns_add_u32 s%d, s4, %d' % (FSH, CBO, FL_CB))
    a('s_mov_b32 s%d, %d\ns_mov_b32 s%d, %d' % (SOF, SS, PRT, PART))
    a('s_mov_b32 s48, s19')
    for b in (1, 2):
        a('s_add_u32 s%d, s%d, 1\ns_cmp_eq_u32 s%d, 3\ns_cselect_b32 s%d, 0, s%d' % (48 + b, 47 + b, 48 + b, 48 + b, 48 + b))
    a('s_lshl_b32 s4, s14, 2\ns_add_u32 s4, s4, s20\ns_mul_i32 s98, s4, 18432')
    a('s_lshl_b32 s5, s20, 11\ns_add_u32 s99, s5, %d' % XI)
    img = lambda k, tt: (k >> 1) * 8192 + tt * 2048 + (k & 1) * 1024

    def load_x(name, base, xc):
        gb, gp, gh = (384, 128, 9216) if base is None else (6144, 2048, 1024)
        ld = 'buffer_load_dwordx4 v4, s[36:39], s23 offen lds' if base is None else 'buffer_load_dwordx4 v1, s[8:11], s23 offen sc1 lds'

        def blk(b):
            a('s_mul_i32 s22, s%d, %d\ns_add_u32 s22, s22, s98\ns_mul_i32 s24, s%d, 24576\ns_add_u32 s24, s24, s99' % (48 + b, gb, 48 + b))
            if base is not None:
                a('s_add_u32 s22, s22, s%d\ns_add_u32 s22, s22, %d' % (LOFF, base))
        a('s_cmp_ge_u32 s12, 8')
        a('s_cbranch_scc1 %s_hi' % name)
        blk(0)
        a('s_mul_i32 s4, s21, %d\ns_add_u32 s22, s22, s4\ns_lshl_b32 s4, s21, 10\ns_add_u32 s24, s24, s4' % gh)
        for p in range(3):
            a('s_add_u32 m0, s24, %d' % (8192 * p))
            a('s_add_u32 s23, s22, %d' % (gp * p))
            a(ld)
        if base is None:
            a('s_barrier')
        a('s_branch %s_x' % name)
        a.label('%s_hi' % name)
        if base is None:
            a('s_barrier')
        for b in (1, 2):
            blk(b)
            for p in range(3):
                for h in range(2):
                    a('s_add_u32 m0, s24, %d' % (8192 * p + 1024 * h))
                    a('s_add_u32 s23, s22, %d' % (gp * p + gh * h))
                    a(ld)
        a.label('%s_x' % name)

    def x_count(xc):
        for n, inc in ((6, 0x100), (0, 0x10000)):
            a('v_mov_b32 v5, 0x%x' % inc)
            a('s_waitcnt vmcnt(%d)' % n)
            a('s_mov_b64 exec, 1')
            a('ds_add_u32 %s, v5 offset:%d' % (vr(VZ), xc))
            a('s_mov_b64 exec, -1')

    def lane_part(dst, tmp, s_b, vg=3, vl=1):
        L = 'lp%d' % len(a.lines)
        a('s_lshl_b32 s4, %s, 10' % s_b)
        a('v_add_u32 %s, s4, %s' % (vr(dst), vr(vl)))
        a('s_cmp_eq_u32 s%d, 0' % LAY)
        a('s_cbranch_scc0 %s' % L)
        a('s_lshl_b32 s4, %s, 2' % s_b)
        a('v_add_u32 %s, s4, %s' % (vr(dst), vr(vg)))
        a('v_and_b32 %s, 7, v2' % vr(tmp))
        a('v_xor_b32 %s, %s, %s' % (vr(dst), vr(dst), vr(tmp)))
        a('v_lshlrev_b32 %s, 4, %s' % (vr(dst), vr(dst)))
        a('v_lshl_add_u32 %s, v2, 7, %s' % (vr(dst), vr(dst)))
        a.label(L)

    def group_sync(name):
        a('s_add_u32 s%d, s%d, 8' % (GBW, GBW))
        a('s_barrier')
        a('s_cmp_eq_u32 s12, 11')
        a('s_cbranch_scc0 %s_go' % name)
        a('v_mov_b32 v4, 1')
        mem_wait(a, name, GBO, GBW, VZ, 5, arrive=True)
        a.label('%s_go' % name)

    ACC = 8; RING = ACC + 32; BF = RING + 72
    VA = 4; VB = 5; VT = 6
    acc = lambda j, tt: ACC + (j * 4 + tt) * 4
    ring = lambda k, j: 40 + ((k % 9) * 2 + j) * 4
    bf = lambda p, tt: BF + (p * 4 + tt) * 4

    def s1_ld(k, j):
        if j == 0 and not k & 1:
            a('s_add_u32 s15, s%d, %d' % (30 + k // 6, 4096 * ((k % 6) >> 1)))
        a('buffer_load_dwordx4 %s, v1, s[8:11], s15 offen offset:%d' % (vr(ring(k, j), 4), 2048 * (k & 1) + 1024 * j))

    def s1_fill(depth=None):
        a('s_mul_i32 s15, s13, 7\ns_add_u32 s15, s15, s12\ns_mul_i32 s15, s15, 36864\ns_add_u32 s15, s15, %d' % WQ)
        for b in range(3):
            a('s_mul_i32 s4, s%d, 12288\ns_add_u32 s%d, s4, s15' % (48 + b, 30 + b))
        for k in range(9):
            for j in range(2):
                s1_ld(k, j)
                if depth is not None:
                    a('s_waitcnt vmcnt(%d)' % depth)

    a('v_lshrrev_b32 v4, 3, v0\nv_and_b32 v5, 7, v0\nv_xor_b32 v5, v5, v4')
    a('v_mul_u32_u24 v4, 1152, v4')
    a('v_lshl_add_u32 v4, v5, 4, v4')
    if SINGLE:
        a('s_mov_b32 s35, 0')
        late_test(a)
        a('s_cselect_b32 s46, 1, 0')
        a('s_cbranch_scc1 st_nx')
        a.label('st_lx')
        a('s_cmp_lt_u32 s12, 6')
        a('s_cbranch_scc1 st_nx')
        a('s_sub_u32 s4, s12, 6\ns_lshr_b32 s4, s4, 1\ns_and_b32 s5, s12, 1')
        a('s_mul_i32 s22, s4, 384\ns_mul_i32 s6, s14, 73728\ns_add_u32 s22, s22, s6\ns_mul_i32 s6, s5, 36864\ns_add_u32 s22, s22, s6')
        a('s_mul_i32 s24, s4, 24576\ns_lshl_b32 s6, s5, 12\ns_add_u32 s24, s24, s6\ns_add_u32 s24, s24, %d' % XI)
        for p in range(3):
            for h in range(4):
                a('s_add_u32 m0, s24, %d' % (8192 * p + 1024 * h))
                a('s_add_u32 s23, s22, %d' % (128 * p + 9216 * h))
                a('buffer_load_dwordx4 v4, s[36:39], s23 offen%s lds' % X0_LD)
        a.label('st_nx')
        a('s_cmp_eq_u32 s46, 2')
        a('s_cbranch_scc1 st_x2')
        a('s_cmp_eq_u32 s47, 1')
        a('s_cbranch_scc1 st_j')
        a('s_waitcnt vmcnt(0)')
        a.label('st_j')
        stamp(a, 'pj')
        a('s_barrier')
        a('s_cmp_eq_u32 s46, 0')
        a('s_cbranch_scc1 st_x2')
        a('s_cmp_eq_u32 s12, 11')
        a('s_cbranch_scc0 st_a1')
        start_arrive(a, 'st_a1')
        a('s_barrier')
        a('s_mov_b32 s46, 2')
        a('s_branch st_lx')
        a.label('st_x2')
        a('s_cmp_lt_u32 s12, 8')
        a('s_cbranch_scc1 st_n2')
        a('s_cmp_lt_u32 s2, 94')
        a('s_cbranch_scc1 st_n2')
        a('s_sub_u32 s4, s2, 94\ns_lshl_b32 s4, s4, 2\ns_add_u32 s4, s4, s20')
        a('s_mul_i32 s33, s4, 7282\ns_lshr_b32 s33, s33, 16\ns_mul_i32 s5, s33, 9\ns_sub_u32 s34, s4, s5\ns_lshl_b32 s34, s34, 1')
        a('s_mul_i32 s35, s33, 7282\ns_lshr_b32 s35, s35, 16\ns_mul_i32 s5, s35, 9\ns_sub_u32 s5, s33, s5')
        a('s_mul_i32 s4, s35, 18\ns_add_u32 s4, s4, s34\ns_mul_i32 s23, s4, %d\ns_lshl_b32 s5, s5, 7\ns_add_u32 s23, s23, s5' % (32 * 1152))
        a('s_lshl_b32 s35, s35, %d\ns_add_u32 s35, s35, %d' % (FSH, FL_CW))
        a('s_lshl_b32 s22, s20, 13\ns_add_u32 s22, s22, %d' % OI)
        a('s_mov_b32 s40, s100\ns_mov_b32 s41, s101\ns_mov_b32 s42, %d\ns_mov_b32 s43, 0x20000' % (D * F * 2))
        a('v_lshrrev_b32 v8, 3, v0\nv_mul_u32_u24 v8, 1152, v8\nv_and_b32 v5, 7, v0\nv_lshrrev_b32 v6, 2, v0\nv_and_b32 v6, 4, v6')
        a('v_xor_b32 v5, v5, v6')
        a('v_lshl_add_u32 v8, v5, 4, v8')
        for n in range(8):
            a('s_add_u32 m0, s22, %d' % (1024 * n))
            a('s_add_u32 s4, s23, %d' % (9216 * n))
            a('buffer_load_dwordx4 v8, s[40:43], s4 offen nt lds')
        a.label('st_n2')
        a('s_cmp_eq_u32 s12, 11')
        a('s_cbranch_scc0 st_w')
        a('v_lshlrev_b32 v4, 2, v0')
        a('v_mov_b32 v5, 0x040404')
        a('s_mov_b64 exec, 0xff')
        a('ds_write_b32 v4, %s offset:%d' % (vr(VZ), FLG))
        a('ds_write_b32 %s, v5 offset:%d' % (vr(VZ), XC1))
        a('s_mov_b64 exec, -1')
        start_wait(a)
        a.label('st_w')
        a('s_waitcnt vmcnt(8)')
        a('s_cmp_eq_u32 s35, 0')
        a('s_cbranch_scc0 st_w2')
        a('s_waitcnt vmcnt(0)')
        a.label('st_w2')
        a('s_barrier')
        stamp(a, 'st')
        a('s_mov_b32 s%d, 8' % GBW)
        a('s_cmp_lt_u32 s12, 8')
        a('s_cbranch_scc1 st_lo')
        if WQ_TOUCH:
            a('s_and_b32 s4, s14, 7\ns_lshl_b32 s4, s4, 2\ns_add_u32 s4, s4, s20\ns_mul_i32 s4, s4, %d' % (63 * 128))
            a('s_mul_i32 s5, s13, %d\ns_add_u32 s4, s4, s5\ns_add_u32 s4, s4, %d' % (WQ_HG, WQ))
            a('v_lshlrev_b32 v6, 7, v0')
            a('s_setprio 3')
            a('buffer_load_dword v7, v6, s[8:11], s4 offen sc1')
            a('s_setprio 0')
        a('s_cmp_eq_u32 s12, 11')
        a('s_cbranch_scc0 st_h')
        mem_wait(a, 'st_c', GBO, GBW, VZ, 5, backoff=(None, 0, 2), arrive=True)
        a('s_add_u32 s6, s%d, %d\ns_mov_b32 s7, 32' % (CBO, FL_C0 - FL_CB))
        mem_wait(a, 'st_e', 6, 7, VZ, 5, backoff=(None, 0, 4), arrive=True)
        a('v_mov_b32 v5, 1')
        a('ds_write_b32 %s, v5 offset:%d' % (vr(VZ), TOK))
        a('s_branch s1_wo0')
        a.label('st_h')
        lds_spin(a, 'st_d', 5, VZ, TOK, 1, 1)
        a('s_branch s1_wo0')
        a.label('st_lo')
        a('s_cmp_eq_u32 s12, 7')
        a('s_cbranch_scc1 s1_go')
        a('s_cmp_eq_u32 s12, 6')
        a('s_cbranch_scc0 st_f')
        a('s_setprio 2')
        a.label('st_f')
        if S1_R2:
            a('s_lshr_b32 s4, 0x43, s12\ns_and_b32 s4, s4, 1')
            a('s_cbranch_scc1 st_g')
            a('s_mov_b32 s33, 0x%x' % (S1_R2 << 24))
            lds_spin(a, 'st_r2', 6, VZ, XC1, 0, 0, ge=33)
            a.label('st_g')
        a('s_mov_b32 s26, 0')
        a('s_branch s1_f1')
    else:
        a('v_lshlrev_b32 v5, 2, v0')
        a('s_mov_b64 exec, 0xff')
        a('ds_write_b32 v5, %s offset:%d' % (vr(VZ), FLG))
        a('s_mov_b64 exec, -1')
        a('s_waitcnt lgkmcnt(0)')
        load_x('x0', None, XC1)
    a('s_cmp_ge_u32 s12, 8')
    a('s_cbranch_scc0 s1_lo')
    a('s_barrier')
    x_count(XC1)
    a('s_branch s1_wo')
    a.label('s1_lo')
    a('s_lshr_b32 s26, 0x43, s12\ns_and_b32 s26, s26, 1')
    a('s_cbranch_scc1 s1_f1')
    a('s_waitcnt vmcnt(0)')
    a('s_barrier')
    a('s_cmp_ge_u32 s12, 7')
    a('s_cbranch_scc1 s1_go')
    a.label('s1_f1')
    s1_fill()
    a('s_cmp_eq_u32 s26, 0')
    a('s_cbranch_scc1 s1_go')
    a('s_waitcnt vmcnt(18)')
    a('s_barrier')
    a.label('s1_go')
    stamp(a, 'x1')
    VX = 144
    for par in range(2):
        lane_part(VA, VT, str(par))
        for b in range(3):
            a('s_mul_i32 s4, s%d, 24576\ns_add_u32 s4, s4, %d' % (48 + b, XI))
            a('v_add_u32 %s, s4, %s' % (vr(VX + 2 * b + par), vr(VA)))

    a('v_mov_b32 v7, 0x1000000')

    def rdx(k, tt):
        a('ds_read_b128 %s, %s offset:%d' % (vr(bf(k & 1, tt), 4), vr(VX + 2 * (k // 6) + (k & 1)), ((k % 6) >> 1) * 8192 + 2048 * tt))

    slow = []

    def x_check(tag, k, step):
        if k not in (4, 10):
            return
        m = 0x0400 if k == 4 else 0x040000
        if step == 0:
            a('ds_read_b32 %s, %s offset:%d' % (vr(VT), vr(VZ), XC1))
        elif step == 1:
            a('v_readfirstlane_b32 s4, %s' % vr(VT))
        else:
            a('s_andn2_b32 s4, 0x%x, s4' % m)
            a('s_cbranch_scc1 s1_slow%s%d' % (tag, k))
            a.label('s1_back%s%d' % (tag, k))
            slow.append((tag, k, m))
    for tt in range(4):
        rdx(0, tt)
    a('s_cmp_lt_u32 s12, 4')
    a('s_cbranch_scc1 s1_nn')
    a('s_cmp_eq_u32 s12, 6')
    a('s_cbranch_scc1 s1_nt')
    a('s_cmp_eq_u32 s12, 7')
    a('s_cbranch_scc1 s1_stats')

    def main(orient):
        issued = 18
        a('s_waitcnt vmcnt(17) lgkmcnt(0)')
        for k in range(18):
            for n in range(8):
                j, tt = n >> 2, n & 3
                if j:
                    tt = 3 - tt
                c = None if k == 0 else acc(j, tt)
                if orient[j] == 'N':
                    mfma(a, acc(j, tt), bf(k & 1, tt), ring(k, j), c)
                else:
                    mfma(a, acc(j, tt), ring(k, j), bf(k & 1, tt), c)
                if n < 2 and k < 17:
                    rdx(k + 1, 2 * n); rdx(k + 1, 2 * n + 1)
                if n == 2:
                    a('s_waitcnt vmcnt(%d)' % (issued - (2 * k + 2)))
                if n in (3, 7) and k < 9:
                    s1_ld(k + 9, j)
                    issued += 1
                if k == S1_GATE and n == 4:
                    a('s_mov_b64 exec, 1')
                    a('ds_add_u32 %s, v7 offset:%d' % (vr(VZ), XC1))
                    a('s_mov_b64 exec, -1')
                if n == 2:
                    x_check(orient, k, 0)
                if n == 6 and k < 17:
                    a('s_waitcnt vmcnt(%d) lgkmcnt(0)' % (issued - (2 * k + 3)))
                    x_check(orient, k, 1)
                if n == 7:
                    x_check(orient, k, 2)
        stamp(a, 's1m')
        lds_spin(a, 's1_s' + orient, VT, VZ, FLG, 2, 2)

    def rs_n(RS):
        a('v_lshlrev_b32 %s, 4, v3' % vr(VT))
        for n in range(8):
            a('ds_read_b128 %s, %s offset:%d' % (vr(RS + 4 * n, 4), vr(VT), RSL + 64 * n))

    def rs_t(RS):
        a('v_lshlrev_b32 %s, 2, v2' % vr(VT))
        for n in range(8):
            a('ds_read_b32 %s, %s offset:%d' % (vr(RS + n), vr(VT), RSL + 64 * n))

    def phi4(items, T):
        n = len(items)
        for i, (d, x, s1, s2) in enumerate(items):
            a('v_mul_f32 %s, %s, %s' % (vr(T + i), vr(x), vr(s2)))
        for i in range(n):
            a('v_min_f32 %s, 0, %s' % (vr(T + i), vr(T + i)))
        for i in range(n):
            a('v_exp_f32 %s, %s' % (vr(T + i), vr(T + i)))
        for i, (d, x, s1, s2) in enumerate(items):
            a('v_max_f32 %s, 0, %s' % (vr(d), vr(x)))
        for i in range(n):
            a('v_add_f32 %s, 0x%x, %s' % (vr(T + i), EPS6, vr(T + i)))
        for i, (d, x, s1, s2) in enumerate(items):
            a('v_fma_f32 %s, %s, %s, %s' % (vr(d), vr(d), vr(s1), vr(T + i)))

    RS = RING; TMP = RING + 32; F0 = RING + 48; ON = RING + 64
    pq_base = 's_lshl_b32 s6, s14, 4\ns_add_u32 s6, s6, s13\ns_mul_i32 s6, s6, 4608\ns_add_u32 s6, s6, s%d\ns_add_u32 s6, s6, %d' % (LOFF, PQ)
    main('TT')
    rs_t(RS)
    a(pq_base)
    a('s_lshl_b32 s5, s20, 10\ns_add_u32 s6, s6, s5\ns_add_u32 s7, s6, %d' % (8 * 4608))
    a('s_waitcnt lgkmcnt(0)')
    for tt in range(4):
        phi4([(acc(j, tt) + r, acc(j, tt) + r, RS + tt, RS + 4 + tt) for j in range(2) for r in range(4)], TMP)
        P = BF + 4 * tt
        for j in range(2):
            a('v_cvt_pk_bf16_f32 %s, %s, %s' % (vr(P + 2 * j), vr(acc(j, tt)), vr(acc(j, tt) + 1)))
            a('v_cvt_pk_bf16_f32 %s, %s, %s' % (vr(P + 2 * j + 1), vr(acc(j, tt) + 2), vr(acc(j, tt) + 3)))
        a('buffer_store_dwordx4 %s, v1, s[8:11], s%d offen offset:%d sc1' % (vr(P, 4), 6 + (tt >> 1), 2048 * (tt & 1)))
    a('s_branch s1_done')
    a.label('s1_nn')
    main('NN')
    rs_n(RS)
    FK = F0; FV = F0 + 8; DV = BF; FX = BF + 16
    for k in range(4):
        a('v_mov_b32 %s, 0x%x' % (vr(ON + k), ONES))
    a('s_lshl_b32 s4, s13, 2\ns_add_u32 s4, s4, s20\ns_mul_i32 s6, s4, %d\ns_add_u32 s6, s6, s%d' % (HSG, SOF))
    a('s_waitcnt lgkmcnt(0)')
    for tp in range(2):
        phi4([(acc(0, tt) + r, acc(0, tt) + r, RS + 4 * tt + r, RS + 16 + 4 * tt + r) for tt in (2 * tp, 2 * tp + 1) for r in range(4)], TMP)
        for tt in (2 * tp, 2 * tp + 1):
            for r in range(4):
                a('v_mul_f32 %s, %s, %s' % (vr(acc(1, tt) + r), vr(acc(1, tt) + r), vr(RS + 4 * tt + r)))
            for j, Fb in enumerate((FK, FV)):
                d = Fb + 2 * tt
                a('v_cvt_pk_bf16_f32 %s, %s, %s' % (vr(d), vr(acc(j, tt)), vr(acc(j, tt) + 1)))
                a('v_cvt_pk_bf16_f32 %s, %s, %s' % (vr(d + 1), vr(acc(j, tt) + 2), vr(acc(j, tt) + 3)))
        c = (lambda x: None) if tp == 0 else (lambda x: x)
        mfma(a, DV, FV + 4 * tp, FK + 4 * tp, c(DV))
        mfma(a, DV + 4, ON, FK + 4 * tp, c(DV + 4))
    a('v_and_b32 %s, 0x380, v1' % vr(VA))
    a('v_and_b32 %s, 4, v2' % vr(VB))
    a('v_lshl_add_u32 %s, %s, 2, %s' % (vr(VA), vr(VB), vr(VA)))
    a('s_lshl_b32 s5, s20, 5')
    a('v_add_u32 %s, s5, %s' % (vr(VA), vr(VA)))
    a('v_lshlrev_b32 %s, 2, v0' % vr(VB))
    for r in range(4):
        a('buffer_atomic_add_f32 %s, %s, s[8:11], s6 offen offset:%d' % (vr(DV + r), vr(VB), 256 * r))
    a('s_mov_b64 exec, 0xffff')
    a('buffer_atomic_add_f32 %s, %s, s[8:11], s6 offen offset:1152' % (vr(DV + 4), vr(VB)))
    a('s_mov_b64 exec, -1')
    lds_spin(a, 's1_w', VT, VZ, FLG, 1, 1)
    a('ds_read_b128 %s, %s offset:%d' % (vr(FX, 4), vr(VA), XF))
    a('ds_read_b128 %s, %s offset:%d' % (vr(FX + 4, 4), vr(VA), XF + 1024))
    a('v_lshlrev_b32 %s, 3, v2' % vr(VT))
    a('v_lshl_add_u32 %s, v3, 2, %s' % (vr(VT), vr(VT)))
    a('v_add_u32 %s, 384, %s' % (vr(VT), vr(VT)))
    a('s_mov_b32 s40, -1\ns_mov_b32 s41, 0')
    a('v_cndmask_b32 %s, %s, %s, s[40:41]' % (vr(VT), vr(VB), vr(VT)))
    a('s_waitcnt lgkmcnt(0)')
    for tp in range(2):
        c = (lambda x: None) if tp == 0 else (lambda x: x)
        mfma(a, DV + 8, FX + 4 * tp, FV + 4 * tp, c(DV + 8))
        mfma(a, DV + 12, FX + 4 * tp, FK + 4 * tp, c(DV + 12))
    a('v_cndmask_b32 %s, %s, %s, s[40:41]' % (vr(DV + 8), vr(DV + 12), vr(DV + 8)))
    a('buffer_atomic_add_f32 %s, %s, s[8:11], s6 offen offset:896' % (vr(DV + 8), vr(VT)))
    a('s_branch s1_done')
    a.label('s1_nt')
    a('s_setprio 2')
    main('NT')
    rs_n(RS)
    FX = F0; PH = BF + 16
    for k in range(4):
        a('v_mov_b32 %s, 0x%x' % (vr(ON + k), ONES))
    a('s_mov_b32 s46, 0x00ff00ff\ns_mov_b32 s47, 0x00ff00ff')
    a('s_waitcnt lgkmcnt(0)')
    for tp in range(2):
        tts = (2 * tp, 2 * tp + 1)
        phi4([(PH + 4 * (tt & 1) + r, acc(0, tt) + r, RS + 4 * tt + r, RS + 16 + 4 * tt + r) for tt in tts for r in range(4)], TMP)
        for tt in tts:
            for r in range(4):
                a('v_mul_f32 %s, %s, %s' % (vr(acc(0, tt) + r), vr(acc(0, tt) + r), vr(RS + 4 * tt + r)))
                a('v_cndmask_b32 %s, %s, %s, s[46:47]' % (vr(acc(0, tt) + r), vr(acc(0, tt) + r), vr(PH + 4 * (tt & 1) + r)))
            a('v_cvt_pk_bf16_f32 %s, %s, %s' % (vr(FX + 2 * tt), vr(acc(0, tt)), vr(acc(0, tt) + 1)))
            a('v_cvt_pk_bf16_f32 %s, %s, %s' % (vr(FX + 2 * tt + 1), vr(acc(0, tt) + 2), vr(acc(0, tt) + 3)))
        a('ds_write_b128 v1, %s offset:%d' % (vr(FX + 4 * tp, 4), XF + 1024 * tp))
    a('v_mov_b32 %s, 3' % vr(VT))
    a('ds_write_b32 %s, %s offset:%d' % (vr(VZ), vr(VT), FLG))
    a('s_setprio 0')
    a('v_and_b32 %s, 0x380, v1' % vr(VA))
    a('v_and_b32 %s, 4, v2' % vr(VB))
    a('v_lshl_add_u32 %s, %s, 2, %s' % (vr(VA), vr(VB), vr(VA)))
    a('v_and_b32 %s, 3, v2' % vr(VB))
    a('v_lshl_add_u32 %s, %s, 5, %s' % (vr(VA), vr(VB), vr(VA)))
    for tp in range(2):
        a('ds_read_b128 %s, %s offset:%d' % (vr(FX + 8 + 4 * tp, 4), vr(VA), XF + 1024 * tp))
    a('s_waitcnt lgkmcnt(0)')
    for tp in range(2):
        c = (lambda x: None) if tp == 0 else (lambda x: x)
        mfma(a, DV, FX + 8 + 4 * tp, FX + 4 * tp, c(DV))
        mfma(a, DV + 4, ON, FX + 4 * tp, c(DV + 4))
    rs_t(RS)
    a('v_bfe_u32 %s, v2, 1, 2' % vr(VA))
    a('v_mul_u32_u24 %s, %d, %s' % (vr(VA), HSG, vr(VA)))
    a('v_and_b32 %s, 1, v2' % vr(VB))
    a('v_lshl_add_u32 %s, %s, 2, %s' % (vr(VA), vr(VB), vr(VA)))
    a('v_add_u32 %s, 2, v3' % vr(VB))
    a('v_and_b32 %s, 3, %s' % (vr(VB), vr(VB)))
    a('v_lshl_add_u32 %s, %s, 3, %s' % (vr(VA), vr(VB), vr(VA)))
    a('s_mul_i32 s6, s13, %d\ns_add_u32 s6, s6, s%d' % (4 * HSG, SOF))
    diag_select(a, DV + 8, DV, (0x0c0c0c0c, 0x30303030, 0xc0c0c0c0))
    a('s_mov_b32 s40, 0xffff\ns_mov_b32 s41, 0')
    a('v_cndmask_b32 %s, %s, %s, s[40:41]' % (vr(DV + 8), vr(DV + 8), vr(DV + 4)))
    a('s_mov_b32 exec_lo, 0xff\ns_mov_b32 exec_hi, 0x00ff00ff')
    a('buffer_atomic_add_f32 %s, %s, s[8:11], s6 offen offset:%d' % (vr(DV + 8), vr(VA), 1280 + 128))
    a('s_mov_b64 exec, -1')
    a(pq_base)
    a('s_add_u32 s6, s6, 4096\ns_add_u32 s7, s6, %d' % (8 * 4608))
    a('v_lshlrev_b32 %s, 3, v0' % vr(VB))
    a('s_waitcnt lgkmcnt(0)')
    a('s_mov_b32 s40, 0xffff0000\ns_mov_b32 s41, 0xffff0000')
    for tt in range(4):
        for r in range(2):
            a('v_cndmask_b32 %s, %s, %s, s[40:41]' % (vr(acc(1, tt) + r), vr(acc(1, tt) + r), vr(acc(1, tt) + 2 + r)))
    phi4([(acc(1, tt) + r, acc(1, tt) + r, RS + tt, RS + 4 + tt) for tt in range(4) for r in range(2)], TMP)
    for tt in range(4):
        a('v_cvt_pk_bf16_f32 %s, %s, %s' % (vr(PH + tt), vr(acc(1, tt)), vr(acc(1, tt) + 1)))
    for tp in range(2):
        a('buffer_store_dwordx2 %s, %s, s[8:11], s%d offen sc1' % (vr(PH + 2 * tp, 2), vr(VB), 6 + tp))
    a('s_branch s1_done')
    a.label('s1_stats')
    a('s_setprio 3')
    for k in range(4):
        a('v_mov_b32 %s, 0x%x' % (vr(RING + k), ONES))
    for k in range(18):
        if k < 17:
            for tt in range(4):
                rdx(k + 1, tt)
        a('s_waitcnt lgkmcnt(%d)' % (4 if k < 17 else 0))
        x_check('S', k, 0)
        for tt in range(4):
            mfma(a, acc(0, tt), RING, bf(k & 1, tt), None if k == 0 else acc(0, tt))
            mfma(a, acc(1, tt), bf(k & 1, tt), bf(k & 1, tt), None if k == 0 else acc(1, tt))
        if k in (4, 10):
            a('s_waitcnt lgkmcnt(0)')
            x_check('S', k, 1)
            x_check('S', k, 2)
    a('v_lshlrev_b32 %s, 2, v2' % vr(VT))
    for tt in range(4):
        diag_select(a, acc(0, tt) + 1, acc(1, tt))
        rstd_from(a, acc(0, tt) + 2, acc(0, tt), acc(0, tt) + 1)
        a('v_mul_f32 %s, 0x%x, %s' % (vr(acc(0, tt) + 3), LOG2E, vr(acc(0, tt) + 2)))
    a('s_mov_b32 exec_lo, 0x00f0000f\ns_mov_b32 exec_hi, 0xf0000f00')
    for tt in range(4):
        a('ds_write_b32 %s, %s offset:%d' % (vr(VT), vr(acc(0, tt) + 2), RSL + 64 * tt))
        a('ds_write_b32 %s, %s offset:%d' % (vr(VT), vr(acc(0, tt) + 3), RSL + 256 + 64 * tt))
    a('s_mov_b64 exec, -1')
    a('v_mov_b32 %s, 2' % vr(VA))
    a('ds_write_b32 %s, %s offset:%d' % (vr(VZ), vr(VA), FLG))
    a('s_setprio 0')
    stamp(a, 's1m')
    a('s_branch s1_done')
    for tag, k, m in slow:
        a.label('s1_slow%s%d' % (tag, k))
        lds_spin(a, 's1_sl%s%d' % (tag, k), VT, VZ, XC1, m, m)
        a('s_branch s1_back%s%d' % (tag, k))
    AC2 = 8; B2 = 24; WR = 56; NPRE = 13
    wr = lambda k, j: WR + ((k % NPRE) * 2 + j) * 4
    def w2_store(name):
        a('s_cmp_eq_u32 s35, 0')
        a('s_cbranch_scc1 %s' % name)
        for k in range(2):
            for c in range(4):
                a('buffer_store_dwordx4 %s, v1, s[8:11], s%d offen offset:%d sc1' % (vr(B2 + (k * 4 + c) * 4, 4), 40 + c, 3072 * k))
        a.label(name)
    a.label('s1_wo0')
    a('s_cmp_eq_u32 s35, 0')
    a('s_cbranch_scc1 s1_wo')
    a('v_bfe_u32 v6, v0, 2, 2')
    a('v_lshl_add_u32 v5, v3, 3, v6')
    a('v_lshlrev_b32 v5, 7, v5')
    a('v_and_b32 v6, 8, v0')
    a('v_lshl_add_u32 v5, v6, 3, v5')
    a('v_add_u32 v4, s22, v5')
    a('v_xor_b32 v5, 64, v4')
    a('v_and_b32 v6, 3, v0')
    for h in range(2):
        a('s_lshl_b32 s4, s33, 1\ns_add_u32 s4, s4, %d\ns_mul_i32 s5, s4, 43691\ns_lshr_b32 s5, s5, 17\ns_mul_i32 s5, s5, 3\ns_sub_u32 s4, s4, s5' % h)
        a('s_cmp_eq_u32 s4, 1\ns_cselect_b32 s4, 3, 4\ns_cselect_b32 s5, 32, 8')
        a('v_lshl_add_u32 v%d, v6, s4, v%d' % (8 + 2 * h, 4 + h))
        a('v_add_u32 v%d, s5, v%d' % (9 + 2 * h, 8 + 2 * h))
    for c in range(4):
        a('s_lshl_b32 s4, s33, 2\ns_add_u32 s4, s4, %d\ns_mul_i32 s5, s4, 43691\ns_lshr_b32 s5, s5, 17' % c)
        a('s_mul_i32 s6, s5, 3\ns_sub_u32 s4, s4, s6')
        a('s_and_b32 s6, s5, 1\ns_lshl_b32 s6, s6, 1\ns_add_u32 s4, s4, s6')
        a('s_cmp_ge_u32 s4, 3\ns_cselect_b32 s6, 3, 0\ns_sub_u32 s4, s4, s6')
        a('s_mul_i32 s6, s5, 54\ns_add_u32 s4, s4, s6\ns_mul_i32 s6, s34, 3\ns_add_u32 s4, s4, s6')
        a('s_lshl_b32 s4, s4, 10\ns_add_u32 s%d, s4, %d' % (40 + c, W2))
    a('s_waitcnt vmcnt(0)')
    for k in range(2):
        for c in range(4):
            for hi in range(2):
                a('ds_read_b64_tr_b16 %s, v%d offset:%d' % (vr(B2 + (k * 4 + c) * 4 + 2 * hi, 2), 8 + c, 4096 * k + 512 * hi))
        a('s_waitcnt lgkmcnt(%d)' % (4 if k == 0 else 0))
    if W2_ST == 's1':
        w2_store('w2_s0')
    a.label('s1_wo')
    a('s_and_b32 s24, s13, 3')
    a('s_mul_i32 s25, s24, 9\ns_and_b32 s4, s24, 1\ns_add_u32 s25, s25, s4\ns_lshl_b32 s4, s20, 1\ns_add_u32 s25, s25, s4')
    a('s_mul_i32 s16, s25, 18432\ns_add_u32 s16, s16, %d\ns_add_u32 s17, s16, 18432' % WO)

    def wo_ld(k):
        for j in range(2):
            a('buffer_load_dwordx4 %s, v1, s[8:11], s%d offen offset:%d' % (vr(wr(k, j), 4), 16 + j, 1024 * (k % 4)))
        if k % 4 == 3:
            a('s_add_u32 s16, s16, 4096\ns_add_u32 s17, s17, 4096')
    nO = [0]

    def wo_pre(n):
        for k in range(nO[0], nO[0] + n):
            wo_ld(k)
        nO[0] += n
        if n and nO[0] == NPRE and WO_TOUCH:
            a('v_min_u32 v6, %d, v0' % ((18 - NPRE) * 8 - 1))
            a('v_lshlrev_b32 v6, 7, v6')
            for j in range(2):
                a('buffer_load_dword v7, v6, s[8:11], s%d offen offset:%d' % (16 + j, 1024 * (NPRE % 4)))
    if WO_SPLIT[0]:
        gm = 0x040000 | (0x07000000 if S1_GATE >= 0 else 0)
        lds_spin(a, 's1_wog', 4, VZ, XC1, gm, gm)
    wo_pre(WO_SPLIT[0])
    a('s_cmp_eq_u32 s12, 11')
    a('s_cbranch_scc0 s1_w11')
    wo_pre(WO_W1)
    if W2_ST == 'w1':
        w2_store('w2_s2')
    nO[0] -= WO_W1
    a.label('s1_w11')
    stamp(a, 's1m')
    a('s_branch s1_join')
    a.label('s1_done')
    a('s_waitcnt vmcnt(0)')
    a.label('s1_join')
    stamp(a, 's1d')
    group_sync('e1a')
    a('s_cmp_eq_u32 s12, 11')
    a('s_cbranch_scc0 e1_x')
    mem_arrive(a, CBO, VZ, 4)
    a('s_branch e1_y')
    a.label('e1_x')
    if WO_W1:
        a('s_cmp_lt_u32 s12, 8')
        a('s_cbranch_scc1 e1_y')
        if W2_ST == 'w1':
            w2_store('w2_s1')
        wo_pre(WO_W1)
        a.label('e1_y')
    a('s_barrier')
    a.label('e1_z')
    stamp(a, 'e1a')

    RING3 = 52
    FR = 124; QF = 20; XP = 4
    VA = 156; VB = 157; VC = 158; VD = 159; EX = 160; VT = 161; QX = 162
    f1 = lambda hh: FR + 8 * hh
    f2 = lambda hh: FR + 8 * hh + 4
    qf = lambda tt, hh: QF + (tt * 4 + hh) * 4
    a('s_cmp_ge_u32 s12, 8')
    a('s_cbranch_scc1 s2_hi')
    a('s_lshl_b32 s23, s14, 1\ns_lshr_b32 s4, s13, 2\ns_add_u32 s23, s23, s4')
    a('s_lshl_b32 s23, s23, 3\ns_add_u32 s23, s23, s12\ns_mul_i32 s23, s23, 4608\ns_add_u32 s23, s23, s%d\ns_add_u32 s23, s23, %d' % (LOFF, PQ))
    a('s_add_u32 s24, s23, 4096')
    a('v_lshlrev_b32 %s, 3, v0' % vr(VT))
    for tt in range(2):
        for p in range(2):
            a('buffer_load_dwordx4 %s, v1, s[8:11], s23 offen offset:%d sc1' % (vr(qf(tt, 2 * p), 4), 2048 * tt + 1024 * p))
    a('buffer_load_dwordx2 %s, %s, s[8:11], s24 offen sc1' % (vr(QX, 2), vr(VT)))
    a('v_and_b32 %s, 3, v2' % vr(VT))
    a('v_lshrrev_b32 %s, 2, v2' % vr(VA))
    a('v_lshl_add_u32 %s, %s, 2, %s' % (vr(VA), vr(VT), vr(VA)))
    a('v_lshlrev_b32 %s, 6, %s' % (vr(VA), vr(VA)))
    a('v_lshl_add_u32 %s, v3, 4, %s' % (vr(VA), vr(VA)))
    a('v_min_u32 %s, 2, %s' % (vr(VT), vr(VT)))
    a('v_lshlrev_b32 %s, 6, %s' % (vr(VB), vr(VT)))
    a('v_lshl_add_u32 %s, v3, 4, %s' % (vr(VB), vr(VB)))
    a('v_mul_u32_u24 %s, %d, v3' % (vr(VD), HS))
    a('v_lshl_add_u32 %s, v2, 3, %s' % (vr(VC), vr(VD)))
    a('v_lshl_add_u32 %s, %s, 3, %s' % (vr(VD), vr(VT), vr(VD)))
    a('s_mul_i32 s25, s12, %d\ns_add_u32 s25, s25, %d\ns_mul_i32 s22, s12, %d\ns_add_u32 s22, s22, s%d' % (4 * HS, SL, 4 * HSG, SOF))
    a('v_lshrrev_b32 %s, 5, v0' % vr(EX))
    a('v_mul_u32_u24 %s, %d, %s' % (vr(EX), HSG - HS, vr(EX)))
    a('v_add_u32 %s, %s, v1' % (vr(EX), vr(EX)))
    for v in (VA, VB, VC, VD):
        a('v_add_u32 %s, s25, %s' % (vr(v), vr(v)))
    for hh in range(4):
        a('s_mov_b32 s%d, 0x%x\ns_mov_b32 s%d, 0x%x' % (
            40 + 2 * hh, (0xffff << (16 * hh)) & 0xffffffff, 41 + 2 * hh, ((0xffff << (16 * hh)) >> 32) & 0xffffffff))
    a('s_mul_i32 s16, s13, 12\ns_add_u32 s16, s16, s28\ns_mul_i32 s16, s16, 55296\ns_mul_i32 s4, s19, 18432\ns_add_u32 s16, s16, s4\ns_add_u32 s16, s16, %d' % W1)
    a('s_and_b32 s4, s13, 3\ns_mul_i32 s29, s4, 9\ns_and_b32 s4, s4, 1\ns_xor_b32 s4, s4, 1\ns_lshl_b32 s4, s4, 3\ns_add_u32 s29, s29, s4')
    a('s_mul_i32 s4, s29, 18432\ns_add_u32 s4, s4, %d' % WO)
    a('s_cmp_eq_u32 s12, 7\ns_cselect_b32 s16, s4, s16')
    nW = [0]

    def wld(n):
        for _ in range(n):
            k = nW[0]
            a('buffer_load_dwordx4 %s, v1, s[8:11], s16 offen offset:%d' % (vr(RING3 + 4 * k, 4), 1024 * (k % 4)))
            if k % 4 == 3:
                a('s_add_u32 s16, s16, 4096')
            nW[0] += 1
    wld(S2_WE)
    a('s_waitcnt vmcnt(%d)' % S2_WE)
    for tt in range(2):
        for p in range(2):
            q0, q1 = qf(tt, 2 * p), qf(tt, 2 * p + 1)
            a('v_mov_b32 %s, %s' % (vr(q1), vr(q0 + 2)))
            a('v_mov_b32 %s, %s' % (vr(q1 + 1), vr(q0 + 3)))
            for q in (q0, q1):
                a('v_mov_b32 %s, %s' % (vr(q + 2), vr(QX + tt)))
                a('v_mov_b32 %s, 0' % vr(q + 3))
    a('s_mov_b32 m0, s25')
    a('s_barrier')
    stamp(a, 'e1b')
    for n in range(6):
        if n == 3:
            a('s_add_u32 m0, s25, 3072')
        if n in (2, 3, 5):
            a('s_add_u32 s22, s22, %d' % (HSG - HS + (3072 if n == 3 else 0)))
        a('buffer_load_dwordx4 %s, s[8:11], s22 offen offset:%d sc1 lds' % (vr(EX) if n % 3 == 1 else 'v1', 1024 * (n % 3)))
    a('s_waitcnt vmcnt(0)')
    stamp(a, 'sld')
    a('ds_read_b64 %s, %s offset:1280' % (vr(XP, 2), vr(VC)))
    a('ds_read_b64 %s, %s offset:%d' % (vr(XP + 2, 2), vr(VD), 1280 + 128))
    for hh in range(4):
        a('ds_read_b128 %s, %s offset:%d' % (vr(f1(hh), 4), vr(VA), HS * hh))
        a('ds_read_b128 %s, %s offset:%d' % (vr(f2(hh), 4), vr(VB), HS * hh + 1024))
    wld(S2_W0)
    a('s_waitcnt lgkmcnt(8)')
    a('v_cvt_pk_bf16_f32 %s, %s, %s' % (vr(XP), vr(XP), vr(XP + 1)))
    a('v_cvt_pk_bf16_f32 %s, %s, %s' % (vr(XP + 2), vr(XP + 2), vr(XP + 3)))
    for hh in range(4):
        a('s_waitcnt lgkmcnt(%d)' % (6 - 2 * hh))
        for f, x in ((f1(hh), XP), (f2(hh), XP + 2)):
            a('v_cvt_pk_bf16_f32 %s, %s, %s' % (vr(f), vr(f), vr(f + 1)))
            a('v_cvt_pk_bf16_f32 %s, %s, %s' % (vr(f + 1), vr(f + 2), vr(f + 3)))
            a('v_cndmask_b32 %s, 0, %s, s[%d:%d]' % (vr(f + 2), vr(x), 40 + 2 * hh, 41 + 2 * hh))
            a('v_mov_b32 %s, 0' % vr(f + 3))
    stamp(a, 'scv')
    a('s_lshl_b32 s4, s12, 12\ns_add_u32 s4, s4, %d' % OI)
    a('v_add_u32 %s, s4, v1' % vr(VA))
    a('s_add_u32 s4, s21, 16\ns_lshl_b32 s4, s4, 11\ns_lshl_b32 s5, s20, 2\ns_add_u32 s4, s4, s5\ns_add_u32 s4, s4, %d' % OI)
    a('v_add_u32 %s, s4, v1' % vr(VB))
    for tt in range(2):
        for p in range(2):
            for n in range(2):
                mfma(a, XP + 8 * n + 4, f2(2 * p + n), qf(tt, 2 * p + n))
            for n in range(2):
                mfma(a, XP + 8 * n, f1(2 * p + n), qf(tt, 2 * p + n))
            wld(S2_W1)
            O = qf(tt, 2 * p)
            for n in range(2):
                d2 = XP + 8 * n + 4
                a('v_add_f32 %s, 0x%x, %s' % (vr(d2 + 2), EPS6, vr(d2 + 2)))
            for n in range(2):
                d2 = XP + 8 * n + 4
                a('v_rcp_f32 %s, %s' % (vr(d2 + 2), vr(d2 + 2)))
            for n in range(2):
                hh = 2 * p + n
                d1 = XP + 8 * n; d2 = d1 + 4
                for r in (4, 5, 0, 1, 2, 3):
                    a('v_mul_f32 %s, %s, %s' % (vr(d1 + r), vr(d1 + r), vr(d2 + 2)))
                a('v_cvt_pk_bf16_f32 %s, %s, %s' % (vr(O + 2 * n), vr(d1), vr(d1 + 1)))
                a('v_cvt_pk_bf16_f32 %s, %s, %s' % (vr(O + 2 * n + 1), vr(d1 + 2), vr(d1 + 3)))
                if hh == 0:
                    a('v_cvt_pk_bf16_f32 %s, %s, %s' % (vr(EX), vr(d2), vr(d2 + 1)))
                else:
                    a('v_cvt_pk_bf16_f32 %s, %s, %s' % (vr(VT), vr(d2), vr(d2 + 1)))
                    a('v_cndmask_b32 %s, %s, %s, s[%d:%d]' % (vr(EX), vr(EX), vr(VT), 40 + 2 * hh, 41 + 2 * hh))
            a('ds_write_b128 %s, %s offset:%d' % (vr(VA), vr(O, 4), 2048 * p + 1024 * tt))
        a('ds_write_b32 %s, %s offset:%d' % (vr(VB), vr(EX), 1024 * tt))
    stamp(a, 'st1')
    a('s_waitcnt lgkmcnt(0)')
    a('s_barrier')
    stamp(a, 'o')
    a('s_cmp_eq_u32 s12, 7')
    a('s_cbranch_scc0 s2_n7')
    a('s_setprio 3')
    a.label('s2_n7')
    wld(18 - S2_W5 - nW[0])
    a('s_cmp_eq_u32 s12, 7')
    a('s_cbranch_scc0 s2_done')
    n5 = nW[0]
    wld(S2_W5)

    def resid_store(nt, AC, T, s_ct):
        A = T + 24; G = T + 26
        a('s_bfe_u32 s7, %s, 0x10001' % sr(s_ct))
        if nt == 1:
            a('s_and_b32 s24, %s, 1\ns_lshl_b32 s24, s24, 1' % sr(s_ct))
            a('v_lshrrev_b32 %s, 1, v3' % vr(G))
            a('v_add_u32 %s, s24, %s' % (vr(G), vr(G)))
            a('v_lshlrev_b32 %s, 8, %s' % (vr(G + 1), vr(G)))
            a('v_lshl_add_u32 %s, v2, 4, %s' % (vr(G + 1), vr(G + 1)))
            lane_part(A, A + 1, 's7', G, G + 1)
            a('v_and_b32 %s, 1, v3' % vr(G))
            a('v_lshl_add_u32 %s, %s, 11, %s' % (vr(A), vr(G), vr(A)))
            a('v_mul_u32_u24 %s, 18432, %s' % (vr(G), vr(G)))
            a('v_add_u32 %s, %s, %s' % (vr(G), vr(G), vr(G + 1)))
        else:
            lane_part(A, A + 1, 's7')
        a('s_lshr_b32 s4, %s, 1\ns_lshr_b32 s5, s13, 2\ns_lshl_b32 s5, s5, 1' % sr(s_ct))
        a('s_lshr_b32 s6, s4, 1\ns_lshl_b32 s6, s6, 2\ns_add_u32 s6, s6, s5\ns_lshl_b32 s6, s6, 11\ns_add_u32 s6, s6, %d' % XI)
        a('v_add_u32 %s, s6, %s' % (vr(A), vr(A)))
        for tt in range(nt):
            a('ds_read_b128 %s, %s offset:%d' % (vr(T + 4 * tt, 4), vr(A), 2048 * tt))
        a('s_lshl_b32 s6, s14, 2\ns_add_u32 s6, s6, s5\ns_mul_i32 s6, s6, 18\ns_add_u32 s6, s6, s4\ns_lshl_b32 s6, s6, 10')
        a('s_add_u32 s6, s6, s%d\ns_add_u32 s6, s6, %d\ns_add_u32 s7, s6, 18432' % (LOFF, X1))
        if nt == 1:
            for r in range(4):
                a('v_permlane16_swap_b32 %s, %s' % (vr(AC + r), vr(AC + 4 + r)))
        a('s_waitcnt lgkmcnt(0)')
        for tt in range(nt):
            U = T + 8 + 8 * tt
            for h in range(4):
                a('v_lshlrev_b32 %s, 16, %s' % (vr(U + 2 * h), vr(T + 4 * tt + h)))
                a('v_and_b32 %s, 0xffff0000, %s' % (vr(U + 2 * h + 1), vr(T + 4 * tt + h)))
            for j in range(2):
                for r in range(4):
                    a('v_add_f32 %s, %s, %s' % (vr(U + 4 * j + r), vr(U + 4 * j + r), vr(AC + (nt * j + tt) * 4 + r)))
            for h in range(4):
                a('v_cvt_pk_bf16_f32 %s, %s, %s' % (vr(T + 4 * tt + h), vr(U + 2 * h), vr(U + 2 * h + 1)))
            a('buffer_store_dwordx4 %s, %s, s[8:11], s%d offen sc1' % (vr(T + 4 * tt, 4), vr(G) if nt == 1 else 'v1', 6 + tt))

    NB = 8
    slot = lambda n: FR + 4 * (n % NB)
    a('v_add_u32 %s, %d, v1' % (vr(VA), OI))
    for n in range(NB):
        a('ds_read_b128 %s, %s offset:%d' % (vr(slot(n), 4), vr(VA), 1024 * n))
    for n in range(36):
        k, tt = n >> 1, n & 1
        a('s_waitcnt vmcnt(%d) lgkmcnt(%d)' % (17 - k, min(NB - 1, 35 - n)))
        mfma(a, 4 + 4 * tt, RING3 + 4 * k, slot(n), None if k == 0 else 4 + 4 * tt)
        if n + NB < 36:
            a('ds_read_b128 %s, %s offset:%d' % (vr(slot(n), 4), vr(VA), 1024 * (n + NB)))
    stamp(a, 'gem')
    resid_store(1, 4, 20, 29)
    stamp(a, 'rst')
    a('s_setprio 0')
    a('s_waitcnt vmcnt(0)')
    a('s_branch s2_done')
    a.label('s2_hi')
    wo_pre(WO_SPLIT[1])
    a('s_cmp_eq_u32 s12, 11')
    a('s_cbranch_scc0 s2_hw')
    mem_wait(a, 'e1b', CBO, CBW, VZ, 5, backoff=(None, 0, CB_SLEEP) if CB_SLEEP else None)
    a('v_lshlrev_b32 v4, 2, v0')
    a('s_mov_b64 exec, 0xff')
    a('ds_write_b32 v4, %s offset:%d' % (vr(VZ), FLG))
    a('s_mov_b64 exec, -1')
    a('s_waitcnt lgkmcnt(0)')
    a.label('s2_hw')
    a('s_barrier')
    stamp(a, 'e1b')
    wo_pre(WO_SPLIT[2])
    assert nO[0] == NPRE
    a('v_add_u32 v4, %d, v1' % OI)
    a('s_waitcnt vmcnt(0)')
    if W2_ST == 'w3':
        w2_store('w2_s3')
    a('s_setprio 2')
    a('s_barrier')
    stamp(a, 'o')
    b2 = lambda k, tt: B2 + ((k % 4) * 2 + tt) * 4
    for k in range(4):
        for tt in range(2):
            a('ds_read_b128 %s, v4 offset:%d' % (vr(b2(k, tt), 4), 2048 * k + 1024 * tt))
    for k in range(18):
        w = 's_waitcnt lgkmcnt(%d)' % min(6, 2 * (17 - k))
        if k >= NPRE:
            w += ' vmcnt(%d)' % (2 * (17 - k))
        a(w)
        for j in range(2):
            for tt in range(2):
                d = AC2 + (2 * j + tt) * 4
                mfma(a, d, wr(k, j), b2(k, tt), None if k == 0 else d)
        if k + NPRE < 18:
            wo_ld(k + NPRE)
        if k + 4 < 18:
            for tt in range(2):
                a('ds_read_b128 %s, v4 offset:%d' % (vr(b2(k, tt), 4), 2048 * (k + 4) + 1024 * tt))
    stamp(a, 'gem')
    resid_store(2, AC2, B2, 25)
    stamp(a, 'rst')
    a('s_setprio 0')
    a('s_waitcnt vmcnt(0)')
    a('s_cmp_eq_u32 s35, 0')
    a('s_cbranch_scc1 s2_done')
    mem_arrive(a, 35)
    a.label('s2_done')
    stamp(a, 's2d')
    group_sync('e2')
    if S2_W5:
        a('s_cmp_ge_u32 s12, 7')
        a('s_cbranch_scc1 e2_y')
        nW[0] = n5
        wld(S2_W5)
        a.label('e2_y')
    a('s_barrier')
    stamp(a, 'e2')

    ACC = 4; RING = RING3; BF = RING + 72; RS = BF + 32
    VA = RS + 4; VT = VA + 3; VC = VT + 1; VK = VC + 1; VN = VK + 1
    acc = lambda j, tt: ACC + (j * 4 + tt) * 4
    ring3 = lambda k, j: RING + ((k % 6) * 3 + j) * 4
    bf = lambda p, tt: BF + (p * 4 + tt) * 4
    load_x('x1', X1, XC3)
    a('s_lshl_b32 s4, s20, 2')
    a('v_mov_b32 %s, s4' % vr(VK))
    a('s_mul_i32 s16, s13, 12\ns_add_u32 s16, s16, s28\ns_mul_i32 s16, s16, 55296\ns_add_u32 s16, s16, %d' % W1)
    for b in range(3):
        a('s_mul_i32 s4, s%d, 18432\ns_add_u32 s%d, s4, s16' % (48 + b, 30 + b))
        a('s_mul_i32 s4, s%d, 24576\ns_add_u32 s4, s4, %d' % (48 + b, XI))
        a('v_add_u32 %s, s4, v1' % vr(VA + b))
    a('s_lshl_b32 s4, s21, 3\ns_lshl_b32 s27, 1, s4')
    a('s_mov_b32 s18, s21')
    a('v_mov_b32 %s, %d' % (vr(VN), XC3))
    a('s_cmp_ge_u32 s12, 8')
    a('s_cbranch_scc1 s3_hi')
    a('s_waitcnt vmcnt(0)')
    a('s_barrier')
    stamp(a, 'x3')
    a('s_cmp_lt_u32 s12, 7')
    a('s_cbranch_scc1 s3_filled')
    a('s_branch s3_fill')
    a.label('s3_hi')
    a('s_barrier')
    x_count(XC3)
    stamp(a, 'x3')
    a('s_setprio %d' % P3_SPRIO)
    a('s_lshl_b32 s4, s20, 11\ns_add_u32 s4, s4, %d' % XI)
    a('v_add_u32 %s, s4, v1' % vr(VC))
    a('v_add_u32 %s, %d, %s' % (vr(VT), 5 * 8192, vr(VC)))
    for k in range(4):
        a('v_mov_b32 %s, 0x%x' % (vr(BF + k), ONES))
    rdk = lambda k: a('ds_read_b128 %s, %s offset:%d' % (vr(RING + 4 * k, 4), vr(VC if k < 10 else VT), img(k % 10, 0)))
    for k in range(12):
        rdk(k)
    for k in range(18):
        a('s_waitcnt lgkmcnt(%d)' % min(11, 17 - k))
        f = RING + 4 * k
        mfma(a, ACC, BF, f, None if k == 0 else ACC)
        mfma(a, ACC + 4, f, f, None if k == 0 else ACC + 4)
        if k + 12 < 18:
            rdk(k + 12)
    diag_select(a, ACC + 1, ACC + 4)
    rstd_from(a, ACC + 2, ACC, ACC + 1)
    a('s_lshl_b32 s4, s20, 6')
    a('v_lshl_add_u32 %s, v2, 2, s4' % vr(VT))
    a('s_cmp_eq_u32 s12, 11')
    a('s_cbranch_scc0 w2_n5')
    a('s_add_u32 s6, s%d, %d\ns_mov_b32 s7, 81' % (CBO, FL_CW - FL_CB))
    mem_wait(a, 'w2_w', 6, 7, VZ, 5)
    a.label('w2_n5')
    a('v_mov_b32 %s, 0x1000000' % vr(VC))
    a('s_mov_b32 exec_lo, 0x00f0000f\ns_mov_b32 exec_hi, 0xf0000f00')
    a('ds_write_b32 %s, %s' % (vr(VT), vr(ACC + 2)))
    a('s_mov_b64 exec, 1')
    a('ds_add_u32 %s, %s offset:%d' % (vr(VZ), vr(VC), CNT))
    a('s_mov_b64 exec, -1')
    a.label('s3_tok')
    a('s_lshl_b32 s4, s18, 2\ns_lshr_b32 s33, 0x%x, s4\ns_and_b32 s33, s33, 15' % sum(t << (4 * (q + 2)) for q, t in enumerate(P3_THR)))
    lds_spin(a, 's3_tk', VT, VK, TOK, 0, 0, ge=33)
    a.label('s3_fill')
    a('s_mov_b32 s15, s30')
    for k in range(6):
        for j in range(3):
            a('buffer_load_dwordx4 %s, v1, s[8:11], s15 offen offset:%d' % (vr(ring3(k, j), 4), 1024 * j))
        if k < 5:
            a('s_add_u32 s15, s15, 3072')
    a.label('s3_filled')
    stamp(a, 'fl')
    a('v_mov_b32 %s, 1' % vr(VC))
    a('s_setprio 2')
    a('s_cmp_lt_u32 s18, 3')
    a('s_cbranch_scc1 s3_pass')
    lds_spin(a, 's3_w2', VT, VZ, CNT, 0xff, 0x04)
    a('s_setprio 1')
    a.label('s3_pass')

    def rd(k, tt):
        a('ds_read_b128 %s, %s offset:%d' % (vr(bf(k & 1, tt), 4), vr(VA + k // 6), img(k % 6, tt)))
    for tt in range(4):
        rd(0, tt)
    a('s_waitcnt vmcnt(17) lgkmcnt(0)')
    issued = 18
    for k in range(18):
        for n in range(12):
            j, tt = n >> 2, n & 3
            if j & 1:
                tt = 3 - tt
            mfma(a, acc(j, tt), ring3(k, j), bf(k & 1, tt), None if k == 0 else acc(j, tt))
            if n == 0 and k < 12:
                a('s_add_u32 s15, s15, 3072' if k % 6 else 's_mov_b32 s15, s%d' % (31 + k // 6))
            if n in (0, 1, 4, 5) and k < 17:
                rd(k + 1, n if n < 2 else n - 2)
            if n in (2, 6, 10) and k * 3 + j + 1 < 54:
                a('s_waitcnt vmcnt(%d)%s' % (issued - (k * 3 + j + 2), ' lgkmcnt(0)' if n == 10 else ''))
            if n in (3, 7, 11) and k < 12:
                a('buffer_load_dwordx4 %s, v1, s[8:11], s15 offen offset:%d' % (vr(ring3(k, j), 4), 1024 * j))
                issued += 1
            if k == P3_TOK + 1 and n == 7:
                a('s_mov_b64 exec, 1')
                a('ds_add_u32 %s, %s offset:%d' % (vr(VK), vr(VC), TOK))
                a('s_mov_b64 exec, -1')
            if k in (4, 10):
                m = 0x0400 if k == 4 else 0x040000
                if n == 6:
                    a('ds_read_b32 %s, %s' % (vr(VT), vr(VN)))
                if n == 10:
                    a('v_readfirstlane_b32 s4, %s' % vr(VT))
                if n == 11:
                    a('s_andn2_b32 s4, 0x%x, s4' % m)
                    a('s_cbranch_scc1 s3_slow%d' % k)
                    a.label('s3_back%d' % k)
                    stamp(a, 'k%d' % k)
    a('s_setprio 0')
    a('s_lshr_b32 s24, s28, 1\ns_mul_i32 s24, s24, 3\ns_and_b32 s25, s28, 1')
    a('s_cmp_ge_u32 s18, 3')
    a('s_cbranch_scc1 s3_epib')
    stamp(a, 'pa')
    lds_spin(a, 's3_w1', VT, VZ, CNT, 0xff000000, 0x04000000)
    a('v_lshlrev_b32 %s, 2, v2' % vr(VT))
    for tt in range(4):
        a('ds_read_b32 %s, %s offset:%d' % (vr(RS + tt), vr(VT), 64 * tt))
    def img_s(dst, ks):
        a('s_lshr_b32 s6, %s, 1\ns_lshl_b32 s6, s6, 13\ns_and_b32 %s, %s, 1\ns_lshl_b32 %s, %s, 10\ns_add_u32 %s, %s, s6' % (ks, dst, ks, dst, dst, dst, dst))
    a('s_lshl_b32 s4, s25, 1\ns_add_u32 s4, s4, s24')
    img_s('s4', 's4')
    a('s_add_u32 s4, s4, %d' % HI)
    a('s_add_u32 s5, s24, 1')
    img_s('s5', 's5')
    a('s_lshl_b32 s6, s25, 3\ns_add_u32 s5, s5, s6\ns_add_u32 s5, s5, %d' % HI)
    a('s_waitcnt lgkmcnt(0)')
    a('v_add_u32 %s, s4, v1' % vr(VT))
    a('v_add_u32 %s, s5, v1' % vr(VC))
    C = BF + 28
    for tt in range(4):
        a('v_mul_f32 %s, 0x%x, %s' % (vr(C + tt), NLOG2E, vr(RS + tt)))
    T = BF
    units = [[(0, u), (1, u)] for u in range(4)] + [[(2, 0), (2, 1)], [(2, 2), (2, 3)]]
    for u, un in enumerate(units):
        idx = [(j, tt, r) for j, tt in un for r in range(4)]
        for n, (j, tt, r) in enumerate(idx):
            a('v_mul_f32 %s, %s, %s' % (vr(T + n), vr(acc(j, tt) + r), vr(C + tt)))
        for n in range(8):
            a('v_exp_f32 %s, %s' % (vr(T + n), vr(T + n)))
        for n in range(8):
            a('v_add_f32 %s, 1.0, %s' % (vr(T + n), vr(T + n)))
        for n in range(8):
            a('v_rcp_f32 %s, %s' % (vr(T + n), vr(T + n)))
        for n, (j, tt, r) in enumerate(idx):
            a('v_mul_f32 %s, %s, %s' % (vr(T + n), vr(acc(j, tt) + r), vr(T + n)))
        P = BF + 8 + 4 * (u % 4)
        for n in range(4):
            a('v_cvt_pk_bf16_f32 %s, %s, %s' % (vr(P + n), vr(T + 2 * n), vr(T + 2 * n + 1)))
        if u < 4:
            a('ds_write_b128 %s, %s offset:%d' % (vr(VT), vr(P, 4), 2048 * u))
        else:
            a('ds_write_b64 %s, %s offset:%d' % (vr(VC), vr(P, 2), 2048 * un[0][1]))
            a('ds_write_b64 %s, %s offset:%d' % (vr(VC), vr(P + 2, 2), 2048 * un[1][1]))
    a('v_mov_b32 %s, s27' % vr(VT))
    a('s_mov_b64 exec, 1')
    a('ds_add_u32 %s, %s offset:%d' % (vr(VZ), vr(VT), CNT))
    a('s_mov_b64 exec, -1')
    for b in range(3):
        a('s_add_u32 s%d, s%d, %d' % (30 + b, 30 + b, W2 - W1))
        a('v_add_u32 %s, %d, %s' % (vr(VA + b), HI - XI, vr(VA + b)))
    a('s_add_u32 s18, s18, 3')
    stamp(a, 'ea')
    a('v_mov_b32 %s, %d' % (vr(VN), CNT))
    a('s_branch s3_tok')
    for k, m in ((4, 0x0400), (10, 0x040000)):
        a.label('s3_slow%d' % k)
        lds_spin(a, 's3_sl%d' % k, VT, VN, 0, m, m)
        a('s_branch s3_back%d' % k)
    a.label('s3_epib')
    stamp(a, 'pb')
    a('s_setprio %d' % EPB_PRIO)
    a('s_lshl_b32 s4, s13, 5\ns_add_u32 s4, s4, s14\ns_mul_i32 s4, s4, 12\ns_add_u32 s4, s4, s28\ns_mul_i32 s4, s4, 6144')
    a('s_add_u32 s6, s4, s%d\ns_add_u32 s7, s6, 4096' % PRT)
    for u, un in enumerate(units):
        P = BF + 4 * u
        for n, (j, tt) in enumerate(un):
            for r in range(4):
                a('v_mul_f32 %s, %s, %s' % (vr(acc(j, tt) + r), vr(acc(j, tt) + r), vr(RS + tt)))
            a('v_cvt_pk_bf16_f32 %s, %s, %s' % (vr(P + 2 * n), vr(acc(j, tt)), vr(acc(j, tt) + 1)))
            a('v_cvt_pk_bf16_f32 %s, %s, %s' % (vr(P + 2 * n + 1), vr(acc(j, tt) + 2), vr(acc(j, tt) + 3)))
        if u >= 4:
            a('v_permlane16_swap_b32 %s, %s' % (vr(P), vr(P + 2)))
            a('v_permlane16_swap_b32 %s, %s' % (vr(P + 1), vr(P + 3)))
        a('buffer_store_dwordx4 %s, v1, s[8:11], s%d offen offset:%d sc1' % (vr(P, 4), 6 + (u >> 2), 1024 * (u & 3)))
    a('s_mul_i32 s22, s14, 12\ns_add_u32 s4, s22, s28\ns_lshl_b32 s4, s4, %d\ns_add_u32 s6, s4, %d' % (FSH, FL_RF))
    a('v_mov_b32 v4, 1')
    a('s_and_b32 s23, s28, 12\ns_lshr_b32 s4, s13, 1\ns_add_u32 s23, s23, s4')
    a('s_add_u32 s22, s22, s23')
    a('s_lshl_b32 s7, s22, %d\ns_add_u32 s7, s7, %d' % (FSH, FL_RF))
    a('s_and_b32 s29, s13, 1')
    a('s_lshr_b32 s24, s23, 1\ns_mul_i32 s24, s24, 3\ns_and_b32 s25, s23, 1')
    a('s_lshl_b32 s26, s29, 1')
    a('v_mov_b32 v8, v3\nv_mov_b32 v9, 0')
    a('s_cmp_eq_u32 s20, 2')
    a('s_cbranch_scc1 s3_mix')
    a('s_add_u32 s26, s26, s20\ns_mov_b32 s16, s26')
    a('s_lshl_b32 s4, s25, 1\ns_add_u32 s24, s24, s4')
    a('s_branch s3_adr')
    a.label('s3_mix')
    a('s_add_u32 s16, s29, 4\ns_add_u32 s24, s24, 1\ns_lshl_b32 s25, s25, 1')
    a('v_lshrrev_b32 v8, 1, v3\nv_add_u32 v8, s25, v8\nv_and_b32 v9, 1, v3')
    a.label('s3_adr')
    a('s_mul_i32 s22, s22, 6\ns_add_u32 s16, s16, s22\ns_lshl_b32 s16, s16, 10\ns_add_u32 s16, s16, s%d' % PRT)
    a('s_lshr_b32 s4, s24, 1\ns_lshl_b32 s4, s4, 2\ns_add_u32 s4, s4, s26\ns_lshl_b32 s4, s4, 1\ns_and_b32 s5, s24, 1\ns_add_u32 s4, s4, s5')
    a('s_lshl_b32 s4, s4, 10\ns_add_u32 s4, s4, %d' % XI)
    a('v_lshlrev_b32 v7, 8, v8')
    a('v_lshl_add_u32 v7, v2, 4, v7')
    a('v_lshl_add_u32 v6, v9, 11, v7')
    a('v_add_u32 v6, s4, v6')
    a('v_mul_u32_u24 v9, 18432, v9')
    a('s_lshl_b32 s4, s14, 2\ns_add_u32 s4, s4, s26\ns_mul_i32 s17, s4, 18432')
    a('s_mov_b32 s39, 0x20000')
    a('s_cmp_eq_u32 s%d, 0' % LAY)
    a('s_cbranch_scc0 s3_fin')
    a('s_mov_b32 s36, s8\ns_mov_b32 s37, s9\ns_mov_b32 s38, s10')
    a('s_lshl_b32 s4, s24, 10\ns_add_u32 s17, s17, s4\ns_add_u32 s17, s17, %d' % (X0 + ACT))
    a('s_branch s3_pu0')
    a.label('s3_fin')
    a('s_mov_b32 s36, s94\ns_mov_b32 s37, s95\ns_mov_b32 s38, %d' % ACT)
    a('s_lshl_b32 s4, s24, 6\ns_add_u32 s17, s17, s4')
    a('v_mul_u32_u24 v7, 1152, v2')
    a('v_lshl_add_u32 v7, v8, 4, v7')
    a.label('s3_pu0')
    a('v_add_u32 v7, v7, v9')
    a.label('s3_pub')
    a('s_cmp_eq_u32 s18, 5')
    a('s_cbranch_scc0 s3_pu2')
    a('s_mov_b64 exec, 1')
    a('ds_add_u32 %s, v4 offset:%d' % (vr(VK), TOK))
    a('s_mov_b64 exec, -1')
    a.label('s3_pu2')
    stamp(a, 'pst')
    a('s_waitcnt vmcnt(0)')
    stamp(a, 'pdr')
    mem_arrive(a, 6, VZ, 4)
    a('s_cmp_eq_u32 s20, 3')
    a('s_cbranch_scc1 s3_red_done')
    RX = 8; PP = 20; AC = 12
    a('ds_read_b128 %s, v6' % vr(RX, 4))
    mem_wait(a, 's3_rw', 7, RFW, VZ, 5, backoff=(18, 5, 4))
    stamp(a, 'rw0')
    thr = sum(t << (4 * (4 * l + g)) for l in range(2) for g, t in enumerate(RED_THR[l]))
    a('s_lshl_b32 s4, s%d, 2\ns_add_u32 s4, s4, s21\ns_lshl_b32 s4, s4, 2\ns_lshr_b32 s33, 0x%x, s4\ns_and_b32 s33, s33, 15' % (LAY, thr))
    lds_spin(a, 's3_t6r', VT, VK, TOK, 0, 0, ge=33)
    stamp(a, 'rw1')
    for c in range(8):
        a('buffer_load_dwordx4 %s, v1, s[8:11], s16 offen sc1' % vr(PP + 4 * c, 4))
        if c < 7:
            a('s_add_u32 s16, s16, %d' % ACT)
    a('s_waitcnt lgkmcnt(0)')
    for n in range(4):
        a('v_lshlrev_b32 %s, 16, %s' % (vr(AC + 2 * n), vr(RX + n)))
        a('v_and_b32 %s, 0xffff0000, %s' % (vr(AC + 2 * n + 1), vr(RX + n)))
    for c in range(8):
        a('s_waitcnt vmcnt(%d)' % (7 - c))
        for n in range(4):
            a('v_lshlrev_b32 %s, 16, %s' % (vr(RX + n), vr(PP + 4 * c + n)))
            a('v_and_b32 %s, 0xffff0000, %s' % (vr(PP + 4 * c + n), vr(PP + 4 * c + n)))
        for n in range(4):
            a('v_add_f32 %s, %s, %s' % (vr(AC + 2 * n), vr(AC + 2 * n), vr(RX + n)))
            a('v_add_f32 %s, %s, %s' % (vr(AC + 2 * n + 1), vr(AC + 2 * n + 1), vr(PP + 4 * c + n)))
    for n in range(4):
        a('v_cvt_pk_bf16_f32 %s, %s, %s' % (vr(RX + n), vr(AC + 2 * n), vr(AC + 2 * n + 1)))
    stamp(a, 'rsum')
    if OUT_ST != ' sc1':
        a('s_cmp_eq_u32 s%d, 0' % LAY)
        a('s_cbranch_scc1 s3_st0')
        a('buffer_store_dwordx4 %s, v7, s[36:39], s17 offen%s' % (vr(RX, 4), OUT_ST))
        a('s_branch s3_red_done')
        a.label('s3_st0')
    a('buffer_store_dwordx4 %s, v7, s[36:39], s17 offen sc1' % vr(RX, 4))
    a.label('s3_red_done')
    a('s_setprio 0')
    a('s_cmp_eq_u32 s%d, 0' % LAY)
    a('s_cbranch_scc0 mega_fin')
    a('s_waitcnt vmcnt(0)')
    if STAMPS:
        stamp_end(a, 6, 12, 12, 12, base_v=8)
        a('s_mov_b64 exec, -1')
        a('s_waitcnt vmcnt(0)')
        stamp(a, 0)
    a('s_mov_b32 s%d, 1\ns_mov_b32 s%d, %d\ns_mov_b32 s%d, 64\ns_mov_b32 s%d, 16' % (LAY, LOFF, ACT, CBW, RFW))
    a('s_add_u32 s%d, s%d, %d\ns_add_u32 s%d, s%d, %d' % (SOF, SOF, 32 * HSG, PRT, PRT, PART_STEP))
    a('s_lshl_b32 s6, s14, 2\ns_add_u32 s6, s6, s21\ns_lshl_b32 s6, s6, %d\ns_add_u32 s6, s6, %d' % (FSH, FL_GT))
    a('s_mov_b32 s33, %d\ns_mov_b32 s35, 0' % NX_TOK)
    a('s_cmp_eq_u32 s20, 3')
    a('s_cbranch_scc1 nx_load')
    mem_arrive(a, 6, VZ, 4)
    a('s_cmp_ge_u32 s12, 8')
    a('s_cbranch_scc1 s1_wo')
    lds_spin(a, 'nx_t1', VT, VK, TOK, 0, 0, ge=33)
    a('s_branch nx_fill')
    a.label('nx_load')
    lds_spin(a, 'nx_t2', VT, VK, TOK, 0, 0, ge=33)
    a('s_mov_b32 s7, 24')
    a('s_setprio 3')
    mem_wait(a, 'nx_w', 6, 7, VZ, 5, backoff=(12, 11, NX_SLEEP))
    stamp(a, 'e4')
    a('s_lshr_b32 s4, s28, 2')
    a('s_mul_i32 s22, s4, 6144\ns_mul_i32 s5, s14, 73728\ns_add_u32 s22, s22, s5\ns_add_u32 s22, s22, %d' % (X0 + ACT))
    a('s_mul_i32 s24, s4, 24576\ns_add_u32 s24, s24, %d' % XI)
    for p in range(3):
        for tt in range(4):
            a('s_add_u32 m0, s24, %d' % (8192 * p + 2048 * tt))
            a('s_add_u32 s23, s22, %d' % (2048 * p + 18432 * tt))
            for h in range(2):
                a('buffer_load_dwordx4 v1, s[8:11], s23 offen offset:%d sc1 lds' % (1024 * h))
    a('s_lshl_b32 s4, s27, 2')
    a('v_mov_b32 v5, s4')
    a('s_waitcnt vmcnt(0)')
    a('s_mov_b64 exec, 1')
    a('ds_add_u32 %s, v5 offset:%d' % (vr(VZ), XC1))
    a('s_mov_b64 exec, -1')
    a('s_setprio 0')
    a('s_cmp_eq_u32 s12, 11')
    a('s_cbranch_scc1 s1_wo')
    a('s_cmp_eq_u32 s12, 7')
    a('s_cbranch_scc1 nx_go')
    a.label('nx_fill')
    s1_fill(NX_DEPTH)
    a.label('nx_go')
    stamp(a, 'fil')
    lds_spin(a, 'nx_x0', 6, VZ, XC1, 4, 4)
    a('s_branch s1_go')
    a.label('mega_fin')
    if AMP:
        a('s_cmp_eq_u32 s2, 20\ns_cbranch_scc0 amp_x')
        a('s_cmp_eq_u32 s12, 8\ns_cbranch_scc0 amp_x')
        a('s_waitcnt vmcnt(0)')
        a('s_mov_b32 s4, %d' % (DBG - 4096))
        a('buffer_load_dword v8, %s, s[8:11], s4 offen' % vr(VZ))
        a('s_memrealtime s[40:41]')
        a('s_waitcnt vmcnt(0) lgkmcnt(0)')
        a('v_readfirstlane_b32 s42, v8')
        if AMP == 'all':
            a('s_sub_u32 s43, s40, s42')
        elif AMP == 'mega':
            a('s_sub_u32 s43, s40, s84')
        elif AMP == 'prep':
            a('s_sub_u32 s43, s84, s42')
        else:
            a('s_mov_b32 s43, 0')
        a('s_min_u32 s43, s43, 50000')
        a.label('amp_l')
        a('s_memrealtime s[44:45]')
        a('s_waitcnt lgkmcnt(0)')
        a('s_sub_u32 s44, s44, s40')
        a('s_cmp_lt_u32 s44, s43')
        a('s_cbranch_scc1 amp_l')
        a.label('amp_x')
    stamp_end(a, 7, 12, 12, 12, base_v=8)
    a.label('mega_end')
    a('s_endpgm')
    if SINGLE:
        a.lines = [l + ' sc1' if re.match(r'buffer_load_dwordx4 v\[\d+:\d+\], v1, s\[8:11\]', l) and 'sc1' not in l else l for l in a.lines]
    return (KNAME if SINGLE else 'mega_kernel', a, 168, 102, (256, 768, LDS))


def gen_pf():
    a = Asm()
    a('s_cmp_ge_u32 s2, 256')
    a('s_cbranch_scc1 pf_end')
    ws_srd(a)
    a('s_waitcnt lgkmcnt(0)')
    l2_touch(a, WQ, WQ_HG, NCX, 8, 2, 3)
    l2_touch(a, WO, 9 * 18432, 4, 4, 2, 3)
    a('s_waitcnt vmcnt(0)')
    a.label('pf_end')
    a('s_endpgm')
    return ('pf_kernel', a, 8, 24, (256, 64, 0))


def gen_empty(n=''):
    a = Asm()
    a('s_endpgm')
    return ('empty%s_kernel' % n, a, 8, 16, (256, 256, 0))


def gen_chain(slot):
    a = Asm()
    a('s_cmp_ge_u32 s2, 32')
    a('s_cbranch_scc1 chain_end')
    a('s_load_dwordx2 s[8:9], s[0:1], %d' % (8 * slot))
    a('s_mov_b32 s10, %d\ns_mov_b32 s11, 0x20000' % ACT)
    a('s_mul_i32 s4, s2, %d' % (64 * 1024))
    a('v_mov_b32 v1, 0')
    a('s_mov_b64 exec, 1')
    a('s_waitcnt lgkmcnt(0)')
    for k in range(64):
        a('buffer_load_dword v2, v1, s[8:11], s4 offen')
        a('s_waitcnt vmcnt(0)')
        a('v_and_b32 v2, 0, v2')
        a('v_add_u32 v1, 1024, v1')
        a('v_add_u32 v1, v2, v1')
    a.label('chain_end')
    a('s_endpgm')
    return ('chain_kernel', a, 8, 16, (32, 64, 0))


PRE = []
S1_R2 = 3
OUT_ST = ' sc1'
TLB_STEP = 0
WQ_TOUCH = False
PREP_OLD = ' nt'
PREP_REV = True
X0_LD = ''
PREP_TLD = ''
PREP_HOLD = False
PREP_T1 = 'h3'
PREP_TX = True
PREP_QT = True
PREP_1LD = ' nt'
W2_ST = 'w1'
RED_THR = ((5, 6), (5, 6))
WO_W1 = 7
S2_W5 = 6
WO_SPLIT = (6, 0, 0)
RED_TOUCH = 0
RED_TSTEP = 128
SFLAG = True
CB_SLEEP = 0
NX_TOK = 6
NX_DEPTH = None
NX_SLEEP = 4
S1_GATE = 8
S1_GATEN = 7
WO_TOUCH = True
P3_THR = (1, 2, 3, 4)
RED_MODE = 0
EPB_PRIO = 3
PREP_RANGES = ((0, 64), (64, 136), (136, 208), (208, 217), (217, 241))
PREP_QLD = ''
PREP_HLD = ''
PREP_H3 = True
PREP_ROT = 0
PREP_GLD = ''
NCX = 4
S2_WE = 6
S2_W0 = 2
S2_W1 = 1
P3_LEAD = 0
PART_STEP = 0
MID = []
KD_PF = False
P3_SLEEP = 0
P3_TOK = 10
P3_EPRIO2 = 0
P3_SPRIO = 3
PF1 = []
PF2 = []
PF3 = None
P0_LD = ''
P1_NCX = 4
P2_NCX = 4
P1_ST = ' sc1'
P2_W0 = 4
P2_W1 = 2
CODE_PF = True
PREP_ST = ' sc1'
PREP_XLD = ''
P3_LD = ''
P3_SNAKE = True
P3_EPRIO = 0
PF = False
P3_NODS = False
P3_NOLD = False
PRIO = True
P3_NCX = 4
P3_ST = ' sc1'


def build():
    if SINGLE:
        name, a, nv, ns, (g, b, l) = gen_mega()
        c, d = kernel_text(name, a, nv, ns)
        hdr = '; generated by gen/gen.py (hand-written generator); see that file for the layouts\n'
        hdr += '; @launch %sgrid=(%d,1,1) block=(%d,1,1) lds=%d\n' % ('kernel=%s ' % name if SINGLE == 'list' else '', g, b, l)
        return hdr + '.amdgcn_target "amdgcn-amd-amdhsa--gfx950"\n' + c + 'code_end:\n' + d
    ks = [gen_prep(), gen_mega()]
    for e in sorted(set(MID)):
        ks.append(gen_pf() if e == 'pf' else gen_empty(e[5:]))
    geo = {k[0]: k[4] for k in ks}
    order = ['prep'] + MID + ['mega']
    hdr = ['; generated by gen/gen.py (hand-written generator); see that file for the layouts']
    for o in order:
        g, b, l = geo[o + '_kernel']
        hdr.append('; @launch kernel=%s_kernel grid=(%d,1,1) block=(%d,1,1) lds=%d' % (o, g, b, l))
    out = '\n'.join(hdr) + '\n.amdgcn_target "amdgcn-amd-amdhsa--gfx950"\n'
    descs = ''
    for name, a, nv, ns, _ in ks:
        c, d = kernel_text(name, a, nv, ns)
        out += c
        descs += d
    out += 'code_end:\n'
    return out + '.section .rodata,"a"\n.p2align 6\nkd_begin:\n' + descs + 'kd_end:\n'


if __name__ == '__main__':
    path = sys.argv[1] if len(sys.argv) > 1 else 'cdna_kernels/%s.s' % NAME
    for o in sys.argv[2:]:
        k, v = o.split('=')
        globals()[k] = eval(v)
    open(path, 'w').write(build())
    print('wrote', path)
```

```python
import sys, re, os
from asmlib import Asm, vr, sr, kernel_text

NAME = 'interleave_layers__linear_attn_block__dense_activation_silu__prompt'
S, D, F = 2048, 576, 4608
ACT = S * D * 2
WQ_HG = 258048
WQ = 0
WO = WQ + 8 * WQ_HG
W1 = WO + 36 * 18432
W2 = W1 + D * F * 2
X0 = W2 + D * F * 2
X1 = X0 + 2 * ACT
PQ = X1 + 2 * ACT
HS = 1536
HSG = int(os.environ.get('HSG', 1536))
FST = int(os.environ.get('FST', 128))
FSH = FST.bit_length() - 1
SS = PQ + 2 * ACT
FL = SS + 64 * HSG
FL_GB = FL
FL_CB = FL + 32 * FST
FL_CW = FL + 40 * FST
FL_C0 = FL + 48 * FST
FL_RF = FL + 64 * FST
FL_GT = FL + 448 * FST
FL_CR = FL + 576 * FST
NREP = int(os.environ.get('NREP', 1))
ZERO_KB = -(-(64 * HSG + (576 + 128 * NREP) * FST) // (36 * 1024))
FL_RL = SS + 36 * 1024 * ZERO_KB
PART = FL_RL + 4096
WS_BYTES = 268435456
OOB = 0x80000000
LOG2E = 0x3fb8aa3b
NLOG2E = 0xbfb8aa3b
EPS6 = 0x358637bd
EPS5 = 0x3727c5ac
INV576 = 0x3ae38e39
ONES = 0x3f803f80
MF = 'v_mfma_f32_16x16x32_bf16'


def mfma(a, d, x, y, c=None):
    a('%s %s, %s, %s, %s' % (MF, vr(d, 4), vr(x, 4), vr(y, 4), '0' if c is None else vr(c, 4)))


def ws_srd(a):
    a('s_load_dwordx2 s[8:9], s[0:1], 64')
    a('s_mov_b32 s10, 0x%x' % WS_BYTES)
    a('s_mov_b32 s11, 0x20000')


def wave_id(a, sdst, vtmp):
    a('v_lshrrev_b32 %s, 6, v0' % vr(vtmp))
    a('v_readfirstlane_b32 %s, %s' % (sr(sdst), vr(vtmp)))
    a('v_and_b32 v0, 63, v0')


DBG = 128 << 20
STAMPS = False
SINGLE = 'list'
KNAME = NAME + '_kernel'
AMP = None
DBGOUT = 0


SEL = ['x1', 's1m', 's1d', 'e1a', 'e1b', 'o', 's2d', 'x3', 'pa', 'pb']


def stamp(a, i):
    if SINGLE and i in (1, 2, 3):
        i = 'p%d' % i
    if isinstance(i, str):
        if i not in SEL:
            return
        i = SEL.index(i) + 1
    if STAMPS:
        a('s_mem%stime s[%d:%d]' % ('real' if STAMPS == 2 else '', 60 + 2 * i, 61 + 2 * i))


def stamp_begin(a):
    if STAMPS:
        a('s_memrealtime s[56:57]')
        stamp(a, 0)


def stamp_end(a, kid, n, s_wave, nw, base_v=2):
    if not STAMPS:
        return
    a('s_waitcnt vmcnt(0)')
    stamp(a, n - 1)
    a('s_memrealtime s[58:59]')
    a('s_getreg_b32 s55, hwreg(HW_REG_XCC_ID)')
    a('s_getreg_b32 s54, hwreg(HW_REG_HW_ID)')
    a('s_mov_b64 exec, -1')
    a('s_mul_i32 s4, s2, %d\ns_add_u32 s4, s4, %s\ns_lshl_b32 s4, s4, 6\ns_add_u32 s4, s4, %d' % (nw, sr(s_wave), DBG + (kid << 20)))
    a('s_waitcnt lgkmcnt(0)')
    d, o = base_v, base_v + 1
    a('v_mov_b32 v%d, 0' % d)
    for i in range(n):
        a('v_writelane_b32 v%d, s%d, %d' % (d, 60 + 2 * i, i))
    a('v_writelane_b32 v%d, s54, 12' % d)
    a('v_writelane_b32 v%d, s55, 13' % d)
    a('v_writelane_b32 v%d, s56, 14' % d)
    a('v_writelane_b32 v%d, s58, 15' % d)
    a('v_mbcnt_lo_u32_b32 v%d, -1, 0' % o)
    a('v_lshlrev_b32 v%d, 2, v%d' % (o, o))
    a('s_mov_b64 exec, 0xffff')
    a('buffer_store_dword v%d, v%d, s[8:11], s4 offen' % (d, o))
    if DBGOUT and kid in (0, 6, 7):
        L = 'dbgo%d_%d' % (kid, len(a.lines))
        a('s_cmp_eq_u32 s2, %d\ns_cbranch_scc0 %s' % (DBGOUT, L))
        a('s_cmp_eq_u32 %s, %d\ns_cbranch_scc0 %s' % (sr(s_wave), 0 if kid == 0 else 8, L))
        a('s_load_dwordx2 s[40:41], s[0:1], 56')
        a('s_mov_b32 s42, 1024\ns_mov_b32 s43, 0x20000')
        a('s_waitcnt lgkmcnt(0)')
        if kid == 0:
            a('s_mov_b64 exec, 0xc000')
            a('buffer_store_dword v%d, v%d, s[40:43], 0 offen' % (d, o))
            a('buffer_store_dword v%d, v%d, s[40:43], 0 offen offset:512' % (d, o))
        else:
            a('s_sub_u32 s40, s40, 512\ns_subb_u32 s41, s41, 0')
            a('v_writelane_b32 v%d, s58, 6' % d)
            a('s_mov_b64 exec, 0x7f')
            a('buffer_store_dword v%d, v%d, s[40:43], 0 offen offset:%d' % (d, o, 28 * (kid - 6)))
            a('buffer_store_dword v%d, v%d, s[40:43], 0 offen offset:%d' % (d, o, 512 + 28 * (kid - 6)))
        a.label(L)


def centre(a, nw, nk, nt, fr, ON, CS, s_w, lds_cs, store):
    for k in range(4):
        a('v_mov_b32 %s, 0x%x' % (vr(ON + k), ONES))
    for k in range(nk):
        for c in range(nt):
            mfma(a, CS + 4 * c, ON, fr(k, c), None if k == 0 else CS + 4 * c)
    a('v_mul_u32_u24 v4, %d, v2' % (16 * nw))
    a('s_lshl_b32 s4, %s, 4' % sr(s_w))
    a('v_add_u32 v5, s4, v4')
    for c in range(1, nt):
        a('v_mov_b32 %s, %s' % (vr(CS + c), vr(CS + 4 * c)))
    a('ds_write_b128 v5, %s offset:%d' % (vr(CS, 4), lds_cs))
    a('s_waitcnt lgkmcnt(0)')
    a('s_barrier')
    for w in range(nw):
        a('ds_read_b128 %s, v4 offset:%d' % (vr(CS + 4 * w, 4), lds_cs + 16 * w))
    a('s_waitcnt lgkmcnt(0)')
    for w in range(1, nw):
        for c in range(nt):
            a('v_add_f32 %s, %s, %s' % (vr(CS + c), vr(CS + c), vr(CS + 4 * w + c)))
    for c in range(nt):
        a('v_mul_f32 %s, 0x%x, %s' % (vr(CS + 8 + 2 * c), INV576 | 0x80000000, vr(CS + c)))
    for k in range(nk):
        for c in range(nt):
            f = fr(k, c)
            for p in range(4):
                a('v_lshlrev_b32 %s, 16, %s' % (vr(12 + 2 * p), vr(f + p)))
                a('v_and_b32 %s, 0xffff0000, %s' % (vr(13 + 2 * p), vr(f + p)))
            for p in range(4):
                a('v_pk_add_f32 %s, %s, %s op_sel_hi:[1,0]' % (vr(12 + 2 * p, 2), vr(12 + 2 * p, 2), vr(CS + 8 + 2 * c, 2)))
            for p in range(4):
                a('v_cvt_pk_bf16_f32 %s, %s, %s' % (vr(f + p), vr(12 + 2 * p), vr(13 + 2 * p)))
            store(k, c)


G_W1, G_WO, G_Z, G_H = 48, 192, 210, 216


def gen_prep(a):
    NW = 6; NK = 3
    LCS = 0; LB = 3072; LW = 12288
    FR = 24; ON = 8; CS = FR + 12 * NK
    a('s_load_dwordx4 s[24:27], s[0:1], 0')
    a('s_load_dwordx4 s[32:35], s[0:1], 32')
    a('s_load_dwordx2 s[28:29], s[0:1], 16')
    ws_srd(a)
    wave_id(a, 3, 1)
    a('v_lshlrev_b32 v1, 4, v0')
    a('v_and_b32 v2, 15, v0')
    a('v_lshrrev_b32 v3, 4, v0')
    a('s_mov_b32 s15, 0x20000')
    a('s_and_b32 s30, s2, 7\ns_lshr_b32 s31, s2, 3')
    a('s_cmp_ge_u32 s3, %d' % NW)
    a('s_cbranch_scc1 prep_hi')
    a('s_mov_b32 s47, 0')
    a('s_mul_i32 s22, s3, %d\ns_add_u32 s22, s22, %d' % (LW, LB))
    a('s_cmp_lt_u32 s2, %d' % G_W1)
    a('s_cbranch_scc1 prep_q')
    a('s_cmp_ge_u32 s2, %d' % G_WO)
    a('s_cbranch_scc1 prep_o')
    a('s_sub_u32 s4, s31, %d\ns_and_b32 s5, s4, 1\ns_lshr_b32 s4, s4, 1\ns_lshl_b32 s4, s4, 3\ns_add_u32 s4, s4, s30' % (G_W1 // 8))
    a('s_lshl_b32 s21, s4, 1\ns_add_u32 s21, s21, s5')
    a('s_sub_u32 s20, 5, s3\ns_cmp_eq_u32 s5, %d\ns_cselect_b32 s20, s20, s3' % (1 if PREP_REV else 2))
    a('s_mul_i32 s19, s20, %d\ns_lshl_b32 s4, s21, 6\ns_add_u32 s19, s19, s4' % (96 * 9216))
    a('v_lshrrev_b32 v4, 2, v0\nv_mul_u32_u24 v4, %d, v4' % (9216 - 64))
    a('v_add_u32 v4, v4, v1')
    a('s_mov_b32 s14, %d' % (D * F * 2))
    a('s_waitcnt lgkmcnt(0)')
    a('s_mov_b32 s12, s32\ns_mov_b32 s13, s33')
    if PREP_REV == 2:
        a('s_mul_i32 s4, s5, %d\ns_add_u32 s23, s22, s4\ns_mul_i32 s4, s5, %d\ns_add_u32 s19, s19, s4' % (1024 * 5, 16 * 9216 * 5))
        a('s_lshl_b32 s4, s5, 1\ns_sub_u32 s4, 1, s4\ns_lshl_b32 s16, s4, 10\ns_mul_i32 s17, s4, %d' % (16 * 9216))
    for n in range(2 * NK):
        if PREP_REV == 2:
            a('s_mov_b32 m0, s23')
            a('s_add_u32 s23, s23, s16')
            a('buffer_load_dwordx4 v4, s[12:15], s19 offen%s lds' % PREP_1LD)
            a('s_add_u32 s19, s19, s17')
        else:
            a('s_add_u32 m0, s22, %d' % (1024 * n))
            a('s_add_u32 s4, s19, %d' % (16 * 9216 * n))
            a('buffer_load_dwordx4 v4, s[12:15], s4 offen%s lds' % PREP_1LD)
    for c in range(2):
        a('s_lshl_b32 s4, s21, 1\ns_add_u32 s4, s4, %d\ns_mul_i32 s5, s4, 43691\ns_lshr_b32 s5, s5, 17' % c)
        a('s_mul_i32 s6, s5, 3\ns_sub_u32 s4, s4, s6')
        a('s_and_b32 s6, s5, 1\ns_lshl_b32 s6, s6, 1\ns_add_u32 s4, s4, s6')
        a('s_cmp_ge_u32 s4, 3\ns_cselect_b32 s6, 3, 0\ns_sub_u32 s4, s4, s6')
        a('s_mul_i32 s6, s5, 54\ns_add_u32 s4, s4, s6\ns_mul_i32 s6, s20, %d\ns_add_u32 s4, s4, s6' % (3 * NK))
        a('s_lshl_b32 s4, s4, 10\ns_add_u32 s%d, s4, %d' % (36 + c, W1))
    a('s_mov_b32 s17, 3072\ns_mov_b32 s18, 4\ns_mov_b32 s19, 8')
    a.label('prep_tr')
    stamp(a, 1)
    fr = lambda k, c: FR + (k * 2 + c) * 4
    a('v_lshlrev_b32 v5, 9, v3')
    a('v_and_b32 v6, 12, v0')
    a('v_lshl_add_u32 v5, v6, 4, v5')
    a('v_and_b32 v6, 3, v0')
    a('v_lshl_add_u32 v5, v6, s18, v5')
    a('v_add_u32 v5, s22, v5')
    a('v_add_u32 v6, s19, v5')
    for k in range(NK):
        a('s_waitcnt vmcnt(%d)' % (0 if PREP_REV == 2 else 2 * (NK - 1 - k)))
        for c in range(2):
            for hi in range(2):
                a('ds_read_b64_tr_b16 %s, v%d offset:%d' % (vr(fr(k, c) + 2 * hi, 2), 5 + c, 2048 * k + 256 * hi))
    a('s_waitcnt lgkmcnt(0)')
    stamp(a, 2)

    def st2(k, c):
        a('buffer_store_dwordx4 %s, v1, s[8:11], s%d offen sc1' % (vr(fr(k, c), 4), 36 + c))
        a('s_add_u32 s%d, s%d, s17' % (36 + c, 36 + c))
    a('s_cmp_ge_u32 s2, %d' % G_WO)
    a('s_cbranch_scc1 prep_st')
    centre(a, NW, NK, 2, fr, ON, CS, 3, LCS, st2)
    stamp(a, 3)
    a('s_branch prep_join')
    a.label('prep_q')
    fq = lambda k, c: FR + (k * 3 + c) * 4
    a('s_and_b32 s21, s31, 1\ns_lshr_b32 s31, s31, 1')
    a('s_lshl_b32 s4, s30, 1\ns_add_u32 s4, s4, s21\ns_mul_i32 s4, s4, 72\ns_and_b32 s20, s4, 63\ns_sub_u32 s4, s4, s20')
    a('s_mul_i32 s19, s3, %d\ns_add_u32 s19, s19, s4\ns_mul_i32 s4, s31, 1152\ns_add_u32 s19, s19, s4' % (96 * 3456))
    a('v_lshrrev_b32 v4, 3, v0\nv_mul_u32_u24 v4, %d, v4' % (3456 - 128))
    a('v_add_u32 v4, v4, v1')
    a('s_mov_b32 s14, %d' % (D * 3 * D * 2))
    a('s_waitcnt lgkmcnt(0)')
    a('s_mov_b32 s12, s26\ns_mov_b32 s13, s27')
    for n in range(4 * NK):
        a('s_add_u32 m0, s22, %d' % (1024 * n))
        a('s_add_u32 s4, s19, %d' % (8 * 3456 * n))
        a('buffer_load_dwordx4 v4, s[12:15], s4 offen%s lds' % PREP_QLD)
    stamp(a, 1)
    a('v_bfe_u32 v6, v0, 2, 2')
    a('v_lshl_add_u32 v6, v3, 3, v6')
    a('s_add_u32 s22, s22, s20')
    a('v_lshl_add_u32 v6, v6, 7, s22')
    a('v_and_b32 v5, 3, v0')
    a('v_lshl_add_u32 v5, v5, 3, v6')
    a('s_mul_i32 s16, s30, 252\ns_mul_i32 s4, s3, %d\ns_add_u32 s16, s16, s4' % (2 * NK))
    a('s_lshr_b32 s5, s31, 1')
    a('s_lshl_b32 s6, s21, 1\ns_add_u32 s6, s6, 8\ns_lshl_b32 s7, s21, 2\ns_add_u32 s7, s7, s5')
    a('s_lshl_b32 s18, s5, 1\ns_add_u32 s18, s18, s21\ns_lshl_b32 s18, s18, 2\ns_lshl_b32 s23, s21, 3')
    a('s_cmp_eq_u32 s31, 0')
    a('s_cselect_b32 s36, s6, s7\ns_cselect_b32 s37, 1, 2\ns_cselect_b32 s38, 13, 12')
    a('s_cselect_b32 s42, 0x00ff00ff, 0\ns_cselect_b32 s43, 0, 0x000f000f\ns_cselect_b32 s18, s23, s18')
    a('s_or_b32 s42, s42, s43\ns_lshl_b32 s42, s42, s18')
    a('s_add_u32 s37, s37, s36')
    for c in range(3):
        a('s_lshr_b32 s4, s%d, 1\ns_mul_i32 s4, s4, 34\ns_add_u32 s4, s4, s%d\ns_add_u32 s4, s4, s16' % (36 + c, 36 + c))
        a('s_lshl_b32 s4, s4, 10\ns_add_u32 s%d, s4, %d' % (36 + c, WQ))
    for k in range(NK):
        a('s_waitcnt vmcnt(%d)' % (4 * (NK - 1 - k)))
        for c in range(3):
            for hi in range(2):
                a('ds_read_b64_tr_b16 %s, v%d offset:%d' % (vr(fq(k, c) + 2 * hi, 2), 5 if c < 2 else 6, 4096 * k + 512 * hi + (0, 40, 32)[c]))
        a('s_waitcnt lgkmcnt(%d)' % (6 if k + 1 < NK else 0))
    stamp(a, 2)

    def st3(k, c):
        if c == 2:
            a('s_mov_b32 exec_lo, s42\ns_mov_b32 exec_hi, s42')
        a('buffer_store_dwordx4 %s, v1, s[8:11], s%d offen offset:%d sc1' % (vr(fq(k, c), 4), 36 + c, 2048 * (k & 1)))
        if c == 2:
            a('s_mov_b64 exec, -1')
        if k == 1:
            a('s_add_u32 s%d, s%d, 4096' % (36 + c, 36 + c))
    centre(a, NW, NK, 3, fq, ON, CS, 3, LCS, st3)
    stamp(a, 3)
    a('s_branch prep_join')
    a.label('prep_hi')
    a('s_mov_b32 s47, 1')
    a('s_cmp_ge_u32 s3, 8')
    a('s_cbranch_scc1 prep_i8')
    a('s_lshl_b32 s31, s31, 1\ns_add_u32 s31, s31, s3\ns_sub_u32 s31, s31, %d' % (6 + G_W1 // 4))
    a('s_cmp_ge_u32 s31, %d' % (51 if PREP_QT else 0))
    a('s_cbranch_scc1 prep_bar')
    a('s_setprio 3')
    a('s_mul_i32 s5, s31, 3856\ns_lshr_b32 s5, s5, 16\ns_mul_i32 s6, s5, 17\ns_sub_u32 s4, s31, s6\ns_add_u32 s4, s4, 1')
    a('s_mul_i32 s19, s4, %d\ns_mul_i32 s5, s5, 1152\ns_add_u32 s19, s19, s5\ns_lshl_b32 s5, s30, 7\ns_add_u32 s19, s19, s5' % (32 * 3456))
    a('v_lshrrev_b32 v4, 1, v0\nv_mul_u32_u24 v4, 3456, v4\nv_and_b32 v6, 1, v0')
    a('v_lshl_add_u32 v4, v6, 7, v4')
    a('s_mov_b32 s14, %d' % (D * 3 * D * 2))
    a('s_waitcnt lgkmcnt(0)')
    a('s_mov_b32 s12, s26\ns_mov_b32 s13, s27')
    a('buffer_load_dword v22, v4, s[12:15], s19 offen%s' % PREP_HLD)
    a('s_setprio 0')
    a('s_branch prep_bar')
    a.label('prep_i8')
    a('s_cmp_eq_u32 s3, 11')
    a('s_cbranch_scc1 prep_i11')
    if TLB_STEP:
        a('s_cmp_eq_u32 s3, 9')
        a('s_cbranch_scc0 prep_i9')
        a('v_lshlrev_b32 v4, %d, v0' % TLB_STEP)
        a('s_waitcnt lgkmcnt(0)')
        a('s_mov_b32 s12, s8\ns_mov_b32 s13, s9\ns_mov_b32 s14, %d' % (PART + 8 * ACT + PART_STEP))
        for n in range(-(-(PART + 8 * ACT + PART_STEP) // (64 << TLB_STEP))):
            a('s_mov_b32 s4, %d' % (n * (64 << TLB_STEP)))
            a('buffer_load_dword v20, v4, s[12:15], s4 offen sc1 nt')
        a('s_mov_b32 s12, s94\ns_mov_b32 s13, s95\ns_mov_b32 s14, %d' % ACT)
        a('buffer_load_dword v21, v4, s[12:15], 0 offen sc1 nt')
        a('s_branch prep_bar')
        a.label('prep_i9')
    a('s_cmp_eq_u32 s3, 8')
    a('s_cbranch_scc0 prep_bar')
    a('s_getpc_b64 s[4:5]')
    a.label('prep_pc')
    a('s_sub_u32 s4, s4, prep_pc-%s' % KNAME)
    a('s_subb_u32 s5, s5, 0')
    a('s_mul_i32 s6, s31, 1536')
    a('v_lshl_add_u32 v4, v0, 7, s6')
    a('v_min_u32 v4, code_end-%s-4, v4' % KNAME)
    a('s_mov_b64 exec, 0xfff')
    a('global_load_dword v20, v4, s[4:5]')
    a('s_mov_b64 exec, -1')
    a('s_branch prep_bar')
    a.label('prep_o')
    a('s_cmp_ge_u32 s2, %d' % G_H)
    a('s_cbranch_scc1 prep_x')
    a('s_cmp_ge_u32 s2, %d' % G_Z)
    a('s_cbranch_scc1 prep_z')
    a('s_sub_u32 s21, s2, %d' % G_WO)
    a('s_lshl_b32 s4, s30, 1\ns_lshr_b32 s5, s21, 3\ns_add_u32 s4, s4, s5\ns_cmp_lt_u32 s21, 16\ns_cselect_b32 s21, s4, s21')
    a('s_sub_u32 s23, 5, s3\ns_and_b32 s4, s21, 1\ns_cselect_b32 s23, s23, s3')
    a('v_bfe_u32 v8, v0, 2, 3\nv_lshrrev_b32 v7, 5, v0\nv_and_b32 v9, 3, v0\nv_lshlrev_b32 v9, 4, v9')
    a('v_lshrrev_b32 v10, 2, v8\nv_and_b32 v11, 3, v8')
    a('v_mad_u32_u24 v10, v10, 20, v11')
    a('v_lshl_add_u32 v10, v7, 2, v10')
    a('v_mul_u32_u24 v10, 1152, v10')
    a('v_add_u32 v10, v10, v9')
    a('v_lshrrev_b32 v11, 1, v8\nv_mul_u32_u24 v11, 72, v11\nv_and_b32 v4, 1, v8\nv_add_u32 v11, v11, v4')
    a('v_lshl_add_u32 v11, v7, 1, v11')
    a('v_mul_u32_u24 v11, 1152, v11')
    a('v_add_u32 v11, v11, v9')
    a('s_mov_b32 s14, %d' % (D * D * 2))
    a('s_lshl_b32 s18, s21, 6')
    a('s_waitcnt lgkmcnt(0)')
    a('s_mov_b32 s12, s28\ns_mov_b32 s13, s29')
    for k in range(NK):
        a('s_mul_i32 s4, s23, %d\ns_add_u32 s4, s4, %d' % (NK, k))
        a('s_mul_i32 s19, s4, 36\ns_sub_u32 s5, s4, 16\ns_mul_i32 s5, s5, 288\ns_add_u32 s5, s5, 16')
        a('s_cmp_lt_u32 s4, 16')
        a('s_cselect_b32 s19, s19, s5\ns_cselect_b32 s20, 8, 36\ns_cselect_b64 vcc, -1, 0')
        a('s_mul_i32 s19, s19, 1152\ns_add_u32 s19, s19, s18\ns_mul_i32 s20, s20, 1152\ns_add_u32 s20, s20, s19')
        a('v_cndmask_b32 v4, v11, v10, vcc')
        for h in range(2):
            a('s_add_u32 m0, s22, %d' % (2048 * k + 1024 * h))
            a('s_nop 0')
            a('buffer_load_dwordx4 v4, s[12:15], s%d offen%s lds' % (19 + h, PREP_OLD))
    for c in range(2):
        a('s_lshl_b32 s4, s21, 1\ns_add_u32 s4, s4, %d\ns_mul_i32 s4, s4, 18\ns_mul_i32 s5, s23, %d\ns_add_u32 s4, s4, s5' % (c, NK))
        a('s_lshl_b32 s4, s4, 10\ns_add_u32 s%d, s4, %d' % (36 + c, WO))
    a('s_mov_b32 s17, 1024')
    a('s_lshr_b32 s4, 0x2010, s21\ns_and_b32 s4, s4, 1\ns_cselect_b32 s18, 3, 4\ns_cselect_b32 s19, 32, 8')
    a('s_branch prep_tr')
    a.label('prep_st')
    for k in range(NK):
        for c in range(2):
            st2(k, c)
    stamp(a, 3)
    a('s_branch prep_bar')
    a.label('prep_z')
    a('s_sub_u32 s16, s2, %d\ns_mul_i32 s16, s16, 6\ns_add_u32 s16, s16, s3\ns_mul_i32 s16, s16, %d\ns_add_u32 s16, s16, %d' % (G_Z, 1024 * ZERO_KB, SS))
    for k in range(4):
        a('v_mov_b32 v%d, 0' % (16 + k))
    a('s_waitcnt lgkmcnt(0)')
    for k in range(ZERO_KB):
        a('buffer_store_dwordx4 v[16:19], v1, s[8:11], s16 offen offset:%d sc1' % (1024 * (k % 4)))
        if k % 4 == 3:
            a('s_add_u32 s16, s16, 4096')
    a('s_branch prep_bar')
    a.label('prep_x')
    a('s_mov_b32 s47, 1')
    if PREP_TX:
        a('s_sub_u32 s4, s31, %d\ns_mul_i32 s4, s4, 6\ns_add_u32 s4, s4, s3\ns_mul_i32 s4, s4, 78' % (G_H // 8))
        a('s_mul_i32 s19, s30, 2304\ns_add_u32 s19, s19, s4\ns_lshl_b32 s19, s19, 7\ns_add_u32 s18, s19, %d' % (39 * 128))
        a('v_lshlrev_b32 v4, 7, v0')
        a('s_mov_b32 s14, %d\ns_mov_b32 exec_hi, 0x7f' % ACT)
        a('s_waitcnt lgkmcnt(0)')
        a('s_mov_b32 s12, s24\ns_mov_b32 s13, s25')
        a('buffer_load_dword v20, v4, s[12:15], s19 offen%s' % PREP_XLD)
        a('buffer_load_dword v21, v4, s[12:15], s18 offen%s' % PREP_XLD)
        a('s_mov_b32 exec_hi, -1')
    a('s_branch prep_bar')
    a.label('prep_i11')
    xcd_map(a, NCX, 13, 14)
    a('s_lshl_b32 s51, s14, 7\ns_lshl_b32 s4, s13, 2\ns_add_u32 s51, s51, s4\ns_add_u32 s51, s51, %d' % FL_RL)
    a('s_mov_b32 s6, 0')
    a('s_waitcnt lgkmcnt(0)')
    a('s_atomic_swap s6, s[8:9], s51 glc')
    a.label('prep_bar')
    a('s_barrier')
    a.label('prep_join')


def late_test(a):
    a('s_sub_u32 s4, s2, %d\ns_cmp_lt_u32 s4, %d\ns_cselect_b32 s4, 0, s2\ns_cmp_lt_u32 s4, %d' % (G_Z, G_H - G_Z, G_W1))


def xcd_map(a, ncx, s_c, s_r, nc=8):
    lg = ncx.bit_length() - 1
    ng = nc // ncx
    lgg = ng.bit_length() - 1
    a('s_and_b32 s4, s2, 7\ns_lshr_b32 s5, s2, 3')
    a('s_and_b32 s6, s4, %d\ns_lshl_b32 s6, s6, %d\ns_and_b32 s7, s5, %d\ns_add_u32 %s, s6, s7' % (ng - 1, lg, ncx - 1, sr(s_c)))
    a('s_lshr_b32 s6, s4, %d\ns_mul_i32 s6, s6, %d\ns_lshr_b32 s7, s5, %d\ns_add_u32 %s, s6, s7' % (lgg, 32 // ncx, lg, sr(s_r)))


def l2_touch(a, base, part_bytes, ncx, nc, v_t, v_d, share=1, s_sub=None):
    ng = nc // ncx
    lines = ncx * part_bytes // 128
    per = -(-lines // (32 * share))
    n = -(-per // 64)
    a('s_and_b32 s4, s2, %d\ns_mul_i32 s4, s4, %d\ns_add_u32 s4, s4, %d' % (ng - 1, ncx * part_bytes, base))
    a('s_lshr_b32 s5, s2, 3')
    if share > 1:
        a('s_mul_i32 s5, s5, %d\ns_add_u32 s5, s5, %s' % (share, sr(s_sub)))
    a('s_mul_i32 s5, s5, %d' % per)
    for i in range(n):
        a('v_add_u32 %s, %d, v0' % (vr(v_t), 64 * i))
        if (i + 1) * 64 > per:
            a('v_min_u32 %s, %d, %s' % (vr(v_t), per - 1, vr(v_t)))
        a('v_add_u32 %s, s5, %s' % (vr(v_t), vr(v_t)))
        a('v_min_u32 %s, %d, %s' % (vr(v_t), lines - 1, vr(v_t)))
        a('v_lshlrev_b32 %s, 7, %s' % (vr(v_t), vr(v_t)))
        a('buffer_load_dword %s, %s, s[8:11], s4 offen' % (vr(v_d), vr(v_t)))


def x_dma(a, nk, s_g, s_l, v_l16):
    for k in range(nk):
        a('s_mov_b32 m0, %s' % sr(s_l))
        if k < nk - 1:
            a('s_add_u32 %s, %s, 4096' % (sr(s_l), sr(s_l)))
        else:
            a('s_nop 0')
        a('buffer_load_dwordx4 %s, s[8:11], %s offen sc1 lds' % (vr(v_l16), sr(s_g)))
        if k < nk - 1:
            a('s_add_u32 %s, %s, 1024' % (sr(s_g), sr(s_g)))


def stats_prepass(a, nk, v_addr, v_fr, v_ones, v_res, v_t, v_g, v_tmp, v_dst):
    for k in range(nk):
        a('ds_read_b128 %s, %s offset:%d' % (vr(v_fr + 4 * k, 4), vr(v_addr), 4096 * k))
    for k in range(4):
        a('v_mov_b32 %s, 0x%x' % (vr(v_ones + k), ONES))
    for k in range(nk):
        a('s_waitcnt lgkmcnt(%d)' % (nk - 1 - k))
        f = v_fr + 4 * k
        mfma(a, v_res, v_ones, f, None if k == 0 else v_res)
        mfma(a, v_res + 4, f, f, None if k == 0 else v_res + 4)
    a('s_mov_b32 s40, 0x22222222\ns_mov_b32 s41, 0x22222222')
    a('s_mov_b32 s42, 0x44444444\ns_mov_b32 s43, 0x44444444')
    a('s_mov_b32 s44, 0x88888888\ns_mov_b32 s45, 0x88888888')
    a('v_cndmask_b32 %s, %s, %s, s[40:41]' % (vr(v_res + 1), vr(v_res + 4), vr(v_res + 5)))
    a('v_cndmask_b32 %s, %s, %s, s[42:43]' % (vr(v_res + 1), vr(v_res + 1), vr(v_res + 6)))
    a('v_cndmask_b32 %s, %s, %s, s[44:45]' % (vr(v_res + 1), vr(v_res + 1), vr(v_res + 7)))
    a('s_mov_b32 exec_lo, 0x00f0000f\ns_mov_b32 exec_hi, 0xf0000f00')
    a('ds_write_b64 %s, %s' % (vr(v_dst), vr(v_res, 2)))
    a('s_mov_b64 exec, -1')


def stats_final(a, nparts, lds_stats, v_lane, v_tmp):
    a('v_lshlrev_b32 %s, 3, %s' % (vr(v_tmp + 6), vr(v_lane)))
    for p in range(nparts):
        a('ds_read_b64 %s, %s offset:%d' % (vr(v_tmp + 2 * p, 2), vr(v_tmp + 6), p * 512))
    a('s_waitcnt lgkmcnt(0)')
    for p in range(1, nparts):
        a('v_add_f32 %s, %s, %s' % (vr(v_tmp), vr(v_tmp), vr(v_tmp + 2 * p)))
        a('v_add_f32 %s, %s, %s' % (vr(v_tmp + 1), vr(v_tmp + 1), vr(v_tmp + 2 * p + 1)))
    a('v_mul_f32 %s, 0x%x, %s' % (vr(v_tmp), INV576, vr(v_tmp)))
    a('v_mul_f32 %s, 0x%x, %s' % (vr(v_tmp + 1), INV576, vr(v_tmp + 1)))
    a('v_fma_f32 %s, -%s, %s, %s' % (vr(v_tmp + 1), vr(v_tmp), vr(v_tmp), vr(v_tmp + 1)))
    a('v_max_f32 %s, 0, %s' % (vr(v_tmp + 1), vr(v_tmp + 1)))
    a('v_add_f32 %s, 0x%x, %s' % (vr(v_tmp + 1), EPS5, vr(v_tmp + 1)))
    a('v_rsq_f32 %s, %s' % (vr(v_tmp), vr(v_tmp + 1)))


def diag_select(a, dst, src, masks=(0x22222222, 0x44444444, 0x88888888)):
    for i, m in enumerate(masks):
        a('s_mov_b32 s%d, 0x%x\ns_mov_b32 s%d, 0x%x' % (40 + 2 * i, m, 41 + 2 * i, m))
    a('v_cndmask_b32 %s, %s, %s, s[40:41]' % (vr(dst), vr(src), vr(src + 1)))
    a('v_cndmask_b32 %s, %s, %s, s[42:43]' % (vr(dst), vr(dst), vr(src + 2)))
    a('v_cndmask_b32 %s, %s, %s, s[44:45]' % (vr(dst), vr(dst), vr(src + 3)))


def rstd_from(a, dst, vsum, vsq):
    a('v_mul_f32 %s, 0x%x, %s' % (vr(vsum), INV576, vr(vsum)))
    a('v_mul_f32 %s, 0x%x, %s' % (vr(vsq), INV576, vr(vsq)))
    a('v_fma_f32 %s, -%s, %s, %s' % (vr(vsq), vr(vsum), vr(vsum), vr(vsq)))
    a('v_max_f32 %s, 0, %s' % (vr(vsq), vr(vsq)))
    a('v_add_f32 %s, 0x%x, %s' % (vr(vsq), EPS5, vr(vsq)))
    a('v_rsq_f32 %s, %s' % (vr(dst), vr(vsq)))


SPIN_CAP = 1 << 18


def lds_spin(a, name, v_tmp, v_addr, off, mask, want, ge=None):
    a('s_mov_b32 s5, 0')
    a.label(name)
    a('ds_read_b32 %s, %s offset:%d' % (vr(v_tmp), vr(v_addr), off))
    a('s_waitcnt lgkmcnt(0)')
    a('v_readfirstlane_b32 s4, %s' % vr(v_tmp))
    if ge is None:
        a('s_and_b32 s4, s4, 0x%x' % mask)
        a('s_cmp_eq_u32 s4, 0x%x' % want)
    else:
        a('s_cmp_ge_u32 s4, %s' % sr(ge))
    a('s_cbranch_scc1 %s_ok' % name)
    a('s_sleep 1')
    a('s_add_u32 s5, s5, 1')
    a('s_cmp_lt_u32 s5, 0x%x' % SPIN_CAP)
    a('s_cbranch_scc1 %s' % name)
    a('s_endpgm')
    a.label(name + '_ok')


def mem_arrive(a, s_off, v_zero=None, v_one=None):
    if not SFLAG:
        a('s_mov_b64 exec, 1')
        a('buffer_atomic_add %s, %s, s[8:11], %s offen sc1' % (vr(v_one), vr(v_zero), sr(s_off)))
        a('s_mov_b64 exec, -1')
        return
    a('s_mov_b32 s3, 1')
    a('s_atomic_add s3, s[8:9], %s' % sr(s_off))


def mem_wait(a, name, s_off, s_want, v_zero, v_tmp, backoff=None, arrive=False):
    a('s_mov_b32 s5, 0')
    if not SFLAG:
        if arrive:
            mem_arrive(a, s_off, v_zero, 4)
        a('s_mov_b64 exec, 1')
        a.label(name)
        a('buffer_load_dword %s, %s, s[8:11], %s offen sc1' % (vr(v_tmp), vr(v_zero), sr(s_off)))
        a('s_waitcnt vmcnt(0)')
        a('v_readfirstlane_b32 s4, %s' % vr(v_tmp))
    else:
        if arrive:
            a('s_mov_b32 s4, 1')
            a('s_atomic_add s4, s[8:9], %s glc' % sr(s_off))
            a('s_waitcnt lgkmcnt(0)')
            a('s_add_u32 s4, s4, 1')
            a('s_cmp_ge_u32 s4, %s' % sr(s_want))
            a('s_cbranch_scc1 %s_ok' % name)
        a.label(name)
        a('s_mov_b32 s4, 0')
        a('s_atomic_add s4, s[8:9], %s glc' % sr(s_off))
        a('s_waitcnt lgkmcnt(0)')
    a('s_cmp_ge_u32 s4, %s' % sr(s_want))
    a('s_cbranch_scc1 %s_ok' % name)
    if backoff:
        if backoff[0] is not None:
            a('s_cmp_eq_u32 %s, %d' % (sr(backoff[0]), backoff[1]))
            a('s_cbranch_scc1 %s_ns' % name)
        a('s_sleep %d' % (backoff[2] if len(backoff) > 2 else 12))
        if backoff[0] is not None:
            a.label(name + '_ns')
    a('s_add_u32 s5, s5, 1')
    a('s_cmp_lt_u32 s5, 0x%x' % SPIN_CAP)
    a('s_cbranch_scc1 %s' % name)
    a('s_endpgm')
    a.label(name + '_ok')
    if not SFLAG:
        a('s_mov_b64 exec, -1')


N_LATE = G_W1 + G_H - G_Z


def start_arrive(a, name):
    a('s_mov_b32 s7, 1')
    a('s_cmp_lt_u32 s2, %d' % G_W1)
    a('s_cbranch_scc1 %s_q' % name)
    a('s_atomic_add s7, s[52:53], 128')
    a('s_branch %s' % name)
    a.label(name + '_q')
    a('v_mov_b32 v7, 1')
    a('s_and_b32 s6, s2, 7\ns_lshl_b32 s6, s6, 2\ns_add_u32 s6, s6, %d' % FL_RL)
    a('v_lshlrev_b32 v6, 7, v0')
    a('s_mov_b32 exec_hi, 0')
    a('buffer_atomic_add v7, v6, s[8:11], s6 offen sc1')
    a('s_mov_b32 exec_hi, -1')
    a('s_atomic_add s7, s[52:53], 0')
    a.label(name)


def start_wait(a):
    a('s_mov_b32 s5, 0')
    a.label('st_b')
    a('s_mov_b32 s4, 0')
    a('s_atomic_add s4, s[8:9], s51 glc')
    a('s_waitcnt lgkmcnt(0)')
    a('s_cmp_eq_u32 s4, 6')
    a('s_cbranch_scc1 st_b_ok')
    a('s_add_u32 s5, s5, 1')
    a('s_and_b32 s4, s5, 15')
    a('s_cbranch_scc1 st_b')
    a('s_atomic_add s4, s[52:53], 0 glc')
    a('s_waitcnt lgkmcnt(0)')
    a('s_cmp_ge_u32 s4, %d' % G_W1)
    a('s_cbranch_scc1 st_b_ok')
    a('s_cmp_lt_u32 s5, 0x%x' % SPIN_CAP)
    a('s_cbranch_scc1 st_b')
    a('s_endpgm')
    a.label('st_b_ok')


def gen_mega():
    a = Asm()
    RSL = 0; FLG = 512; CNT = 516; XC1 = 520; XC3 = 524; TOK = 528; XF = 1024; XI = 3072; HI = XI + 73728
    OI = HI; SL = HI + 36864
    LDS = SL + 32 * HS
    VZ = 167
    LAY, LOFF, GBO, GBW, CBO, CBW, RFW, SOF, PRT = 86, 87, 88, 89, 90, 91, 92, 96, 97
    a('s_cmp_ge_u32 s2, 256')
    a('s_cbranch_scc1 mega_end')
    stamp_begin(a)
    if AMP:
        a('s_memrealtime s[84:85]')
    a('s_load_dwordx2 s[94:95], s[0:1], 48')
    if SINGLE:
        a('s_load_dwordx2 s[52:53], s[0:1], 56')
        gen_prep(a)
        a('s_waitcnt lgkmcnt(0)')
        a('s_mov_b32 s12, s3\ns_mov_b32 s36, s24\ns_mov_b32 s37, s25\ns_mov_b32 s100, s34\ns_mov_b32 s101, s35')
    else:
        ws_srd(a)
        a('s_load_dwordx2 s[36:37], s[0:1], 0')
        wave_id(a, 12, 1)
        a('v_lshlrev_b32 v1, 4, v0')
        a('v_and_b32 v2, 15, v0')
        a('v_lshrrev_b32 v3, 4, v0')
    a('s_mov_b32 s38, %d\ns_mov_b32 s39, 0x20000' % ACT)
    a('v_mov_b32 %s, 0' % vr(VZ))
    xcd_map(a, NCX, 13, 14)
    a('s_and_b32 s20, s12, 3\ns_lshr_b32 s21, s12, 2')
    a('s_mul_i32 s4, s14, 21846\ns_lshr_b32 s4, s4, 16\ns_mul_i32 s4, s4, 3\ns_sub_u32 s19, s14, s4')
    a('s_lshl_b32 s4, s19, 2\ns_add_u32 s28, s12, s4\ns_cmp_ge_u32 s28, 12\ns_cselect_b32 s4, 12, 0\ns_sub_u32 s28, s28, s4')
    a('s_mov_b32 s%d, 0\ns_mov_b32 s%d, 0\ns_mov_b32 s%d, 0\ns_mov_b32 s%d, 32\ns_mov_b32 s%d, 8' % (LAY, LOFF, GBW, CBW, RFW))
    a('s_lshl_b32 s4, s14, %d\ns_add_u32 s%d, s4, %d' % (FSH, GBO, FL_GB))
    a('s_lshl_b32 s4, s13, %d\ns_add_u32 s%d, s4, %d' % (FSH, CBO, FL_CB))
    a('s_mov_b32 s%d, %d\ns_mov_b32 s%d, %d' % (SOF, SS, PRT, PART))
    a('s_mov_b32 s48, s19')
    for b in (1, 2):
        a('s_add_u32 s%d, s%d, 1\ns_cmp_eq_u32 s%d, 3\ns_cselect_b32 s%d, 0, s%d' % (48 + b, 47 + b, 48 + b, 48 + b, 48 + b))
    a('s_lshl_b32 s4, s14, 2\ns_add_u32 s4, s4, s20\ns_mul_i32 s98, s4, 18432')
    a('s_lshl_b32 s5, s20, 11\ns_add_u32 s99, s5, %d' % XI)
    img = lambda k, tt: (k >> 1) * 8192 + tt * 2048 + (k & 1) * 1024

    def load_x(name, base, xc):
        gb, gp, gh = (384, 128, 9216) if base is None else (6144, 2048, 1024)
        ld = 'buffer_load_dwordx4 v4, s[36:39], s23 offen lds' if base is None else 'buffer_load_dwordx4 v1, s[8:11], s23 offen sc1 lds'

        def blk(b):
            a('s_mul_i32 s22, s%d, %d\ns_add_u32 s22, s22, s98\ns_mul_i32 s24, s%d, 24576\ns_add_u32 s24, s24, s99' % (48 + b, gb, 48 + b))
            if base is not None:
                a('s_add_u32 s22, s22, s%d\ns_add_u32 s22, s22, %d' % (LOFF, base))
        a('s_cmp_ge_u32 s12, 8')
        a('s_cbranch_scc1 %s_hi' % name)
        blk(0)
        a('s_mul_i32 s4, s21, %d\ns_add_u32 s22, s22, s4\ns_lshl_b32 s4, s21, 10\ns_add_u32 s24, s24, s4' % gh)
        for p in range(3):
            a('s_add_u32 m0, s24, %d' % (8192 * p))
            a('s_add_u32 s23, s22, %d' % (gp * p))
            a(ld)
        if base is None:
            a('s_barrier')
        a('s_branch %s_x' % name)
        a.label('%s_hi' % name)
        if base is None:
            a('s_barrier')
        for b in (1, 2):
            blk(b)
            for p in range(3):
                for h in range(2):
                    a('s_add_u32 m0, s24, %d' % (8192 * p + 1024 * h))
                    a('s_add_u32 s23, s22, %d' % (gp * p + gh * h))
                    a(ld)
        a.label('%s_x' % name)

    def x_count(xc):
        for n, inc in ((6, 0x100), (0, 0x10000)):
            a('v_mov_b32 v5, 0x%x' % inc)
            a('s_waitcnt vmcnt(%d)' % n)
            a('s_mov_b64 exec, 1')
            a('ds_add_u32 %s, v5 offset:%d' % (vr(VZ), xc))
            a('s_mov_b64 exec, -1')

    def lane_part(dst, tmp, s_b, vg=3, vl=1):
        L = 'lp%d' % len(a.lines)
        a('s_lshl_b32 s4, %s, 10' % s_b)
        a('v_add_u32 %s, s4, %s' % (vr(dst), vr(vl)))
        a('s_cmp_eq_u32 s%d, 0' % LAY)
        a('s_cbranch_scc0 %s' % L)
        a('s_lshl_b32 s4, %s, 2' % s_b)
        a('v_add_u32 %s, s4, %s' % (vr(dst), vr(vg)))
        a('v_and_b32 %s, 7, v2' % vr(tmp))
        a('v_xor_b32 %s, %s, %s' % (vr(dst), vr(dst), vr(tmp)))
        a('v_lshlrev_b32 %s, 4, %s' % (vr(dst), vr(dst)))
        a('v_lshl_add_u32 %s, v2, 7, %s' % (vr(dst), vr(dst)))
        a.label(L)

    def group_sync(name):
        a('s_add_u32 s%d, s%d, 8' % (GBW, GBW))
        a('s_barrier')
        a('s_cmp_eq_u32 s12, 11')
        a('s_cbranch_scc0 %s_go' % name)
        a('v_mov_b32 v4, 1')
        mem_wait(a, name, GBO, GBW, VZ, 5, arrive=True)
        a.label('%s_go' % name)

    ACC = 8; RING = ACC + 32; BF = RING + 72
    VA = 4; VB = 5; VT = 6
    acc = lambda j, tt: ACC + (j * 4 + tt) * 4
    ring = lambda k, j: 40 + ((k % 9) * 2 + j) * 4
    bf = lambda p, tt: BF + (p * 4 + tt) * 4

    def s1_ld(k, j):
        if j == 0 and not k & 1:
            a('s_add_u32 s15, s%d, %d' % (30 + k // 6, 4096 * ((k % 6) >> 1)))
        a('buffer_load_dwordx4 %s, v1, s[8:11], s15 offen offset:%d' % (vr(ring(k, j), 4), 2048 * (k & 1) + 1024 * j))

    def s1_fill(depth=None):
        a('s_mul_i32 s15, s13, 7\ns_add_u32 s15, s15, s12\ns_mul_i32 s15, s15, 36864\ns_add_u32 s15, s15, %d' % WQ)
        for b in range(3):
            a('s_mul_i32 s4, s%d, 12288\ns_add_u32 s%d, s4, s15' % (48 + b, 30 + b))
        for k in range(9):
            for j in range(2):
                s1_ld(k, j)
                if depth is not None:
                    a('s_waitcnt vmcnt(%d)' % depth)

    a('v_lshrrev_b32 v4, 3, v0\nv_and_b32 v5, 7, v0\nv_xor_b32 v5, v5, v4')
    a('v_mul_u32_u24 v4, 1152, v4')
    a('v_lshl_add_u32 v4, v5, 4, v4')
    if SINGLE:
        a('s_mov_b32 s35, 0')
        late_test(a)
        a('s_cselect_b32 s46, 1, 0')
        a('s_cbranch_scc1 st_nx')
        a.label('st_lx')
        a('s_cmp_lt_u32 s12, 6')
        a('s_cbranch_scc1 st_nx')
        a('s_sub_u32 s4, s12, 6\ns_lshr_b32 s4, s4, 1\ns_and_b32 s5, s12, 1')
        a('s_mul_i32 s22, s4, 384\ns_mul_i32 s6, s14, 73728\ns_add_u32 s22, s22, s6\ns_mul_i32 s6, s5, 36864\ns_add_u32 s22, s22, s6')
        a('s_mul_i32 s24, s4, 24576\ns_lshl_b32 s6, s5, 12\ns_add_u32 s24, s24, s6\ns_add_u32 s24, s24, %d' % XI)
        for p in range(3):
            for h in range(4):
                a('s_add_u32 m0, s24, %d' % (8192 * p + 1024 * h))
                a('s_add_u32 s23, s22, %d' % (128 * p + 9216 * h))
                a('buffer_load_dwordx4 v4, s[36:39], s23 offen%s lds' % X0_LD)
        a.label('st_nx')
        a('s_cmp_eq_u32 s46, 2')
        a('s_cbranch_scc1 st_x2')
        a('s_cmp_eq_u32 s47, 1')
        a('s_cbranch_scc1 st_j')
        a('s_waitcnt vmcnt(0)')
        a.label('st_j')
        a('s_cmp_eq_u32 s12, 11\ns_cselect_b32 s4, s2, 255\ns_cmp_lt_u32 s4, %d' % G_W1)
        a('s_cbranch_scc0 st_z_ok')
        a('s_mov_b32 s5, 0')
        a.label('st_z')
        a('s_mov_b32 s4, 0')
        a('s_atomic_add s4, s[52:53], 128 glc')
        a('s_add_u32 s5, s5, 1')
        a('s_cmp_lt_u32 s5, 0x%x' % SPIN_CAP)
        a('s_cbranch_scc0 mega_end')
        a('s_waitcnt lgkmcnt(0)')
        a('s_cmp_ge_u32 s4, %d' % (G_H - G_Z))
        a('s_cbranch_scc0 st_z')
        a.label('st_z_ok')
        stamp(a, 'pj')
        a('s_barrier')
        a('s_cmp_eq_u32 s46, 0')
        a('s_cbranch_scc1 st_x2')
        a('s_cmp_eq_u32 s12, 11')
        a('s_cbranch_scc0 st_a1')
        start_arrive(a, 'st_a1')
        a('s_barrier')
        a('s_mov_b32 s46, 2')
        a('s_branch st_lx')
        a.label('st_x2')
        a('s_cmp_lt_u32 s12, 8')
        a('s_cbranch_scc1 st_n2')
        a('s_cmp_lt_u32 s2, 94')
        a('s_cbranch_scc1 st_n2')
        a('s_sub_u32 s4, s2, 94\ns_lshl_b32 s4, s4, 2\ns_add_u32 s4, s4, s20')
        a('s_mul_i32 s33, s4, 7282\ns_lshr_b32 s33, s33, 16\ns_mul_i32 s5, s33, 9\ns_sub_u32 s34, s4, s5\ns_lshl_b32 s34, s34, 1')
        a('s_mul_i32 s35, s33, 7282\ns_lshr_b32 s35, s35, 16\ns_mul_i32 s5, s35, 9\ns_sub_u32 s5, s33, s5')
        a('s_mul_i32 s4, s35, 18\ns_add_u32 s4, s4, s34\ns_mul_i32 s23, s4, %d\ns_lshl_b32 s5, s5, 7\ns_add_u32 s23, s23, s5' % (32 * 1152))
        a('s_lshl_b32 s35, s35, %d\ns_add_u32 s35, s35, %d' % (FSH, FL_CW))
        a('s_lshl_b32 s22, s20, 13\ns_add_u32 s22, s22, %d' % OI)
        a('s_mov_b32 s40, s100\ns_mov_b32 s41, s101\ns_mov_b32 s42, %d\ns_mov_b32 s43, 0x20000' % (D * F * 2))
        a('v_lshrrev_b32 v8, 3, v0\nv_mul_u32_u24 v8, 1152, v8\nv_and_b32 v5, 7, v0\nv_lshrrev_b32 v6, 2, v0\nv_and_b32 v6, 4, v6')
        a('v_xor_b32 v5, v5, v6')
        a('v_lshl_add_u32 v8, v5, 4, v8')
        for n in range(8):
            a('s_add_u32 m0, s22, %d' % (1024 * n))
            a('s_add_u32 s4, s23, %d' % (9216 * n))
            a('buffer_load_dwordx4 v8, s[40:43], s4 offen nt lds')
        a.label('st_n2')
        a('s_cmp_eq_u32 s12, 7')
        a('s_cbranch_scc0 st_w')
        a('s_lshl_b32 s51, s14, 7\ns_lshl_b32 s4, s13, 2\ns_add_u32 s51, s51, s4\ns_add_u32 s51, s51, %d' % FL_RL)
        a('v_lshlrev_b32 v4, 2, v0')
        a('v_mov_b32 v5, 0x040404')
        a('s_mov_b64 exec, 0xff')
        a('ds_write_b32 v4, %s offset:%d' % (vr(VZ), FLG))
        a('ds_write_b32 %s, v5 offset:%d' % (vr(VZ), XC1))
        a('s_mov_b64 exec, -1')
        start_wait(a)
        a.label('st_w')
        a('s_waitcnt vmcnt(8)')
        a('s_cmp_eq_u32 s35, 0')
        a('s_cbranch_scc0 st_w2')
        a('s_waitcnt vmcnt(0)')
        a.label('st_w2')
        a('s_barrier')
        stamp(a, 'st')
        a('s_mov_b32 s%d, 8' % GBW)
        a('s_cmp_lt_u32 s12, 8')
        a('s_cbranch_scc1 st_lo')
        if WQ_TOUCH:
            a('s_and_b32 s4, s14, 7\ns_lshl_b32 s4, s4, 2\ns_add_u32 s4, s4, s20\ns_mul_i32 s4, s4, %d' % (63 * 128))
            a('s_mul_i32 s5, s13, %d\ns_add_u32 s4, s4, s5\ns_add_u32 s4, s4, %d' % (WQ_HG, WQ))
            a('v_lshlrev_b32 v6, 7, v0')
            a('s_setprio 3')
            a('buffer_load_dword v7, v6, s[8:11], s4 offen sc1')
            a('s_setprio 0')
        a('s_cmp_eq_u32 s12, 11')
        a('s_cbranch_scc0 st_h')
        mem_wait(a, 'st_c', GBO, GBW, VZ, 5, backoff=(None, 0, 2), arrive=True)
        a('s_add_u32 s6, s%d, %d\ns_mov_b32 s7, 32' % (CBO, FL_C0 - FL_CB))
        mem_wait(a, 'st_e', 6, 7, VZ, 5, backoff=(None, 0, 4), arrive=True)
        a('v_mov_b32 v5, 1')
        a('ds_write_b32 %s, v5 offset:%d' % (vr(VZ), TOK))
        a('s_branch s1_wo0')
        a.label('st_h')
        lds_spin(a, 'st_d', 5, VZ, TOK, 1, 1)
        a('s_branch s1_wo0')
        a.label('st_lo')
        a('s_cmp_eq_u32 s12, 7')
        a('s_cbranch_scc1 s1_go')
        a('s_cmp_eq_u32 s12, 6')
        a('s_cbranch_scc0 st_f')
        a('s_setprio 2')
        a.label('st_f')
        if S1_R2:
            a('s_lshr_b32 s4, 0x43, s12\ns_and_b32 s4, s4, 1')
            a('s_cbranch_scc1 st_g')
            a('s_mov_b32 s33, 0x%x' % (S1_R2 << 24))
            lds_spin(a, 'st_r2', 6, VZ, XC1, 0, 0, ge=33)
            a.label('st_g')
        a('s_mov_b32 s26, 0')
        a('s_branch s1_f1')
    else:
        a('v_lshlrev_b32 v5, 2, v0')
        a('s_mov_b64 exec, 0xff')
        a('ds_write_b32 v5, %s offset:%d' % (vr(VZ), FLG))
        a('s_mov_b64 exec, -1')
        a('s_waitcnt lgkmcnt(0)')
        load_x('x0', None, XC1)
    a('s_cmp_ge_u32 s12, 8')
    a('s_cbranch_scc0 s1_lo')
    a('s_barrier')
    x_count(XC1)
    a('s_branch s1_wo')
    a.label('s1_lo')
    a('s_lshr_b32 s26, 0x43, s12\ns_and_b32 s26, s26, 1')
    a('s_cbranch_scc1 s1_f1')
    a('s_waitcnt vmcnt(0)')
    a('s_barrier')
    a('s_cmp_ge_u32 s12, 7')
    a('s_cbranch_scc1 s1_go')
    a.label('s1_f1')
    s1_fill()
    a('s_cmp_eq_u32 s26, 0')
    a('s_cbranch_scc1 s1_go')
    a('s_waitcnt vmcnt(18)')
    a('s_barrier')
    a.label('s1_go')
    stamp(a, 'x1')
    VX = 144
    for par in range(2):
        lane_part(VA, VT, str(par))
        for b in range(3):
            a('s_mul_i32 s4, s%d, 24576\ns_add_u32 s4, s4, %d' % (48 + b, XI))
            a('v_add_u32 %s, s4, %s' % (vr(VX + 2 * b + par), vr(VA)))

    a('v_mov_b32 v7, 0x1000000')

    def rdx(k, tt):
        a('ds_read_b128 %s, %s offset:%d' % (vr(bf(k & 1, tt), 4), vr(VX + 2 * (k // 6) + (k & 1)), ((k % 6) >> 1) * 8192 + 2048 * tt))

    slow = []

    def x_check(tag, k, step):
        if k not in (4, 10):
            return
        m = 0x0400 if k == 4 else 0x040000
        if step == 0:
            a('ds_read_b32 %s, %s offset:%d' % (vr(VT), vr(VZ), XC1))
        elif step == 1:
            a('v_readfirstlane_b32 s4, %s' % vr(VT))
        else:
            a('s_andn2_b32 s4, 0x%x, s4' % m)
            a('s_cbranch_scc1 s1_slow%s%d' % (tag, k))
            a.label('s1_back%s%d' % (tag, k))
            slow.append((tag, k, m))
    for tt in range(4):
        rdx(0, tt)
    a('s_cmp_lt_u32 s12, 4')
    a('s_cbranch_scc1 s1_nn')
    a('s_cmp_eq_u32 s12, 6')
    a('s_cbranch_scc1 s1_nt')
    a('s_cmp_eq_u32 s12, 7')
    a('s_cbranch_scc1 s1_stats')

    def main(orient):
        issued = 18
        a('s_waitcnt vmcnt(17) lgkmcnt(0)')
        for k in range(18):
            for n in range(8):
                j, tt = n >> 2, n & 3
                if j:
                    tt = 3 - tt
                c = None if k == 0 else acc(j, tt)
                if orient[j] == 'N':
                    mfma(a, acc(j, tt), bf(k & 1, tt), ring(k, j), c)
                else:
                    mfma(a, acc(j, tt), ring(k, j), bf(k & 1, tt), c)
                if n < 2 and k < 17:
                    rdx(k + 1, 2 * n); rdx(k + 1, 2 * n + 1)
                if n == 2:
                    a('s_waitcnt vmcnt(%d)' % (issued - (2 * k + 2)))
                if n in (3, 7) and k < 9:
                    s1_ld(k + 9, j)
                    issued += 1
                if k == S1_GATE and n == 4:
                    a('s_mov_b64 exec, 1')
                    a('ds_add_u32 %s, v7 offset:%d' % (vr(VZ), XC1))
                    a('s_mov_b64 exec, -1')
                if n == 2:
                    x_check(orient, k, 0)
                if n == 6 and k < 17:
                    a('s_waitcnt vmcnt(%d) lgkmcnt(0)' % (issued - (2 * k + 3)))
                    x_check(orient, k, 1)
                if n == 7:
                    x_check(orient, k, 2)
        stamp(a, 's1m')
        lds_spin(a, 's1_s' + orient, VT, VZ, FLG, 2, 2)

    def rs_n(RS):
        a('v_lshlrev_b32 %s, 4, v3' % vr(VT))
        for n in range(8):
            a('ds_read_b128 %s, %s offset:%d' % (vr(RS + 4 * n, 4), vr(VT), RSL + 64 * n))

    def rs_t(RS):
        a('v_lshlrev_b32 %s, 2, v2' % vr(VT))
        for n in range(8):
            a('ds_read_b32 %s, %s offset:%d' % (vr(RS + n), vr(VT), RSL + 64 * n))

    def phi4(items, T):
        n = len(items)
        for i, (d, x, s1, s2) in enumerate(items):
            a('v_mul_f32 %s, %s, %s' % (vr(T + i), vr(x), vr(s2)))
        for i in range(n):
            a('v_min_f32 %s, 0, %s' % (vr(T + i), vr(T + i)))
        for i in range(n):
            a('v_exp_f32 %s, %s' % (vr(T + i), vr(T + i)))
        for i, (d, x, s1, s2) in enumerate(items):
            a('v_max_f32 %s, 0, %s' % (vr(d), vr(x)))
        for i in range(n):
            a('v_add_f32 %s, 0x%x, %s' % (vr(T + i), EPS6, vr(T + i)))
        for i, (d, x, s1, s2) in enumerate(items):
            a('v_fma_f32 %s, %s, %s, %s' % (vr(d), vr(d), vr(s1), vr(T + i)))

    RS = RING; TMP = RING + 32; F0 = RING + 48; ON = RING + 64
    pq_base = 's_lshl_b32 s6, s14, 4\ns_add_u32 s6, s6, s13\ns_mul_i32 s6, s6, 4608\ns_add_u32 s6, s6, s%d\ns_add_u32 s6, s6, %d' % (LOFF, PQ)
    main('TT')
    rs_t(RS)
    a(pq_base)
    a('s_lshl_b32 s5, s20, 10\ns_add_u32 s6, s6, s5\ns_add_u32 s7, s6, %d' % (8 * 4608))
    a('s_waitcnt lgkmcnt(0)')
    for tt in range(4):
        phi4([(acc(j, tt) + r, acc(j, tt) + r, RS + tt, RS + 4 + tt) for j in range(2) for r in range(4)], TMP)
        P = BF + 4 * tt
        for j in range(2):
            a('v_cvt_pk_bf16_f32 %s, %s, %s' % (vr(P + 2 * j), vr(acc(j, tt)), vr(acc(j, tt) + 1)))
            a('v_cvt_pk_bf16_f32 %s, %s, %s' % (vr(P + 2 * j + 1), vr(acc(j, tt) + 2), vr(acc(j, tt) + 3)))
        a('buffer_store_dwordx4 %s, v1, s[8:11], s%d offen offset:%d sc1' % (vr(P, 4), 6 + (tt >> 1), 2048 * (tt & 1)))
    a('s_branch s1_done')
    a.label('s1_nn')
    main('NN')
    rs_n(RS)
    FK = F0; FV = F0 + 8; DV = BF; FX = BF + 16
    for k in range(4):
        a('v_mov_b32 %s, 0x%x' % (vr(ON + k), ONES))
    a('s_lshl_b32 s4, s13, 2\ns_add_u32 s4, s4, s20\ns_mul_i32 s6, s4, %d\ns_add_u32 s6, s6, s%d' % (HSG, SOF))
    a('s_waitcnt lgkmcnt(0)')
    for tp in range(2):
        phi4([(acc(0, tt) + r, acc(0, tt) + r, RS + 4 * tt + r, RS + 16 + 4 * tt + r) for tt in (2 * tp, 2 * tp + 1) for r in range(4)], TMP)
        for tt in (2 * tp, 2 * tp + 1):
            for r in range(4):
                a('v_mul_f32 %s, %s, %s' % (vr(acc(1, tt) + r), vr(acc(1, tt) + r), vr(RS + 4 * tt + r)))
            for j, Fb in enumerate((FK, FV)):
                d = Fb + 2 * tt
                a('v_cvt_pk_bf16_f32 %s, %s, %s' % (vr(d), vr(acc(j, tt)), vr(acc(j, tt) + 1)))
                a('v_cvt_pk_bf16_f32 %s, %s, %s' % (vr(d + 1), vr(acc(j, tt) + 2), vr(acc(j, tt) + 3)))
        c = (lambda x: None) if tp == 0 else (lambda x: x)
        mfma(a, DV, FV + 4 * tp, FK + 4 * tp, c(DV))
        mfma(a, DV + 4, ON, FK + 4 * tp, c(DV + 4))
    a('v_and_b32 %s, 0x380, v1' % vr(VA))
    a('v_and_b32 %s, 4, v2' % vr(VB))
    a('v_lshl_add_u32 %s, %s, 2, %s' % (vr(VA), vr(VB), vr(VA)))
    a('s_lshl_b32 s5, s20, 5')
    a('v_add_u32 %s, s5, %s' % (vr(VA), vr(VA)))
    a('v_lshlrev_b32 %s, 2, v0' % vr(VB))
    for r in range(4):
        a('buffer_atomic_add_f32 %s, %s, s[8:11], s6 offen offset:%d' % (vr(DV + r), vr(VB), 256 * r))
    a('s_mov_b64 exec, 0xffff')
    a('buffer_atomic_add_f32 %s, %s, s[8:11], s6 offen offset:1152' % (vr(DV + 4), vr(VB)))
    a('s_mov_b64 exec, -1')
    lds_spin(a, 's1_w', VT, VZ, FLG, 1, 1)
    a('ds_read_b128 %s, %s offset:%d' % (vr(FX, 4), vr(VA), XF))
    a('ds_read_b128 %s, %s offset:%d' % (vr(FX + 4, 4), vr(VA), XF + 1024))
    a('v_lshlrev_b32 %s, 3, v2' % vr(VT))
    a('v_lshl_add_u32 %s, v3, 2, %s' % (vr(VT), vr(VT)))
    a('v_add_u32 %s, 384, %s' % (vr(VT), vr(VT)))
    a('s_mov_b32 s40, -1\ns_mov_b32 s41, 0')
    a('v_cndmask_b32 %s, %s, %s, s[40:41]' % (vr(VT), vr(VB), vr(VT)))
    a('s_waitcnt lgkmcnt(0)')
    for tp in range(2):
        c = (lambda x: None) if tp == 0 else (lambda x: x)
        mfma(a, DV + 8, FX + 4 * tp, FV + 4 * tp, c(DV + 8))
        mfma(a, DV + 12, FX + 4 * tp, FK + 4 * tp, c(DV + 12))
    a('v_cndmask_b32 %s, %s, %s, s[40:41]' % (vr(DV + 8), vr(DV + 12), vr(DV + 8)))
    a('buffer_atomic_add_f32 %s, %s, s[8:11], s6 offen offset:896' % (vr(DV + 8), vr(VT)))
    a('s_branch s1_done')
    a.label('s1_nt')
    a('s_setprio 2')
    main('NT')
    rs_n(RS)
    FX = F0; PH = BF + 16
    for k in range(4):
        a('v_mov_b32 %s, 0x%x' % (vr(ON + k), ONES))
    a('s_mov_b32 s46, 0x00ff00ff\ns_mov_b32 s47, 0x00ff00ff')
    a('s_waitcnt lgkmcnt(0)')
    for tp in range(2):
        tts = (2 * tp, 2 * tp + 1)
        phi4([(PH + 4 * (tt & 1) + r, acc(0, tt) + r, RS + 4 * tt + r, RS + 16 + 4 * tt + r) for tt in tts for r in range(4)], TMP)
        for tt in tts:
            for r in range(4):
                a('v_mul_f32 %s, %s, %s' % (vr(acc(0, tt) + r), vr(acc(0, tt) + r), vr(RS + 4 * tt + r)))
                a('v_cndmask_b32 %s, %s, %s, s[46:47]' % (vr(acc(0, tt) + r), vr(acc(0, tt) + r), vr(PH + 4 * (tt & 1) + r)))
            a('v_cvt_pk_bf16_f32 %s, %s, %s' % (vr(FX + 2 * tt), vr(acc(0, tt)), vr(acc(0, tt) + 1)))
            a('v_cvt_pk_bf16_f32 %s, %s, %s' % (vr(FX + 2 * tt + 1), vr(acc(0, tt) + 2), vr(acc(0, tt) + 3)))
        a('ds_write_b128 v1, %s offset:%d' % (vr(FX + 4 * tp, 4), XF + 1024 * tp))
    a('v_mov_b32 %s, 3' % vr(VT))
    a('ds_write_b32 %s, %s offset:%d' % (vr(VZ), vr(VT), FLG))
    a('s_setprio 0')
    a('v_and_b32 %s, 0x380, v1' % vr(VA))
    a('v_and_b32 %s, 4, v2' % vr(VB))
    a('v_lshl_add_u32 %s, %s, 2, %s' % (vr(VA), vr(VB), vr(VA)))
    a('v_and_b32 %s, 3, v2' % vr(VB))
    a('v_lshl_add_u32 %s, %s, 5, %s' % (vr(VA), vr(VB), vr(VA)))
    for tp in range(2):
        a('ds_read_b128 %s, %s offset:%d' % (vr(FX + 8 + 4 * tp, 4), vr(VA), XF + 1024 * tp))
    a('s_waitcnt lgkmcnt(0)')
    for tp in range(2):
        c = (lambda x: None) if tp == 0 else (lambda x: x)
        mfma(a, DV, FX + 8 + 4 * tp, FX + 4 * tp, c(DV))
        mfma(a, DV + 4, ON, FX + 4 * tp, c(DV + 4))
    rs_t(RS)
    a('v_bfe_u32 %s, v2, 1, 2' % vr(VA))
    a('v_mul_u32_u24 %s, %d, %s' % (vr(VA), HSG, vr(VA)))
    a('v_and_b32 %s, 1, v2' % vr(VB))
    a('v_lshl_add_u32 %s, %s, 2, %s' % (vr(VA), vr(VB), vr(VA)))
    a('v_add_u32 %s, 2, v3' % vr(VB))
    a('v_and_b32 %s, 3, %s' % (vr(VB), vr(VB)))
    a('v_lshl_add_u32 %s, %s, 3, %s' % (vr(VA), vr(VB), vr(VA)))
    a('s_mul_i32 s6, s13, %d\ns_add_u32 s6, s6, s%d' % (4 * HSG, SOF))
    diag_select(a, DV + 8, DV, (0x0c0c0c0c, 0x30303030, 0xc0c0c0c0))
    a('s_mov_b32 s40, 0xffff\ns_mov_b32 s41, 0')
    a('v_cndmask_b32 %s, %s, %s, s[40:41]' % (vr(DV + 8), vr(DV + 8), vr(DV + 4)))
    a('s_mov_b32 exec_lo, 0xff\ns_mov_b32 exec_hi, 0x00ff00ff')
    a('buffer_atomic_add_f32 %s, %s, s[8:11], s6 offen offset:%d' % (vr(DV + 8), vr(VA), 1280 + 128))
    a('s_mov_b64 exec, -1')
    a(pq_base)
    a('s_add_u32 s6, s6, 4096\ns_add_u32 s7, s6, %d' % (8 * 4608))
    a('v_lshlrev_b32 %s, 3, v0' % vr(VB))
    a('s_waitcnt lgkmcnt(0)')
    a('s_mov_b32 s40, 0xffff0000\ns_mov_b32 s41, 0xffff0000')
    for tt in range(4):
        for r in range(2):
            a('v_cndmask_b32 %s, %s, %s, s[40:41]' % (vr(acc(1, tt) + r), vr(acc(1, tt) + r), vr(acc(1, tt) + 2 + r)))
    phi4([(acc(1, tt) + r, acc(1, tt) + r, RS + tt, RS + 4 + tt) for tt in range(4) for r in range(2)], TMP)
    for tt in range(4):
        a('v_cvt_pk_bf16_f32 %s, %s, %s' % (vr(PH + tt), vr(acc(1, tt)), vr(acc(1, tt) + 1)))
    for tp in range(2):
        a('buffer_store_dwordx2 %s, %s, s[8:11], s%d offen sc1' % (vr(PH + 2 * tp, 2), vr(VB), 6 + tp))
    a('s_branch s1_done')
    a.label('s1_stats')
    a('s_setprio 3')
    for k in range(4):
        a('v_mov_b32 %s, 0x%x' % (vr(RING + k), ONES))
    for i, m in enumerate((0x22222222, 0x44444444, 0x88888888)):
        a('s_mov_b32 s%d, 0x%x\ns_mov_b32 s%d, 0x%x' % (40 + 2 * i, m, 41 + 2 * i, m))
    a('s_waitcnt lgkmcnt(0)')
    for k in range(18):
        for n in range(8):
            j, tt = 1 - (n >> 2), n & 3
            mfma(a, acc(j, tt), bf(k & 1, tt) if j else RING, bf(k & 1, tt), None if k == 0 else acc(j, tt))
            if n < 2 and k < 17:
                rdx(k + 1, 2 * n); rdx(k + 1, 2 * n + 1)
            if n == 2:
                x_check('S', k, 0)
            if n == 6 and k < 17:
                a('s_waitcnt lgkmcnt(0)')
                x_check('S', k, 1)
            if n == 7:
                x_check('S', k, 2)
    a('v_lshlrev_b32 %s, 2, v2' % vr(VT))
    for i in range(3):
        for tt in range(4):
            a('v_cndmask_b32 %s, %s, %s, s[%d:%d]' % (vr(acc(1, tt)), vr(acc(1, tt)), vr(acc(1, tt) + 1 + i), 40 + 2 * i, 41 + 2 * i))
    for fmt in ('v_mul_f32 {q}, 0x%x, {q}' % INV576, 'v_mul_f32 {s}, 0x%x, {s}' % INV576, 'v_fma_f32 {q}, -{s}, {s}, {q}',
                'v_max_f32 {q}, 0, {q}', 'v_add_f32 {q}, 0x%x, {q}' % EPS5, 'v_rsq_f32 {r}, {q}', 'v_mul_f32 {r2}, 0x%x, {r}' % LOG2E):
        for tt in range(4):
            a(fmt.format(s=vr(acc(0, tt)), q=vr(acc(1, tt)), r=vr(acc(0, tt) + 2), r2=vr(acc(0, tt) + 3)))
    a('s_mov_b32 exec_lo, 0x00f0000f\ns_mov_b32 exec_hi, 0xf0000f00')
    for tt in range(4):
        a('ds_write_b32 %s, %s offset:%d' % (vr(VT), vr(acc(0, tt) + 2), RSL + 64 * tt))
        a('ds_write_b32 %s, %s offset:%d' % (vr(VT), vr(acc(0, tt) + 3), RSL + 256 + 64 * tt))
    a('s_mov_b64 exec, -1')
    a('v_mov_b32 %s, 2' % vr(VA))
    a('ds_write_b32 %s, %s offset:%d' % (vr(VZ), vr(VA), FLG))
    a('s_setprio 0')
    stamp(a, 's1m')
    a('s_branch s1_done')
    for tag, k, m in slow:
        a.label('s1_slow%s%d' % (tag, k))
        lds_spin(a, 's1_sl%s%d' % (tag, k), VT, VZ, XC1, m, m)
        a('s_branch s1_back%s%d' % (tag, k))
    AC2 = 8; B2 = 24; WR = 56; NPRE = 13
    wr = lambda k, j: WR + ((k % NPRE) * 2 + j) * 4
    def w2_store(name):
        a('s_cmp_eq_u32 s35, 0')
        a('s_cbranch_scc1 %s' % name)
        for k in range(2):
            for c in range(4):
                a('buffer_store_dwordx4 %s, v1, s[8:11], s%d offen offset:%d sc1' % (vr(B2 + (k * 4 + c) * 4, 4), 40 + c, 3072 * k))
        a.label(name)
    a.label('s1_wo0')
    a('s_cmp_eq_u32 s35, 0')
    a('s_cbranch_scc1 s1_wo')
    a('v_bfe_u32 v6, v0, 2, 2')
    a('v_lshl_add_u32 v5, v3, 3, v6')
    a('v_lshlrev_b32 v5, 7, v5')
    a('v_and_b32 v6, 8, v0')
    a('v_lshl_add_u32 v5, v6, 3, v5')
    a('v_add_u32 v4, s22, v5')
    a('v_xor_b32 v5, 64, v4')
    a('v_and_b32 v6, 3, v0')
    for h in range(2):
        a('s_lshl_b32 s4, s33, 1\ns_add_u32 s4, s4, %d\ns_mul_i32 s5, s4, 43691\ns_lshr_b32 s5, s5, 17\ns_mul_i32 s5, s5, 3\ns_sub_u32 s4, s4, s5' % h)
        a('s_cmp_eq_u32 s4, 1\ns_cselect_b32 s4, 3, 4\ns_cselect_b32 s5, 32, 8')
        a('v_lshl_add_u32 v%d, v6, s4, v%d' % (8 + 2 * h, 4 + h))
        a('v_add_u32 v%d, s5, v%d' % (9 + 2 * h, 8 + 2 * h))
    for c in range(4):
        a('s_lshl_b32 s4, s33, 2\ns_add_u32 s4, s4, %d\ns_mul_i32 s5, s4, 43691\ns_lshr_b32 s5, s5, 17' % c)
        a('s_mul_i32 s6, s5, 3\ns_sub_u32 s4, s4, s6')
        a('s_and_b32 s6, s5, 1\ns_lshl_b32 s6, s6, 1\ns_add_u32 s4, s4, s6')
        a('s_cmp_ge_u32 s4, 3\ns_cselect_b32 s6, 3, 0\ns_sub_u32 s4, s4, s6')
        a('s_mul_i32 s6, s5, 54\ns_add_u32 s4, s4, s6\ns_mul_i32 s6, s34, 3\ns_add_u32 s4, s4, s6')
        a('s_lshl_b32 s4, s4, 10\ns_add_u32 s%d, s4, %d' % (40 + c, W2))
    a('s_waitcnt vmcnt(0)')
    for k in range(2):
        for c in range(4):
            for hi in range(2):
                a('ds_read_b64_tr_b16 %s, v%d offset:%d' % (vr(B2 + (k * 4 + c) * 4 + 2 * hi, 2), 8 + c, 4096 * k + 512 * hi))
        a('s_waitcnt lgkmcnt(%d)' % (4 if k == 0 else 0))
    if W2_ST == 's1':
        w2_store('w2_s0')
    a.label('s1_wo')
    a('s_and_b32 s24, s13, 3')
    a('s_mul_i32 s25, s24, 9\ns_and_b32 s4, s24, 1\ns_add_u32 s25, s25, s4\ns_lshl_b32 s4, s20, 1\ns_add_u32 s25, s25, s4')
    a('s_mul_i32 s16, s25, 18432\ns_add_u32 s16, s16, %d\ns_add_u32 s17, s16, 18432' % WO)

    def wo_ld(k):
        for j in range(2):
            a('buffer_load_dwordx4 %s, v1, s[8:11], s%d offen offset:%d' % (vr(wr(k, j), 4), 16 + j, 1024 * (k % 4)))
        if k % 4 == 3:
            a('s_add_u32 s16, s16, 4096\ns_add_u32 s17, s17, 4096')
    nO = [0]

    def wo_pre(n):
        for k in range(nO[0], nO[0] + n):
            wo_ld(k)
        nO[0] += n
        if n and nO[0] == NPRE and WO_TOUCH:
            a('v_min_u32 v6, %d, v0' % ((18 - NPRE) * 8 - 1))
            a('v_lshlrev_b32 v6, 7, v6')
            for j in range(2):
                a('buffer_load_dword v7, v6, s[8:11], s%d offen offset:%d' % (16 + j, 1024 * (NPRE % 4)))
    if WO_SPLIT[0]:
        gm = 0x040000 | (0x07000000 if S1_GATE >= 0 else 0)
        lds_spin(a, 's1_wog', 4, VZ, XC1, gm, gm)
    wo_pre(WO_SPLIT[0])
    stamp(a, 's1m')
    a('s_branch s1_join')
    a.label('s1_done')
    a('s_waitcnt vmcnt(0)')
    a.label('s1_join')
    stamp(a, 's1d')
    a('s_barrier')

    RING3 = 52
    FR = 124; QF = 20; XP = 4
    VA = 156; VB = 157; VC = 158; VD = 159; EX = 160; VT = 161; QX = 162
    f1 = lambda hh: FR + 8 * hh
    f2 = lambda hh: FR + 8 * hh + 4
    qf = lambda tt, hh: QF + (tt * 4 + hh) * 4
    a('s_cmp_ge_u32 s12, 8')
    a('s_cbranch_scc1 s2_hi')
    a('s_lshl_b32 s4, s%d, 3\ns_add_u32 s5, s4, s13\ns_lshl_b32 s5, s5, 3\ns_add_u32 s5, s5, s12\ns_lshl_b32 s5, s5, %d\ns_add_u32 s5, s5, %d' % (LAY, FSH, FL_CR))
    a('s_lshl_b32 s3, 1, s14')
    for r in range(NREP):
        a('s_add_u32 s%d, s5, %d' % (40 + r, 128 * FST * r))
        a('s_atomic_or s3, s[8:9], s%d' % (40 + r))
    a('s_add_u32 s26, s4, s12\ns_lshl_b32 s26, s26, 3\ns_add_u32 s26, s26, s13\ns_lshl_b32 s26, s26, %d\ns_add_u32 s26, s26, %d' % (FSH, FL_CR))
    a('s_and_b32 s4, s14, %d\ns_mul_i32 s4, s4, %d\ns_add_u32 s26, s26, s4' % (NREP - 1, 128 * FST))
    a('s_lshl_b32 s23, s14, 1\ns_lshr_b32 s4, s13, 2\ns_add_u32 s23, s23, s4')
    a('s_lshl_b32 s23, s23, 3\ns_add_u32 s23, s23, s12\ns_mul_i32 s23, s23, 4608\ns_add_u32 s23, s23, s%d\ns_add_u32 s23, s23, %d' % (LOFF, PQ))
    a('s_add_u32 s24, s23, 4096')
    a('v_and_b32 %s, 3, v2' % vr(VT))
    a('v_lshrrev_b32 %s, 2, v2' % vr(VA))
    a('v_lshl_add_u32 %s, %s, 2, %s' % (vr(VA), vr(VT), vr(VA)))
    a('v_lshlrev_b32 %s, 6, %s' % (vr(VA), vr(VA)))
    a('v_lshl_add_u32 %s, v3, 4, %s' % (vr(VA), vr(VA)))
    a('v_min_u32 %s, 2, %s' % (vr(VT), vr(VT)))
    a('v_lshlrev_b32 %s, 6, %s' % (vr(VB), vr(VT)))
    a('v_lshl_add_u32 %s, v3, 4, %s' % (vr(VB), vr(VB)))
    a('v_mul_u32_u24 %s, %d, v3' % (vr(VD), HS))
    a('v_lshl_add_u32 %s, v2, 3, %s' % (vr(VC), vr(VD)))
    a('v_lshl_add_u32 %s, %s, 3, %s' % (vr(VD), vr(VT), vr(VD)))
    a('s_mul_i32 s25, s12, %d\ns_add_u32 s25, s25, %d\ns_mul_i32 s22, s12, %d\ns_add_u32 s22, s22, s%d' % (4 * HS, SL, 4 * HSG, SOF))
    a('v_lshrrev_b32 %s, 5, v0' % vr(EX))
    a('v_mul_u32_u24 %s, %d, %s' % (vr(EX), HSG - HS, vr(EX)))
    a('v_add_u32 %s, %s, v1' % (vr(EX), vr(EX)))
    for v in (VA, VB, VC, VD):
        a('v_add_u32 %s, s25, %s' % (vr(v), vr(v)))
    for hh in range(4):
        a('s_mov_b32 s%d, 0x%x\ns_mov_b32 s%d, 0x%x' % (
            40 + 2 * hh, (0xffff << (16 * hh)) & 0xffffffff, 41 + 2 * hh, ((0xffff << (16 * hh)) >> 32) & 0xffffffff))
    a('s_mul_i32 s16, s13, 12\ns_add_u32 s16, s16, s28\ns_mul_i32 s16, s16, 55296\ns_mul_i32 s4, s19, 18432\ns_add_u32 s16, s16, s4\ns_add_u32 s16, s16, %d' % W1)
    a('s_and_b32 s4, s13, 3\ns_mul_i32 s29, s4, 9\ns_and_b32 s4, s4, 1\ns_xor_b32 s4, s4, 1\ns_lshl_b32 s4, s4, 3\ns_add_u32 s29, s29, s4')
    a('s_mul_i32 s4, s29, 18432\ns_add_u32 s4, s4, %d' % WO)
    a('s_cmp_eq_u32 s12, 7\ns_cselect_b32 s16, s4, s16')
    nW = [0]

    def wld(n, guard=True):
        if not n:
            return
        L = 'wld%d' % len(a.lines)
        if guard:
            a('s_cmp_eq_u32 s12, 7')
            a('s_cbranch_scc1 %s' % L)
        for _ in range(n):
            k = nW[0]
            a('buffer_load_dwordx4 %s, v1, s[8:11], s16 offen offset:%d' % (vr(RING3 + 4 * k, 4), 1024 * (k % 4)))
            if k % 4 == 3:
                a('s_add_u32 s16, s16, 4096')
            nW[0] += 1
        if guard:
            a.label(L)
    wld(S2_WE, False)
    a('s_cmp_eq_u32 s12, 7')
    a('s_cbranch_scc0 s2_n7a')
    wld(18 - S2_WE, False)
    nW[0] = S2_WE
    a.label('s2_n7a')

    def mask_wait(name, mask, first):
        if first:
            a('s_mov_b32 s5, 0')
        else:
            a('s_branch %s_t' % name)
        a.label(name)
        if CB_SLEEP:
            a('s_sleep %d' % CB_SLEEP)
        a('s_mov_b32 s6, 0')
        a('s_atomic_or s6, s[8:9], s26 glc')
        a('s_add_u32 s5, s5, 1')
        a('s_cmp_lt_u32 s5, 0x%x' % SPIN_CAP)
        a('s_cbranch_scc0 mega_end')
        a('s_waitcnt lgkmcnt(0)')
        a.label(name + '_t')
        a('s_andn2_b32 s4, %s, s6' % mask)
        a('s_cbranch_scc1 %s' % name)
    mask_wait('e1a', 's3', True)
    stamp(a, 'e1a')
    a('v_lshlrev_b32 %s, 3, v0' % vr(VT))
    for tt in range(2):
        for p in range(2):
            a('buffer_load_dwordx4 %s, v1, s[8:11], s23 offen offset:%d sc1' % (vr(qf(tt, 2 * p), 4), 2048 * tt + 1024 * p))
    a('buffer_load_dwordx2 %s, %s, s[8:11], s24 offen sc1' % (vr(QX, 2), vr(VT)))
    def s_dma():
        for n in range(6):
            if n == 3:
                a('s_add_u32 m0, s25, 3072')
            if n in (2, 3, 5):
                a('s_add_u32 s22, s22, %d' % (HSG - HS + (3072 if n == 3 else 0)))
            a('buffer_load_dwordx4 %s, s[8:11], s22 offen offset:%d sc1 lds' % (vr(EX) if n % 3 == 1 else 'v1', 1024 * (n % 3)))

    def q_prep():
        for tt in range(2):
            for p in range(2):
                q0, q1 = qf(tt, 2 * p), qf(tt, 2 * p + 1)
                a('v_mov_b32 %s, %s' % (vr(q1), vr(q0 + 2)))
                a('v_mov_b32 %s, %s' % (vr(q1 + 1), vr(q0 + 3)))
                for q in (q0, q1):
                    a('v_mov_b32 %s, %s' % (vr(q + 2), vr(QX + tt)))
                    a('v_mov_b32 %s, 0' % vr(q + 3))
    a('s_mov_b32 m0, s25')
    mask_wait('e1b', '-1', False)
    stamp(a, 'e1b')
    s_dma()
    a('s_waitcnt vmcnt(6)')
    q_prep()
    a('s_waitcnt vmcnt(0)')
    a.label('e1_d')
    stamp(a, 'sld')
    a('ds_read_b64 %s, %s offset:1280' % (vr(XP, 2), vr(VC)))
    a('ds_read_b64 %s, %s offset:%d' % (vr(XP + 2, 2), vr(VD), 1280 + 128))
    for hh in range(4):
        a('ds_read_b128 %s, %s offset:%d' % (vr(f1(hh), 4), vr(VA), HS * hh))
        a('ds_read_b128 %s, %s offset:%d' % (vr(f2(hh), 4), vr(VB), HS * hh + 1024))
    wld(S2_W0)
    a('s_waitcnt lgkmcnt(8)')
    a('v_cvt_pk_bf16_f32 %s, %s, %s' % (vr(XP), vr(XP), vr(XP + 1)))
    a('v_cvt_pk_bf16_f32 %s, %s, %s' % (vr(XP + 2), vr(XP + 2), vr(XP + 3)))
    for hh in range(4):
        a('s_waitcnt lgkmcnt(%d)' % (6 - 2 * hh))
        for f, x in ((f1(hh), XP), (f2(hh), XP + 2)):
            a('v_cvt_pk_bf16_f32 %s, %s, %s' % (vr(f), vr(f), vr(f + 1)))
            a('v_cvt_pk_bf16_f32 %s, %s, %s' % (vr(f + 1), vr(f + 2), vr(f + 3)))
            a('v_cndmask_b32 %s, 0, %s, s[%d:%d]' % (vr(f + 2), vr(x), 40 + 2 * hh, 41 + 2 * hh))
            a('v_mov_b32 %s, 0' % vr(f + 3))
    stamp(a, 'scv')
    a('s_lshl_b32 s4, s12, 12\ns_add_u32 s4, s4, %d' % OI)
    a('v_add_u32 %s, s4, v1' % vr(VA))
    a('s_add_u32 s4, s21, 16\ns_lshl_b32 s4, s4, 11\ns_lshl_b32 s5, s20, 2\ns_add_u32 s4, s4, s5\ns_add_u32 s4, s4, %d' % OI)
    a('v_add_u32 %s, s4, v1' % vr(VB))
    for tt in range(2):
        for p in range(2):
            for n in range(2):
                mfma(a, XP + 8 * n + 4, f2(2 * p + n), qf(tt, 2 * p + n))
            for n in range(2):
                mfma(a, XP + 8 * n, f1(2 * p + n), qf(tt, 2 * p + n))
            wld(S2_W1)
            O = qf(tt, 2 * p)
            for n in range(2):
                d2 = XP + 8 * n + 4
                a('v_add_f32 %s, 0x%x, %s' % (vr(d2 + 2), EPS6, vr(d2 + 2)))
            for n in range(2):
                d2 = XP + 8 * n + 4
                a('v_rcp_f32 %s, %s' % (vr(d2 + 2), vr(d2 + 2)))
            for n in range(2):
                hh = 2 * p + n
                d1 = XP + 8 * n; d2 = d1 + 4
                for r in (4, 5, 0, 1, 2, 3):
                    a('v_mul_f32 %s, %s, %s' % (vr(d1 + r), vr(d1 + r), vr(d2 + 2)))
                a('v_cvt_pk_bf16_f32 %s, %s, %s' % (vr(O + 2 * n), vr(d1), vr(d1 + 1)))
                a('v_cvt_pk_bf16_f32 %s, %s, %s' % (vr(O + 2 * n + 1), vr(d1 + 2), vr(d1 + 3)))
                if hh == 0:
                    a('v_cvt_pk_bf16_f32 %s, %s, %s' % (vr(EX), vr(d2), vr(d2 + 1)))
                else:
                    a('v_cvt_pk_bf16_f32 %s, %s, %s' % (vr(VT), vr(d2), vr(d2 + 1)))
                    a('v_cndmask_b32 %s, %s, %s, s[%d:%d]' % (vr(EX), vr(EX), vr(VT), 40 + 2 * hh, 41 + 2 * hh))
            a('ds_write_b128 %s, %s offset:%d' % (vr(VA), vr(O, 4), 2048 * p + 1024 * tt))
        a('ds_write_b32 %s, %s offset:%d' % (vr(VB), vr(EX), 1024 * tt))
    stamp(a, 'st1')
    a('s_waitcnt lgkmcnt(0)')
    a('s_barrier')
    stamp(a, 'o')
    a('s_cmp_eq_u32 s12, 7')
    a('s_cbranch_scc1 s2_w7')
    if S2_BAR:
        a('s_barrier')
    wld(18 - S2_W5 - nW[0], False)
    n5 = nW[0]
    a('s_branch s2_done')
    a.label('s2_w7')
    a('s_setprio %d' % W7_PRIO)

    def resid_store(nt, AC, T, s_ct):
        A = T + 24; G = T + 26
        a('s_bfe_u32 s7, %s, 0x10001' % sr(s_ct))
        if nt == 1:
            a('s_and_b32 s24, %s, 1\ns_lshl_b32 s24, s24, 1' % sr(s_ct))
            a('v_lshrrev_b32 %s, 1, v3' % vr(G))
            a('v_add_u32 %s, s24, %s' % (vr(G), vr(G)))
            a('v_lshlrev_b32 %s, 8, %s' % (vr(G + 1), vr(G)))
            a('v_lshl_add_u32 %s, v2, 4, %s' % (vr(G + 1), vr(G + 1)))
            lane_part(A, A + 1, 's7', G, G + 1)
            a('v_and_b32 %s, 1, v3' % vr(G))
            a('v_lshl_add_u32 %s, %s, 11, %s' % (vr(A), vr(G), vr(A)))
            a('v_mul_u32_u24 %s, 18432, %s' % (vr(G), vr(G)))
            a('v_add_u32 %s, %s, %s' % (vr(G), vr(G), vr(G + 1)))
        else:
            lane_part(A, A + 1, 's7')
        a('s_lshr_b32 s4, %s, 1\ns_lshr_b32 s5, s13, 2\ns_lshl_b32 s5, s5, 1' % sr(s_ct))
        a('s_lshr_b32 s6, s4, 1\ns_lshl_b32 s6, s6, 2\ns_add_u32 s6, s6, s5\ns_lshl_b32 s6, s6, 11\ns_add_u32 s6, s6, %d' % XI)
        a('v_add_u32 %s, s6, %s' % (vr(A), vr(A)))
        for tt in range(nt):
            a('ds_read_b128 %s, %s offset:%d' % (vr(T + 4 * tt, 4), vr(A), 2048 * tt))
        a('s_lshl_b32 s6, s14, 2\ns_add_u32 s6, s6, s5\ns_mul_i32 s6, s6, 18\ns_add_u32 s6, s6, s4\ns_lshl_b32 s6, s6, 10')
        a('s_add_u32 s6, s6, s%d\ns_add_u32 s6, s6, %d\ns_add_u32 s7, s6, 18432' % (LOFF, X1))
        if nt == 1:
            for r in range(4):
                a('v_permlane16_swap_b32 %s, %s' % (vr(AC + r), vr(AC + 4 + r)))
        a('s_waitcnt lgkmcnt(0)')
        for tt in range(nt):
            U = T + 8 + 8 * tt
            for h in range(4):
                a('v_lshlrev_b32 %s, 16, %s' % (vr(U + 2 * h), vr(T + 4 * tt + h)))
                a('v_and_b32 %s, 0xffff0000, %s' % (vr(U + 2 * h + 1), vr(T + 4 * tt + h)))
            for j in range(2):
                for r in range(4):
                    a('v_add_f32 %s, %s, %s' % (vr(U + 4 * j + r), vr(U + 4 * j + r), vr(AC + (nt * j + tt) * 4 + r)))
            for h in range(4):
                a('v_cvt_pk_bf16_f32 %s, %s, %s' % (vr(T + 4 * tt + h), vr(U + 2 * h), vr(U + 2 * h + 1)))
            a('buffer_store_dwordx4 %s, %s, s[8:11], s%d offen sc1' % (vr(T + 4 * tt, 4), vr(G) if nt == 1 else 'v1', 6 + tt))

    NB = 8
    slot = lambda n: FR + 4 * (n % NB)
    a('v_add_u32 %s, %d, v1' % (vr(VA), OI))
    for n in range(NB):
        a('ds_read_b128 %s, %s offset:%d' % (vr(slot(n), 4), vr(VA), 1024 * n))
    for n in range(36):
        k, tt = n >> 1, n & 1
        a('s_waitcnt lgkmcnt(%d)' % min(NB - 1, 35 - n))
        if n == 0 and S2_BAR:
            a('s_barrier')
        mfma(a, 4 + 4 * tt, RING3 + 4 * k, slot(n), None if k == 0 else 4 + 4 * tt)
        if n + NB < 36:
            a('ds_read_b128 %s, %s offset:%d' % (vr(slot(n), 4), vr(VA), 1024 * (n + NB)))
    stamp(a, 'gem')
    resid_store(1, 4, 20, 29)
    stamp(a, 'rst')
    a('s_setprio 0')
    a('s_waitcnt vmcnt(0)')
    a('s_branch s2_done')
    a.label('s2_hi')
    if W2_ST == 'w1':
        w2_store('w2_s1')
    wo_pre(WO_W1 + WO_SPLIT[1])
    a('v_lshlrev_b32 v4, 2, v0')
    a('s_mov_b64 exec, 0xff')
    a('ds_write_b32 v4, %s offset:%d' % (vr(VZ), FLG))
    a('s_mov_b64 exec, -1')
    a('s_waitcnt lgkmcnt(0)')
    wo_pre(WO_SPLIT[2])
    assert nO[0] == NPRE
    a('v_add_u32 v4, %d, v1' % OI)
    a('s_waitcnt vmcnt(0)')
    if W2_ST == 'w3':
        w2_store('w2_s3')
    a('s_setprio 2')
    a('s_barrier')
    stamp(a, 'o')
    b2 = lambda k, tt: B2 + ((k % 4) * 2 + tt) * 4
    for k in range(4):
        for tt in range(2):
            a('ds_read_b128 %s, v4 offset:%d' % (vr(b2(k, tt), 4), 2048 * k + 1024 * tt))
    for k in range(18):
        w = 's_waitcnt lgkmcnt(%d)' % min(6, 2 * (17 - k))
        if k >= NPRE:
            w += ' vmcnt(%d)' % (2 * (17 - k))
        a(w)
        for j in range(2):
            for tt in range(2):
                d = AC2 + (2 * j + tt) * 4
                mfma(a, d, wr(k, j), b2(k, tt), None if k == 0 else d)
        if k + NPRE < 18:
            wo_ld(k + NPRE)
        if k + NPRE == 17 and S2_BAR:
            a('s_barrier')
        if k + 4 < 18:
            for tt in range(2):
                a('ds_read_b128 %s, v4 offset:%d' % (vr(b2(k, tt), 4), 2048 * (k + 4) + 1024 * tt))
    stamp(a, 'gem')
    resid_store(2, AC2, B2, 25)
    stamp(a, 'rst')
    a('s_setprio 0')
    a('s_waitcnt vmcnt(0)')
    a('s_cmp_eq_u32 s35, 0')
    a('s_cbranch_scc1 s2_done')
    mem_arrive(a, 35)
    a.label('s2_done')
    stamp(a, 's2d')
    group_sync('e2')
    if S2_W5:
        a('s_cmp_ge_u32 s12, 7')
        a('s_cbranch_scc1 e2_y')
        nW[0] = n5
        wld(S2_W5, False)
        a.label('e2_y')
    a('s_barrier')
    stamp(a, 'e2')

    ACC = 4; RING = RING3; BF = RING + 72; RS = BF + 32
    VA = RS + 4; VT = VA + 3; VC = VT + 1; VK = VC + 1; VN = VK + 1
    acc = lambda j, tt: ACC + (j * 4 + tt) * 4
    ring3 = lambda k, j: RING + ((k % 6) * 3 + j) * 4
    bf = lambda p, tt: BF + (p * 4 + tt) * 4
    load_x('x1', X1, XC3)
    a('s_lshl_b32 s4, s20, 2')
    a('v_mov_b32 %s, s4' % vr(VK))
    a('s_mul_i32 s16, s13, 12\ns_add_u32 s16, s16, s28\ns_mul_i32 s16, s16, 55296\ns_add_u32 s16, s16, %d' % W1)
    for b in range(3):
        a('s_mul_i32 s4, s%d, 18432\ns_add_u32 s%d, s4, s16' % (48 + b, 30 + b))
        a('s_mul_i32 s4, s%d, 24576\ns_add_u32 s4, s4, %d' % (48 + b, XI))
        a('v_add_u32 %s, s4, v1' % vr(VA + b))
    a('s_lshl_b32 s4, s21, 3\ns_lshl_b32 s27, 1, s4')
    a('s_mov_b32 s18, s21')
    a('v_mov_b32 %s, %d' % (vr(VN), XC3))
    a('s_cmp_ge_u32 s12, 8')
    a('s_cbranch_scc1 s3_hi')
    a('s_waitcnt vmcnt(0)')
    a('s_barrier')
    stamp(a, 'x3')
    a('s_cmp_lt_u32 s12, 7')
    a('s_cbranch_scc1 s3_filled')
    a('s_branch s3_fill')
    a.label('s3_hi')
    a('s_barrier')
    x_count(XC3)
    stamp(a, 'x3')
    a('s_setprio %d' % P3_SPRIO)
    a('s_lshl_b32 s4, s20, 11\ns_add_u32 s4, s4, %d' % XI)
    a('v_add_u32 %s, s4, v1' % vr(VC))
    a('v_add_u32 %s, %d, %s' % (vr(VT), 5 * 8192, vr(VC)))
    for k in range(4):
        a('v_mov_b32 %s, 0x%x' % (vr(BF + k), ONES))
    rdk = lambda k: a('ds_read_b128 %s, %s offset:%d' % (vr(RING + 4 * k, 4), vr(VC if k < 10 else VT), img(k % 10, 0)))
    for k in range(12):
        rdk(k)
    for k in range(18):
        a('s_waitcnt lgkmcnt(%d)' % min(11, 17 - k))
        f = RING + 4 * k
        mfma(a, ACC, BF, f, None if k == 0 else ACC)
        mfma(a, ACC + 4, f, f, None if k == 0 else ACC + 4)
        if k + 12 < 18:
            rdk(k + 12)
    diag_select(a, ACC + 1, ACC + 4)
    rstd_from(a, ACC + 2, ACC, ACC + 1)
    a('s_lshl_b32 s4, s20, 6')
    a('v_lshl_add_u32 %s, v2, 2, s4' % vr(VT))
    a('s_cmp_eq_u32 s12, 11')
    a('s_cbranch_scc0 w2_n5')
    a('s_add_u32 s6, s%d, %d\ns_mov_b32 s7, 81' % (CBO, FL_CW - FL_CB))
    mem_wait(a, 'w2_w', 6, 7, VZ, 5)
    a.label('w2_n5')
    a('v_mov_b32 %s, 0x1000000' % vr(VC))
    a('s_mov_b32 exec_lo, 0x00f0000f\ns_mov_b32 exec_hi, 0xf0000f00')
    a('ds_write_b32 %s, %s' % (vr(VT), vr(ACC + 2)))
    a('s_mov_b64 exec, 1')
    a('ds_add_u32 %s, %s offset:%d' % (vr(VZ), vr(VC), CNT))
    a('s_mov_b64 exec, -1')
    a.label('s3_tok')
    a('s_lshl_b32 s4, s18, 2\ns_lshr_b32 s33, 0x%x, s4\ns_and_b32 s33, s33, 15' % sum(t << (4 * (q + 2)) for q, t in enumerate(P3_THR)))
    lds_spin(a, 's3_tk', VT, VK, TOK, 0, 0, ge=33)
    a.label('s3_fill')
    a('s_mov_b32 s15, s30')
    for k in range(6):
        for j in range(3):
            a('buffer_load_dwordx4 %s, v1, s[8:11], s15 offen offset:%d' % (vr(ring3(k, j), 4), 1024 * j))
        if k < 5:
            a('s_add_u32 s15, s15, 3072')
    a.label('s3_filled')
    stamp(a, 'fl')
    a('v_mov_b32 %s, 1' % vr(VC))
    a('s_setprio 2')
    a('s_cmp_lt_u32 s18, 3')
    a('s_cbranch_scc1 s3_pass')
    lds_spin(a, 's3_w2', VT, VZ, CNT, 0xff, 0x04)
    a('s_setprio 1')
    a.label('s3_pass')

    def rd(k, tt):
        a('ds_read_b128 %s, %s offset:%d' % (vr(bf(k & 1, tt), 4), vr(VA + k // 6), img(k % 6, tt)))
    for tt in range(4):
        rd(0, tt)
    a('s_waitcnt vmcnt(17) lgkmcnt(0)')
    issued = 18
    for k in range(18):
        for n in range(12):
            j, tt = n >> 2, n & 3
            if j & 1:
                tt = 3 - tt
            mfma(a, acc(j, tt), ring3(k, j), bf(k & 1, tt), None if k == 0 else acc(j, tt))
            if n == 0 and k < 12:
                a('s_add_u32 s15, s15, 3072' if k % 6 else 's_mov_b32 s15, s%d' % (31 + k // 6))
            if n in (0, 1, 4, 5) and k < 17:
                rd(k + 1, n if n < 2 else n - 2)
            if n in (2, 6, 10) and k * 3 + j + 1 < 54:
                a('s_waitcnt vmcnt(%d)%s' % (issued - (k * 3 + j + 2), ' lgkmcnt(0)' if n == 10 else ''))
            if n in (3, 7, 11) and k < 12:
                a('buffer_load_dwordx4 %s, v1, s[8:11], s15 offen offset:%d' % (vr(ring3(k, j), 4), 1024 * j))
                issued += 1
            if k == P3_TOK + 1 and n == 7:
                a('s_mov_b64 exec, 1')
                a('ds_add_u32 %s, %s offset:%d' % (vr(VK), vr(VC), TOK))
                a('s_mov_b64 exec, -1')
            if k in (4, 10):
                m = 0x0400 if k == 4 else 0x040000
                if n == 6:
                    a('ds_read_b32 %s, %s' % (vr(VT), vr(VN)))
                if n == 10:
                    a('v_readfirstlane_b32 s4, %s' % vr(VT))
                if n == 11:
                    a('s_andn2_b32 s4, 0x%x, s4' % m)
                    a('s_cbranch_scc1 s3_slow%d' % k)
                    a.label('s3_back%d' % k)
                    stamp(a, 'k%d' % k)
    a('s_setprio 0')
    a('s_lshr_b32 s24, s28, 1\ns_mul_i32 s24, s24, 3\ns_and_b32 s25, s28, 1')
    a('s_cmp_ge_u32 s18, 3')
    a('s_cbranch_scc1 s3_epib')
    stamp(a, 'pa')
    lds_spin(a, 's3_w1', VT, VZ, CNT, 0xff000000, 0x04000000)
    a('v_lshlrev_b32 %s, 2, v2' % vr(VT))
    for tt in range(4):
        a('ds_read_b32 %s, %s offset:%d' % (vr(RS + tt), vr(VT), 64 * tt))
    def img_s(dst, ks):
        a('s_lshr_b32 s6, %s, 1\ns_lshl_b32 s6, s6, 13\ns_and_b32 %s, %s, 1\ns_lshl_b32 %s, %s, 10\ns_add_u32 %s, %s, s6' % (ks, dst, ks, dst, dst, dst, dst))
    a('s_lshl_b32 s4, s25, 1\ns_add_u32 s4, s4, s24')
    img_s('s4', 's4')
    a('s_add_u32 s4, s4, %d' % HI)
    a('s_add_u32 s5, s24, 1')
    img_s('s5', 's5')
    a('s_lshl_b32 s6, s25, 3\ns_add_u32 s5, s5, s6\ns_add_u32 s5, s5, %d' % HI)
    a('s_waitcnt lgkmcnt(0)')
    a('v_add_u32 %s, s4, v1' % vr(VT))
    a('v_add_u32 %s, s5, v1' % vr(VC))
    C = BF + 28
    for tt in range(4):
        a('v_mul_f32 %s, 0x%x, %s' % (vr(C + tt), NLOG2E, vr(RS + tt)))
    T = BF
    units = [[(0, u), (1, u)] for u in range(4)] + [[(2, 0), (2, 1)], [(2, 2), (2, 3)]]
    for u, un in enumerate(units):
        idx = [(j, tt, r) for j, tt in un for r in range(4)]
        for n, (j, tt, r) in enumerate(idx):
            a('v_mul_f32 %s, %s, %s' % (vr(T + n), vr(acc(j, tt) + r), vr(C + tt)))
        for n in range(8):
            a('v_exp_f32 %s, %s' % (vr(T + n), vr(T + n)))
        for n in range(8):
            a('v_add_f32 %s, 1.0, %s' % (vr(T + n), vr(T + n)))
        for n in range(8):
            a('v_rcp_f32 %s, %s' % (vr(T + n), vr(T + n)))
        for n, (j, tt, r) in enumerate(idx):
            a('v_mul_f32 %s, %s, %s' % (vr(T + n), vr(acc(j, tt) + r), vr(T + n)))
        P = BF + 8 + 4 * (u % 4)
        for n in range(4):
            a('v_cvt_pk_bf16_f32 %s, %s, %s' % (vr(P + n), vr(T + 2 * n), vr(T + 2 * n + 1)))
        if u < 4:
            a('ds_write_b128 %s, %s offset:%d' % (vr(VT), vr(P, 4), 2048 * u))
        else:
            a('ds_write_b64 %s, %s offset:%d' % (vr(VC), vr(P, 2), 2048 * un[0][1]))
            a('ds_write_b64 %s, %s offset:%d' % (vr(VC), vr(P + 2, 2), 2048 * un[1][1]))
    a('v_mov_b32 %s, s27' % vr(VT))
    a('s_mov_b64 exec, 1')
    a('ds_add_u32 %s, %s offset:%d' % (vr(VZ), vr(VT), CNT))
    a('s_mov_b64 exec, -1')
    for b in range(3):
        a('s_add_u32 s%d, s%d, %d' % (30 + b, 30 + b, W2 - W1))
        a('v_add_u32 %s, %d, %s' % (vr(VA + b), HI - XI, vr(VA + b)))
    a('s_add_u32 s18, s18, 3')
    stamp(a, 'ea')
    a('v_mov_b32 %s, %d' % (vr(VN), CNT))
    a('s_branch s3_tok')
    for k, m in ((4, 0x0400), (10, 0x040000)):
        a.label('s3_slow%d' % k)
        lds_spin(a, 's3_sl%d' % k, VT, VN, 0, m, m)
        a('s_branch s3_back%d' % k)
    a.label('s3_epib')
    stamp(a, 'pb')
    a('s_setprio %d' % EPB_PRIO)
    a('s_lshl_b32 s4, s13, 5\ns_add_u32 s4, s4, s14\ns_mul_i32 s4, s4, 12\ns_add_u32 s4, s4, s28\ns_mul_i32 s4, s4, 6144')
    a('s_add_u32 s6, s4, s%d\ns_add_u32 s7, s6, 4096' % PRT)
    for u, un in enumerate(units):
        P = BF + 4 * u
        for n, (j, tt) in enumerate(un):
            for r in range(4):
                a('v_mul_f32 %s, %s, %s' % (vr(acc(j, tt) + r), vr(acc(j, tt) + r), vr(RS + tt)))
            a('v_cvt_pk_bf16_f32 %s, %s, %s' % (vr(P + 2 * n), vr(acc(j, tt)), vr(acc(j, tt) + 1)))
            a('v_cvt_pk_bf16_f32 %s, %s, %s' % (vr(P + 2 * n + 1), vr(acc(j, tt) + 2), vr(acc(j, tt) + 3)))
        if u >= 4:
            a('v_permlane16_swap_b32 %s, %s' % (vr(P), vr(P + 2)))
            a('v_permlane16_swap_b32 %s, %s' % (vr(P + 1), vr(P + 3)))
        a('buffer_store_dwordx4 %s, v1, s[8:11], s%d offen offset:%d sc1' % (vr(P, 4), 6 + (u >> 2), 1024 * (u & 3)))
    a('s_mul_i32 s22, s14, 12\ns_add_u32 s4, s22, s28\ns_lshl_b32 s4, s4, %d\ns_add_u32 s6, s4, %d' % (FSH, FL_RF))
    a('v_mov_b32 v4, 1')
    a('s_and_b32 s23, s28, 12\ns_lshr_b32 s4, s13, 1\ns_add_u32 s23, s23, s4')
    a('s_add_u32 s22, s22, s23')
    a('s_lshl_b32 s7, s22, %d\ns_add_u32 s7, s7, %d' % (FSH, FL_RF))
    a('s_and_b32 s29, s13, 1')
    a('s_lshr_b32 s24, s23, 1\ns_mul_i32 s24, s24, 3\ns_and_b32 s25, s23, 1')
    a('s_lshl_b32 s26, s29, 1')
    a('v_mov_b32 v8, v3\nv_mov_b32 v9, 0')
    a('s_cmp_eq_u32 s20, 2')
    a('s_cbranch_scc1 s3_mix')
    a('s_add_u32 s26, s26, s20\ns_mov_b32 s16, s26')
    a('s_lshl_b32 s4, s25, 1\ns_add_u32 s24, s24, s4')
    a('s_branch s3_adr')
    a.label('s3_mix')
    a('s_add_u32 s16, s29, 4\ns_add_u32 s24, s24, 1\ns_lshl_b32 s25, s25, 1')
    a('v_lshrrev_b32 v8, 1, v3\nv_add_u32 v8, s25, v8\nv_and_b32 v9, 1, v3')
    a.label('s3_adr')
    a('s_mul_i32 s22, s22, 6\ns_add_u32 s16, s16, s22\ns_lshl_b32 s16, s16, 10\ns_add_u32 s16, s16, s%d' % PRT)
    a('s_lshr_b32 s4, s24, 1\ns_lshl_b32 s4, s4, 2\ns_add_u32 s4, s4, s26\ns_lshl_b32 s4, s4, 1\ns_and_b32 s5, s24, 1\ns_add_u32 s4, s4, s5')
    a('s_lshl_b32 s4, s4, 10\ns_add_u32 s4, s4, %d' % XI)
    a('v_lshlrev_b32 v7, 8, v8')
    a('v_lshl_add_u32 v7, v2, 4, v7')
    a('v_lshl_add_u32 v6, v9, 11, v7')
    a('v_add_u32 v6, s4, v6')
    a('v_mul_u32_u24 v9, 18432, v9')
    a('s_lshl_b32 s4, s14, 2\ns_add_u32 s4, s4, s26\ns_mul_i32 s17, s4, 18432')
    a('s_mov_b32 s39, 0x20000')
    a('s_cmp_eq_u32 s%d, 0' % LAY)
    a('s_cbranch_scc0 s3_fin')
    a('s_mov_b32 s36, s8\ns_mov_b32 s37, s9\ns_mov_b32 s38, s10')
    a('s_lshl_b32 s4, s24, 10\ns_add_u32 s17, s17, s4\ns_add_u32 s17, s17, %d' % (X0 + ACT))
    a('s_branch s3_pu0')
    a.label('s3_fin')
    a('s_mov_b32 s36, s94\ns_mov_b32 s37, s95\ns_mov_b32 s38, %d' % ACT)
    a('s_lshl_b32 s4, s24, 6\ns_add_u32 s17, s17, s4')
    a('v_mul_u32_u24 v7, 1152, v2')
    a('v_lshl_add_u32 v7, v8, 4, v7')
    a.label('s3_pu0')
    a('v_add_u32 v7, v7, v9')
    a.label('s3_pub')
    a('s_cmp_eq_u32 s18, 5')
    a('s_cbranch_scc0 s3_pu2')
    a('s_mov_b64 exec, 1')
    a('ds_add_u32 %s, v4 offset:%d' % (vr(VK), TOK))
    a('s_mov_b64 exec, -1')
    a.label('s3_pu2')
    stamp(a, 'pst')
    a('s_waitcnt vmcnt(0)')
    stamp(a, 'pdr')
    mem_arrive(a, 6, VZ, 4)
    a('s_cmp_eq_u32 s20, 3')
    a('s_cbranch_scc1 s3_red_done')
    RX = 8; PP = 20; AC = 12
    a('ds_read_b128 %s, v6' % vr(RX, 4))
    mem_wait(a, 's3_rw', 7, RFW, VZ, 5, backoff=(18, 5, 4))
    stamp(a, 'rw0')
    thr = sum(t << (4 * (4 * l + g)) for l in range(2) for g, t in enumerate(RED_THR[l]))
    a('s_lshl_b32 s4, s%d, 2\ns_add_u32 s4, s4, s21\ns_lshl_b32 s4, s4, 2\ns_lshr_b32 s33, 0x%x, s4\ns_and_b32 s33, s33, 15' % (LAY, thr))
    lds_spin(a, 's3_t6r', VT, VK, TOK, 0, 0, ge=33)
    stamp(a, 'rw1')
    for c in range(8):
        a('buffer_load_dwordx4 %s, v1, s[8:11], s16 offen sc1' % vr(PP + 4 * c, 4))
        if c < 7:
            a('s_add_u32 s16, s16, %d' % ACT)
    a('s_waitcnt lgkmcnt(0)')
    for n in range(4):
        a('v_lshlrev_b32 %s, 16, %s' % (vr(AC + 2 * n), vr(RX + n)))
        a('v_and_b32 %s, 0xffff0000, %s' % (vr(AC + 2 * n + 1), vr(RX + n)))
    for c in range(8):
        a('s_waitcnt vmcnt(%d)' % (7 - c))
        for n in range(4):
            a('v_lshlrev_b32 %s, 16, %s' % (vr(RX + n), vr(PP + 4 * c + n)))
            a('v_and_b32 %s, 0xffff0000, %s' % (vr(PP + 4 * c + n), vr(PP + 4 * c + n)))
        for n in range(4):
            a('v_add_f32 %s, %s, %s' % (vr(AC + 2 * n), vr(AC + 2 * n), vr(RX + n)))
            a('v_add_f32 %s, %s, %s' % (vr(AC + 2 * n + 1), vr(AC + 2 * n + 1), vr(PP + 4 * c + n)))
    for n in range(4):
        a('v_cvt_pk_bf16_f32 %s, %s, %s' % (vr(RX + n), vr(AC + 2 * n), vr(AC + 2 * n + 1)))
    stamp(a, 'rsum')
    if OUT_ST != ' sc1':
        a('s_cmp_eq_u32 s%d, 0' % LAY)
        a('s_cbranch_scc1 s3_st0')
        a('buffer_store_dwordx4 %s, v7, s[36:39], s17 offen%s' % (vr(RX, 4), OUT_ST))
        a('s_branch s3_red_done')
        a.label('s3_st0')
    a('buffer_store_dwordx4 %s, v7, s[36:39], s17 offen sc1' % vr(RX, 4))
    a.label('s3_red_done')
    a('s_setprio 0')
    a('s_cmp_eq_u32 s%d, 0' % LAY)
    a('s_cbranch_scc0 mega_fin')
    a('s_waitcnt vmcnt(0)')
    if STAMPS:
        stamp_end(a, 6, 12, 12, 12, base_v=8)
        a('s_mov_b64 exec, -1')
        a('s_waitcnt vmcnt(0)')
        stamp(a, 0)
    a('s_mov_b32 s%d, 1\ns_mov_b32 s%d, %d\ns_mov_b32 s%d, 64\ns_mov_b32 s%d, 16' % (LAY, LOFF, ACT, CBW, RFW))
    a('s_add_u32 s%d, s%d, %d\ns_add_u32 s%d, s%d, %d' % (SOF, SOF, 32 * HSG, PRT, PRT, PART_STEP))
    a('s_lshl_b32 s6, s14, 2\ns_add_u32 s6, s6, s21\ns_lshl_b32 s6, s6, %d\ns_add_u32 s6, s6, %d' % (FSH, FL_GT))
    a('s_mov_b32 s33, %d\ns_mov_b32 s35, 0' % NX_TOK)
    a('s_cmp_eq_u32 s20, 3')
    a('s_cbranch_scc1 nx_load')
    mem_arrive(a, 6, VZ, 4)
    a('s_cmp_ge_u32 s12, 8')
    a('s_cbranch_scc1 s1_wo')
    lds_spin(a, 'nx_t1', VT, VK, TOK, 0, 0, ge=33)
    a('s_branch nx_fill')
    a.label('nx_load')
    lds_spin(a, 'nx_t2', VT, VK, TOK, 0, 0, ge=33)
    a('s_mov_b32 s7, 24')
    a('s_setprio 3')
    mem_wait(a, 'nx_w', 6, 7, VZ, 5, backoff=(12, 11, NX_SLEEP))
    stamp(a, 'e4')
    a('s_lshr_b32 s4, s28, 2')
    a('s_mul_i32 s22, s4, 6144\ns_mul_i32 s5, s14, 73728\ns_add_u32 s22, s22, s5\ns_add_u32 s22, s22, %d' % (X0 + ACT))
    a('s_mul_i32 s24, s4, 24576\ns_add_u32 s24, s24, %d' % XI)
    for p in range(3):
        for tt in range(4):
            a('s_add_u32 m0, s24, %d' % (8192 * p + 2048 * tt))
            a('s_add_u32 s23, s22, %d' % (2048 * p + 18432 * tt))
            for h in range(2):
                a('buffer_load_dwordx4 v1, s[8:11], s23 offen offset:%d sc1 lds' % (1024 * h))
    a('s_lshl_b32 s4, s27, 2')
    a('v_mov_b32 v5, s4')
    a('s_waitcnt vmcnt(0)')
    a('s_mov_b64 exec, 1')
    a('ds_add_u32 %s, v5 offset:%d' % (vr(VZ), XC1))
    a('s_mov_b64 exec, -1')
    a('s_setprio 0')
    a('s_cmp_eq_u32 s12, 11')
    a('s_cbranch_scc1 s1_wo')
    a('s_cmp_eq_u32 s12, 7')
    a('s_cbranch_scc1 nx_go')
    a.label('nx_fill')
    s1_fill(NX_DEPTH)
    a.label('nx_go')
    stamp(a, 'fil')
    lds_spin(a, 'nx_x0', 6, VZ, XC1, 4, 4)
    a('s_branch s1_go')
    a.label('mega_fin')
    if AMP:
        a('s_cmp_eq_u32 s2, 20\ns_cbranch_scc0 amp_x')
        a('s_cmp_eq_u32 s12, 8\ns_cbranch_scc0 amp_x')
        a('s_waitcnt vmcnt(0)')
        a('s_mov_b32 s4, %d' % (DBG - 4096))
        a('buffer_load_dword v8, %s, s[8:11], s4 offen' % vr(VZ))
        a('s_memrealtime s[40:41]')
        a('s_waitcnt vmcnt(0) lgkmcnt(0)')
        a('v_readfirstlane_b32 s42, v8')
        if AMP == 'all':
            a('s_sub_u32 s43, s40, s42')
        elif AMP == 'mega':
            a('s_sub_u32 s43, s40, s84')
        elif AMP == 'prep':
            a('s_sub_u32 s43, s84, s42')
        else:
            a('s_mov_b32 s43, 0')
        a('s_min_u32 s43, s43, 50000')
        a.label('amp_l')
        a('s_memrealtime s[44:45]')
        a('s_waitcnt lgkmcnt(0)')
        a('s_sub_u32 s44, s44, s40')
        a('s_cmp_lt_u32 s44, s43')
        a('s_cbranch_scc1 amp_l')
        a.label('amp_x')
    stamp_end(a, 7, 12, 12, 12, base_v=8)
    a.label('mega_end')
    a('s_endpgm')
    if SINGLE:
        a.lines = [l + ' sc1' if re.match(r'buffer_load_dwordx4 v\[\d+:\d+\], v1, s\[8:11\]', l) and 'sc1' not in l else l for l in a.lines]
    return (KNAME if SINGLE else 'mega_kernel', a, 168, 102, (256, 768, LDS))


def gen_pf():
    a = Asm()
    a('s_cmp_ge_u32 s2, 256')
    a('s_cbranch_scc1 pf_end')
    ws_srd(a)
    a('s_waitcnt lgkmcnt(0)')
    l2_touch(a, WQ, WQ_HG, NCX, 8, 2, 3)
    l2_touch(a, WO, 9 * 18432, 4, 4, 2, 3)
    a('s_waitcnt vmcnt(0)')
    a.label('pf_end')
    a('s_endpgm')
    return ('pf_kernel', a, 8, 24, (256, 64, 0))


def gen_empty(n=''):
    a = Asm()
    a('s_endpgm')
    return ('empty%s_kernel' % n, a, 8, 16, (256, 256, 0))


def gen_chain(slot):
    a = Asm()
    a('s_cmp_ge_u32 s2, 32')
    a('s_cbranch_scc1 chain_end')
    a('s_load_dwordx2 s[8:9], s[0:1], %d' % (8 * slot))
    a('s_mov_b32 s10, %d\ns_mov_b32 s11, 0x20000' % ACT)
    a('s_mul_i32 s4, s2, %d' % (64 * 1024))
    a('v_mov_b32 v1, 0')
    a('s_mov_b64 exec, 1')
    a('s_waitcnt lgkmcnt(0)')
    for k in range(64):
        a('buffer_load_dword v2, v1, s[8:11], s4 offen')
        a('s_waitcnt vmcnt(0)')
        a('v_and_b32 v2, 0, v2')
        a('v_add_u32 v1, 1024, v1')
        a('v_add_u32 v1, v2, v1')
    a.label('chain_end')
    a('s_endpgm')
    return ('chain_kernel', a, 8, 16, (32, 64, 0))


PRE = []
S2_BAR = True
W7_PRIO = 3
S1_R2 = 3
OUT_ST = ' sc1'
TLB_STEP = 0
WQ_TOUCH = False
PREP_OLD = ' nt'
PREP_REV = 2
X0_LD = ''
PREP_TLD = ''
PREP_HOLD = False
PREP_T1 = 'h3'
PREP_TX = True
PREP_QT = True
PREP_1LD = ' nt'
W2_ST = 'w1'
RED_THR = ((5, 6), (5, 6))
WO_W1 = 7
S2_W5 = 6
WO_SPLIT = (6, 0, 0)
RED_TOUCH = 0
RED_TSTEP = 128
SFLAG = True
CB_SLEEP = 2
NX_TOK = 6
NX_DEPTH = None
NX_SLEEP = 4
S1_GATE = 8
S1_GATEN = 7
WO_TOUCH = True
P3_THR = (1, 2, 3, 4)
RED_MODE = 0
EPB_PRIO = 3
PREP_RANGES = ((0, 64), (64, 136), (136, 208), (208, 217), (217, 241))
PREP_QLD = ''
PREP_HLD = ''
PREP_H3 = True
PREP_ROT = 0
PREP_GLD = ''
NCX = 4
S2_WE = 0
S2_W0 = 2
S2_W1 = 1
P3_LEAD = 0
PART_STEP = 0
MID = []
KD_PF = False
P3_SLEEP = 0
P3_TOK = 10
P3_EPRIO2 = 0
P3_SPRIO = 3
PF1 = []
PF2 = []
PF3 = None
P0_LD = ''
P1_NCX = 4
P2_NCX = 4
P1_ST = ' sc1'
P2_W0 = 4
P2_W1 = 2
CODE_PF = True
PREP_ST = ' sc1'
PREP_XLD = ''
P3_LD = ''
P3_SNAKE = True
P3_EPRIO = 0
PF = False
P3_NODS = False
P3_NOLD = False
PRIO = True
P3_NCX = 4
P3_ST = ' sc1'


def build():
    if SINGLE:
        name, a, nv, ns, (g, b, l) = gen_mega()
        c, d = kernel_text(name, a, nv, ns)
        hdr = '; generated by gen/gen.py (hand-written generator); see that file for the layouts\n'
        extra = ''
        if PRE or MID:
            en, ea, ev, es, _ = gen_empty()
            ec, ed = kernel_text(en, ea, ev, es)
            extra = ec; d += ed
        eline = '; @launch kernel=empty_kernel grid=(%d,1,1) block=(64,1,1) lds=0\n'
        hdr += ''.join(eline % n for n in PRE)
        hdr += '; @launch %sgrid=(%d,1,1) block=(%d,1,1) lds=%d\n' % ('kernel=%s ' % name if SINGLE == 'list' else '', g, b, l)
        hdr += ''.join(eline % n for n in MID)
        return hdr + '.amdgcn_target "amdgcn-amd-amdhsa--gfx950"\n' + c + 'code_end:\n' + extra + d
    ks = [gen_prep(), gen_mega()]
    for e in sorted(set(MID)):
        ks.append(gen_pf() if e == 'pf' else gen_empty(e[5:]))
    geo = {k[0]: k[4] for k in ks}
    order = ['prep'] + MID + ['mega']
    hdr = ['; generated by gen/gen.py (hand-written generator); see that file for the layouts']
    for o in order:
        g, b, l = geo[o + '_kernel']
        hdr.append('; @launch kernel=%s_kernel grid=(%d,1,1) block=(%d,1,1) lds=%d' % (o, g, b, l))
    out = '\n'.join(hdr) + '\n.amdgcn_target "amdgcn-amd-amdhsa--gfx950"\n'
    descs = ''
    for name, a, nv, ns, _ in ks:
        c, d = kernel_text(name, a, nv, ns)
        out += c
        descs += d
    out += 'code_end:\n'
    return out + '.section .rodata,"a"\n.p2align 6\nkd_begin:\n' + descs + 'kd_end:\n'


if __name__ == '__main__':
    path = sys.argv[1] if len(sys.argv) > 1 else 'cdna_kernels/%s.s' % NAME
    for o in sys.argv[2:]:
        k, v = o.split('=')
        globals()[k] = eval(v)
    open(path, 'w').write(build())
    print('wrote', path)
```

```python
import sys, re, os
from asmlib import Asm, vr, sr, kernel_text

NAME = 'interleave_layers__linear_attn_block__dense_activation_silu__prompt'
S, D, F = 2048, 576, 4608
ACT = S * D * 2
WQ_HG = 258048
WQ = 0
WO = WQ + 8 * WQ_HG
W1 = WO + 36 * 18432
W2 = W1 + D * F * 2
X0 = W2 + D * F * 2
X1 = X0 + 2 * ACT
PQ = X1 + 2 * ACT
HS = 1536
HSG = int(os.environ.get('HSG', 1536))
FST = int(os.environ.get('FST', 128))
FSH = FST.bit_length() - 1
SS = PQ + 2 * ACT
FL = SS + 64 * HSG
FL_GB = FL
FL_CB = FL + 32 * FST
FL_CW = FL + 40 * FST
FL_C0 = FL + 48 * FST
FL_RF = FL + 64 * FST
FL_GT = FL + 448 * FST
FL_CR = FL + 576 * FST
NREP = int(os.environ.get('NREP', 1))
ZERO_KB = -(-(64 * HSG + (576 + 128 * NREP) * FST) // (36 * 1024))
FL_RL = SS + 36 * 1024 * ZERO_KB
PART = FL_RL + 4096
WS_BYTES = 268435456
OOB = 0x80000000
LOG2E = 0x3fb8aa3b
NLOG2E = 0xbfb8aa3b
EPS6 = 0x358637bd
EPS5 = 0x3727c5ac
INV576 = 0x3ae38e39
ONES = 0x3f803f80
MF = 'v_mfma_f32_16x16x32_bf16'


def mfma(a, d, x, y, c=None):
    a('%s %s, %s, %s, %s' % (MF, vr(d, 4), vr(x, 4), vr(y, 4), '0' if c is None else vr(c, 4)))


def ws_srd(a):
    a('s_load_dwordx2 s[8:9], s[0:1], 64')
    a('s_mov_b32 s10, 0x%x' % WS_BYTES)
    a('s_mov_b32 s11, 0x20000')


def wave_id(a, sdst, vtmp):
    a('v_lshrrev_b32 %s, 6, v0' % vr(vtmp))
    a('v_readfirstlane_b32 %s, %s' % (sr(sdst), vr(vtmp)))
    a('v_and_b32 v0, 63, v0')


DBG = 128 << 20
STAMPS = False
SINGLE = 'list'
KNAME = NAME + '_kernel'
AMP = None
DBGOUT = 0


SEL = ['x1', 's1m', 's1d', 'e1a', 'e1b', 'o', 's2d', 'x3', 'pa', 'pb']


def stamp(a, i):
    if SINGLE and i in (1, 2, 3):
        i = 'p%d' % i
    if isinstance(i, str):
        if i not in SEL:
            return
        i = SEL.index(i) + 1
    if STAMPS:
        a('s_mem%stime s[%d:%d]' % ('real' if STAMPS == 2 else '', 60 + 2 * i, 61 + 2 * i))


def stamp_begin(a):
    if STAMPS:
        a('s_memrealtime s[56:57]')
        stamp(a, 0)


def stamp_end(a, kid, n, s_wave, nw, base_v=2):
    if not STAMPS:
        return
    a('s_waitcnt vmcnt(0)')
    stamp(a, n - 1)
    a('s_memrealtime s[58:59]')
    a('s_getreg_b32 s55, hwreg(HW_REG_XCC_ID)')
    a('s_getreg_b32 s54, hwreg(HW_REG_HW_ID)')
    a('s_mov_b64 exec, -1')
    a('s_mul_i32 s4, s2, %d\ns_add_u32 s4, s4, %s\ns_lshl_b32 s4, s4, 6\ns_add_u32 s4, s4, %d' % (nw, sr(s_wave), DBG + (kid << 20)))
    a('s_waitcnt lgkmcnt(0)')
    d, o = base_v, base_v + 1
    a('v_mov_b32 v%d, 0' % d)
    for i in range(n):
        a('v_writelane_b32 v%d, s%d, %d' % (d, 60 + 2 * i, i))
    a('v_writelane_b32 v%d, s54, 12' % d)
    a('v_writelane_b32 v%d, s55, 13' % d)
    a('v_writelane_b32 v%d, s56, 14' % d)
    a('v_writelane_b32 v%d, s58, 15' % d)
    a('v_mbcnt_lo_u32_b32 v%d, -1, 0' % o)
    a('v_lshlrev_b32 v%d, 2, v%d' % (o, o))
    a('s_mov_b64 exec, 0xffff')
    a('buffer_store_dword v%d, v%d, s[8:11], s4 offen' % (d, o))
    if DBGOUT and kid in (0, 6, 7):
        L = 'dbgo%d_%d' % (kid, len(a.lines))
        a('s_cmp_eq_u32 s2, %d\ns_cbranch_scc0 %s' % (DBGOUT, L))
        a('s_cmp_eq_u32 %s, %d\ns_cbranch_scc0 %s' % (sr(s_wave), 0 if kid == 0 else 8, L))
        a('s_load_dwordx2 s[40:41], s[0:1], 56')
        a('s_mov_b32 s42, 1024\ns_mov_b32 s43, 0x20000')
        a('s_waitcnt lgkmcnt(0)')
        if kid == 0:
            a('s_mov_b64 exec, 0xc000')
            a('buffer_store_dword v%d, v%d, s[40:43], 0 offen' % (d, o))
            a('buffer_store_dword v%d, v%d, s[40:43], 0 offen offset:512' % (d, o))
        else:
            a('s_sub_u32 s40, s40, 512\ns_subb_u32 s41, s41, 0')
            a('v_writelane_b32 v%d, s58, 6' % d)
            a('s_mov_b64 exec, 0x7f')
            a('buffer_store_dword v%d, v%d, s[40:43], 0 offen offset:%d' % (d, o, 28 * (kid - 6)))
            a('buffer_store_dword v%d, v%d, s[40:43], 0 offen offset:%d' % (d, o, 512 + 28 * (kid - 6)))
        a.label(L)


def centre(a, nw, nk, nt, fr, ON, CS, s_w, lds_cs, store):
    for k in range(4):
        a('v_mov_b32 %s, 0x%x' % (vr(ON + k), ONES))
    for k in range(nk):
        for c in range(nt):
            mfma(a, CS + 4 * c, ON, fr(k, c), None if k == 0 else CS + 4 * c)
    a('v_mul_u32_u24 v4, %d, v2' % (16 * nw))
    a('s_lshl_b32 s4, %s, 4' % sr(s_w))
    a('v_add_u32 v5, s4, v4')
    for c in range(1, nt):
        a('v_mov_b32 %s, %s' % (vr(CS + c), vr(CS + 4 * c)))
    a('ds_write_b128 v5, %s offset:%d' % (vr(CS, 4), lds_cs))
    a('s_waitcnt lgkmcnt(0)')
    a('s_barrier')
    for w in range(nw):
        a('ds_read_b128 %s, v4 offset:%d' % (vr(CS + 4 * w, 4), lds_cs + 16 * w))
    a('s_waitcnt lgkmcnt(0)')
    for w in range(1, nw):
        for c in range(nt):
            a('v_add_f32 %s, %s, %s' % (vr(CS + c), vr(CS + c), vr(CS + 4 * w + c)))
    for c in range(nt):
        a('v_mul_f32 %s, 0x%x, %s' % (vr(CS + 8 + 2 * c), INV576 | 0x80000000, vr(CS + c)))
    for k in range(nk):
        for c in range(nt):
            f = fr(k, c)
            for p in range(4):
                a('v_lshlrev_b32 %s, 16, %s' % (vr(12 + 2 * p), vr(f + p)))
                a('v_and_b32 %s, 0xffff0000, %s' % (vr(13 + 2 * p), vr(f + p)))
            for p in range(4):
                a('v_pk_add_f32 %s, %s, %s op_sel_hi:[1,0]' % (vr(12 + 2 * p, 2), vr(12 + 2 * p, 2), vr(CS + 8 + 2 * c, 2)))
            for p in range(4):
                a('v_cvt_pk_bf16_f32 %s, %s, %s' % (vr(f + p), vr(12 + 2 * p), vr(13 + 2 * p)))
            store(k, c)


G_W1, G_WO, G_Z, G_H = 48, 192, 210, 216


def gen_prep(a):
    NW = 6; NK = 3
    LCS = 0; LB = 3072; LW = 12288
    FR = 24; ON = 8; CS = FR + 12 * NK
    a('s_load_dwordx4 s[24:27], s[0:1], 0')
    a('s_load_dwordx4 s[32:35], s[0:1], 32')
    a('s_load_dwordx2 s[28:29], s[0:1], 16')
    ws_srd(a)
    wave_id(a, 3, 1)
    a('v_lshlrev_b32 v1, 4, v0')
    a('v_and_b32 v2, 15, v0')
    a('v_lshrrev_b32 v3, 4, v0')
    a('s_mov_b32 s15, 0x20000')
    a('s_and_b32 s30, s2, 7\ns_lshr_b32 s31, s2, 3')
    a('s_cmp_ge_u32 s3, %d' % NW)
    a('s_cbranch_scc1 prep_hi')
    a('s_mov_b32 s47, 0')
    a('s_mul_i32 s22, s3, %d\ns_add_u32 s22, s22, %d' % (LW, LB))
    a('s_cmp_lt_u32 s2, %d' % G_W1)
    a('s_cbranch_scc1 prep_q')
    a('s_cmp_ge_u32 s2, %d' % G_WO)
    a('s_cbranch_scc1 prep_o')
    a('s_sub_u32 s4, s31, %d\ns_and_b32 s5, s4, 1\ns_lshr_b32 s4, s4, 1\ns_lshl_b32 s4, s4, 3\ns_add_u32 s4, s4, s30' % (G_W1 // 8))
    a('s_lshl_b32 s21, s4, 1\ns_add_u32 s21, s21, s5')
    a('s_sub_u32 s20, 5, s3\ns_cmp_eq_u32 s5, %d\ns_cselect_b32 s20, s20, s3' % (1 if PREP_REV else 2))
    a('s_mul_i32 s19, s20, %d\ns_lshl_b32 s4, s21, 6\ns_add_u32 s19, s19, s4' % (96 * 9216))
    a('v_lshrrev_b32 v4, 2, v0\nv_mul_u32_u24 v4, %d, v4' % (9216 - 64))
    a('v_add_u32 v4, v4, v1')
    a('s_mov_b32 s14, %d' % (D * F * 2))
    a('s_waitcnt lgkmcnt(0)')
    a('s_mov_b32 s12, s32\ns_mov_b32 s13, s33')
    if PREP_REV == 2:
        a('s_mul_i32 s4, s5, %d\ns_add_u32 s23, s22, s4\ns_mul_i32 s4, s5, %d\ns_add_u32 s19, s19, s4' % (1024 * 5, 16 * 9216 * 5))
        a('s_lshl_b32 s4, s5, 1\ns_sub_u32 s4, 1, s4\ns_lshl_b32 s16, s4, 10\ns_mul_i32 s17, s4, %d' % (16 * 9216))
    for n in range(2 * NK):
        if PREP_REV == 2:
            a('s_mov_b32 m0, s23')
            a('s_add_u32 s23, s23, s16')
            a('buffer_load_dwordx4 v4, s[12:15], s19 offen%s lds' % PREP_1LD)
            a('s_add_u32 s19, s19, s17')
        else:
            a('s_add_u32 m0, s22, %d' % (1024 * n))
            a('s_add_u32 s4, s19, %d' % (16 * 9216 * n))
            a('buffer_load_dwordx4 v4, s[12:15], s4 offen%s lds' % PREP_1LD)
    for c in range(2):
        a('s_lshl_b32 s4, s21, 1\ns_add_u32 s4, s4, %d\ns_mul_i32 s5, s4, 43691\ns_lshr_b32 s5, s5, 17' % c)
        a('s_mul_i32 s6, s5, 3\ns_sub_u32 s4, s4, s6')
        a('s_and_b32 s6, s5, 1\ns_lshl_b32 s6, s6, 1\ns_add_u32 s4, s4, s6')
        a('s_cmp_ge_u32 s4, 3\ns_cselect_b32 s6, 3, 0\ns_sub_u32 s4, s4, s6')
        a('s_mul_i32 s6, s5, 54\ns_add_u32 s4, s4, s6\ns_mul_i32 s6, s20, %d\ns_add_u32 s4, s4, s6' % (3 * NK))
        a('s_lshl_b32 s4, s4, 10\ns_add_u32 s%d, s4, %d' % (36 + c, W1))
    a('s_mov_b32 s17, 3072\ns_mov_b32 s18, 4\ns_mov_b32 s19, 8')
    a.label('prep_tr')
    stamp(a, 1)
    fr = lambda k, c: FR + (k * 2 + c) * 4
    a('v_lshlrev_b32 v5, 9, v3')
    a('v_and_b32 v6, 12, v0')
    a('v_lshl_add_u32 v5, v6, 4, v5')
    a('v_and_b32 v6, 3, v0')
    a('v_lshl_add_u32 v5, v6, s18, v5')
    a('v_add_u32 v5, s22, v5')
    a('v_add_u32 v6, s19, v5')
    for k in range(NK):
        a('s_waitcnt vmcnt(%d)' % (0 if PREP_REV == 2 else 2 * (NK - 1 - k)))
        for c in range(2):
            for hi in range(2):
                a('ds_read_b64_tr_b16 %s, v%d offset:%d' % (vr(fr(k, c) + 2 * hi, 2), 5 + c, 2048 * k + 256 * hi))
    a('s_waitcnt lgkmcnt(0)')
    stamp(a, 2)

    def st2(k, c):
        a('buffer_store_dwordx4 %s, v1, s[8:11], s%d offen sc1' % (vr(fr(k, c), 4), 36 + c))
        a('s_add_u32 s%d, s%d, s17' % (36 + c, 36 + c))
    a('s_cmp_ge_u32 s2, %d' % G_WO)
    a('s_cbranch_scc1 prep_st')
    centre(a, NW, NK, 2, fr, ON, CS, 3, LCS, st2)
    stamp(a, 3)
    a('s_branch prep_join')
    a.label('prep_q')
    fq = lambda k, c: FR + (k * 3 + c) * 4
    a('s_and_b32 s21, s31, 1\ns_lshr_b32 s31, s31, 1')
    a('s_lshl_b32 s4, s30, 1\ns_add_u32 s4, s4, s21\ns_mul_i32 s4, s4, 72\ns_and_b32 s20, s4, 63\ns_sub_u32 s4, s4, s20')
    a('s_mul_i32 s19, s3, %d\ns_add_u32 s19, s19, s4\ns_mul_i32 s4, s31, 1152\ns_add_u32 s19, s19, s4' % (96 * 3456))
    a('v_lshrrev_b32 v4, 3, v0\nv_mul_u32_u24 v4, %d, v4' % (3456 - 128))
    a('v_add_u32 v4, v4, v1')
    a('s_mov_b32 s14, %d' % (D * 3 * D * 2))
    a('s_waitcnt lgkmcnt(0)')
    a('s_mov_b32 s12, s26\ns_mov_b32 s13, s27')
    for n in range(4 * NK):
        a('s_add_u32 m0, s22, %d' % (1024 * n))
        a('s_add_u32 s4, s19, %d' % (8 * 3456 * n))
        a('buffer_load_dwordx4 v4, s[12:15], s4 offen%s lds' % PREP_QLD)
    stamp(a, 1)
    a('v_bfe_u32 v6, v0, 2, 2')
    a('v_lshl_add_u32 v6, v3, 3, v6')
    a('s_add_u32 s22, s22, s20')
    a('v_lshl_add_u32 v6, v6, 7, s22')
    a('v_and_b32 v5, 3, v0')
    a('v_lshl_add_u32 v5, v5, 3, v6')
    a('s_mul_i32 s16, s30, 252\ns_mul_i32 s4, s3, %d\ns_add_u32 s16, s16, s4' % (2 * NK))
    a('s_lshr_b32 s5, s31, 1')
    a('s_lshl_b32 s6, s21, 1\ns_add_u32 s6, s6, 8\ns_lshl_b32 s7, s21, 2\ns_add_u32 s7, s7, s5')
    a('s_lshl_b32 s18, s5, 1\ns_add_u32 s18, s18, s21\ns_lshl_b32 s18, s18, 2\ns_lshl_b32 s23, s21, 3')
    a('s_cmp_eq_u32 s31, 0')
    a('s_cselect_b32 s36, s6, s7\ns_cselect_b32 s37, 1, 2\ns_cselect_b32 s38, 13, 12')
    a('s_cselect_b32 s42, 0x00ff00ff, 0\ns_cselect_b32 s43, 0, 0x000f000f\ns_cselect_b32 s18, s23, s18')
    a('s_or_b32 s42, s42, s43\ns_lshl_b32 s42, s42, s18')
    a('s_add_u32 s37, s37, s36')
    for c in range(3):
        a('s_lshr_b32 s4, s%d, 1\ns_mul_i32 s4, s4, 34\ns_add_u32 s4, s4, s%d\ns_add_u32 s4, s4, s16' % (36 + c, 36 + c))
        a('s_lshl_b32 s4, s4, 10\ns_add_u32 s%d, s4, %d' % (36 + c, WQ))
    for k in range(NK):
        a('s_waitcnt vmcnt(%d)' % (4 * (NK - 1 - k)))
        for c in range(3):
            for hi in range(2):
                a('ds_read_b64_tr_b16 %s, v%d offset:%d' % (vr(fq(k, c) + 2 * hi, 2), 5 if c < 2 else 6, 4096 * k + 512 * hi + (0, 40, 32)[c]))
        a('s_waitcnt lgkmcnt(%d)' % (6 if k + 1 < NK else 0))
    stamp(a, 2)

    def st3(k, c):
        if c == 2:
            a('s_mov_b32 exec_lo, s42\ns_mov_b32 exec_hi, s42')
        a('buffer_store_dwordx4 %s, v1, s[8:11], s%d offen offset:%d sc1' % (vr(fq(k, c), 4), 36 + c, 2048 * (k & 1)))
        if c == 2:
            a('s_mov_b64 exec, -1')
        if k == 1:
            a('s_add_u32 s%d, s%d, 4096' % (36 + c, 36 + c))
    centre(a, NW, NK, 3, fq, ON, CS, 3, LCS, st3)
    stamp(a, 3)
    a('s_branch prep_join')
    a.label('prep_hi')
    a('s_mov_b32 s47, 1')
    a('s_cmp_ge_u32 s3, 8')
    a('s_cbranch_scc1 prep_i8')
    a('s_lshl_b32 s31, s31, 1\ns_add_u32 s31, s31, s3\ns_sub_u32 s31, s31, %d' % (6 + G_W1 // 4))
    a('s_cmp_ge_u32 s31, %d' % (51 if PREP_QT else 0))
    a('s_cbranch_scc1 prep_bar')
    a('s_setprio 3')
    a('s_mul_i32 s5, s31, 3856\ns_lshr_b32 s5, s5, 16\ns_mul_i32 s6, s5, 17\ns_sub_u32 s4, s31, s6\ns_add_u32 s4, s4, 1')
    a('s_mul_i32 s19, s4, %d\ns_mul_i32 s5, s5, 1152\ns_add_u32 s19, s19, s5\ns_lshl_b32 s5, s30, 7\ns_add_u32 s19, s19, s5' % (32 * 3456))
    a('v_lshrrev_b32 v4, 1, v0\nv_mul_u32_u24 v4, 3456, v4\nv_and_b32 v6, 1, v0')
    a('v_lshl_add_u32 v4, v6, 7, v4')
    a('s_mov_b32 s14, %d' % (D * 3 * D * 2))
    a('s_waitcnt lgkmcnt(0)')
    a('s_mov_b32 s12, s26\ns_mov_b32 s13, s27')
    a('buffer_load_dword v22, v4, s[12:15], s19 offen%s' % PREP_HLD)
    a('s_setprio 0')
    a('s_branch prep_bar')
    a.label('prep_i8')
    a('s_cmp_eq_u32 s3, 11')
    a('s_cbranch_scc1 prep_i11')
    if TLB_STEP:
        a('s_cmp_eq_u32 s3, 9')
        a('s_cbranch_scc0 prep_i9')
        a('v_lshlrev_b32 v4, %d, v0' % TLB_STEP)
        a('s_waitcnt lgkmcnt(0)')
        a('s_mov_b32 s12, s8\ns_mov_b32 s13, s9\ns_mov_b32 s14, %d' % (PART + 8 * ACT + PART_STEP))
        for n in range(-(-(PART + 8 * ACT + PART_STEP) // (64 << TLB_STEP))):
            a('s_mov_b32 s4, %d' % (n * (64 << TLB_STEP)))
            a('buffer_load_dword v20, v4, s[12:15], s4 offen sc1 nt')
        a('s_mov_b32 s12, s94\ns_mov_b32 s13, s95\ns_mov_b32 s14, %d' % ACT)
        a('buffer_load_dword v21, v4, s[12:15], 0 offen sc1 nt')
        a('s_branch prep_bar')
        a.label('prep_i9')
    a('s_cmp_eq_u32 s3, 8')
    a('s_cbranch_scc0 prep_bar')
    a('s_getpc_b64 s[4:5]')
    a.label('prep_pc')
    a('s_sub_u32 s4, s4, prep_pc-%s' % KNAME)
    a('s_subb_u32 s5, s5, 0')
    a('s_mul_i32 s6, s31, 1536')
    a('v_lshl_add_u32 v4, v0, 7, s6')
    a('v_min_u32 v4, code_end-%s-4, v4' % KNAME)
    a('s_mov_b64 exec, 0xfff')
    a('global_load_dword v20, v4, s[4:5]')
    a('s_mov_b64 exec, -1')
    a('s_branch prep_bar')
    a.label('prep_o')
    a('s_cmp_ge_u32 s2, %d' % G_H)
    a('s_cbranch_scc1 prep_x')
    a('s_cmp_ge_u32 s2, %d' % G_Z)
    a('s_cbranch_scc1 prep_z')
    a('s_sub_u32 s21, s2, %d' % G_WO)
    a('s_lshl_b32 s4, s30, 1\ns_lshr_b32 s5, s21, 3\ns_add_u32 s4, s4, s5\ns_cmp_lt_u32 s21, 16\ns_cselect_b32 s21, s4, s21')
    a('s_sub_u32 s23, 5, s3\ns_and_b32 s4, s21, 1\ns_cselect_b32 s23, s23, s3')
    a('v_bfe_u32 v8, v0, 2, 3\nv_lshrrev_b32 v7, 5, v0\nv_and_b32 v9, 3, v0\nv_lshlrev_b32 v9, 4, v9')
    a('v_lshrrev_b32 v10, 2, v8\nv_and_b32 v11, 3, v8')
    a('v_mad_u32_u24 v10, v10, 20, v11')
    a('v_lshl_add_u32 v10, v7, 2, v10')
    a('v_mul_u32_u24 v10, 1152, v10')
    a('v_add_u32 v10, v10, v9')
    a('v_lshrrev_b32 v11, 1, v8\nv_mul_u32_u24 v11, 72, v11\nv_and_b32 v4, 1, v8\nv_add_u32 v11, v11, v4')
    a('v_lshl_add_u32 v11, v7, 1, v11')
    a('v_mul_u32_u24 v11, 1152, v11')
    a('v_add_u32 v11, v11, v9')
    a('s_mov_b32 s14, %d' % (D * D * 2))
    a('s_lshl_b32 s18, s21, 6')
    a('s_waitcnt lgkmcnt(0)')
    a('s_mov_b32 s12, s28\ns_mov_b32 s13, s29')
    for k in range(NK):
        a('s_mul_i32 s4, s23, %d\ns_add_u32 s4, s4, %d' % (NK, k))
        a('s_mul_i32 s19, s4, 36\ns_sub_u32 s5, s4, 16\ns_mul_i32 s5, s5, 288\ns_add_u32 s5, s5, 16')
        a('s_cmp_lt_u32 s4, 16')
        a('s_cselect_b32 s19, s19, s5\ns_cselect_b32 s20, 8, 36\ns_cselect_b64 vcc, -1, 0')
        a('s_mul_i32 s19, s19, 1152\ns_add_u32 s19, s19, s18\ns_mul_i32 s20, s20, 1152\ns_add_u32 s20, s20, s19')
        a('v_cndmask_b32 v4, v11, v10, vcc')
        for h in range(2):
            a('s_add_u32 m0, s22, %d' % (2048 * k + 1024 * h))
            a('s_nop 0')
            a('buffer_load_dwordx4 v4, s[12:15], s%d offen%s lds' % (19 + h, PREP_OLD))
    for c in range(2):
        a('s_lshl_b32 s4, s21, 1\ns_add_u32 s4, s4, %d\ns_mul_i32 s4, s4, 18\ns_mul_i32 s5, s23, %d\ns_add_u32 s4, s4, s5' % (c, NK))
        a('s_lshl_b32 s4, s4, 10\ns_add_u32 s%d, s4, %d' % (36 + c, WO))
    a('s_mov_b32 s17, 1024')
    a('s_lshr_b32 s4, 0x2010, s21\ns_and_b32 s4, s4, 1\ns_cselect_b32 s18, 3, 4\ns_cselect_b32 s19, 32, 8')
    a('s_branch prep_tr')
    a.label('prep_st')
    for k in range(NK):
        for c in range(2):
            st2(k, c)
    stamp(a, 3)
    a('s_branch prep_bar')
    a.label('prep_z')
    a('s_sub_u32 s16, s2, %d\ns_mul_i32 s16, s16, 6\ns_add_u32 s16, s16, s3\ns_mul_i32 s16, s16, %d\ns_add_u32 s16, s16, %d' % (G_Z, 1024 * ZERO_KB, SS))
    for k in range(4):
        a('v_mov_b32 v%d, 0' % (16 + k))
    a('s_waitcnt lgkmcnt(0)')
    for k in range(ZERO_KB):
        a('buffer_store_dwordx4 v[16:19], v1, s[8:11], s16 offen offset:%d sc1' % (1024 * (k % 4)))
        if k % 4 == 3:
            a('s_add_u32 s16, s16, 4096')
    a('s_branch prep_bar')
    a.label('prep_x')
    a('s_mov_b32 s47, 1')
    if PREP_TX:
        a('s_sub_u32 s4, s31, %d\ns_mul_i32 s4, s4, 6\ns_add_u32 s4, s4, s3\ns_mul_i32 s4, s4, 78' % (G_H // 8))
        a('s_mul_i32 s19, s30, 2304\ns_add_u32 s19, s19, s4\ns_lshl_b32 s19, s19, 7\ns_add_u32 s18, s19, %d' % (39 * 128))
        a('v_lshlrev_b32 v4, 7, v0')
        a('s_mov_b32 s14, %d\ns_mov_b32 exec_hi, 0x7f' % ACT)
        a('s_waitcnt lgkmcnt(0)')
        a('s_mov_b32 s12, s24\ns_mov_b32 s13, s25')
        a('buffer_load_dword v20, v4, s[12:15], s19 offen%s' % PREP_XLD)
        a('buffer_load_dword v21, v4, s[12:15], s18 offen%s' % PREP_XLD)
        a('s_mov_b32 exec_hi, -1')
    a('s_branch prep_bar')
    a.label('prep_i11')
    xcd_map(a, NCX, 13, 14)
    a('s_lshl_b32 s51, s14, 7\ns_lshl_b32 s4, s13, 2\ns_add_u32 s51, s51, s4\ns_add_u32 s51, s51, %d' % FL_RL)
    a('s_mov_b32 s6, 0')
    a('s_waitcnt lgkmcnt(0)')
    a('s_atomic_swap s6, s[8:9], s51 glc')
    a.label('prep_bar')
    a('s_barrier')
    a.label('prep_join')


def late_test(a):
    a('s_sub_u32 s4, s2, %d\ns_cmp_lt_u32 s4, %d\ns_cselect_b32 s4, 0, s2\ns_cmp_lt_u32 s4, %d' % (G_Z, G_H - G_Z, G_W1))


def xcd_map(a, ncx, s_c, s_r, nc=8):
    lg = ncx.bit_length() - 1
    ng = nc // ncx
    lgg = ng.bit_length() - 1
    a('s_and_b32 s4, s2, 7\ns_lshr_b32 s5, s2, 3')
    a('s_and_b32 s6, s4, %d\ns_lshl_b32 s6, s6, %d\ns_and_b32 s7, s5, %d\ns_add_u32 %s, s6, s7' % (ng - 1, lg, ncx - 1, sr(s_c)))
    a('s_lshr_b32 s6, s4, %d\ns_mul_i32 s6, s6, %d\ns_lshr_b32 s7, s5, %d\ns_add_u32 %s, s6, s7' % (lgg, 32 // ncx, lg, sr(s_r)))


def l2_touch(a, base, part_bytes, ncx, nc, v_t, v_d, share=1, s_sub=None):
    ng = nc // ncx
    lines = ncx * part_bytes // 128
    per = -(-lines // (32 * share))
    n = -(-per // 64)
    a('s_and_b32 s4, s2, %d\ns_mul_i32 s4, s4, %d\ns_add_u32 s4, s4, %d' % (ng - 1, ncx * part_bytes, base))
    a('s_lshr_b32 s5, s2, 3')
    if share > 1:
        a('s_mul_i32 s5, s5, %d\ns_add_u32 s5, s5, %s' % (share, sr(s_sub)))
    a('s_mul_i32 s5, s5, %d' % per)
    for i in range(n):
        a('v_add_u32 %s, %d, v0' % (vr(v_t), 64 * i))
        if (i + 1) * 64 > per:
            a('v_min_u32 %s, %d, %s' % (vr(v_t), per - 1, vr(v_t)))
        a('v_add_u32 %s, s5, %s' % (vr(v_t), vr(v_t)))
        a('v_min_u32 %s, %d, %s' % (vr(v_t), lines - 1, vr(v_t)))
        a('v_lshlrev_b32 %s, 7, %s' % (vr(v_t), vr(v_t)))
        a('buffer_load_dword %s, %s, s[8:11], s4 offen' % (vr(v_d), vr(v_t)))


def x_dma(a, nk, s_g, s_l, v_l16):
    for k in range(nk):
        a('s_mov_b32 m0, %s' % sr(s_l))
        if k < nk - 1:
            a('s_add_u32 %s, %s, 4096' % (sr(s_l), sr(s_l)))
        else:
            a('s_nop 0')
        a('buffer_load_dwordx4 %s, s[8:11], %s offen sc1 lds' % (vr(v_l16), sr(s_g)))
        if k < nk - 1:
            a('s_add_u32 %s, %s, 1024' % (sr(s_g), sr(s_g)))


def stats_prepass(a, nk, v_addr, v_fr, v_ones, v_res, v_t, v_g, v_tmp, v_dst):
    for k in range(nk):
        a('ds_read_b128 %s, %s offset:%d' % (vr(v_fr + 4 * k, 4), vr(v_addr), 4096 * k))
    for k in range(4):
        a('v_mov_b32 %s, 0x%x' % (vr(v_ones + k), ONES))
    for k in range(nk):
        a('s_waitcnt lgkmcnt(%d)' % (nk - 1 - k))
        f = v_fr + 4 * k
        mfma(a, v_res, v_ones, f, None if k == 0 else v_res)
        mfma(a, v_res + 4, f, f, None if k == 0 else v_res + 4)
    a('s_mov_b32 s40, 0x22222222\ns_mov_b32 s41, 0x22222222')
    a('s_mov_b32 s42, 0x44444444\ns_mov_b32 s43, 0x44444444')
    a('s_mov_b32 s44, 0x88888888\ns_mov_b32 s45, 0x88888888')
    a('v_cndmask_b32 %s, %s, %s, s[40:41]' % (vr(v_res + 1), vr(v_res + 4), vr(v_res + 5)))
    a('v_cndmask_b32 %s, %s, %s, s[42:43]' % (vr(v_res + 1), vr(v_res + 1), vr(v_res + 6)))
    a('v_cndmask_b32 %s, %s, %s, s[44:45]' % (vr(v_res + 1), vr(v_res + 1), vr(v_res + 7)))
    a('s_mov_b32 exec_lo, 0x00f0000f\ns_mov_b32 exec_hi, 0xf0000f00')
    a('ds_write_b64 %s, %s' % (vr(v_dst), vr(v_res, 2)))
    a('s_mov_b64 exec, -1')


def stats_final(a, nparts, lds_stats, v_lane, v_tmp):
    a('v_lshlrev_b32 %s, 3, %s' % (vr(v_tmp + 6), vr(v_lane)))
    for p in range(nparts):
        a('ds_read_b64 %s, %s offset:%d' % (vr(v_tmp + 2 * p, 2), vr(v_tmp + 6), p * 512))
    a('s_waitcnt lgkmcnt(0)')
    for p in range(1, nparts):
        a('v_add_f32 %s, %s, %s' % (vr(v_tmp), vr(v_tmp), vr(v_tmp + 2 * p)))
        a('v_add_f32 %s, %s, %s' % (vr(v_tmp + 1), vr(v_tmp + 1), vr(v_tmp + 2 * p + 1)))
    a('v_mul_f32 %s, 0x%x, %s' % (vr(v_tmp), INV576, vr(v_tmp)))
    a('v_mul_f32 %s, 0x%x, %s' % (vr(v_tmp + 1), INV576, vr(v_tmp + 1)))
    a('v_fma_f32 %s, -%s, %s, %s' % (vr(v_tmp + 1), vr(v_tmp), vr(v_tmp), vr(v_tmp + 1)))
    a('v_max_f32 %s, 0, %s' % (vr(v_tmp + 1), vr(v_tmp + 1)))
    a('v_add_f32 %s, 0x%x, %s' % (vr(v_tmp + 1), EPS5, vr(v_tmp + 1)))
    a('v_rsq_f32 %s, %s' % (vr(v_tmp), vr(v_tmp + 1)))


def diag_select(a, dst, src, masks=(0x22222222, 0x44444444, 0x88888888)):
    for i, m in enumerate(masks):
        a('s_mov_b32 s%d, 0x%x\ns_mov_b32 s%d, 0x%x' % (40 + 2 * i, m, 41 + 2 * i, m))
    a('v_cndmask_b32 %s, %s, %s, s[40:41]' % (vr(dst), vr(src), vr(src + 1)))
    a('v_cndmask_b32 %s, %s, %s, s[42:43]' % (vr(dst), vr(dst), vr(src + 2)))
    a('v_cndmask_b32 %s, %s, %s, s[44:45]' % (vr(dst), vr(dst), vr(src + 3)))


def rstd_from(a, dst, vsum, vsq):
    a('v_mul_f32 %s, 0x%x, %s' % (vr(vsum), INV576, vr(vsum)))
    a('v_mul_f32 %s, 0x%x, %s' % (vr(vsq), INV576, vr(vsq)))
    a('v_fma_f32 %s, -%s, %s, %s' % (vr(vsq), vr(vsum), vr(vsum), vr(vsq)))
    a('v_max_f32 %s, 0, %s' % (vr(vsq), vr(vsq)))
    a('v_add_f32 %s, 0x%x, %s' % (vr(vsq), EPS5, vr(vsq)))
    a('v_rsq_f32 %s, %s' % (vr(dst), vr(vsq)))


SPIN_CAP = 1 << 18


def lds_spin(a, name, v_tmp, v_addr, off, mask, want, ge=None):
    a('s_mov_b32 s5, 0')
    a.label(name)
    a('ds_read_b32 %s, %s offset:%d' % (vr(v_tmp), vr(v_addr), off))
    a('s_waitcnt lgkmcnt(0)')
    a('v_readfirstlane_b32 s4, %s' % vr(v_tmp))
    if ge is None:
        a('s_and_b32 s4, s4, 0x%x' % mask)
        a('s_cmp_eq_u32 s4, 0x%x' % want)
    else:
        a('s_cmp_ge_u32 s4, %s' % sr(ge))
    a('s_cbranch_scc1 %s_ok' % name)
    a('s_sleep 1')
    a('s_add_u32 s5, s5, 1')
    a('s_cmp_lt_u32 s5, 0x%x' % SPIN_CAP)
    a('s_cbranch_scc1 %s' % name)
    a('s_endpgm')
    a.label(name + '_ok')


def mem_arrive(a, s_off, v_zero=None, v_one=None):
    if not SFLAG:
        a('s_mov_b64 exec, 1')
        a('buffer_atomic_add %s, %s, s[8:11], %s offen sc1' % (vr(v_one), vr(v_zero), sr(s_off)))
        a('s_mov_b64 exec, -1')
        return
    a('s_mov_b32 s3, 1')
    a('s_atomic_add s3, s[8:9], %s' % sr(s_off))


def mem_wait(a, name, s_off, s_want, v_zero, v_tmp, backoff=None, arrive=False):
    a('s_mov_b32 s5, 0')
    if not SFLAG:
        if arrive:
            mem_arrive(a, s_off, v_zero, 4)
        a('s_mov_b64 exec, 1')
        a.label(name)
        a('buffer_load_dword %s, %s, s[8:11], %s offen sc1' % (vr(v_tmp), vr(v_zero), sr(s_off)))
        a('s_waitcnt vmcnt(0)')
        a('v_readfirstlane_b32 s4, %s' % vr(v_tmp))
    else:
        if arrive:
            a('s_mov_b32 s4, 1')
            a('s_atomic_add s4, s[8:9], %s glc' % sr(s_off))
            a('s_waitcnt lgkmcnt(0)')
            a('s_add_u32 s4, s4, 1')
            a('s_cmp_ge_u32 s4, %s' % sr(s_want))
            a('s_cbranch_scc1 %s_ok' % name)
        a.label(name)
        a('s_mov_b32 s4, 0')
        a('s_atomic_add s4, s[8:9], %s glc' % sr(s_off))
        a('s_waitcnt lgkmcnt(0)')
    a('s_cmp_ge_u32 s4, %s' % sr(s_want))
    a('s_cbranch_scc1 %s_ok' % name)
    if backoff:
        if backoff[0] is not None:
            a('s_cmp_eq_u32 %s, %d' % (sr(backoff[0]), backoff[1]))
            a('s_cbranch_scc1 %s_ns' % name)
        a('s_sleep %d' % (backoff[2] if len(backoff) > 2 else 12))
        if backoff[0] is not None:
            a.label(name + '_ns')
    a('s_add_u32 s5, s5, 1')
    a('s_cmp_lt_u32 s5, 0x%x' % SPIN_CAP)
    a('s_cbranch_scc1 %s' % name)
    a('s_endpgm')
    a.label(name + '_ok')
    if not SFLAG:
        a('s_mov_b64 exec, -1')


N_LATE = G_W1 + G_H - G_Z


def start_arrive(a, name):
    a('s_mov_b32 s7, 1')
    a('s_cmp_lt_u32 s2, %d' % G_W1)
    a('s_cbranch_scc1 %s_q' % name)
    a('s_atomic_add s7, s[52:53], 128')
    a('s_branch %s' % name)
    a.label(name + '_q')
    a('v_mov_b32 v7, 1')
    a('s_and_b32 s6, s2, 7\ns_lshl_b32 s6, s6, 2\ns_add_u32 s6, s6, %d' % FL_RL)
    a('v_lshlrev_b32 v6, 7, v0')
    a('s_mov_b32 exec_hi, 0')
    a('buffer_atomic_add v7, v6, s[8:11], s6 offen sc1')
    a('s_mov_b32 exec_hi, -1')
    a('s_atomic_add s7, s[52:53], 0')
    a.label(name)


def start_wait(a):
    a('s_mov_b32 s5, 0')
    a.label('st_b')
    a('s_mov_b32 s4, 0')
    a('s_atomic_add s4, s[8:9], s51 glc')
    a('s_waitcnt lgkmcnt(0)')
    a('s_cmp_eq_u32 s4, 6')
    a('s_cbranch_scc1 st_b_ok')
    a('s_add_u32 s5, s5, 1')
    a('s_and_b32 s4, s5, 15')
    a('s_cbranch_scc1 st_b')
    a('s_atomic_add s4, s[52:53], 0 glc')
    a('s_waitcnt lgkmcnt(0)')
    a('s_cmp_ge_u32 s4, %d' % G_W1)
    a('s_cbranch_scc1 st_b_ok')
    a('s_cmp_lt_u32 s5, 0x%x' % SPIN_CAP)
    a('s_cbranch_scc1 st_b')
    a('s_endpgm')
    a.label('st_b_ok')


def gen_mega():
    a = Asm()
    RSL = 0; FLG = 512; CNT = 516; XC1 = 520; XC3 = 524; TOK = 528; XF = 1024; XI = 3072; HI = XI + 73728
    OI = HI; SL = HI + 36864
    LDS = SL + 32 * HS
    VZ = 167
    LAY, LOFF, GBO, GBW, CBO, CBW, RFW, SOF, PRT = 86, 87, 88, 89, 90, 91, 92, 96, 97
    a('s_cmp_ge_u32 s2, 256')
    a('s_cbranch_scc1 mega_end')
    stamp_begin(a)
    if AMP:
        a('s_memrealtime s[84:85]')
    a('s_load_dwordx2 s[94:95], s[0:1], 48')
    if SINGLE:
        a('s_load_dwordx2 s[52:53], s[0:1], 56')
        gen_prep(a)
        a('s_waitcnt lgkmcnt(0)')
        a('s_mov_b32 s12, s3\ns_mov_b32 s36, s24\ns_mov_b32 s37, s25\ns_mov_b32 s100, s34\ns_mov_b32 s101, s35')
    else:
        ws_srd(a)
        a('s_load_dwordx2 s[36:37], s[0:1], 0')
        wave_id(a, 12, 1)
        a('v_lshlrev_b32 v1, 4, v0')
        a('v_and_b32 v2, 15, v0')
        a('v_lshrrev_b32 v3, 4, v0')
    a('s_mov_b32 s38, %d\ns_mov_b32 s39, 0x20000' % ACT)
    a('v_mov_b32 %s, 0' % vr(VZ))
    xcd_map(a, NCX, 13, 14)
    a('s_and_b32 s20, s12, 3\ns_lshr_b32 s21, s12, 2')
    a('s_mul_i32 s4, s14, 21846\ns_lshr_b32 s4, s4, 16\ns_mul_i32 s4, s4, 3\ns_sub_u32 s19, s14, s4')
    a('s_lshl_b32 s4, s19, 2\ns_add_u32 s28, s12, s4\ns_cmp_ge_u32 s28, 12\ns_cselect_b32 s4, 12, 0\ns_sub_u32 s28, s28, s4')
    a('s_mov_b32 s%d, 0\ns_mov_b32 s%d, 0\ns_mov_b32 s%d, 0\ns_mov_b32 s%d, 32\ns_mov_b32 s%d, 8' % (LAY, LOFF, GBW, CBW, RFW))
    a('s_lshl_b32 s4, s14, %d\ns_add_u32 s%d, s4, %d' % (FSH, GBO, FL_GB))
    a('s_lshl_b32 s4, s13, %d\ns_add_u32 s%d, s4, %d' % (FSH, CBO, FL_CB))
    a('s_mov_b32 s%d, %d\ns_mov_b32 s%d, %d' % (SOF, SS, PRT, PART))
    a('s_mov_b32 s48, s19')
    for b in (1, 2):
        a('s_add_u32 s%d, s%d, 1\ns_cmp_eq_u32 s%d, 3\ns_cselect_b32 s%d, 0, s%d' % (48 + b, 47 + b, 48 + b, 48 + b, 48 + b))
    a('s_lshl_b32 s4, s14, 2\ns_add_u32 s4, s4, s20\ns_mul_i32 s98, s4, 18432')
    a('s_lshl_b32 s5, s20, 11\ns_add_u32 s99, s5, %d' % XI)
    img = lambda k, tt: (k >> 1) * 8192 + tt * 2048 + (k & 1) * 1024

    def load_x(name, base, xc):
        gb, gp, gh = (384, 128, 9216) if base is None else (6144, 2048, 1024)
        ld = 'buffer_load_dwordx4 v4, s[36:39], s23 offen lds' if base is None else 'buffer_load_dwordx4 v1, s[8:11], s23 offen sc1 lds'

        def blk(b):
            a('s_mul_i32 s22, s%d, %d\ns_add_u32 s22, s22, s98\ns_mul_i32 s24, s%d, 24576\ns_add_u32 s24, s24, s99' % (48 + b, gb, 48 + b))
            if base is not None:
                a('s_add_u32 s22, s22, s%d\ns_add_u32 s22, s22, %d' % (LOFF, base))
        a('s_cmp_ge_u32 s12, 8')
        a('s_cbranch_scc1 %s_hi' % name)
        blk(0)
        a('s_mul_i32 s4, s21, %d\ns_add_u32 s22, s22, s4\ns_lshl_b32 s4, s21, 10\ns_add_u32 s24, s24, s4' % gh)
        for p in range(3):
            a('s_add_u32 m0, s24, %d' % (8192 * p))
            a('s_add_u32 s23, s22, %d' % (gp * p))
            a(ld)
        if base is None:
            a('s_barrier')
        a('s_branch %s_x' % name)
        a.label('%s_hi' % name)
        if base is None:
            a('s_barrier')
        for b in (1, 2):
            blk(b)
            for p in range(3):
                for h in range(2):
                    a('s_add_u32 m0, s24, %d' % (8192 * p + 1024 * h))
                    a('s_add_u32 s23, s22, %d' % (gp * p + gh * h))
                    a(ld)
        a.label('%s_x' % name)

    def x_count(xc):
        for n, inc in ((6, 0x100), (0, 0x10000)):
            a('v_mov_b32 v5, 0x%x' % inc)
            a('s_waitcnt vmcnt(%d)' % n)
            a('s_mov_b64 exec, 1')
            a('ds_add_u32 %s, v5 offset:%d' % (vr(VZ), xc))
            a('s_mov_b64 exec, -1')

    def lane_part(dst, tmp, s_b, vg=3, vl=1):
        L = 'lp%d' % len(a.lines)
        a('s_lshl_b32 s4, %s, 10' % s_b)
        a('v_add_u32 %s, s4, %s' % (vr(dst), vr(vl)))
        a('s_cmp_eq_u32 s%d, 0' % LAY)
        a('s_cbranch_scc0 %s' % L)
        a('s_lshl_b32 s4, %s, 2' % s_b)
        a('v_add_u32 %s, s4, %s' % (vr(dst), vr(vg)))
        a('v_and_b32 %s, 7, v2' % vr(tmp))
        a('v_xor_b32 %s, %s, %s' % (vr(dst), vr(dst), vr(tmp)))
        a('v_lshlrev_b32 %s, 4, %s' % (vr(dst), vr(dst)))
        a('v_lshl_add_u32 %s, v2, 7, %s' % (vr(dst), vr(dst)))
        a.label(L)

    def group_sync(name):
        a('s_add_u32 s%d, s%d, 8' % (GBW, GBW))
        a('s_barrier')
        a('s_cmp_eq_u32 s12, 11')
        a('s_cbranch_scc0 %s_go' % name)
        a('v_mov_b32 v4, 1')
        mem_wait(a, name, GBO, GBW, VZ, 5, arrive=True)
        a.label('%s_go' % name)

    ACC = 8; RING = ACC + 32; BF = RING + 72
    VA = 4; VB = 5; VT = 6
    acc = lambda j, tt: ACC + (j * 4 + tt) * 4
    ring = lambda k, j: 40 + ((k % 9) * 2 + j) * 4
    bf = lambda p, tt: BF + (p * 4 + tt) * 4

    def s1_ld(k, j):
        if j == 0 and not k & 1:
            a('s_add_u32 s15, s%d, %d' % (30 + k // 6, 4096 * ((k % 6) >> 1)))
        a('buffer_load_dwordx4 %s, v1, s[8:11], s15 offen offset:%d' % (vr(ring(k, j), 4), 2048 * (k & 1) + 1024 * j))

    def s1_fill(depth=None):
        a('s_mul_i32 s15, s13, 7\ns_add_u32 s15, s15, s12\ns_mul_i32 s15, s15, 36864\ns_add_u32 s15, s15, %d' % WQ)
        for b in range(3):
            a('s_mul_i32 s4, s%d, 12288\ns_add_u32 s%d, s4, s15' % (48 + b, 30 + b))
        for k in range(9):
            for j in range(2):
                s1_ld(k, j)
                if depth is not None:
                    a('s_waitcnt vmcnt(%d)' % depth)

    a('v_lshrrev_b32 v4, 3, v0\nv_and_b32 v5, 7, v0\nv_xor_b32 v5, v5, v4')
    a('v_mul_u32_u24 v4, 1152, v4')
    a('v_lshl_add_u32 v4, v5, 4, v4')
    if SINGLE:
        a('s_mov_b32 s35, 0')
        late_test(a)
        a('s_cselect_b32 s46, 1, 0')
        a('s_cbranch_scc1 st_nx')
        a.label('st_lx')
        a('s_cmp_lt_u32 s12, 6')
        a('s_cbranch_scc1 st_nx')
        a('s_sub_u32 s4, s12, 6\ns_lshr_b32 s4, s4, 1\ns_and_b32 s5, s12, 1')
        a('s_mul_i32 s22, s4, 384\ns_mul_i32 s6, s14, 73728\ns_add_u32 s22, s22, s6\ns_mul_i32 s6, s5, 36864\ns_add_u32 s22, s22, s6')
        a('s_mul_i32 s24, s4, 24576\ns_lshl_b32 s6, s5, 12\ns_add_u32 s24, s24, s6\ns_add_u32 s24, s24, %d' % XI)
        for p in range(3):
            for h in range(4):
                a('s_add_u32 m0, s24, %d' % (8192 * p + 1024 * h))
                a('s_add_u32 s23, s22, %d' % (128 * p + 9216 * h))
                a('buffer_load_dwordx4 v4, s[36:39], s23 offen%s lds' % X0_LD)
        a.label('st_nx')
        a('s_cmp_eq_u32 s46, 2')
        a('s_cbranch_scc1 st_x2')
        a('s_cmp_eq_u32 s47, 1')
        a('s_cbranch_scc1 st_j')
        a('s_waitcnt vmcnt(0)')
        a.label('st_j')
        a('s_cmp_eq_u32 s12, 11\ns_cselect_b32 s4, s2, 255\ns_cmp_lt_u32 s4, %d' % G_W1)
        a('s_cbranch_scc0 st_z_ok')
        a('s_mov_b32 s5, 0')
        a.label('st_z')
        a('s_mov_b32 s4, 0')
        a('s_atomic_add s4, s[52:53], 128 glc')
        a('s_add_u32 s5, s5, 1')
        a('s_cmp_lt_u32 s5, 0x%x' % SPIN_CAP)
        a('s_cbranch_scc0 mega_end')
        a('s_waitcnt lgkmcnt(0)')
        a('s_cmp_ge_u32 s4, %d' % (G_H - G_Z))
        a('s_cbranch_scc0 st_z')
        a.label('st_z_ok')
        stamp(a, 'pj')
        a('s_barrier')
        a('s_cmp_eq_u32 s46, 0')
        a('s_cbranch_scc1 st_x2')
        a('s_cmp_eq_u32 s12, 11')
        a('s_cbranch_scc0 st_a1')
        start_arrive(a, 'st_a1')
        a('s_barrier')
        a('s_mov_b32 s46, 2')
        a('s_branch st_lx')
        a.label('st_x2')
        a('s_cmp_lt_u32 s12, 8')
        a('s_cbranch_scc1 st_n2')
        a('s_cmp_lt_u32 s2, 94')
        a('s_cbranch_scc1 st_n2')
        a('s_sub_u32 s4, s2, 94\ns_lshl_b32 s4, s4, 2\ns_add_u32 s4, s4, s20')
        a('s_mul_i32 s33, s4, 7282\ns_lshr_b32 s33, s33, 16\ns_mul_i32 s5, s33, 9\ns_sub_u32 s34, s4, s5\ns_lshl_b32 s34, s34, 1')
        a('s_mul_i32 s35, s33, 7282\ns_lshr_b32 s35, s35, 16\ns_mul_i32 s5, s35, 9\ns_sub_u32 s5, s33, s5')
        a('s_mul_i32 s4, s35, 18\ns_add_u32 s4, s4, s34\ns_mul_i32 s23, s4, %d\ns_lshl_b32 s5, s5, 7\ns_add_u32 s23, s23, s5' % (32 * 1152))
        a('s_lshl_b32 s35, s35, %d\ns_add_u32 s35, s35, %d' % (FSH, FL_CW))
        a('s_lshl_b32 s22, s20, 13\ns_add_u32 s22, s22, %d' % OI)
        a('s_mov_b32 s40, s100\ns_mov_b32 s41, s101\ns_mov_b32 s42, %d\ns_mov_b32 s43, 0x20000' % (D * F * 2))
        a('v_lshrrev_b32 v8, 3, v0\nv_mul_u32_u24 v8, 1152, v8\nv_and_b32 v5, 7, v0\nv_lshrrev_b32 v6, 2, v0\nv_and_b32 v6, 4, v6')
        a('v_xor_b32 v5, v5, v6')
        a('v_lshl_add_u32 v8, v5, 4, v8')
        for n in range(8):
            a('s_add_u32 m0, s22, %d' % (1024 * n))
            a('s_add_u32 s4, s23, %d' % (9216 * n))
            a('buffer_load_dwordx4 v8, s[40:43], s4 offen nt lds')
        a.label('st_n2')
        a('s_cmp_eq_u32 s12, 7')
        a('s_cbranch_scc0 st_w')
        a('s_lshl_b32 s51, s14, 7\ns_lshl_b32 s4, s13, 2\ns_add_u32 s51, s51, s4\ns_add_u32 s51, s51, %d' % FL_RL)
        a('v_lshlrev_b32 v4, 2, v0')
        a('v_mov_b32 v5, 0x040404')
        a('s_mov_b64 exec, 0xff')
        a('ds_write_b32 v4, %s offset:%d' % (vr(VZ), FLG))
        a('ds_write_b32 %s, v5 offset:%d' % (vr(VZ), XC1))
        a('s_mov_b64 exec, -1')
        start_wait(a)
        a.label('st_w')
        a('s_waitcnt vmcnt(8)')
        a('s_cmp_eq_u32 s35, 0')
        a('s_cbranch_scc0 st_w2')
        a('s_waitcnt vmcnt(0)')
        a.label('st_w2')
        a('s_barrier')
        stamp(a, 'st')
        a('s_mov_b32 s%d, 8' % GBW)
        a('s_cmp_lt_u32 s12, 8')
        a('s_cbranch_scc1 st_lo')
        if WQ_TOUCH:
            a('s_and_b32 s4, s14, 7\ns_lshl_b32 s4, s4, 2\ns_add_u32 s4, s4, s20\ns_mul_i32 s4, s4, %d' % (63 * 128))
            a('s_mul_i32 s5, s13, %d\ns_add_u32 s4, s4, s5\ns_add_u32 s4, s4, %d' % (WQ_HG, WQ))
            a('v_lshlrev_b32 v6, 7, v0')
            a('s_setprio 3')
            a('buffer_load_dword v7, v6, s[8:11], s4 offen sc1')
            a('s_setprio 0')
        a('s_cmp_eq_u32 s12, 11')
        a('s_cbranch_scc0 st_h')
        mem_wait(a, 'st_c', GBO, GBW, VZ, 5, backoff=(None, 0, 2), arrive=True)
        a('s_add_u32 s6, s%d, %d\ns_mov_b32 s7, 32' % (CBO, FL_C0 - FL_CB))
        mem_wait(a, 'st_e', 6, 7, VZ, 5, backoff=(None, 0, 4), arrive=True)
        a('v_mov_b32 v5, 1')
        a('ds_write_b32 %s, v5 offset:%d' % (vr(VZ), TOK))
        a('s_branch s1_wo0')
        a.label('st_h')
        lds_spin(a, 'st_d', 5, VZ, TOK, 1, 1)
        a('s_branch s1_wo0')
        a.label('st_lo')
        a('s_cmp_eq_u32 s12, 7')
        a('s_cbranch_scc1 s1_go')
        a('s_cmp_eq_u32 s12, 6')
        a('s_cbranch_scc0 st_f')
        a('s_setprio 2')
        a.label('st_f')
        if S1_R2:
            a('s_lshr_b32 s4, 0x43, s12\ns_and_b32 s4, s4, 1')
            a('s_cbranch_scc1 st_g')
            a('s_mov_b32 s33, 0x%x' % (S1_R2 << 24))
            lds_spin(a, 'st_r2', 6, VZ, XC1, 0, 0, ge=33)
            a.label('st_g')
        a('s_mov_b32 s26, 0')
        a('s_branch s1_f1')
    else:
        a('v_lshlrev_b32 v5, 2, v0')
        a('s_mov_b64 exec, 0xff')
        a('ds_write_b32 v5, %s offset:%d' % (vr(VZ), FLG))
        a('s_mov_b64 exec, -1')
        a('s_waitcnt lgkmcnt(0)')
        load_x('x0', None, XC1)
    a('s_cmp_ge_u32 s12, 8')
    a('s_cbranch_scc0 s1_lo')
    a('s_barrier')
    x_count(XC1)
    a('s_branch s1_wo')
    a.label('s1_lo')
    a('s_lshr_b32 s26, 0x43, s12\ns_and_b32 s26, s26, 1')
    a('s_cbranch_scc1 s1_f1')
    a('s_waitcnt vmcnt(0)')
    a('s_barrier')
    a('s_cmp_ge_u32 s12, 7')
    a('s_cbranch_scc1 s1_go')
    a.label('s1_f1')
    s1_fill()
    a('s_cmp_eq_u32 s26, 0')
    a('s_cbranch_scc1 s1_go')
    a('s_waitcnt vmcnt(18)')
    a('s_barrier')
    a.label('s1_go')
    stamp(a, 'x1')
    VX = 144
    for par in range(2):
        lane_part(VA, VT, str(par))
        for b in range(3):
            a('s_mul_i32 s4, s%d, 24576\ns_add_u32 s4, s4, %d' % (48 + b, XI))
            a('v_add_u32 %s, s4, %s' % (vr(VX + 2 * b + par), vr(VA)))

    a('v_mov_b32 v7, 0x1000000')

    def rdx(k, tt):
        a('ds_read_b128 %s, %s offset:%d' % (vr(bf(k & 1, tt), 4), vr(VX + 2 * (k // 6) + (k & 1)), ((k % 6) >> 1) * 8192 + 2048 * tt))

    slow = []

    def x_check(tag, k, step):
        if k not in (4, 10):
            return
        m = 0x0400 if k == 4 else 0x040000
        if step == 0:
            a('ds_read_b32 %s, %s offset:%d' % (vr(VT), vr(VZ), XC1))
        elif step == 1:
            a('v_readfirstlane_b32 s4, %s' % vr(VT))
        else:
            a('s_andn2_b32 s4, 0x%x, s4' % m)
            a('s_cbranch_scc1 s1_slow%s%d' % (tag, k))
            a.label('s1_back%s%d' % (tag, k))
            slow.append((tag, k, m))
    for tt in range(4):
        rdx(0, tt)
    a('s_cmp_lt_u32 s12, 4')
    a('s_cbranch_scc1 s1_nn')
    a('s_cmp_eq_u32 s12, 6')
    a('s_cbranch_scc1 s1_nt')
    a('s_cmp_eq_u32 s12, 7')
    a('s_cbranch_scc1 s1_stats')

    def main(orient):
        issued = 18
        a('s_waitcnt vmcnt(17) lgkmcnt(0)')
        for k in range(18):
            for n in range(8):
                j, tt = n >> 2, n & 3
                if j:
                    tt = 3 - tt
                c = None if k == 0 else acc(j, tt)
                if orient[j] == 'N':
                    mfma(a, acc(j, tt), bf(k & 1, tt), ring(k, j), c)
                else:
                    mfma(a, acc(j, tt), ring(k, j), bf(k & 1, tt), c)
                if n < 2 and k < 17:
                    rdx(k + 1, 2 * n); rdx(k + 1, 2 * n + 1)
                if n == 2:
                    a('s_waitcnt vmcnt(%d)' % (issued - (2 * k + 2)))
                if n in (3, 7) and k < 9:
                    s1_ld(k + 9, j)
                    issued += 1
                if k == S1_GATE and n == 4:
                    a('s_mov_b64 exec, 1')
                    a('ds_add_u32 %s, v7 offset:%d' % (vr(VZ), XC1))
                    a('s_mov_b64 exec, -1')
                if n == 2:
                    x_check(orient, k, 0)
                if n == 6 and k < 17:
                    a('s_waitcnt vmcnt(%d) lgkmcnt(0)' % (issued - (2 * k + 3)))
                    x_check(orient, k, 1)
                if n == 7:
                    x_check(orient, k, 2)
        stamp(a, 's1m')
        lds_spin(a, 's1_s' + orient, VT, VZ, FLG, 2, 2)

    def rs_n(RS):
        a('v_lshlrev_b32 %s, 4, v3' % vr(VT))
        for n in range(8):
            a('ds_read_b128 %s, %s offset:%d' % (vr(RS + 4 * n, 4), vr(VT), RSL + 64 * n))

    def rs_t(RS):
        a('v_lshlrev_b32 %s, 2, v2' % vr(VT))
        for n in range(8):
            a('ds_read_b32 %s, %s offset:%d' % (vr(RS + n), vr(VT), RSL + 64 * n))

    def phi4(items, T):
        n = len(items)
        for i, (d, x, s1, s2) in enumerate(items):
            a('v_mul_f32 %s, %s, %s' % (vr(T + i), vr(x), vr(s2)))
        for i in range(n):
            a('v_min_f32 %s, 0, %s' % (vr(T + i), vr(T + i)))
        for i in range(n):
            a('v_exp_f32 %s, %s' % (vr(T + i), vr(T + i)))
        for i, (d, x, s1, s2) in enumerate(items):
            a('v_max_f32 %s, 0, %s' % (vr(d), vr(x)))
        for i in range(n):
            a('v_add_f32 %s, 0x%x, %s' % (vr(T + i), EPS6, vr(T + i)))
        for i, (d, x, s1, s2) in enumerate(items):
            a('v_fma_f32 %s, %s, %s, %s' % (vr(d), vr(d), vr(s1), vr(T + i)))

    RS = RING; TMP = RING + 32; F0 = RING + 48; ON = RING + 64
    pq_base = 's_lshl_b32 s6, s14, 4\ns_add_u32 s6, s6, s13\ns_mul_i32 s6, s6, 4608\ns_add_u32 s6, s6, s%d\ns_add_u32 s6, s6, %d' % (LOFF, PQ)
    main('TT')
    rs_t(RS)
    a(pq_base)
    a('s_lshl_b32 s5, s20, 10\ns_add_u32 s6, s6, s5\ns_add_u32 s7, s6, %d' % (8 * 4608))
    a('s_waitcnt lgkmcnt(0)')
    for tt in range(4):
        phi4([(acc(j, tt) + r, acc(j, tt) + r, RS + tt, RS + 4 + tt) for j in range(2) for r in range(4)], TMP)
        P = BF + 4 * tt
        for j in range(2):
            a('v_cvt_pk_bf16_f32 %s, %s, %s' % (vr(P + 2 * j), vr(acc(j, tt)), vr(acc(j, tt) + 1)))
            a('v_cvt_pk_bf16_f32 %s, %s, %s' % (vr(P + 2 * j + 1), vr(acc(j, tt) + 2), vr(acc(j, tt) + 3)))
        a('buffer_store_dwordx4 %s, v1, s[8:11], s%d offen offset:%d sc1' % (vr(P, 4), 6 + (tt >> 1), 2048 * (tt & 1)))
    a('s_branch s1_done')
    a.label('s1_nn')
    main('NN')
    rs_n(RS)
    FK = F0; FV = F0 + 8; DV = BF; FX = BF + 16
    for k in range(4):
        a('v_mov_b32 %s, 0x%x' % (vr(ON + k), ONES))
    a('s_lshl_b32 s4, s13, 2\ns_add_u32 s4, s4, s20\ns_mul_i32 s6, s4, %d\ns_add_u32 s6, s6, s%d' % (HSG, SOF))
    a('s_waitcnt lgkmcnt(0)')
    for tp in range(2):
        phi4([(acc(0, tt) + r, acc(0, tt) + r, RS + 4 * tt + r, RS + 16 + 4 * tt + r) for tt in (2 * tp, 2 * tp + 1) for r in range(4)], TMP)
        for tt in (2 * tp, 2 * tp + 1):
            for r in range(4):
                a('v_mul_f32 %s, %s, %s' % (vr(acc(1, tt) + r), vr(acc(1, tt) + r), vr(RS + 4 * tt + r)))
            for j, Fb in enumerate((FK, FV)):
                d = Fb + 2 * tt
                a('v_cvt_pk_bf16_f32 %s, %s, %s' % (vr(d), vr(acc(j, tt)), vr(acc(j, tt) + 1)))
                a('v_cvt_pk_bf16_f32 %s, %s, %s' % (vr(d + 1), vr(acc(j, tt) + 2), vr(acc(j, tt) + 3)))
        c = (lambda x: None) if tp == 0 else (lambda x: x)
        mfma(a, DV, FV + 4 * tp, FK + 4 * tp, c(DV))
        mfma(a, DV + 4, ON, FK + 4 * tp, c(DV + 4))
    a('v_and_b32 %s, 0x380, v1' % vr(VA))
    a('v_and_b32 %s, 4, v2' % vr(VB))
    a('v_lshl_add_u32 %s, %s, 2, %s' % (vr(VA), vr(VB), vr(VA)))
    a('s_lshl_b32 s5, s20, 5')
    a('v_add_u32 %s, s5, %s' % (vr(VA), vr(VA)))
    a('v_lshlrev_b32 %s, 2, v0' % vr(VB))
    for r in range(4):
        a('buffer_atomic_add_f32 %s, %s, s[8:11], s6 offen offset:%d' % (vr(DV + r), vr(VB), 256 * r))
    a('s_mov_b64 exec, 0xffff')
    a('buffer_atomic_add_f32 %s, %s, s[8:11], s6 offen offset:1152' % (vr(DV + 4), vr(VB)))
    a('s_mov_b64 exec, -1')
    lds_spin(a, 's1_w', VT, VZ, FLG, 1, 1)
    a('ds_read_b128 %s, %s offset:%d' % (vr(FX, 4), vr(VA), XF))
    a('ds_read_b128 %s, %s offset:%d' % (vr(FX + 4, 4), vr(VA), XF + 1024))
    a('v_lshlrev_b32 %s, 3, v2' % vr(VT))
    a('v_lshl_add_u32 %s, v3, 2, %s' % (vr(VT), vr(VT)))
    a('v_add_u32 %s, 384, %s' % (vr(VT), vr(VT)))
    a('s_mov_b32 s40, -1\ns_mov_b32 s41, 0')
    a('v_cndmask_b32 %s, %s, %s, s[40:41]' % (vr(VT), vr(VB), vr(VT)))
    a('s_waitcnt lgkmcnt(0)')
    for tp in range(2):
        c = (lambda x: None) if tp == 0 else (lambda x: x)
        mfma(a, DV + 8, FX + 4 * tp, FV + 4 * tp, c(DV + 8))
        mfma(a, DV + 12, FX + 4 * tp, FK + 4 * tp, c(DV + 12))
    a('v_cndmask_b32 %s, %s, %s, s[40:41]' % (vr(DV + 8), vr(DV + 12), vr(DV + 8)))
    a('buffer_atomic_add_f32 %s, %s, s[8:11], s6 offen offset:896' % (vr(DV + 8), vr(VT)))
    a('s_branch s1_done')
    a.label('s1_nt')
    a('s_setprio 2')
    main('NT')
    rs_n(RS)
    FX = F0; PH = BF + 16
    for k in range(4):
        a('v_mov_b32 %s, 0x%x' % (vr(ON + k), ONES))
    a('s_mov_b32 s46, 0x00ff00ff\ns_mov_b32 s47, 0x00ff00ff')
    a('s_waitcnt lgkmcnt(0)')
    for tp in range(2):
        tts = (2 * tp, 2 * tp + 1)
        phi4([(PH + 4 * (tt & 1) + r, acc(0, tt) + r, RS + 4 * tt + r, RS + 16 + 4 * tt + r) for tt in tts for r in range(4)], TMP)
        for tt in tts:
            for r in range(4):
                a('v_mul_f32 %s, %s, %s' % (vr(acc(0, tt) + r), vr(acc(0, tt) + r), vr(RS + 4 * tt + r)))
                a('v_cndmask_b32 %s, %s, %s, s[46:47]' % (vr(acc(0, tt) + r), vr(acc(0, tt) + r), vr(PH + 4 * (tt & 1) + r)))
            a('v_cvt_pk_bf16_f32 %s, %s, %s' % (vr(FX + 2 * tt), vr(acc(0, tt)), vr(acc(0, tt) + 1)))
            a('v_cvt_pk_bf16_f32 %s, %s, %s' % (vr(FX + 2 * tt + 1), vr(acc(0, tt) + 2), vr(acc(0, tt) + 3)))
        a('ds_write_b128 v1, %s offset:%d' % (vr(FX + 4 * tp, 4), XF + 1024 * tp))
    a('v_mov_b32 %s, 3' % vr(VT))
    a('ds_write_b32 %s, %s offset:%d' % (vr(VZ), vr(VT), FLG))
    a('s_setprio 0')
    a('v_and_b32 %s, 0x380, v1' % vr(VA))
    a('v_and_b32 %s, 4, v2' % vr(VB))
    a('v_lshl_add_u32 %s, %s, 2, %s' % (vr(VA), vr(VB), vr(VA)))
    a('v_and_b32 %s, 3, v2' % vr(VB))
    a('v_lshl_add_u32 %s, %s, 5, %s' % (vr(VA), vr(VB), vr(VA)))
    for tp in range(2):
        a('ds_read_b128 %s, %s offset:%d' % (vr(FX + 8 + 4 * tp, 4), vr(VA), XF + 1024 * tp))
    a('s_waitcnt lgkmcnt(0)')
    for tp in range(2):
        c = (lambda x: None) if tp == 0 else (lambda x: x)
        mfma(a, DV, FX + 8 + 4 * tp, FX + 4 * tp, c(DV))
        mfma(a, DV + 4, ON, FX + 4 * tp, c(DV + 4))
    rs_t(RS)
    a('v_bfe_u32 %s, v2, 1, 2' % vr(VA))
    a('v_mul_u32_u24 %s, %d, %s' % (vr(VA), HSG, vr(VA)))
    a('v_and_b32 %s, 1, v2' % vr(VB))
    a('v_lshl_add_u32 %s, %s, 2, %s' % (vr(VA), vr(VB), vr(VA)))
    a('v_add_u32 %s, 2, v3' % vr(VB))
    a('v_and_b32 %s, 3, %s' % (vr(VB), vr(VB)))
    a('v_lshl_add_u32 %s, %s, 3, %s' % (vr(VA), vr(VB), vr(VA)))
    a('s_mul_i32 s6, s13, %d\ns_add_u32 s6, s6, s%d' % (4 * HSG, SOF))
    diag_select(a, DV + 8, DV, (0x0c0c0c0c, 0x30303030, 0xc0c0c0c0))
    a('s_mov_b32 s40, 0xffff\ns_mov_b32 s41, 0')
    a('v_cndmask_b32 %s, %s, %s, s[40:41]' % (vr(DV + 8), vr(DV + 8), vr(DV + 4)))
    a('s_mov_b32 exec_lo, 0xff\ns_mov_b32 exec_hi, 0x00ff00ff')
    a('buffer_atomic_add_f32 %s, %s, s[8:11], s6 offen offset:%d' % (vr(DV + 8), vr(VA), 1280 + 128))
    a('s_mov_b64 exec, -1')
    a(pq_base)
    a('s_add_u32 s6, s6, 4096\ns_add_u32 s7, s6, %d' % (8 * 4608))
    a('v_lshlrev_b32 %s, 3, v0' % vr(VB))
    a('s_waitcnt lgkmcnt(0)')
    a('s_mov_b32 s40, 0xffff0000\ns_mov_b32 s41, 0xffff0000')
    for tt in range(4):
        for r in range(2):
            a('v_cndmask_b32 %s, %s, %s, s[40:41]' % (vr(acc(1, tt) + r), vr(acc(1, tt) + r), vr(acc(1, tt) + 2 + r)))
    phi4([(acc(1, tt) + r, acc(1, tt) + r, RS + tt, RS + 4 + tt) for tt in range(4) for r in range(2)], TMP)
    for tt in range(4):
        a('v_cvt_pk_bf16_f32 %s, %s, %s' % (vr(PH + tt), vr(acc(1, tt)), vr(acc(1, tt) + 1)))
    for tp in range(2):
        a('buffer_store_dwordx2 %s, %s, s[8:11], s%d offen sc1' % (vr(PH + 2 * tp, 2), vr(VB), 6 + tp))
    a('s_branch s1_done')
    a.label('s1_stats')
    a('s_setprio 3')
    for k in range(4):
        a('v_mov_b32 %s, 0x%x' % (vr(RING + k), ONES))
    for i, m in enumerate((0x22222222, 0x44444444, 0x88888888)):
        a('s_mov_b32 s%d, 0x%x\ns_mov_b32 s%d, 0x%x' % (40 + 2 * i, m, 41 + 2 * i, m))
    a('s_waitcnt lgkmcnt(0)')
    for k in range(18):
        for n in range(8):
            j, tt = 1 - (n >> 2), n & 3
            mfma(a, acc(j, tt), bf(k & 1, tt) if j else RING, bf(k & 1, tt), None if k == 0 else acc(j, tt))
            if n < 2 and k < 17:
                rdx(k + 1, 2 * n); rdx(k + 1, 2 * n + 1)
            if n == 2:
                x_check('S', k, 0)
            if n == 6 and k < 17:
                a('s_waitcnt lgkmcnt(0)')
                x_check('S', k, 1)
            if n == 7:
                x_check('S', k, 2)
    a('v_lshlrev_b32 %s, 2, v2' % vr(VT))
    for i in range(3):
        for tt in range(4):
            a('v_cndmask_b32 %s, %s, %s, s[%d:%d]' % (vr(acc(1, tt)), vr(acc(1, tt)), vr(acc(1, tt) + 1 + i), 40 + 2 * i, 41 + 2 * i))
    for fmt in ('v_mul_f32 {q}, 0x%x, {q}' % INV576, 'v_mul_f32 {s}, 0x%x, {s}' % INV576, 'v_fma_f32 {q}, -{s}, {s}, {q}',
                'v_max_f32 {q}, 0, {q}', 'v_add_f32 {q}, 0x%x, {q}' % EPS5, 'v_rsq_f32 {r}, {q}', 'v_mul_f32 {r2}, 0x%x, {r}' % LOG2E):
        for tt in range(4):
            a(fmt.format(s=vr(acc(0, tt)), q=vr(acc(1, tt)), r=vr(acc(0, tt) + 2), r2=vr(acc(0, tt) + 3)))
    a('s_mov_b32 exec_lo, 0x00f0000f\ns_mov_b32 exec_hi, 0xf0000f00')
    for tt in range(4):
        a('ds_write_b32 %s, %s offset:%d' % (vr(VT), vr(acc(0, tt) + 2), RSL + 64 * tt))
        a('ds_write_b32 %s, %s offset:%d' % (vr(VT), vr(acc(0, tt) + 3), RSL + 256 + 64 * tt))
    a('s_mov_b64 exec, -1')
    a('v_mov_b32 %s, 2' % vr(VA))
    a('ds_write_b32 %s, %s offset:%d' % (vr(VZ), vr(VA), FLG))
    a('s_setprio 0')
    stamp(a, 's1m')
    a('s_branch s1_done')
    for tag, k, m in slow:
        a.label('s1_slow%s%d' % (tag, k))
        lds_spin(a, 's1_sl%s%d' % (tag, k), VT, VZ, XC1, m, m)
        a('s_branch s1_back%s%d' % (tag, k))
    AC2 = 8; B2 = 24; WR = 56; NPRE = 13
    wr = lambda k, j: WR + ((k % NPRE) * 2 + j) * 4
    def w2_store(name):
        a('s_cmp_eq_u32 s35, 0')
        a('s_cbranch_scc1 %s' % name)
        for k in range(2):
            for c in range(4):
                a('buffer_store_dwordx4 %s, v1, s[8:11], s%d offen offset:%d sc1' % (vr(B2 + (k * 4 + c) * 4, 4), 40 + c, 3072 * k))
        a.label(name)
    a.label('s1_wo0')
    a('s_cmp_eq_u32 s35, 0')
    a('s_cbranch_scc1 s1_wo')
    a('v_bfe_u32 v6, v0, 2, 2')
    a('v_lshl_add_u32 v5, v3, 3, v6')
    a('v_lshlrev_b32 v5, 7, v5')
    a('v_and_b32 v6, 8, v0')
    a('v_lshl_add_u32 v5, v6, 3, v5')
    a('v_add_u32 v4, s22, v5')
    a('v_xor_b32 v5, 64, v4')
    a('v_and_b32 v6, 3, v0')
    for h in range(2):
        a('s_lshl_b32 s4, s33, 1\ns_add_u32 s4, s4, %d\ns_mul_i32 s5, s4, 43691\ns_lshr_b32 s5, s5, 17\ns_mul_i32 s5, s5, 3\ns_sub_u32 s4, s4, s5' % h)
        a('s_cmp_eq_u32 s4, 1\ns_cselect_b32 s4, 3, 4\ns_cselect_b32 s5, 32, 8')
        a('v_lshl_add_u32 v%d, v6, s4, v%d' % (8 + 2 * h, 4 + h))
        a('v_add_u32 v%d, s5, v%d' % (9 + 2 * h, 8 + 2 * h))
    for c in range(4):
        a('s_lshl_b32 s4, s33, 2\ns_add_u32 s4, s4, %d\ns_mul_i32 s5, s4, 43691\ns_lshr_b32 s5, s5, 17' % c)
        a('s_mul_i32 s6, s5, 3\ns_sub_u32 s4, s4, s6')
        a('s_and_b32 s6, s5, 1\ns_lshl_b32 s6, s6, 1\ns_add_u32 s4, s4, s6')
        a('s_cmp_ge_u32 s4, 3\ns_cselect_b32 s6, 3, 0\ns_sub_u32 s4, s4, s6')
        a('s_mul_i32 s6, s5, 54\ns_add_u32 s4, s4, s6\ns_mul_i32 s6, s34, 3\ns_add_u32 s4, s4, s6')
        a('s_lshl_b32 s4, s4, 10\ns_add_u32 s%d, s4, %d' % (40 + c, W2))
    a('s_waitcnt vmcnt(0)')
    for k in range(2):
        for c in range(4):
            for hi in range(2):
                a('ds_read_b64_tr_b16 %s, v%d offset:%d' % (vr(B2 + (k * 4 + c) * 4 + 2 * hi, 2), 8 + c, 4096 * k + 512 * hi))
        a('s_waitcnt lgkmcnt(%d)' % (4 if k == 0 else 0))
    if W2_ST == 's1':
        w2_store('w2_s0')
    a.label('s1_wo')
    a('s_and_b32 s24, s13, 3')
    a('s_mul_i32 s25, s24, 9\ns_and_b32 s4, s24, 1\ns_add_u32 s25, s25, s4\ns_lshl_b32 s4, s20, 1\ns_add_u32 s25, s25, s4')
    a('s_mul_i32 s16, s25, 18432\ns_add_u32 s16, s16, %d\ns_add_u32 s17, s16, 18432' % WO)

    def wo_ld(k):
        for j in range(2):
            a('buffer_load_dwordx4 %s, v1, s[8:11], s%d offen offset:%d' % (vr(wr(k, j), 4), 16 + j, 1024 * (k % 4)))
        if k % 4 == 3:
            a('s_add_u32 s16, s16, 4096\ns_add_u32 s17, s17, 4096')
    nO = [0]

    def wo_pre(n):
        for k in range(nO[0], nO[0] + n):
            wo_ld(k)
        nO[0] += n
        if n and nO[0] == NPRE and WO_TOUCH:
            a('v_min_u32 v6, %d, v0' % ((18 - NPRE) * 8 - 1))
            a('v_lshlrev_b32 v6, 7, v6')
            for j in range(2):
                a('buffer_load_dword v7, v6, s[8:11], s%d offen offset:%d' % (16 + j, 1024 * (NPRE % 4)))
    if WO_SPLIT[0]:
        gm = 0x040000 | (0x07000000 if S1_GATE >= 0 else 0)
        lds_spin(a, 's1_wog', 4, VZ, XC1, gm, gm)
    wo_pre(WO_SPLIT[0])
    stamp(a, 's1m')
    a('s_branch s1_join')
    a.label('s1_done')
    a('s_waitcnt vmcnt(0)')
    a.label('s1_join')
    stamp(a, 's1d')
    a('s_barrier')

    RING3 = 52
    FR = 124; QF = 20; XP = 4
    VA = 156; VB = 157; VC = 158; VD = 159; EX = 160; VT = 161; QX = 162
    f1 = lambda hh: FR + 8 * hh
    f2 = lambda hh: FR + 8 * hh + 4
    qf = lambda tt, hh: QF + (tt * 4 + hh) * 4
    a('s_cmp_ge_u32 s12, 8')
    a('s_cbranch_scc1 s2_hi')
    a('s_lshl_b32 s4, s%d, 3\ns_add_u32 s5, s4, s13\ns_lshl_b32 s5, s5, 3\ns_add_u32 s5, s5, s12\ns_lshl_b32 s5, s5, %d\ns_add_u32 s5, s5, %d' % (LAY, FSH, FL_CR))
    a('s_lshl_b32 s3, 1, s14')
    for r in range(NREP):
        a('s_add_u32 s%d, s5, %d' % (40 + r, 128 * FST * r))
        a('s_atomic_or s3, s[8:9], s%d' % (40 + r))
    a('s_add_u32 s26, s4, s12\ns_lshl_b32 s26, s26, 3\ns_add_u32 s26, s26, s13\ns_lshl_b32 s26, s26, %d\ns_add_u32 s26, s26, %d' % (FSH, FL_CR))
    a('s_and_b32 s4, s14, %d\ns_mul_i32 s4, s4, %d\ns_add_u32 s26, s26, s4' % (NREP - 1, 128 * FST))
    a('s_lshl_b32 s23, s14, 1\ns_lshr_b32 s4, s13, 2\ns_add_u32 s23, s23, s4')
    a('s_lshl_b32 s23, s23, 3\ns_add_u32 s23, s23, s12\ns_mul_i32 s23, s23, 4608\ns_add_u32 s23, s23, s%d\ns_add_u32 s23, s23, %d' % (LOFF, PQ))
    a('s_add_u32 s24, s23, 4096')
    a('v_and_b32 %s, 3, v2' % vr(VT))
    a('v_lshrrev_b32 %s, 2, v2' % vr(VA))
    a('v_lshl_add_u32 %s, %s, 2, %s' % (vr(VA), vr(VT), vr(VA)))
    a('v_lshlrev_b32 %s, 6, %s' % (vr(VA), vr(VA)))
    a('v_lshl_add_u32 %s, v3, 4, %s' % (vr(VA), vr(VA)))
    a('v_min_u32 %s, 2, %s' % (vr(VT), vr(VT)))
    a('v_lshlrev_b32 %s, 6, %s' % (vr(VB), vr(VT)))
    a('v_lshl_add_u32 %s, v3, 4, %s' % (vr(VB), vr(VB)))
    a('v_mul_u32_u24 %s, %d, v3' % (vr(VD), HS))
    a('v_lshl_add_u32 %s, v2, 3, %s' % (vr(VC), vr(VD)))
    a('v_lshl_add_u32 %s, %s, 3, %s' % (vr(VD), vr(VT), vr(VD)))
    a('s_mul_i32 s25, s12, %d\ns_add_u32 s25, s25, %d\ns_mul_i32 s22, s12, %d\ns_add_u32 s22, s22, s%d' % (4 * HS, SL, 4 * HSG, SOF))
    a('v_lshrrev_b32 %s, 5, v0' % vr(EX))
    a('v_mul_u32_u24 %s, %d, %s' % (vr(EX), HSG - HS, vr(EX)))
    a('v_add_u32 %s, %s, v1' % (vr(EX), vr(EX)))
    for v in (VA, VB, VC, VD):
        a('v_add_u32 %s, s25, %s' % (vr(v), vr(v)))
    for hh in range(4):
        a('s_mov_b32 s%d, 0x%x\ns_mov_b32 s%d, 0x%x' % (
            40 + 2 * hh, (0xffff << (16 * hh)) & 0xffffffff, 41 + 2 * hh, ((0xffff << (16 * hh)) >> 32) & 0xffffffff))
    a('s_mul_i32 s16, s13, 12\ns_add_u32 s16, s16, s28\ns_mul_i32 s16, s16, 55296\ns_mul_i32 s4, s19, 18432\ns_add_u32 s16, s16, s4\ns_add_u32 s16, s16, %d' % W1)
    a('s_and_b32 s4, s13, 3\ns_mul_i32 s29, s4, 9\ns_and_b32 s4, s4, 1\ns_xor_b32 s4, s4, 1\ns_lshl_b32 s4, s4, 3\ns_add_u32 s29, s29, s4')
    a('s_mul_i32 s4, s29, 18432\ns_add_u32 s4, s4, %d' % WO)
    a('s_cmp_eq_u32 s12, 7\ns_cselect_b32 s16, s4, s16')
    nW = [0]

    def wld(n, guard=True):
        if not n:
            return
        L = 'wld%d' % len(a.lines)
        if guard:
            a('s_cmp_eq_u32 s12, 7')
            a('s_cbranch_scc1 %s' % L)
        for _ in range(n):
            k = nW[0]
            a('buffer_load_dwordx4 %s, v1, s[8:11], s16 offen offset:%d' % (vr(RING3 + 4 * k, 4), 1024 * (k % 4)))
            if k % 4 == 3:
                a('s_add_u32 s16, s16, 4096')
            nW[0] += 1
        if guard:
            a.label(L)
    wld(S2_WE, False)
    a('s_cmp_eq_u32 s12, 7')
    a('s_cbranch_scc0 s2_n7a')
    wld(18 - S2_WE, False)
    nW[0] = S2_WE
    a.label('s2_n7a')

    def mask_wait(name, mask, first):
        if first:
            a('s_mov_b32 s5, 0')
        else:
            a('s_branch %s_t' % name)
        a.label(name)
        if CB_SLEEP:
            a('s_sleep %d' % CB_SLEEP)
        a('s_mov_b32 s6, 0')
        a('s_atomic_or s6, s[8:9], s26 glc')
        a('s_add_u32 s5, s5, 1')
        a('s_cmp_lt_u32 s5, 0x%x' % SPIN_CAP)
        a('s_cbranch_scc0 mega_end')
        a('s_waitcnt lgkmcnt(0)')
        a.label(name + '_t')
        a('s_andn2_b32 s4, %s, s6' % mask)
        a('s_cbranch_scc1 %s' % name)
    mask_wait('e1a', 's3', True)
    stamp(a, 'e1a')
    a('v_lshlrev_b32 %s, 3, v0' % vr(VT))
    for tt in range(2):
        for p in range(2):
            a('buffer_load_dwordx4 %s, v1, s[8:11], s23 offen offset:%d sc1' % (vr(qf(tt, 2 * p), 4), 2048 * tt + 1024 * p))
    a('buffer_load_dwordx2 %s, %s, s[8:11], s24 offen sc1' % (vr(QX, 2), vr(VT)))
    def s_dma():
        for n in range(6):
            if n == 3:
                a('s_add_u32 m0, s25, 3072')
            if n in (2, 3, 5):
                a('s_add_u32 s22, s22, %d' % (HSG - HS + (3072 if n == 3 else 0)))
            a('buffer_load_dwordx4 %s, s[8:11], s22 offen offset:%d sc1 lds' % (vr(EX) if n % 3 == 1 else 'v1', 1024 * (n % 3)))

    def q_prep():
        for tt in range(2):
            for p in range(2):
                q0, q1 = qf(tt, 2 * p), qf(tt, 2 * p + 1)
                a('v_mov_b32 %s, %s' % (vr(q1), vr(q0 + 2)))
                a('v_mov_b32 %s, %s' % (vr(q1 + 1), vr(q0 + 3)))
                for q in (q0, q1):
                    a('v_mov_b32 %s, %s' % (vr(q + 2), vr(QX + tt)))
                    a('v_mov_b32 %s, 0' % vr(q + 3))
    a('s_mov_b32 m0, s25')
    mask_wait('e1b', '-1', False)
    stamp(a, 'e1b')
    s_dma()
    a('s_waitcnt vmcnt(6)')
    q_prep()
    a('s_waitcnt vmcnt(0)')
    a.label('e1_d')
    stamp(a, 'sld')
    a('ds_read_b64 %s, %s offset:1280' % (vr(XP, 2), vr(VC)))
    a('ds_read_b64 %s, %s offset:%d' % (vr(XP + 2, 2), vr(VD), 1280 + 128))
    for hh in range(4):
        a('ds_read_b128 %s, %s offset:%d' % (vr(f1(hh), 4), vr(VA), HS * hh))
        a('ds_read_b128 %s, %s offset:%d' % (vr(f2(hh), 4), vr(VB), HS * hh + 1024))
    wld(S2_W0)
    a('s_waitcnt lgkmcnt(8)')
    a('v_cvt_pk_bf16_f32 %s, %s, %s' % (vr(XP), vr(XP), vr(XP + 1)))
    a('v_cvt_pk_bf16_f32 %s, %s, %s' % (vr(XP + 2), vr(XP + 2), vr(XP + 3)))
    for hh in range(4):
        a('s_waitcnt lgkmcnt(%d)' % (6 - 2 * hh))
        for f, x in ((f1(hh), XP), (f2(hh), XP + 2)):
            a('v_cvt_pk_bf16_f32 %s, %s, %s' % (vr(f), vr(f), vr(f + 1)))
            a('v_cvt_pk_bf16_f32 %s, %s, %s' % (vr(f + 1), vr(f + 2), vr(f + 3)))
            a('v_cndmask_b32 %s, 0, %s, s[%d:%d]' % (vr(f + 2), vr(x), 40 + 2 * hh, 41 + 2 * hh))
            a('v_mov_b32 %s, 0' % vr(f + 3))
    stamp(a, 'scv')
    a('s_lshl_b32 s4, s12, 12\ns_add_u32 s4, s4, %d' % OI)
    a('v_add_u32 %s, s4, v1' % vr(VA))
    a('s_add_u32 s4, s21, 16\ns_lshl_b32 s4, s4, 11\ns_lshl_b32 s5, s20, 2\ns_add_u32 s4, s4, s5\ns_add_u32 s4, s4, %d' % OI)
    a('v_add_u32 %s, s4, v1' % vr(VB))
    for tt in range(2):
        for p in range(2):
            for n in range(2):
                mfma(a, XP + 8 * n + 4, f2(2 * p + n), qf(tt, 2 * p + n))
            for n in range(2):
                mfma(a, XP + 8 * n, f1(2 * p + n), qf(tt, 2 * p + n))
            wld(S2_W1)
            O = qf(tt, 2 * p)
            for n in range(2):
                d2 = XP + 8 * n + 4
                a('v_add_f32 %s, 0x%x, %s' % (vr(d2 + 2), EPS6, vr(d2 + 2)))
            for n in range(2):
                d2 = XP + 8 * n + 4
                a('v_rcp_f32 %s, %s' % (vr(d2 + 2), vr(d2 + 2)))
            for n in range(2):
                hh = 2 * p + n
                d1 = XP + 8 * n; d2 = d1 + 4
                for r in (4, 5, 0, 1, 2, 3):
                    a('v_mul_f32 %s, %s, %s' % (vr(d1 + r), vr(d1 + r), vr(d2 + 2)))
                a('v_cvt_pk_bf16_f32 %s, %s, %s' % (vr(O + 2 * n), vr(d1), vr(d1 + 1)))
                a('v_cvt_pk_bf16_f32 %s, %s, %s' % (vr(O + 2 * n + 1), vr(d1 + 2), vr(d1 + 3)))
                if hh == 0:
                    a('v_cvt_pk_bf16_f32 %s, %s, %s' % (vr(EX), vr(d2), vr(d2 + 1)))
                else:
                    a('v_cvt_pk_bf16_f32 %s, %s, %s' % (vr(VT), vr(d2), vr(d2 + 1)))
                    a('v_cndmask_b32 %s, %s, %s, s[%d:%d]' % (vr(EX), vr(EX), vr(VT), 40 + 2 * hh, 41 + 2 * hh))
            a('ds_write_b128 %s, %s offset:%d' % (vr(VA), vr(O, 4), 2048 * p + 1024 * tt))
        a('ds_write_b32 %s, %s offset:%d' % (vr(VB), vr(EX), 1024 * tt))
    stamp(a, 'st1')
    a('s_waitcnt lgkmcnt(0)')
    a('s_barrier')
    stamp(a, 'o')
    a('s_cmp_eq_u32 s12, 7')
    a('s_cbranch_scc1 s2_w7')
    if S2_BAR:
        a('s_barrier')
    wld(18 - S2_W5 - nW[0], False)
    n5 = nW[0]
    a('s_branch s2_done')
    a.label('s2_w7')
    a('s_setprio %d' % W7_PRIO)

    def resid_store(nt, AC, T, s_ct):
        A = T + 24; G = T + 26
        a('s_bfe_u32 s7, %s, 0x10001' % sr(s_ct))
        if nt == 1:
            a('s_and_b32 s24, %s, 1\ns_lshl_b32 s24, s24, 1' % sr(s_ct))
            a('v_lshrrev_b32 %s, 1, v3' % vr(G))
            a('v_add_u32 %s, s24, %s' % (vr(G), vr(G)))
            a('v_lshlrev_b32 %s, 8, %s' % (vr(G + 1), vr(G)))
            a('v_lshl_add_u32 %s, v2, 4, %s' % (vr(G + 1), vr(G + 1)))
            lane_part(A, A + 1, 's7', G, G + 1)
            a('v_and_b32 %s, 1, v3' % vr(G))
            a('v_lshl_add_u32 %s, %s, 11, %s' % (vr(A), vr(G), vr(A)))
            a('v_mul_u32_u24 %s, 18432, %s' % (vr(G), vr(G)))
            a('v_add_u32 %s, %s, %s' % (vr(G), vr(G), vr(G + 1)))
        else:
            lane_part(A, A + 1, 's7')
        a('s_lshr_b32 s4, %s, 1\ns_lshr_b32 s5, s13, 2\ns_lshl_b32 s5, s5, 1' % sr(s_ct))
        a('s_lshr_b32 s6, s4, 1\ns_lshl_b32 s6, s6, 2\ns_add_u32 s6, s6, s5\ns_lshl_b32 s6, s6, 11\ns_add_u32 s6, s6, %d' % XI)
        a('v_add_u32 %s, s6, %s' % (vr(A), vr(A)))
        for tt in range(nt):
            a('ds_read_b128 %s, %s offset:%d' % (vr(T + 4 * tt, 4), vr(A), 2048 * tt))
        a('s_lshl_b32 s6, s14, 2\ns_add_u32 s6, s6, s5\ns_mul_i32 s6, s6, 18\ns_add_u32 s6, s6, s4\ns_lshl_b32 s6, s6, 10')
        a('s_add_u32 s6, s6, s%d\ns_add_u32 s6, s6, %d\ns_add_u32 s7, s6, 18432' % (LOFF, X1))
        if nt == 1:
            for r in range(4):
                a('v_permlane16_swap_b32 %s, %s' % (vr(AC + r), vr(AC + 4 + r)))
        a('s_waitcnt lgkmcnt(0)')
        for tt in range(nt):
            U = T + 8 + 8 * tt
            for h in range(4):
                a('v_lshlrev_b32 %s, 16, %s' % (vr(U + 2 * h), vr(T + 4 * tt + h)))
                a('v_and_b32 %s, 0xffff0000, %s' % (vr(U + 2 * h + 1), vr(T + 4 * tt + h)))
            for j in range(2):
                for r in range(4):
                    a('v_add_f32 %s, %s, %s' % (vr(U + 4 * j + r), vr(U + 4 * j + r), vr(AC + (nt * j + tt) * 4 + r)))
            for h in range(4):
                a('v_cvt_pk_bf16_f32 %s, %s, %s' % (vr(T + 4 * tt + h), vr(U + 2 * h), vr(U + 2 * h + 1)))
            a('buffer_store_dwordx4 %s, %s, s[8:11], s%d offen sc1' % (vr(T + 4 * tt, 4), vr(G) if nt == 1 else 'v1', 6 + tt))

    NB = 8
    slot = lambda n: FR + 4 * (n % NB)
    a('v_add_u32 %s, %d, v1' % (vr(VA), OI))
    for n in range(NB):
        a('ds_read_b128 %s, %s offset:%d' % (vr(slot(n), 4), vr(VA), 1024 * n))
    for n in range(36):
        k, tt = n >> 1, n & 1
        a('s_waitcnt lgkmcnt(%d)' % min(NB - 1, 35 - n))
        if n == 0 and S2_BAR:
            a('s_barrier')
        mfma(a, 4 + 4 * tt, RING3 + 4 * k, slot(n), None if k == 0 else 4 + 4 * tt)
        if n + NB < 36:
            a('ds_read_b128 %s, %s offset:%d' % (vr(slot(n), 4), vr(VA), 1024 * (n + NB)))
    stamp(a, 'gem')
    resid_store(1, 4, 20, 29)
    stamp(a, 'rst')
    a('s_setprio 0')
    a('s_waitcnt vmcnt(0)')
    a('s_branch s2_done')
    a.label('s2_hi')
    if W2_ST == 'w1':
        w2_store('w2_s1')
    wo_pre(WO_W1 + WO_SPLIT[1])
    a('v_lshlrev_b32 v4, 2, v0')
    a('s_mov_b64 exec, 0xff')
    a('ds_write_b32 v4, %s offset:%d' % (vr(VZ), FLG))
    a('s_mov_b64 exec, -1')
    a('s_waitcnt lgkmcnt(0)')
    wo_pre(WO_SPLIT[2])
    assert nO[0] == NPRE
    a('v_add_u32 v4, %d, v1' % OI)
    a('s_waitcnt vmcnt(0)')
    if W2_ST == 'w3':
        w2_store('w2_s3')
    a('s_setprio 2')
    a('s_barrier')
    stamp(a, 'o')
    b2 = lambda k, tt: B2 + ((k % 4) * 2 + tt) * 4
    for k in range(4):
        for tt in range(2):
            a('ds_read_b128 %s, v4 offset:%d' % (vr(b2(k, tt), 4), 2048 * k + 1024 * tt))
    for k in range(18):
        w = 's_waitcnt lgkmcnt(%d)' % min(6, 2 * (17 - k))
        if k >= NPRE:
            w += ' vmcnt(%d)' % (2 * (17 - k))
        a(w)
        for j in range(2):
            for tt in range(2):
                d = AC2 + (2 * j + tt) * 4
                mfma(a, d, wr(k, j), b2(k, tt), None if k == 0 else d)
        if k + NPRE < 18:
            wo_ld(k + NPRE)
        if k + NPRE == 17 and S2_BAR:
            a('s_barrier')
        if k + 4 < 18:
            for tt in range(2):
                a('ds_read_b128 %s, v4 offset:%d' % (vr(b2(k, tt), 4), 2048 * (k + 4) + 1024 * tt))
    stamp(a, 'gem')
    resid_store(2, AC2, B2, 25)
    stamp(a, 'rst')
    a('s_setprio 0')
    a('s_waitcnt vmcnt(0)')
    a('s_cmp_eq_u32 s35, 0')
    a('s_cbranch_scc1 s2_done')
    mem_arrive(a, 35)
    a.label('s2_done')
    stamp(a, 's2d')
    group_sync('e2')
    if S2_W5:
        a('s_cmp_ge_u32 s12, 7')
        a('s_cbranch_scc1 e2_y')
        nW[0] = n5
        wld(S2_W5, False)
        a.label('e2_y')
    a('s_barrier')
    stamp(a, 'e2')

    ACC = 4; RING = RING3; BF = RING + 72; RS = BF + 32
    VA = RS + 4; VT = VA + 3; VC = VT + 1; VK = VC + 1; VN = VK + 1
    acc = lambda j, tt: ACC + (j * 4 + tt) * 4
    ring3 = lambda k, j: RING + ((k % 6) * 3 + j) * 4
    bf = lambda p, tt: BF + (p * 4 + tt) * 4
    load_x('x1', X1, XC3)
    a('s_lshl_b32 s4, s20, 2')
    a('v_mov_b32 %s, s4' % vr(VK))
    a('s_mul_i32 s16, s13, 12\ns_add_u32 s16, s16, s28\ns_mul_i32 s16, s16, 55296\ns_add_u32 s16, s16, %d' % W1)
    for b in range(3):
        a('s_mul_i32 s4, s%d, 18432\ns_add_u32 s%d, s4, s16' % (48 + b, 30 + b))
        a('s_mul_i32 s4, s%d, 24576\ns_add_u32 s4, s4, %d' % (48 + b, XI))
        a('v_add_u32 %s, s4, v1' % vr(VA + b))
    a('s_lshl_b32 s4, s21, 3\ns_lshl_b32 s27, 1, s4')
    a('s_mov_b32 s18, s21')
    a('v_mov_b32 %s, %d' % (vr(VN), XC3))
    a('s_cmp_ge_u32 s12, 8')
    a('s_cbranch_scc1 s3_hi')
    a('s_waitcnt vmcnt(0)')
    a('s_barrier')
    stamp(a, 'x3')
    a('s_cmp_lt_u32 s12, 7')
    a('s_cbranch_scc1 s3_filled')
    a('s_branch s3_fill')
    a.label('s3_hi')
    a('s_barrier')
    x_count(XC3)
    stamp(a, 'x3')
    a('s_setprio %d' % P3_SPRIO)
    a('s_lshl_b32 s4, s20, 11\ns_add_u32 s4, s4, %d' % XI)
    a('v_add_u32 %s, s4, v1' % vr(VC))
    a('v_add_u32 %s, %d, %s' % (vr(VT), 5 * 8192, vr(VC)))
    for k in range(4):
        a('v_mov_b32 %s, 0x%x' % (vr(BF + k), ONES))
    rdk = lambda k: a('ds_read_b128 %s, %s offset:%d' % (vr(RING + 4 * k, 4), vr(VC if k < 10 else VT), img(k % 10, 0)))
    for k in range(12):
        rdk(k)
    for k in range(18):
        a('s_waitcnt lgkmcnt(%d)' % min(11, 17 - k))
        f = RING + 4 * k
        mfma(a, ACC, BF, f, None if k == 0 else ACC)
        mfma(a, ACC + 4, f, f, None if k == 0 else ACC + 4)
        if k + 12 < 18:
            rdk(k + 12)
    diag_select(a, ACC + 1, ACC + 4)
    rstd_from(a, ACC + 2, ACC, ACC + 1)
    a('s_lshl_b32 s4, s20, 6')
    a('v_lshl_add_u32 %s, v2, 2, s4' % vr(VT))
    a('s_cmp_eq_u32 s12, 11')
    a('s_cbranch_scc0 w2_n5')
    a('s_add_u32 s6, s%d, %d\ns_mov_b32 s7, 81' % (CBO, FL_CW - FL_CB))
    mem_wait(a, 'w2_w', 6, 7, VZ, 5)
    a.label('w2_n5')
    a('v_mov_b32 %s, 0x1000000' % vr(VC))
    a('s_mov_b32 exec_lo, 0x00f0000f\ns_mov_b32 exec_hi, 0xf0000f00')
    a('ds_write_b32 %s, %s' % (vr(VT), vr(ACC + 2)))
    a('s_mov_b64 exec, 1')
    a('ds_add_u32 %s, %s offset:%d' % (vr(VZ), vr(VC), CNT))
    a('s_mov_b64 exec, -1')
    a.label('s3_tok')
    a('s_lshl_b32 s4, s18, 2\ns_lshr_b32 s33, 0x%x, s4\ns_and_b32 s33, s33, 15' % sum(t << (4 * (q + 2)) for q, t in enumerate(P3_THR)))
    lds_spin(a, 's3_tk', VT, VK, TOK, 0, 0, ge=33)
    a.label('s3_fill')
    a('s_mov_b32 s15, s30')
    for k in range(6):
        for j in range(3):
            a('buffer_load_dwordx4 %s, v1, s[8:11], s15 offen offset:%d' % (vr(ring3(k, j), 4), 1024 * j))
        if k < 5:
            a('s_add_u32 s15, s15, 3072')
    a.label('s3_filled')
    stamp(a, 'fl')
    a('v_mov_b32 %s, 1' % vr(VC))
    a('s_setprio 2')
    a('s_cmp_lt_u32 s18, 3')
    a('s_cbranch_scc1 s3_pass')
    lds_spin(a, 's3_w2', VT, VZ, CNT, 0xff, 0x04)
    a('s_setprio 1')
    a.label('s3_pass')

    def rd(k, tt):
        a('ds_read_b128 %s, %s offset:%d' % (vr(bf(k & 1, tt), 4), vr(VA + k // 6), img(k % 6, tt)))
    for tt in range(4):
        rd(0, tt)
    a('s_waitcnt vmcnt(17) lgkmcnt(0)')
    issued = 18
    for k in range(18):
        for n in range(12):
            j, tt = n >> 2, n & 3
            if j & 1:
                tt = 3 - tt
            mfma(a, acc(j, tt), ring3(k, j), bf(k & 1, tt), None if k == 0 else acc(j, tt))
            if n == 0 and k < 12:
                a('s_add_u32 s15, s15, 3072' if k % 6 else 's_mov_b32 s15, s%d' % (31 + k // 6))
            if n in (0, 1, 4, 5) and k < 17:
                rd(k + 1, n if n < 2 else n - 2)
            if n in (2, 6, 10) and k * 3 + j + 1 < 54:
                a('s_waitcnt vmcnt(%d)%s' % (issued - (k * 3 + j + 2), ' lgkmcnt(0)' if n == 10 else ''))
            if n in (3, 7, 11) and k < 12:
                a('buffer_load_dwordx4 %s, v1, s[8:11], s15 offen offset:%d' % (vr(ring3(k, j), 4), 1024 * j))
                issued += 1
            if k == P3_TOK + 1 and n == 7:
                a('s_mov_b64 exec, 1')
                a('ds_add_u32 %s, %s offset:%d' % (vr(VK), vr(VC), TOK))
                a('s_mov_b64 exec, -1')
            if k in (4, 10):
                m = 0x0400 if k == 4 else 0x040000
                if n == 6:
                    a('ds_read_b32 %s, %s' % (vr(VT), vr(VN)))
                if n == 10:
                    a('v_readfirstlane_b32 s4, %s' % vr(VT))
                if n == 11:
                    a('s_andn2_b32 s4, 0x%x, s4' % m)
                    a('s_cbranch_scc1 s3_slow%d' % k)
                    a.label('s3_back%d' % k)
                    stamp(a, 'k%d' % k)
    a('s_setprio 0')
    a('s_lshr_b32 s24, s28, 1\ns_mul_i32 s24, s24, 3\ns_and_b32 s25, s28, 1')
    a('s_cmp_ge_u32 s18, 3')
    a('s_cbranch_scc1 s3_epib')
    stamp(a, 'pa')
    lds_spin(a, 's3_w1', VT, VZ, CNT, 0xff000000, 0x04000000)
    a('v_lshlrev_b32 %s, 2, v2' % vr(VT))
    for tt in range(4):
        a('ds_read_b32 %s, %s offset:%d' % (vr(RS + tt), vr(VT), 64 * tt))
    def img_s(dst, ks):
        a('s_lshr_b32 s6, %s, 1\ns_lshl_b32 s6, s6, 13\ns_and_b32 %s, %s, 1\ns_lshl_b32 %s, %s, 10\ns_add_u32 %s, %s, s6' % (ks, dst, ks, dst, dst, dst, dst))
    a('s_lshl_b32 s4, s25, 1\ns_add_u32 s4, s4, s24')
    img_s('s4', 's4')
    a('s_add_u32 s4, s4, %d' % HI)
    a('s_add_u32 s5, s24, 1')
    img_s('s5', 's5')
    a('s_lshl_b32 s6, s25, 3\ns_add_u32 s5, s5, s6\ns_add_u32 s5, s5, %d' % HI)
    a('s_waitcnt lgkmcnt(0)')
    a('v_add_u32 %s, s4, v1' % vr(VT))
    a('v_add_u32 %s, s5, v1' % vr(VC))
    C = BF + 28
    for tt in range(4):
        a('v_mul_f32 %s, 0x%x, %s' % (vr(C + tt), NLOG2E, vr(RS + tt)))
    T = BF
    units = [[(0, u), (1, u)] for u in range(4)] + [[(2, 0), (2, 1)], [(2, 2), (2, 3)]]
    for u, un in enumerate(units):
        idx = [(j, tt, r) for j, tt in un for r in range(4)]
        for n, (j, tt, r) in enumerate(idx):
            a('v_mul_f32 %s, %s, %s' % (vr(T + n), vr(acc(j, tt) + r), vr(C + tt)))
        for n in range(8):
            a('v_exp_f32 %s, %s' % (vr(T + n), vr(T + n)))
        for n in range(8):
            a('v_add_f32 %s, 1.0, %s' % (vr(T + n), vr(T + n)))
        for n in range(8):
            a('v_rcp_f32 %s, %s' % (vr(T + n), vr(T + n)))
        for n, (j, tt, r) in enumerate(idx):
            a('v_mul_f32 %s, %s, %s' % (vr(T + n), vr(acc(j, tt) + r), vr(T + n)))
        P = BF + 8 + 4 * (u % 4)
        for n in range(4):
            a('v_cvt_pk_bf16_f32 %s, %s, %s' % (vr(P + n), vr(T + 2 * n), vr(T + 2 * n + 1)))
        if u < 4:
            a('ds_write_b128 %s, %s offset:%d' % (vr(VT), vr(P, 4), 2048 * u))
        else:
            a('ds_write_b64 %s, %s offset:%d' % (vr(VC), vr(P, 2), 2048 * un[0][1]))
            a('ds_write_b64 %s, %s offset:%d' % (vr(VC), vr(P + 2, 2), 2048 * un[1][1]))
    a('v_mov_b32 %s, s27' % vr(VT))
    a('s_mov_b64 exec, 1')
    a('ds_add_u32 %s, %s offset:%d' % (vr(VZ), vr(VT), CNT))
    a('s_mov_b64 exec, -1')
    for b in range(3):
        a('s_add_u32 s%d, s%d, %d' % (30 + b, 30 + b, W2 - W1))
        a('v_add_u32 %s, %d, %s' % (vr(VA + b), HI - XI, vr(VA + b)))
    a('s_add_u32 s18, s18, 3')
    stamp(a, 'ea')
    a('v_mov_b32 %s, %d' % (vr(VN), CNT))
    a('s_branch s3_tok')
    for k, m in ((4, 0x0400), (10, 0x040000)):
        a.label('s3_slow%d' % k)
        lds_spin(a, 's3_sl%d' % k, VT, VN, 0, m, m)
        a('s_branch s3_back%d' % k)
    a.label('s3_epib')
    stamp(a, 'pb')
    a('s_setprio %d' % EPB_PRIO)
    a('s_lshl_b32 s4, s13, 5\ns_add_u32 s4, s4, s14\ns_mul_i32 s4, s4, 12\ns_add_u32 s4, s4, s28\ns_mul_i32 s4, s4, 6144')
    a('s_add_u32 s6, s4, s%d\ns_add_u32 s7, s6, 4096' % PRT)
    for u, un in enumerate(units):
        P = BF + 4 * u
        for n, (j, tt) in enumerate(un):
            for r in range(4):
                a('v_mul_f32 %s, %s, %s' % (vr(acc(j, tt) + r), vr(acc(j, tt) + r), vr(RS + tt)))
            a('v_cvt_pk_bf16_f32 %s, %s, %s' % (vr(P + 2 * n), vr(acc(j, tt)), vr(acc(j, tt) + 1)))
            a('v_cvt_pk_bf16_f32 %s, %s, %s' % (vr(P + 2 * n + 1), vr(acc(j, tt) + 2), vr(acc(j, tt) + 3)))
        if u >= 4:
            a('v_permlane16_swap_b32 %s, %s' % (vr(P), vr(P + 2)))
            a('v_permlane16_swap_b32 %s, %s' % (vr(P + 1), vr(P + 3)))
        a('buffer_store_dwordx4 %s, v1, s[8:11], s%d offen offset:%d sc1' % (vr(P, 4), 6 + (u >> 2), 1024 * (u & 3)))
    a('s_mul_i32 s22, s14, 12\ns_add_u32 s4, s22, s28\ns_lshl_b32 s4, s4, %d\ns_add_u32 s6, s4, %d' % (FSH, FL_RF))
    a('v_mov_b32 v4, 1')
    a('s_and_b32 s23, s28, 12\ns_lshr_b32 s4, s13, 1\ns_add_u32 s23, s23, s4')
    a('s_add_u32 s22, s22, s23')
    a('s_lshl_b32 s7, s22, %d\ns_add_u32 s7, s7, %d' % (FSH, FL_RF))
    a('s_and_b32 s29, s13, 1')
    a('s_lshr_b32 s24, s23, 1\ns_mul_i32 s24, s24, 3\ns_and_b32 s25, s23, 1')
    a('s_lshl_b32 s26, s29, 1')
    a('v_mov_b32 v8, v3\nv_mov_b32 v9, 0')
    a('s_cmp_eq_u32 s20, 2')
    a('s_cbranch_scc1 s3_mix')
    a('s_add_u32 s26, s26, s20\ns_mov_b32 s16, s26')
    a('s_lshl_b32 s4, s25, 1\ns_add_u32 s24, s24, s4')
    a('s_branch s3_adr')
    a.label('s3_mix')
    a('s_add_u32 s16, s29, 4\ns_add_u32 s24, s24, 1\ns_lshl_b32 s25, s25, 1')
    a('v_lshrrev_b32 v8, 1, v3\nv_add_u32 v8, s25, v8\nv_and_b32 v9, 1, v3')
    a.label('s3_adr')
    a('s_mul_i32 s22, s22, 6\ns_add_u32 s16, s16, s22\ns_lshl_b32 s16, s16, 10\ns_add_u32 s16, s16, s%d' % PRT)
    a('s_lshr_b32 s4, s24, 1\ns_lshl_b32 s4, s4, 2\ns_add_u32 s4, s4, s26\ns_lshl_b32 s4, s4, 1\ns_and_b32 s5, s24, 1\ns_add_u32 s4, s4, s5')
    a('s_lshl_b32 s4, s4, 10\ns_add_u32 s4, s4, %d' % XI)
    a('v_lshlrev_b32 v7, 8, v8')
    a('v_lshl_add_u32 v7, v2, 4, v7')
    a('v_lshl_add_u32 v6, v9, 11, v7')
    a('v_add_u32 v6, s4, v6')
    a('v_mul_u32_u24 v9, 18432, v9')
    a('s_lshl_b32 s4, s14, 2\ns_add_u32 s4, s4, s26\ns_mul_i32 s17, s4, 18432')
    a('s_mov_b32 s39, 0x20000')
    a('s_cmp_eq_u32 s%d, 0' % LAY)
    a('s_cbranch_scc0 s3_fin')
    a('s_mov_b32 s36, s8\ns_mov_b32 s37, s9\ns_mov_b32 s38, s10')
    a('s_lshl_b32 s4, s24, 10\ns_add_u32 s17, s17, s4\ns_add_u32 s17, s17, %d' % (X0 + ACT))
    a('s_branch s3_pu0')
    a.label('s3_fin')
    a('s_mov_b32 s36, s94\ns_mov_b32 s37, s95\ns_mov_b32 s38, %d' % ACT)
    a('s_lshl_b32 s4, s24, 6\ns_add_u32 s17, s17, s4')
    a('v_mul_u32_u24 v7, 1152, v2')
    a('v_lshl_add_u32 v7, v8, 4, v7')
    a.label('s3_pu0')
    a('v_add_u32 v7, v7, v9')
    a.label('s3_pub')
    a('s_cmp_eq_u32 s18, 5')
    a('s_cbranch_scc0 s3_pu2')
    a('s_mov_b64 exec, 1')
    a('ds_add_u32 %s, v4 offset:%d' % (vr(VK), TOK))
    a('s_mov_b64 exec, -1')
    a.label('s3_pu2')
    stamp(a, 'pst')
    a('s_waitcnt vmcnt(0)')
    stamp(a, 'pdr')
    mem_arrive(a, 6, VZ, 4)
    a('s_cmp_eq_u32 s20, 3')
    a('s_cbranch_scc1 s3_red_done')
    RX = 8; PP = 20; AC = 12
    a('ds_read_b128 %s, v6' % vr(RX, 4))
    mem_wait(a, 's3_rw', 7, RFW, VZ, 5, backoff=(18, 5, 4))
    stamp(a, 'rw0')
    thr = sum(t << (4 * (4 * l + g)) for l in range(2) for g, t in enumerate(RED_THR[l]))
    a('s_lshl_b32 s4, s%d, 2\ns_add_u32 s4, s4, s21\ns_lshl_b32 s4, s4, 2\ns_lshr_b32 s33, 0x%x, s4\ns_and_b32 s33, s33, 15' % (LAY, thr))
    lds_spin(a, 's3_t6r', VT, VK, TOK, 0, 0, ge=33)
    stamp(a, 'rw1')
    for c in range(8):
        a('buffer_load_dwordx4 %s, v1, s[8:11], s16 offen sc1' % vr(PP + 4 * c, 4))
        if c < 7:
            a('s_add_u32 s16, s16, %d' % ACT)
    a('s_waitcnt lgkmcnt(0)')
    for n in range(4):
        a('v_lshlrev_b32 %s, 16, %s' % (vr(AC + 2 * n), vr(RX + n)))
        a('v_and_b32 %s, 0xffff0000, %s' % (vr(AC + 2 * n + 1), vr(RX + n)))
    for c in range(8):
        a('s_waitcnt vmcnt(%d)' % (7 - c))
        for n in range(4):
            a('v_lshlrev_b32 %s, 16, %s' % (vr(RX + n), vr(PP + 4 * c + n)))
            a('v_and_b32 %s, 0xffff0000, %s' % (vr(PP + 4 * c + n), vr(PP + 4 * c + n)))
        for n in range(4):
            a('v_add_f32 %s, %s, %s' % (vr(AC + 2 * n), vr(AC + 2 * n), vr(RX + n)))
            a('v_add_f32 %s, %s, %s' % (vr(AC + 2 * n + 1), vr(AC + 2 * n + 1), vr(PP + 4 * c + n)))
    for n in range(4):
        a('v_cvt_pk_bf16_f32 %s, %s, %s' % (vr(RX + n), vr(AC + 2 * n), vr(AC + 2 * n + 1)))
    stamp(a, 'rsum')
    if OUT_ST != ' sc1':
        a('s_cmp_eq_u32 s%d, 0' % LAY)
        a('s_cbranch_scc1 s3_st0')
        a('buffer_store_dwordx4 %s, v7, s[36:39], s17 offen%s' % (vr(RX, 4), OUT_ST))
        a('s_branch s3_red_done')
        a.label('s3_st0')
    a('buffer_store_dwordx4 %s, v7, s[36:39], s17 offen sc1' % vr(RX, 4))
    a.label('s3_red_done')
    a('s_setprio 0')
    a('s_cmp_eq_u32 s%d, 0' % LAY)
    a('s_cbranch_scc0 mega_fin')
    a('s_waitcnt vmcnt(0)')
    if STAMPS:
        stamp_end(a, 6, 12, 12, 12, base_v=8)
        a('s_mov_b64 exec, -1')
        a('s_waitcnt vmcnt(0)')
        stamp(a, 0)
    a('s_mov_b32 s%d, 1\ns_mov_b32 s%d, %d\ns_mov_b32 s%d, 64\ns_mov_b32 s%d, 16' % (LAY, LOFF, ACT, CBW, RFW))
    a('s_add_u32 s%d, s%d, %d\ns_add_u32 s%d, s%d, %d' % (SOF, SOF, 32 * HSG, PRT, PRT, PART_STEP))
    a('s_lshl_b32 s6, s14, 2\ns_add_u32 s6, s6, s21\ns_lshl_b32 s6, s6, %d\ns_add_u32 s6, s6, %d' % (FSH, FL_GT))
    a('s_mov_b32 s33, %d\ns_mov_b32 s35, 0' % NX_TOK)
    a('s_cmp_eq_u32 s20, 3')
    a('s_cbranch_scc1 nx_load')
    mem_arrive(a, 6, VZ, 4)
    a('s_cmp_ge_u32 s12, 8')
    a('s_cbranch_scc1 s1_wo')
    lds_spin(a, 'nx_t1', VT, VK, TOK, 0, 0, ge=33)
    a('s_branch nx_fill')
    a.label('nx_load')
    lds_spin(a, 'nx_t2', VT, VK, TOK, 0, 0, ge=33)
    a('s_mov_b32 s7, 24')
    a('s_setprio 3')
    mem_wait(a, 'nx_w', 6, 7, VZ, 5, backoff=(12, 11, NX_SLEEP))
    stamp(a, 'e4')
    a('s_lshr_b32 s4, s28, 2')
    a('s_mul_i32 s22, s4, 6144\ns_mul_i32 s5, s14, 73728\ns_add_u32 s22, s22, s5\ns_add_u32 s22, s22, %d' % (X0 + ACT))
    a('s_mul_i32 s24, s4, 24576\ns_add_u32 s24, s24, %d' % XI)
    for p in range(3):
        for tt in range(4):
            a('s_add_u32 m0, s24, %d' % (8192 * p + 2048 * tt))
            a('s_add_u32 s23, s22, %d' % (2048 * p + 18432 * tt))
            for h in range(2):
                a('buffer_load_dwordx4 v1, s[8:11], s23 offen offset:%d sc1 lds' % (1024 * h))
    a('s_lshl_b32 s4, s27, 2')
    a('v_mov_b32 v5, s4')
    a('s_waitcnt vmcnt(0)')
    a('s_mov_b64 exec, 1')
    a('ds_add_u32 %s, v5 offset:%d' % (vr(VZ), XC1))
    a('s_mov_b64 exec, -1')
    a('s_setprio 0')
    a('s_cmp_eq_u32 s12, 11')
    a('s_cbranch_scc1 s1_wo')
    a('s_cmp_eq_u32 s12, 7')
    a('s_cbranch_scc1 nx_go')
    a.label('nx_fill')
    s1_fill(NX_DEPTH)
    a.label('nx_go')
    stamp(a, 'fil')
    lds_spin(a, 'nx_x0', 6, VZ, XC1, 4, 4)
    a('s_branch s1_go')
    a.label('mega_fin')
    if AMP:
        a('s_cmp_eq_u32 s2, 20\ns_cbranch_scc0 amp_x')
        a('s_cmp_eq_u32 s12, 8\ns_cbranch_scc0 amp_x')
        a('s_waitcnt vmcnt(0)')
        a('s_mov_b32 s4, %d' % (DBG - 4096))
        a('buffer_load_dword v8, %s, s[8:11], s4 offen' % vr(VZ))
        a('s_memrealtime s[40:41]')
        a('s_waitcnt vmcnt(0) lgkmcnt(0)')
        a('v_readfirstlane_b32 s42, v8')
        if AMP == 'all':
            a('s_sub_u32 s43, s40, s42')
        elif AMP == 'mega':
            a('s_sub_u32 s43, s40, s84')
        elif AMP == 'prep':
            a('s_sub_u32 s43, s84, s42')
        else:
            a('s_mov_b32 s43, 0')
        a('s_min_u32 s43, s43, 50000')
        a.label('amp_l')
        a('s_memrealtime s[44:45]')
        a('s_waitcnt lgkmcnt(0)')
        a('s_sub_u32 s44, s44, s40')
        a('s_cmp_lt_u32 s44, s43')
        a('s_cbranch_scc1 amp_l')
        a.label('amp_x')
    stamp_end(a, 7, 12, 12, 12, base_v=8)
    a.label('mega_end')
    a('s_endpgm')
    if SINGLE:
        a.lines = [l + ' sc1' if re.match(r'buffer_load_dwordx4 v\[\d+:\d+\], v1, s\[8:11\]', l) and 'sc1' not in l else l for l in a.lines]
    return (KNAME if SINGLE else 'mega_kernel', a, 168, 102, (256, 768, LDS))


def gen_pf():
    a = Asm()
    a('s_cmp_ge_u32 s2, 256')
    a('s_cbranch_scc1 pf_end')
    ws_srd(a)
    a('s_waitcnt lgkmcnt(0)')
    l2_touch(a, WQ, WQ_HG, NCX, 8, 2, 3)
    l2_touch(a, WO, 9 * 18432, 4, 4, 2, 3)
    a('s_waitcnt vmcnt(0)')
    a.label('pf_end')
    a('s_endpgm')
    return ('pf_kernel', a, 8, 24, (256, 64, 0))


def gen_empty(n=''):
    a = Asm()
    a('s_endpgm')
    return ('empty%s_kernel' % n, a, 8, 16, (256, 256, 0))


def gen_chain(slot):
    a = Asm()
    a('s_cmp_ge_u32 s2, 32')
    a('s_cbranch_scc1 chain_end')
    a('s_load_dwordx2 s[8:9], s[0:1], %d' % (8 * slot))
    a('s_mov_b32 s10, %d\ns_mov_b32 s11, 0x20000' % ACT)
    a('s_mul_i32 s4, s2, %d' % (64 * 1024))
    a('v_mov_b32 v1, 0')
    a('s_mov_b64 exec, 1')
    a('s_waitcnt lgkmcnt(0)')
    for k in range(64):
        a('buffer_load_dword v2, v1, s[8:11], s4 offen')
        a('s_waitcnt vmcnt(0)')
        a('v_and_b32 v2, 0, v2')
        a('v_add_u32 v1, 1024, v1')
        a('v_add_u32 v1, v2, v1')
    a.label('chain_end')
    a('s_endpgm')
    return ('chain_kernel', a, 8, 16, (32, 64, 0))


PRE = []
S2_BAR = True
W7_PRIO = 3
S1_R2 = 3
OUT_ST = ' sc1'
TLB_STEP = 0
WQ_TOUCH = False
PREP_OLD = ' nt'
PREP_REV = 2
X0_LD = ''
PREP_TLD = ''
PREP_HOLD = False
PREP_T1 = 'h3'
PREP_TX = True
PREP_QT = True
PREP_1LD = ' nt'
W2_ST = 'w1'
RED_THR = ((5, 6), (5, 6))
WO_W1 = 7
S2_W5 = 6
WO_SPLIT = (6, 0, 0)
RED_TOUCH = 0
RED_TSTEP = 128
SFLAG = True
CB_SLEEP = 2
NX_TOK = 6
NX_DEPTH = None
NX_SLEEP = 4
S1_GATE = 8
S1_GATEN = 7
WO_TOUCH = True
P3_THR = (1, 2, 3, 4)
RED_MODE = 0
EPB_PRIO = 3
PREP_RANGES = ((0, 64), (64, 136), (136, 208), (208, 217), (217, 241))
PREP_QLD = ''
PREP_HLD = ''
PREP_H3 = True
PREP_ROT = 0
PREP_GLD = ''
NCX = 4
S2_WE = 0
S2_W0 = 2
S2_W1 = 1
P3_LEAD = 0
PART_STEP = 0
MID = []
KD_PF = False
P3_SLEEP = 0
P3_TOK = 10
P3_EPRIO2 = 0
P3_SPRIO = 3
PF1 = []
PF2 = []
PF3 = None
P0_LD = ''
P1_NCX = 4
P2_NCX = 4
P1_ST = ' sc1'
P2_W0 = 4
P2_W1 = 2
CODE_PF = True
PREP_ST = ' sc1'
PREP_XLD = ''
P3_LD = ''
P3_SNAKE = True
P3_EPRIO = 0
PF = False
P3_NODS = False
P3_NOLD = False
PRIO = True
P3_NCX = 4
P3_ST = ' sc1'


def build():
    if SINGLE:
        name, a, nv, ns, (g, b, l) = gen_mega()
        c, d = kernel_text(name, a, nv, ns)
        hdr = '; generated by gen/gen.py (hand-written generator); see that file for the layouts\n'
        hdr += '; @launch %sgrid=(%d,1,1) block=(%d,1,1) lds=%d\n' % ('kernel=%s ' % name if SINGLE == 'list' else '', g, b, l)
        return hdr + '.amdgcn_target "amdgcn-amd-amdhsa--gfx950"\n' + c + 'code_end:\n' + d
    ks = [gen_prep(), gen_mega()]
    for e in sorted(set(MID)):
        ks.append(gen_pf() if e == 'pf' else gen_empty(e[5:]))
    geo = {k[0]: k[4] for k in ks}
    order = ['prep'] + MID + ['mega']
    hdr = ['; generated by gen/gen.py (hand-written generator); see that file for the layouts']
    for o in order:
        g, b, l = geo[o + '_kernel']
        hdr.append('; @launch kernel=%s_kernel grid=(%d,1,1) block=(%d,1,1) lds=%d' % (o, g, b, l))
    out = '\n'.join(hdr) + '\n.amdgcn_target "amdgcn-amd-amdhsa--gfx950"\n'
    descs = ''
    for name, a, nv, ns, _ in ks:
        c, d = kernel_text(name, a, nv, ns)
        out += c
        descs += d
    out += 'code_end:\n'
    return out + '.section .rodata,"a"\n.p2align 6\nkd_begin:\n' + descs + 'kd_end:\n'


if __name__ == '__main__':
    path = sys.argv[1] if len(sys.argv) > 1 else 'cdna_kernels/%s.s' % NAME
    for o in sys.argv[2:]:
        k, v = o.split('=')
        globals()[k] = eval(v)
    open(path, 'w').write(build())
    print('wrote', path)
```
